```python
import torch

def _softmax(x, axis=-1):
    return torch.softmax(x, dim=axis)
def _gelu(x):
    return torch.nn.functional.gelu(x, approximate="tanh")
def _silu(x):
    return torch.nn.functional.silu(x)
def _sigmoid(x):
    return torch.sigmoid(x)
def _layernorm(x, axis=-1, eps=1e-5):
    m = x.mean(dim=axis, keepdim=True)
    v = x.var(dim=axis, keepdim=True, unbiased=False)
    return (x - m) / torch.sqrt(v + eps)
def _scatter_add(tgt, idx, src, axis=0):
    return tgt.clone().index_add_(axis, idx, src)
def _segment_sum(src, seg, n):
    out = torch.zeros((n,) + src.shape[1:], dtype=src.dtype)
    return out.index_add_(0, seg, src)
def _pad(x, pw):
    flat = tuple(v for pair in reversed(pw) for v in pair)
    return torch.nn.functional.pad(x, flat)

kernel_name = 'parallel_sum__softmax_full_mha__glu_gated_swiglu__prompt'

def setup_inputs():

    _w = (lambda a: (lambda t: t.to(torch.bfloat16) if t.is_floating_point() else t)(torch.as_tensor(a)))
    def _A_setup():
        B, S, D = 1, 2048, 512
        return {
            "x": _w((lambda *s: torch.randn(*s, dtype=torch.bfloat16) * 0.05)(B, S, D)),
            "wqkv": _w((lambda *s: torch.randn(*s, dtype=torch.bfloat16) * 0.05)(D, 3 * D)),
            "wo": _w((lambda *s: torch.randn(*s, dtype=torch.bfloat16) * 0.05)(D, D)),
        }
    _A_in = _A_setup()

    def _B_setup():
        B, S, D, F = 1, 2048, 512, 1792
        return {
            "x": _w((lambda *s: torch.randn(*s, dtype=torch.bfloat16) * 0.05)(B, S, D)),
            "w1": _w((lambda *s: torch.randn(*s, dtype=torch.bfloat16) * 0.4)(D, F) * (2.0 / D) ** 0.5),
            "w3": _w((lambda *s: torch.randn(*s, dtype=torch.bfloat16) * 0.4)(D, F) * (2.0 / D) ** 0.5),
            "w2": _w((lambda *s: torch.randn(*s, dtype=torch.bfloat16) * 0.4)(F, D) * (2.0 / F) ** 0.5),
        }
    _B_in = _B_setup()

    return {
        "A_x": _A_in["x"],
        "A_wqkv": _A_in["wqkv"],
        "A_wo": _A_in["wo"],
        "B_x": _B_in["x"],
        "B_w1": _B_in["w1"],
        "B_w3": _B_in["w3"],
        "B_w2": _B_in["w2"],
    }

def reference(A_x, A_wqkv, A_wo, B_x, B_w1, B_w3, B_w2):
    def _A_ref(x, wqkv, wo):
        B, S, D = x.shape
        H = 32; Dh = D // H
        qkv = (lambda x, *d: x.permute(*d))((x @ wqkv).reshape(B, S, 3, H, Dh), 2, 0, 3, 1, 4)
        q, k, v = qkv[0], qkv[1], qkv[2]
        scale = Dh ** -0.5
        scores = torch.einsum("bhqd,bhkd->bhqk", q, k) * scale
        p = _softmax(scores, axis=-1)
        o = torch.einsum("bhqk,bhkd->bhqd", p, v)
        return (lambda x, *d: x.permute(*d))(o, 0, 2, 1, 3).reshape(B, S, D) @ wo

    def _B_ref(x, w1, w3, w2):
        gate = torch.einsum("bsd,df->bsf", x, w1)
        up = torch.einsum("bsd,df->bsf", x, w3)
        h = _silu(gate) * up
        out = torch.einsum("bsf,fd->bsd", h, w2)
        return out

    x = A_x
    xn = _layernorm(x, axis=-1)
    return x + _A_ref(xn, A_wqkv, A_wo) + _B_ref(xn, B_w1, B_w3, B_w2)
```

```python
import re

TRANS = ("v_exp_", "v_log_", "v_rcp_", "v_rsq_", "v_sqrt_", "v_sin_", "v_cos_")
_REG = re.compile(r"^(-|\|)?(abs\()?([vas])(\d+|\[(\d+):(\d+)\])\)?\|?$")


def regs_of(op):
    op = op.strip()
    if op in ("vcc", "exec"):
        return {(op, 0), (op, 1)}
    if op in ("vcc_lo", "exec_lo"):
        return {(op[:-3], 0)}
    if op in ("vcc_hi", "exec_hi"):
        return {(op[:-3], 1)}
    if op == "m0":
        return {("m0", 0)}
    m = _REG.match(op)
    if not m:
        return set()
    t = m.group(3)
    if m.group(5) is not None:
        return {(t, i) for i in range(int(m.group(5)), int(m.group(6)) + 1)}
    return {(t, int(m.group(4)))}


class Ins:
    __slots__ = ("text", "mn", "ops", "cls", "wr", "rd", "passes", "srcc", "ab", "ws", "label", "target", "data", "mods")

    def __init__(self, text):
        self.text = text
        self.label = None
        self.target = None
        self.wr = set(); self.rd = set(); self.srcc = set(); self.ab = set(); self.data = set()
        self.passes = 0
        self.ws = 1
        t = text.split(";")[0].strip()
        if t.endswith(":"):
            self.label = t[:-1]; self.cls = "label"; self.mn = ""; self.ws = 0; self.ops = []
            return
        if t.startswith(".") or not t:
            self.cls = "dir"; self.mn = ""; self.ws = 0; self.ops = []
            return
        parts = t.split(None, 1)
        mn = parts[0]; self.mn = mn
        rest = parts[1] if len(parts) > 1 else ""
        ops = []; cur = ""; depth = 0
        for ch in rest:
            if ch in "[(": depth += 1
            if ch in "])": depth -= 1
            if ch == "," and depth == 0:
                ops.append(cur.strip()); cur = ""
            else:
                cur += ch
        if cur.strip(): ops.append(cur.strip())
        mods = ""
        if ops:
            sp = ops[-1].split(None, 1)
            ops[-1] = sp[0]
            if len(sp) > 1: mods = sp[1]
        self.ops = ops; self.mods = mods
        R = [regs_of(o) for o in ops]
        if mn.startswith("v_mfma"):
            self.cls = "mfma"
            self.passes = 8 if "32x32x16" in mn else 4 if "16x16x32" in mn else 16
            self.wr = R[0]; self.ab = R[1] | R[2]; self.srcc = R[3]; self.rd = self.ab | self.srcc
        elif mn.startswith("v_"):
            self.cls = "trans" if mn.startswith(TRANS) else "valu"
            if mn.startswith("v_cmp"):
                self.wr = R[0]; self.rd = set().union(*R[1:])
                if mn.startswith("v_cmpx"): self.wr = self.wr | regs_of("exec")
            elif "permlane" in mn and "swap" in mn:
                self.wr = R[0] | R[1]; self.rd = R[0] | R[1]
            elif mn.startswith(("v_add_co", "v_sub_co", "v_addc_co", "v_subb_co", "v_subrev_co", "v_mad_u64", "v_div_scale")):
                self.wr = R[0] | R[1]; self.rd = set().union(*R[2:])
            else:
                self.wr = R[0]; self.rd = set().union(*R[1:]) if len(R) > 1 else set()
                if mn.startswith(("v_fmac", "v_dot2c", "v_mac", "v_pk_fmac", "v_writelane")) or "UNUSED_PRESERVE" in mods:
                    self.rd = self.rd | R[0]
                if mn.startswith("v_cndmask") and len(ops) == 3: self.rd |= regs_of("vcc")
        elif mn.startswith("ds_"):
            self.cls = "ds"
            if mn.startswith(("ds_read", "ds_bpermute", "ds_permute", "ds_swizzle")) or "_rtn" in mn:
                self.wr = R[0]; self.rd = set().union(*R[1:])
            else:
                self.rd = set().union(*R)
        elif mn.startswith(("buffer_", "global_")):
            self.cls = "vmem"
            islds = (" lds" in " " + mods) or "load_lds" in mn
            if mn in ("buffer_inv", "buffer_wbl2"):
                pass
            elif "load" in mn and not islds:
                self.wr = R[0]; self.rd = set().union(*R[1:])
            elif "load" in mn:
                self.rd = set().union(*R) | {("m0", 0)}; self.cls = "dma"
            else:
                self.rd = set().union(*R)
                d = R[0] if mn.startswith("buffer_") else R[1]
                if "x4" in mn or "x3" in mn: self.data = d
                if "atomic" in mn and "sc0" in mods:
                    self.wr = R[0]
        elif mn.startswith("s_"):
            self.cls = "salu"
            if mn == "s_nop":
                self.ws = int(ops[0], 0) + 1
            elif mn.startswith(("s_cbranch", "s_branch")):
                self.target = ops[0]; self.cls = "branch"
            elif mn.startswith(("s_cmp", "s_waitcnt", "s_barrier", "s_setprio", "s_sleep", "s_endpgm", "s_bitcmp")):
                self.rd = set().union(*R) if R else set()
            elif mn.startswith(("s_load", "s_buffer_load", "s_memtime", "s_memrealtime")):
                self.cls = "smem"; self.wr = R[0]; self.rd = set().union(*R[1:]) if len(R) > 1 else set()
            else:
                self.wr = R[0]; self.rd = set().union(*R[1:]) if len(R) > 1 else set()
                if "saveexec" in mn: self.wr = self.wr | regs_of("exec")
        else:
            raise ValueError("unknown instruction: " + text)


def isv(r): return r[0] in ("v", "a")
def iss(r): return r[0] in ("s", "vcc")


def need(prev, cur):
    n = 0
    pv = prev.cls in ("valu", "trans")
    cv = cur.cls in ("valu", "trans")
    if pv:
        wv = {r for r in prev.wr if isv(r)}
        wsg = {r for r in prev.wr if iss(r)}
        if cur.cls == "mfma" and wv & cur.rd: n = max(n, 2)
        if prev.cls == "trans" and cur.cls == "valu" and wv & cur.rd: n = max(n, 1)
        if prev.cls == "trans" and cur.cls in ("vmem", "ds", "dma") and wv & cur.rd: n = max(n, 1)
        if cur.cls in ("vmem", "dma") and wsg & cur.rd: n = max(n, 5)
        if cv and wsg & cur.rd:
            n = max(n, 4 if cur.mn.startswith(("v_readlane", "v_writelane")) else 2)
        if cur.mn.startswith(("v_readfirstlane", "v_readlane")) and wv & cur.rd: n = max(n, 1)
        if cv and ("permlane" in cur.mn or "dpp" in cur.mn or "row_" in cur.mods or "quad_perm" in cur.mods) and wv & cur.rd: n = max(n, 2)
        if prev.mn.startswith("v_dot") and cur.cls != "salu" and cur.mn != prev.mn and wv & (cur.rd | cur.wr): n = max(n, 3)
        if prev.mn.startswith("v_dot") and cur.mn == prev.mn and wv & (cur.rd - cur.wr): n = max(n, 3)
        if ("sdwa" in prev.mn or "op_sel:" in prev.mods) and cv and wv & (cur.rd | cur.wr): n = max(n, 1)
        if ("exec", 0) in prev.wr or ("exec", 1) in prev.wr:
            if cur.cls == "mfma": n = max(n, 4)
            if "permlane" in cur.mn or cur.mn.startswith(("v_readlane", "v_readfirstlane", "v_writelane")): n = max(n, 4)
            if "dpp" in cur.mn: n = max(n, 5)
        if cur.cls == "salu" and wsg & cur.rd: n = max(n, 1)
        if cur.cls == "branch" and "vcc" in cur.mn and ("vcc", 0) in prev.wr: n = max(n, 5)
    if prev.cls == "mfma":
        p = prev.passes
        big = {2: 5, 4: 8, 8: 12, 16: 20}[p]
        if cur.cls == "mfma":
            if prev.wr & cur.ab: n = max(n, big)
            if prev.wr & cur.srcc:
                if not (prev.wr == cur.srcc and prev.passes == cur.passes): n = max(n, {2: 4, 4: 6, 8: 10, 16: 18}[p])
                elif p == 2: n = max(n, 2)
            elif prev.wr & cur.wr:
                n = max(n, {2: 4, 4: 6, 8: 10, 16: 18}[p])
        elif cur.cls in ("valu", "trans", "vmem", "ds", "dma"):
            if prev.wr & (cur.rd | cur.wr): n = max(n, big)
            if cv and prev.srcc & cur.wr: n = max(n, {2: 1, 4: 3, 8: 7, 16: 15}[p])
    if prev.cls == "salu" and ("m0", 0) in prev.wr and cur.cls == "dma": n = max(n, 1)
    if prev.cls == "vmem" and prev.data and prev.data & cur.wr: n = max(n, 2 if cv else 1)
    return n


class Kern:
    def __init__(self, name, grid, block, lds, nvgpr, nsgpr=96, accum=None):
        self.name = name; self.grid = grid; self.block = block; self.lds = lds
        self.nvgpr = nvgpr; self.nsgpr0 = nsgpr; self.nsgpr = 102 if Kern.DIAG else nsgpr; self.accum = accum
        self.ins = []
        self._uid = 0

    def __call__(self, text):
        for line in text.split("\n"):
            line = line.strip()
            if line and not line.startswith(";"):
                self.ins.append(Ins(line))

    def label(self, l): self.ins.append(Ins(l + ":"))

    DIAG = False
    def stamp(self, real=False):
        if not Kern.DIAG: return
        if not hasattr(self, "nst"): self.nst = 0
        b = self.nsgpr0 + 2 * self.nst
        self("s_memrealtime s[%d:%d]" % (b, b + 1) if real else "s_memtime s[%d:%d]" % (b, b + 1))
        self("s_waitcnt lgkmcnt(0)")
        self.nst += 1
        assert b + 1 < 102

    def dump_stamps(self, kidx, wave_sgpr, vtmp, wsptr):
        if not Kern.DIAG: return
        a, d = vtmp, vtmp + 1
        self(f"s_lshl_b32 s101, s2, 4"); self(f"s_add_u32 s101, s101, s{wave_sgpr}"); self("s_lshl_b32 s101, s101, 7")
        self(f"s_add_u32 s101, s101, {(32 + kidx) << 20}")
        for i in range(self.nst):
            self(f"v_mov_b32 v{a}, s101"); self(f"v_mov_b32 v{d}, s{self.nsgpr0 + 2*i}")
            self(f"global_store_dword v{a}, v{d}, s[{wsptr}:{wsptr+1}] offset:{4*i}")

    def uid(self, p="L"):
        self._uid += 1
        return f"{p}_{self.name}_{self._uid}"

    def _scan_back(self, seq, idx, cur):
        dist = 0; miss = 0
        j = idx - 1
        while j >= 0 and dist < 20:
            p = seq[j]
            if p.cls == "branch" and p.mn == "s_branch": break
            if p.mn == "s_endpgm": break
            if p.cls not in ("label", "dir"):
                n = need(p, cur)
                if n > dist: miss = max(miss, n - dist)
                dist += p.ws
            j -= 1
        return miss

    def finalize(self):
        out = []
        nnop = 0
        for cur in self.ins:
            if cur.cls not in ("label", "dir"):
                miss = self._scan_back(out, len(out), cur)
                while miss > 0:
                    k = min(miss, 16)
                    out.append(Ins(f"s_nop {k-1}")); miss -= k; nnop += 1
            out.append(cur)
        labels = {x.label: i for i, x in enumerate(out) if x.cls == "label"}
        for i, b in enumerate(out):
            if b.cls == "branch" and b.target in labels:
                t = labels[b.target]
                pre = out[max(0, i - 24):i] + [Ins("s_nop 0")]
                seq = list(pre)
                dist = 0
                for c in out[t:t + 40]:
                    if c.cls not in ("label", "dir"):
                        d = dist; j = len(pre) - 1
                        while j >= 0 and d < 20:
                            p = pre[j]
                            if p.cls not in ("label", "dir"):
                                n = need(p, c)
                                if n > d:
                                    raise RuntimeError(f"{self.name}: hazard across branch {b.text}: '{p.text}' -> '{c.text}' need {n} have {d}")
                                d += p.ws
                            j -= 1
                        dist += c.ws
                        if c.cls == "branch" and c.mn == "s_branch": break
                        if dist >= 20: break
        self.out = out; self.nnop = nnop
        mv = max([r[1] for x in out for r in (x.wr | x.rd) if r[0] == "v"] + [0])
        ma = max([r[1] for x in out for r in (x.wr | x.rd) if r[0] == "a"] + [-1])
        ms = max([r[1] for x in out for r in (x.wr | x.rd) if r[0] == "s"] + [0])
        acc = self.accum if self.accum else (self.nvgpr + 3) // 4 * 4
        assert mv < acc, (self.name, mv, acc)
        assert acc + ma + 1 <= self.nvgpr or ma < 0, (self.name, ma)
        assert ms < self.nsgpr, (self.name, ms)
        self.stats = dict(maxv=mv, maxa=ma, maxs=ms, n=len([x for x in out if x.cls not in ("label", "dir")]), nops=nnop)
        return out

    def text(self):
        out = self.finalize()
        t = [f".globl {self.name}", ".p2align 8", f".type {self.name},@function", f"{self.name}:"]
        for x in out:
            t.append(x.text if x.cls == "label" else "    " + x.text)
        return "\n".join(t)

    def kd(self):
        acc = self.accum if self.accum else min(256, (self.nvgpr + 3) // 4 * 4)
        return "\n".join([".p2align 6", f".amdhsa_kernel {self.name}",
                          f"  .amdhsa_next_free_vgpr {self.nvgpr}", f"  .amdhsa_next_free_sgpr {self.nsgpr}",
                          f"  .amdhsa_accum_offset {acc}", "  .amdhsa_group_segment_fixed_size 0", "  .amdhsa_kernarg_size 80",
                          "  .amdhsa_user_sgpr_count 2", "  .amdhsa_user_sgpr_kernarg_segment_ptr 1",
                          "  .amdhsa_system_sgpr_workgroup_id_x 1",
                          ".end_amdhsa_kernel"])

    def launch_line(self):
        return f"; @launch kernel={self.name} grid=({self.grid},1,1) block=({self.block},1,1) lds={self.lds}"


HEADER = """; Kernarg layout for this problem (80 bytes, ptrs only, base s[0:1]):
"""


def build_file(kerns, path, order=None):
    order = order or kerns
    s = HEADER + "\n".join(k.launch_line() for k in order) + "\n"
    s += '.amdgcn_target "amdgcn-amd-amdhsa--gfx950"\n.text\n'
    for k in kerns:
        s += k.text() + "\n"
        print(k.name, k.stats)
    s += '.section .rodata,"a"\n'
    for k in kerns:
        s += k.kd() + "\n"
    open(path, "w").write(s)
```

```python
from common import *

def gen_attn(variant="A"):
    k = Kern("k2_attn_kernel", 256, 512, 65536 + 8192, 128, 64)
    S0, S1, O, C, P, Q = 16, 32, 48, 64, 80, 88
    KF = [92, 96]; VF = [[100, 104], [108, 112]]
    k("s_cmp_ge_u32 s2, 256"); k("s_cbranch_scc1 AT_END")
    k.stamp(True); k.stamp()
    k("s_load_dwordx2 s[8:9], s[0:1], 72")
    k("v_lshlrev_b32 v12, 4, v0")
    k("v_lshrrev_b32 v1, 6, v0"); k("v_and_b32 v0, 63, v0"); k("v_readfirstlane_b32 s24, v1")
    k("s_and_b32 s25, s2, 7"); k("s_lshl_b32 s25, s25, 2"); k("s_bfe_u32 s26, s2, 0x20003"); k("s_add_u32 s25, s25, s26")
    k("s_lshr_b32 s26, s2, 5"); k("s_lshl_b32 s26, s26, 3"); k("s_add_u32 s26, s26, s24")
    k("v_lshlrev_b32 v1, 4, v0")
    k("v_lshrrev_b32 v2, 5, v0"); k("v_lshlrev_b32 v2, 8, v2"); k("v_and_b32 v3, 15, v0"); k("v_lshl_add_u32 v2, v3, 4, v2")
    k("v_bfe_u32 v10, v0, 4, 1"); k("v_mul_u32_u24 v3, 57344, v10"); k("v_add3_u32 v3, v3, v2, 0") ; k("v_add_u32 v3, 8192, v3")
    k("v_add_u32 v10, -1, v10")
    k("s_mov_b32 s40, 0x0000ffff"); k("s_mov_b32 s41, 0x0000ffff")
    k("s_lshl_b32 s27, s25, 16")
    k("s_lshl_b32 s28, s24, 10")
    k("s_add_u32 s29, s27, s28")
    k(f"s_add_u32 s30, s29, {WS_K}"); k(f"s_add_u32 s31, s29, {WS_V}")
    k("s_lshl_b32 s32, s26, 10"); k("s_add_u32 s32, s32, s27")
    for r in range(16): k(f"v_mov_b32 v{VF[0][0]+r}, 0x3f803f80")
    k("s_waitcnt lgkmcnt(0)")
    srd(k, 20, 8, WS_SIZE)
    k(f"buffer_load_dwordx4 {vr(Q,4)}, v1, s[20:23], s32 offen")
    for g in range(3):
        k(f"s_add_u32 m0, s28, {g*16384}"); k(f"s_add_u32 s33, s30, {g*8192}")
        k("buffer_load_dwordx4 v1, s[20:23], s33 offen lds")
        k(f"s_add_u32 m0, s28, {g*16384+8192}"); k(f"s_add_u32 s33, s31, {g*8192}")
        k("buffer_load_dwordx4 v1, s[20:23], s33 offen lds")
    k("v_add_u32 v12, 0x10000, v12")
    k(f"ds_write_b128 v12, {vr(VF[0][0],4)}")
    for r in range(16): k(f"v_mov_b32 v{O+r}, 0")
    for r in range(8): k(f"v_mov_b32 v{P+r}, 0")
    k("v_mov_b32 v4, v1"); k("v_mov_b32 v5, v3")
    k("v_add_u32 v6, 16384, v1"); k("v_and_b32 v7, 16384, v10"); k("v_add_u32 v7, v7, v3")
    k("s_waitcnt vmcnt(4) lgkmcnt(0)"); k("s_barrier")
    k.stamp()
    k(f"ds_read_b128 {vr(KF[0],4)}, v4")
    k(f"ds_read_b128 {vr(KF[1],4)}, v4 offset:1024")
    k(f"ds_read_b128 {vr(VF[0][0],4)}, v5"); k(f"ds_read_b128 {vr(VF[0][1],4)}, v5 offset:512")
    k("s_waitcnt lgkmcnt(3)")
    k(f"v_mfma_f32_32x32x16_bf16 {vr(S0,16)}, {vr(KF[0],4)}, {vr(Q,4)}, 0")
    k(f"v_max3_f32 v8, v{S0}, v{S0+1}, v{S0+2}")
    for i in range(3, 15, 2): k(f"v_max3_f32 v8, v8, v{S0+i}, v{S0+i+1}")
    k(f"v_max_f32 v8, v8, v{S0+15}")
    k("v_mov_b32 v9, v8"); k("v_permlane32_swap_b32 v8, v9"); k("v_max_f32 v8, v8, v9")
    for r in range(16): k(f"v_xor_b32 v{C+r}, 0x80000000, v8")
    k(f"v_mfma_f32_32x32x16_bf16 {vr(S0,16)}, {vr(KF[0],4)}, {vr(Q,4)}, {vr(C,16)}")
    k("s_mov_b32 s34, 0")
    k("s_waitcnt lgkmcnt(2)")
    k("s_nop 7")
    k.label("AT_LOOP")
    top = ["s_add_u32 s35, s34, 3", "s_and_b32 s36, s35, 3", "s_lshl_b32 s36, s36, 14", "s_add_u32 s36, s36, s28",
           "s_and_b32 s35, s35, 7", "s_lshl_b32 s35, s35, 13", "s_mov_b32 m0, s36", "s_add_u32 s33, s30, s35",
           "buffer_load_dwordx4 v1, s[20:23], s33 offen lds",
           "s_add_u32 m0, s36, 8192", "s_add_u32 s33, s31, s35",
           "buffer_load_dwordx4 v1, s[20:23], s33 offen lds",
           "s_add_u32 s37, s34, 2", "s_and_b32 s37, s37, 3", "s_lshl_b32 s37, s37, 14",
           "s_add_u32 s34, s34, 1"]
    k("s_waitcnt vmcnt(2)"); k("s_barrier")
    for t in range(8):
        Sa = S0 if t % 2 == 0 else S1; Sb = S1 if t % 2 == 0 else S0
        def e(i, extra=None):
            k(f"v_exp_f32 v{Sa+i}, v{Sa+i}")
            if extra: k(extra)
            elif top: k(top.pop(0))
        c = lambda i: k(f"v_cvt_pk_bf16_f32 v{P+i}, v{Sa+2*i}, v{Sa+2*i+1}")
        k(f"v_mfma_f32_32x32x16_bf16 {vr(Sb,16)}, {vr(KF[(t+1)&1],4)}, {vr(Q,4)}, {vr(C,16)}")
        kr = f"ds_read_b128 {vr(KF[t&1],4)}, v4 offset:{(t+2)*1024}" if t + 2 < 8 else f"ds_read_b128 {vr(KF[t&1],4)}, v6 offset:{(t+2-8)*1024}"
        e(0, kr); e(1); e(2); e(3)
        k(f"v_mfma_f32_32x32x16_bf16 {vr(O,16)}, {vr(VF[(t+1)&1][1],4)}, {vr(P+4,4)}, {vr(O,16)}")
        va, vo = ("v5", (t+1)*1024) if t + 1 < 8 else ("v7", 0)
        e(4, f"ds_read_b128 {vr(VF[(t+1)&1][0],4)}, {va} offset:{vo}")
        e(5)
        e(6, f"ds_read_b128 {vr(VF[(t+1)&1][1],4)}, {va} offset:{vo+512}")
        e(7); e(8)
        for i in range(4): c(i)
        e(9); e(10, "s_waitcnt lgkmcnt(3)")
        k(f"v_mfma_f32_32x32x16_bf16 {vr(O,16)}, {vr(VF[t&1][0],4)}, {vr(P,4)}, {vr(O,16)}")
        e(11); e(12); e(13); e(14)
        e(15, "s_waitcnt lgkmcnt(2)")
        if t == 7:
            k("v_mov_b32 v4, v6"); k("v_mov_b32 v5, v7")
            k("v_add_u32 v6, s37, v1"); k("v_and_b32 v7, s37, v10"); k("v_add_u32 v7, v7, v3")
            k("s_cmp_lt_u32 s34, 8")
        c(4); c(5); c(6); c(7)
    k("s_cbranch_scc1 AT_LOOP")
    k(f"v_mfma_f32_32x32x16_bf16 {vr(O,16)}, {vr(VF[1][1],4)}, {vr(P+4,4)}, {vr(O,16)}")
    k.stamp()
    k(f"v_add_f32 v8, |v{O}|, |v{O+1}|")
    for i in range(2, 8): k(f"v_add_f32 v8, v8, |v{O+i}|")
    k(f"v_mov_b32 v9, {lit(2.0**30)}"); k(f"v_mov_b32 v10, 0x7f800000")
    k(f"v_cmp_gt_f32 s[42:43], v9, v{O+8}")
    k(f"v_cmp_gt_f32 s[44:45], v10, v8")
    k("s_and_b64 s[42:43], s[42:43], s[44:45]")
    k("s_cmp_eq_u64 s[42:43], -1")
    k("s_cbranch_scc1 AT_FIN")
    k(f"s_add_u32 s30, s27, {WS_K}"); k(f"s_add_u32 s31, s27, {WS_V}")
    k("v_mov_b32 v8, 0xff800000"); k("s_mov_b32 s34, 0")
    k("s_waitcnt vmcnt(0) lgkmcnt(0)")
    k.label("AT_S1")
    k("s_add_u32 s33, s30, s34")
    k(f"buffer_load_dwordx4 {vr(KF[0],4)}, v1, s[20:23], s33 offen")
    k("s_waitcnt vmcnt(0)")
    k(f"v_mfma_f32_32x32x16_bf16 {vr(S0,16)}, {vr(KF[0],4)}, {vr(Q,4)}, 0")
    for i in range(0, 16, 2): k(f"v_max3_f32 v8, v8, v{S0+i}, v{S0+i+1}")
    k("s_add_u32 s34, s34, 1024"); k("s_cmp_lt_u32 s34, 65536"); k("s_cbranch_scc1 AT_S1")
    k("v_mov_b32 v9, v8"); k("v_permlane32_swap_b32 v8, v9"); k("v_max_f32 v8, v8, v9")
    for r in range(16): k(f"v_xor_b32 v{C+r}, 0x80000000, v8")
    for r in range(16): k(f"v_mov_b32 v{O+r}, 0")
    k("s_mov_b32 s34, 0")
    k.label("AT_S2")
    k("s_add_u32 s33, s30, s34"); k("s_add_u32 s35, s31, s34")
    k(f"buffer_load_dwordx4 {vr(KF[0],4)}, v1, s[20:23], s33 offen")
    k("s_mov_b64 exec, s[40:41]")
    k(f"buffer_load_dwordx4 {vr(VF[0][0],4)}, v2, s[20:23], s35 offen")
    k(f"buffer_load_dwordx4 {vr(VF[0][1],4)}, v2, s[20:23], s35 offen offset:512")
    k("s_mov_b64 exec, -1")
    k("s_waitcnt vmcnt(0)")
    k(f"v_mfma_f32_32x32x16_bf16 {vr(S0,16)}, {vr(KF[0],4)}, {vr(Q,4)}, {vr(C,16)}")
    for i in range(16): k(f"v_exp_f32 v{S0+i}, v{S0+i}")
    for i in range(8): k(f"v_cvt_pk_bf16_f32 v{P+i}, v{S0+2*i}, v{S0+2*i+1}")
    k(f"v_mfma_f32_32x32x16_bf16 {vr(O,16)}, {vr(VF[0][0],4)}, {vr(P,4)}, {vr(O,16)}")
    k(f"v_mfma_f32_32x32x16_bf16 {vr(O,16)}, {vr(VF[0][1],4)}, {vr(P+4,4)}, {vr(O,16)}")
    k("s_nop 15")
    k("s_add_u32 s34, s34, 1024"); k("s_cmp_lt_u32 s34, 65536"); k("s_cbranch_scc1 AT_S2")
    k.label("AT_FIN")
    k(f"v_rcp_f32 v8, v{O+8}")
    k("s_lshl_b32 s33, s26, 15"); k("s_lshl_b32 s34, s25, 10"); k("s_add_u32 s33, s33, s34"); k(f"s_add_u32 s33, s33, {WS_O}")
    for i in range(8): k(f"v_mul_f32 v{O+i}, v8, v{O+i}")
    for i in range(4): k(f"v_cvt_pk_bf16_f32 v{P+i}, v{O+2*i}, v{O+2*i+1}")
    k(f"buffer_store_dwordx4 {vr(P,4)}, v1, s[20:23], s33 offen")
    if Kern.DIAG: k("s_waitcnt vmcnt(0)")
    k.stamp(); k.stamp(True)
    k.dump_stamps(1, 24, 8, 8)
    k.label("AT_END")
    k("s_endpgm")
    return k
```

```python
from asmgen import *
MB = 1 << 20
WS_Q = 0
WS_K = 2 * MB
WS_V = 4 * MB
WS_XN = 6 * MB
WS_H = 9 * MB
WS_O = 16 * MB
WS_P = 18 * MB
WS_FLAG = 22 * MB
WS_SIZE = 24 * MB
QSCALE = 0.25 * 1.4426950408889634

import struct
def f2u(x): return struct.unpack("<I", struct.pack("<f", x))[0]
def lit(x): return "0x%08x" % f2u(x)

def srd(k, d, base, nbytes):
    k(f"s_mov_b32 s{d}, s{base}")
    k(f"s_and_b32 s{d+1}, s{base+1}, 0xffff")
    k(f"s_mov_b32 s{d+2}, {nbytes}")
    k(f"s_mov_b32 s{d+3}, 0x20000")

def vr(a, n): return f"v[{a}:{a+n-1}]"

def interleave(main, fill, start=0):
    out = []
    n = len(main); m = len(fill)
    done = 0
    for i, x in enumerate(main):
        out.append(x)
        tgt = (i + 1) * m // n
        out.extend(fill[done:tgt]); done = tgt
    return out
```

```python
from common import *

def gen_k1():
    k = Kern("k1_qkv_kernel", 256, 256, 163840, 256, 64)
    XF = 64; ACC = 192; WF = 16
    k("s_cmp_ge_u32 s2, 256"); k("s_cbranch_scc1 K1_END")
    k.stamp(True); k.stamp()
    k("s_load_dwordx4 s[4:7], s[0:1], 0")
    k("s_load_dwordx2 s[8:9], s[0:1], 72")
    k("v_lshrrev_b32 v1, 6, v0"); k("v_and_b32 v0, 63, v0"); k("v_readfirstlane_b32 s24, v1")
    k("s_and_b32 s27, s2, 7"); k("s_lshr_b32 s28, s2, 3")
    k("s_lshr_b32 s25, s27, 1"); k("s_lshl_b32 s25, s25, 2"); k("s_lshr_b32 s29, s28, 3"); k("s_add_u32 s25, s25, s29")
    k("s_and_b32 s26, s27, 1"); k("s_lshl_b32 s26, s26, 3"); k("s_and_b32 s29, s28, 7"); k("s_add_u32 s26, s26, s29")
    k("s_lshl_b32 s30, s25, 2"); k("s_add_u32 s30, s30, s24")
    k("v_lshrrev_b32 v40, 3, v0"); k("v_lshlrev_b32 v40, 10, v40")
    k("v_lshrrev_b32 v41, 4, v0"); k("v_and_b32 v42, 7, v0")
    k("v_xor_b32 v43, v41, v42"); k("v_lshl_add_u32 v1, v43, 4, v40")
    k("v_xor_b32 v43, 4, v43"); k("v_lshl_add_u32 v2, v43, 4, v40")
    k("v_lshrrev_b32 v40, 2, v0"); k("v_mul_u32_u24 v40, 3072, v40"); k("v_and_b32 v41, 3, v0"); k("v_lshl_add_u32 v3, v41, 4, v40")
    k("s_waitcnt lgkmcnt(0)")
    k.stamp()
    srd(k, 12, 4, 2048 * 1024); srd(k, 16, 6, 512 * 3072); srd(k, 20, 8, WS_SIZE)
    k("s_lshl_b32 s31, s30, 15")
    k("s_lshl_b32 s32, s24, 15")
    k("s_mov_b32 m0, s32")
    for c in range(8):
        for i in range(4):
            k(f"s_add_u32 s33, s31, {i*8192 + c*128}")
            k(f"buffer_load_dwordx4 v{1 + (i & 1)}, s[12:15], s33 offen lds")
            k("s_add_u32 m0, m0, 1024")
    k("s_mul_i32 s34, s24, 49152"); k("s_lshl_b32 s35, s26, 6"); k("s_add_u32 s34, s34, s35")
    k("s_mul_i32 s36, s24, 3072"); k("s_add_u32 s36, s36, 131072")
    for j in range(2):
        for blk in range(3):
            k(f"s_add_u32 m0, s36, {j*4*3072 + blk*1024}")
            k(f"s_add_u32 s33, s34, {j*4*49152 + blk*1024}")
            k(f"buffer_load_dwordx4 v3, s[16:19], s33 offen lds")
    k("v_and_b32 v40, 31, v0"); k("v_lshrrev_b32 v41, 5, v0"); k("v_bfe_u32 v42, v0, 1, 3")
    k("v_lshlrev_b32 v40, 7, v40"); k("v_add_u32 v40, s32, v40")
    for j in range(4):
        k(f"v_or_b32 v43, {2*j}, v41"); k("v_xor_b32 v43, v43, v42"); k(f"v_lshl_add_u32 v{4+j}, v43, 4, v40")
    k("v_lshlrev_b32 v40, 9, v41"); k("v_bfe_u32 v42, v0, 2, 2"); k("v_lshl_add_u32 v40, v42, 6, v40")
    k("v_bfe_u32 v42, v0, 4, 1"); k("v_lshl_add_u32 v40, v42, 5, v40"); k("v_and_b32 v42, 3, v0"); k("v_lshl_add_u32 v8, v42, 3, v40")
    k("v_add_u32 v9, 0x10000, v8"); k("v_add_u32 v10, 0x20000, v8")
    k("v_mov_b32 v11, 0x3f803f80")
    for r in range(44, 52): k(f"v_mov_b32 v{r}, 0")
    k.stamp()
    for c in range(8):
        k(f"s_waitcnt vmcnt({6 + (7 - c) * 4})")
        if c in (0, 7): k.stamp()
        for j in range(4):
            k(f"ds_read_b128 {vr(XF + (c*4+j)*4, 4)}, v{4+j} offset:{c*4096}")
        if c > 0:
            k("s_waitcnt lgkmcnt(4)")
            for r in range(16):
                x = XF + (c-1)*16 + r
                k(f"v_dot2c_f32_bf16 v{44 + (r & 3)}, v{x}, v11")
                k(f"v_dot2c_f32_bf16 v{48 + (r & 3)}, v{x}, v{x}")
    k("s_waitcnt lgkmcnt(0)")
    for j in range(6):
        for blk in range(3):
            k(f"s_add_u32 m0, s32, {j*3072 + blk*1024}")
            k(f"s_add_u32 s33, s34, {(8 + 4*j)*49152 + blk*1024}")
            k(f"buffer_load_dwordx4 v3, s[16:19], s33 offen lds")
    for r in range(16):
        x = XF + 7*16 + r
        k(f"v_dot2c_f32_bf16 v{44 + (r & 3)}, v{x}, v11")
        k(f"v_dot2c_f32_bf16 v{48 + (r & 3)}, v{x}, v{x}")
    k("v_add_f32 v44, v44, v45"); k("v_add_f32 v46, v46, v47"); k("v_add_f32 v48, v48, v49"); k("v_add_f32 v50, v50, v51")
    k("v_add_f32 v44, v44, v46"); k("v_add_f32 v48, v48, v50")
    k("v_mov_b32 v45, v44"); k("v_mov_b32 v49, v48")
    k("v_permlane32_swap_b32 v44, v45"); k("v_permlane32_swap_b32 v48, v49")
    k("v_add_f32 v44, v44, v45"); k("v_add_f32 v48, v48, v49")
    k(f"v_mul_f32 v44, {lit(1/512)}, v44")
    k(f"v_mul_f32 v48, {lit(1/512)}, v48")
    k("v_fma_f32 v48, -v44, v44, v48"); k("v_max_f32 v48, 0, v48")
    k("v_cvt_pk_bf16_f32 v44, v44, v48")
    k("v_and_b32 v48, 0xffff0000, v44"); k("v_lshlrev_b32 v44, 16, v44")
    k(f"v_add_f32 v48, {lit(1e-5)}, v48")
    k("v_cvt_pk_bf16_f32 v48, v48, v48"); k("v_lshlrev_b32 v48, 16, v48")
    k("v_sqrt_f32 v48, v48")
    k("v_cvt_pk_bf16_f32 v48, v48, v48"); k("v_lshlrev_b32 v48, 16, v48")
    k("v_rcp_f32 v12, v48")
    k("v_mul_f32 v14, -v44, v12")
    k("v_mov_b32 v13, v12"); k("v_mov_b32 v15, v14")

    def norm(ks):
        out = []
        for r in range(4):
            x = XF + ks*4 + r; t = 52 + 2*r
            out.append(f"v_lshlrev_b32 v{t}, 16, v{x}")
            out.append(f"v_and_b32 v{t+1}, 0xffff0000, v{x}")
        for r in range(4):
            t = 52 + 2*r
            out.append(f"v_fma_f32 v{t}, v{t}, v12, v14")
            out.append(f"v_fma_f32 v{t+1}, v{t+1}, v12, v14")
        for r in range(4):
            x = XF + ks*4 + r; t = 52 + 2*r
            out.append(f"v_cvt_pk_bf16_f32 v{x}, v{t}, v{t+1}")
        return out

    def waddr(ks, blk):
        a = 131072 + (ks*3 + blk)*1024 if ks < 8 else (ks & 3)*32768 + ((ks-8) >> 2)*3072 + blk*1024
        return 8 + (a >> 16), a & 0xffff

    def wreads(ks):
        out = []
        for blk in range(3):
            b, o = waddr(ks, blk); d = WF + (ks & 1)*12 + blk*4
            out.append(f"ds_read_b64_tr_b16 {vr(d,2)}, v{b} offset:{o}")
            out.append(f"ds_read_b64_tr_b16 {vr(d+2,2)}, v{b} offset:{o+256}")
        return out

    def mfmas(ks):
        out = []
        for blk in range(3):
            w = vr(WF + (ks & 1)*12 + blk*4, 4); x = vr(XF + ks*4, 4); a = vr(ACC + blk*16, 16)
            c = "0" if ks == 0 else a
            if blk < 2: out.append(f"v_mfma_f32_32x32x16_bf16 {a}, {w}, {x}, {c}")
            else: out.append(f"v_mfma_f32_32x32x16_bf16 {a}, {x}, {w}, {c}")
        return out

    for x in norm(0): k(x)
    k.stamp()
    k("s_waitcnt vmcnt(18)"); k("s_barrier")
    k.stamp()
    for x in wreads(0): k(x)
    for ks in range(32):
        nxt = ks + 1
        if nxt < 32 and nxt % 8 == 0:
            k.stamp()
            k(f"s_waitcnt vmcnt({18 - 6*(nxt//8)})"); k("s_barrier")
            k.stamp()
        fill = []
        rd = wreads(nxt) if nxt < 32 else []
        nm = norm(nxt) if nxt < 32 else []
        for x in rd: k(x)
        k(f"s_waitcnt lgkmcnt({len(rd)})")
        for x in interleave(mfmas(ks), nm): k(x)
    k.stamp()
    k("v_lshlrev_b32 v1, 4, v0")
    k("v_bfe_u32 v40, v0, 4, 1"); k("v_lshlrev_b32 v40, 16, v40"); k("v_lshrrev_b32 v41, 5, v0"); k("v_lshl_add_u32 v40, v41, 8, v40")
    k("v_and_b32 v41, 15, v0"); k("v_lshl_add_u32 v2, v41, 4, v40")
    k("s_lshl_b32 s33, s26, 17"); k("s_lshl_b32 s34, s30, 10"); k("s_add_u32 s33, s33, s34")
    k(f"s_add_u32 s34, s33, {WS_K}"); k(f"s_add_u32 s35, s33, {WS_V}"); k("s_add_u32 s36, s33, 65536"); k(f"s_add_u32 s37, s34, 65536")
    k("s_lshl_b32 s38, s30, 15"); k("s_lshl_b32 s39, s26, 11"); k("s_add_u32 s38, s38, s39"); k(f"s_add_u32 s38, s38, {WS_XN}")
    for nb in range(16):
        k(f"s_cmp_lg_u32 s26, {nb}"); k(f"s_cbranch_scc1 K1_X{nb}")
        k(f"buffer_store_dwordx4 {vr(XF + nb*8, 4)}, v1, s[20:23], s38 offen")
        k(f"buffer_store_dwordx4 {vr(XF + nb*8 + 4, 4)}, v1, s[20:23], s38 offen offset:1024")
        k("s_branch K1_XD")
        k.label(f"K1_X{nb}")
    k.label("K1_XD")
    k(f"v_mov_b32 v40, {lit(QSCALE)}")
    for r in range(16): k(f"v_mul_f32 v{ACC+r}, v40, v{ACC+r}")
    for blk in range(3):
        for r in range(8):
            k(f"v_cvt_pk_bf16_f32 v{16 + blk*8 + r}, v{ACC + blk*16 + 2*r}, v{ACC + blk*16 + 2*r + 1}")
    k("buffer_store_dwordx4 v[16:19], v1, s[20:23], s33 offen")
    k("buffer_store_dwordx4 v[20:23], v1, s[20:23], s36 offen")
    k("buffer_store_dwordx4 v[24:27], v1, s[20:23], s34 offen")
    k("buffer_store_dwordx4 v[28:31], v1, s[20:23], s37 offen")
    k("buffer_store_dwordx4 v[32:35], v2, s[20:23], s35 offen")
    k("buffer_store_dwordx4 v[36:39], v2, s[20:23], s35 offen offset:512")
    if Kern.DIAG: k("s_waitcnt vmcnt(0)")
    k.stamp(); k.stamp(True)
    k.dump_stamps(0, 24, 40, 8)
    k.label("K1_END")
    k("s_endpgm")
    return k
```

```python
from common import *

def gen_ks(mode):
    down = mode == "down"
    KW = 28 if down else 8
    NFB = 112 if down else 32
    D = 8
    L = "KD" if down else "KO"
    k = Kern("k2_down_kernel" if down else "k3_out_kernel", 256, 256, 4 * D * 4096, 160, 64)
    ACC = 64
    TF = [16, 32]; WF = [24, 40]
    EP = 128
    k("s_cmp_ge_u32 s2, 256"); k(f"s_cbranch_scc1 {L}_END")
    k.stamp(True); k.stamp()
    k(f"s_load_dwordx2 s[4:5], s[0:1], {48 if down else 16}")
    k(f"s_load_dwordx2 s[6:7], s[0:1], {0 if down else 56}")
    k("s_load_dwordx2 s[8:9], s[0:1], 72")
    k("v_lshrrev_b32 v1, 6, v0"); k("v_and_b32 v0, 63, v0"); k("v_readfirstlane_b32 s24, v1")
    k("s_and_b32 s27, s2, 7"); k("s_lshr_b32 s28, s2, 3")
    k("s_lshr_b32 s25, s27, 1"); k("s_lshl_b32 s25, s25, 3"); k("s_lshr_b32 s29, s28, 2"); k("s_add_u32 s25, s25, s29")
    k("s_and_b32 s26, s27, 1"); k("s_lshl_b32 s26, s26, 2"); k("s_and_b32 s29, s28, 3"); k("s_add_u32 s26, s26, s29")
    k("v_lshlrev_b32 v1, 4, v0")
    k("v_lshrrev_b32 v2, 3, v0"); k("v_lshlrev_b32 v2, 10, v2")
    k("v_bfe_u32 v3, v0, 2, 1"); k("v_bfe_u32 v4, v0, 4, 1"); k("v_xor_b32 v3, v3, v4"); k("v_lshl_add_u32 v2, v3, 6, v2")
    k("v_and_b32 v3, 3, v0"); k("v_lshl_add_u32 v2, v3, 4, v2")
    k(f"s_mul_i32 s32, s24, {D*4096}")
    k("v_lshrrev_b32 v3, 5, v0"); k("v_lshlrev_b32 v3, 2, v3"); k("v_bfe_u32 v4, v0, 2, 2"); k("v_add_u32 v3, v3, v4"); k("v_lshlrev_b32 v3, 7, v3")
    k("v_bfe_u32 v4, v0, 3, 1"); k("v_lshl_add_u32 v3, v4, 6, v3")
    k("v_bfe_u32 v4, v0, 4, 1"); k("v_lshl_add_u32 v3, v4, 5, v3"); k("v_and_b32 v4, 3, v0"); k("v_lshl_add_u32 v3, v4, 3, v3")
    k("v_add_u32 v3, s32, v3"); k("v_add_u32 v5, 2048, v3"); k("v_xor_b32 v6, 64, v5")
    k("v_add_u32 v7, s32, v1")
    k("s_waitcnt lgkmcnt(0)")
    srd(k, 12, 4, (1792 if down else 512) * 1024); srd(k, 16, 6, 2048 * 1024); srd(k, 20, 8, WS_SIZE)
    k(f"s_mul_i32 s33, s24, {KW*16384}"); k("s_lshl_b32 s34, s26, 7"); k("s_add_u32 s33, s33, s34")
    k(f"s_mul_i32 s34, s25, {2*NFB*1024}"); k(f"s_mul_i32 s35, s24, {KW*1024}"); k("s_add_u32 s34, s34, s35"); k(f"s_add_u32 s34, s34, {WS_H if down else WS_O}")
    def dma(slot_expr_base):
        return [f"s_mov_b32 m0, s36", f"s_add_u32 s37, s34, {NFB*1024}",
                "buffer_load_dwordx4 v1, s[20:23], s34 offen lds",
                "s_add_u32 m0, s36, 1024", "s_add_u32 s34, s34, 1024",
                "buffer_load_dwordx4 v1, s[20:23], s37 offen lds",
                "s_add_u32 m0, s36, 2048", "s_add_u32 s37, s33, 8192",
                "buffer_load_dwordx4 v2, s[12:15], s33 offen lds",
                "s_add_u32 m0, s36, 3072", "s_add_u32 s33, s33, 16384",
                "buffer_load_dwordx4 v2, s[12:15], s37 offen lds"]
    npro = D - 1 if down else 8
    for s in range(npro):
        k(f"s_add_u32 s36, s32, {s*4096}")
        for x in dma(0): k(x)
    k("v_lshrrev_b32 v8, 2, v0"); k("v_and_b32 v9, 3, v0")
    k("s_lshl_b32 s38, s25, 6"); k("s_lshl_b32 s39, s24, 4"); k("s_add_u32 s38, s38, s39")
    k("v_lshlrev_b32 v10, 10, v8"); k("v_lshl_add_u32 v10, v9, 5, v10")
    k("v_lshlrev_b32 v11, 1, v10")
    k("s_lshl_b32 s40, s38, 10"); k("s_lshl_b32 s41, s26, 7"); k("s_add_u32 s40, s40, s41")
    k("s_lshl_b32 s41, s40, 1"); k(f"s_add_u32 s41, s41, {WS_P}")
    nep = 0
    if not down:
        for i in range(4): k(f"buffer_load_dwordx4 {vr(EP+4*i,4)}, v11, s[20:23], s41 offen offset:{16*i}")
        nep = 4
    for r in range(64): k(f"v_mov_b32 v{ACC+r}, 0")
    def reads(slot, buf):
        o = slot * 4096
        return [f"ds_read_b128 {vr(TF[buf],4)}, v7 offset:{o}",
                f"ds_read_b64_tr_b16 {vr(WF[buf],2)}, v5 offset:{o}", f"ds_read_b64_tr_b16 {vr(WF[buf]+2,2)}, v5 offset:{o+1024}",
                f"ds_read_b64_tr_b16 {vr(WF[buf]+4,2)}, v6 offset:{o}", f"ds_read_b64_tr_b16 {vr(WF[buf]+6,2)}, v6 offset:{o+1024}",
                f"ds_read_b128 {vr(TF[buf]+4,4)}, v7 offset:{o+1024}"]
    def mf(buf):
        out = []
        for a in range(2):
            for b in range(2):
                c = vr(ACC + (a*2+b)*16, 16)
                out.append(f"v_mfma_f32_32x32x16_bf16 {c}, {vr(WF[buf]+4*b,4)}, {vr(TF[buf]+4*a,4)}, {c}")
        return out
    k.stamp()
    if down:
        k(f"s_waitcnt vmcnt({4*(npro-1)})")
        for x in reads(0, 0): k(x)
        k("s_mov_b32 s42, 0")
        k(f"s_mov_b32 s43, 0x7fffffff")
        k.label("KD_LOOP")
        for s in range(8):
            k(f"s_waitcnt vmcnt({4*(D-3)})")
            rd = reads((s+1) % D, (s+1) & 1)
            k("s_waitcnt lgkmcnt(0)")
            k(f"s_add_u32 s36, s32, {((s-1) % D)*4096}")
            k(f"s_cmp_lt_u32 s42, {KW - (D-1) - s}") if KW - (D-1) - s > 0 else k("s_cmp_lt_u32 s42, 0")
            k("s_cselect_b32 s33, s33, s43"); k("s_cselect_b32 s34, s34, s43")
            for x in interleave(mf(s & 1), rd + dma(0)): k(x)
            if s == 3:
                k(f"s_cmp_eq_u32 s42, {KW-4}"); k("s_cbranch_scc1 KD_DONE")
        k("s_add_u32 s42, s42, 8"); k("s_branch KD_LOOP")
        k.label("KD_DONE")
        for i in range(2): k(f"buffer_load_dwordx4 {vr(EP+4*i,4)}, v10, s[16:19], s40 offen offset:{16*i}")
    else:
        k(f"s_waitcnt vmcnt({4*7 + nep})")
        for x in reads(0, 0): k(x)
        for s in range(8):
            rd = []
            if s < 7:
                k(f"s_waitcnt vmcnt({4*(6-s) + nep})")
                rd = reads(s+1, (s+1) & 1)
            k("s_waitcnt lgkmcnt(0)")
            for x in interleave(mf(s & 1), rd): k(x)
    k.stamp()
    k("s_waitcnt vmcnt(0) lgkmcnt(0)") if down else k("s_waitcnt lgkmcnt(0)")
    k("s_barrier")
    k("v_and_b32 v12, 31, v0"); k("v_mul_u32_u24 v12, 272, v12"); k("v_lshrrev_b32 v13, 5, v0"); k("v_lshl_add_u32 v12, v13, 4, v12")
    k("s_mul_i32 s44, s24, 17408"); k("v_add_u32 v12, s44, v12")
    for a in range(2):
        for b in range(2):
            for q in range(4):
                k(f"ds_write_b128 v12, {vr(ACC + (a*2+b)*16 + 4*q, 4)} offset:{a*32*272 + (8*b + 2*q)*16}")
    k("v_add_u32 v13, s39, v8"); k("v_mul_u32_u24 v13, 272, v13"); k("v_lshl_add_u32 v13, v9, 6, v13")
    k("s_waitcnt lgkmcnt(0)"); k("s_barrier")
    for p in range(4):
        for i in range(4): k(f"ds_read_b128 {vr(ACC + p*16 + 4*i, 4)}, v13 offset:{p*17408 + 16*i}")
    k("s_waitcnt lgkmcnt(8)")
    for r in range(16): k(f"v_add_f32 v{ACC+r}, v{ACC+r}, v{ACC+16+r}")
    k("s_waitcnt lgkmcnt(0)")
    for r in range(16): k(f"v_add_f32 v{ACC+32+r}, v{ACC+32+r}, v{ACC+48+r}")
    k("s_waitcnt vmcnt(0)")
    if down:
        for r in range(8):
            k(f"v_lshlrev_b32 v{16+2*r}, 16, v{EP+r}"); k(f"v_and_b32 v{17+2*r}, 0xffff0000, v{EP+r}")
        for r in range(16): k(f"v_add_f32 v{ACC+r}, v{ACC+r}, v{16+r}")
        for r in range(16): k(f"v_add_f32 v{ACC+r}, v{ACC+r}, v{ACC+32+r}")
        for i in range(4): k(f"buffer_store_dwordx4 {vr(ACC+4*i,4)}, v11, s[20:23], s41 offen offset:{16*i}")
    else:
        for r in range(16): k(f"v_add_f32 v{ACC+r}, v{ACC+r}, v{EP+r}")
        for r in range(16): k(f"v_add_f32 v{ACC+r}, v{ACC+r}, v{ACC+32+r}")
        for r in range(8): k(f"v_cvt_pk_bf16_f32 v{16+r}, v{ACC+2*r}, v{ACC+2*r+1}")
        for i in range(2): k(f"buffer_store_dwordx4 {vr(16+4*i,4)}, v10, s[16:19], s40 offen offset:{16*i}")
    if Kern.DIAG: k("s_waitcnt vmcnt(0)")
    k.stamp(); k.stamp(True)
    k.dump_stamps(3 if down else 4, 24, 2, 8)
    k.label(f"{L}_END")
    k("s_endpgm")
    return k
```

```python
from common import *

UP_SLOT = 28928
UP_W3OFF = 14464

def gen_up(NS=3):
    k = Kern("k2_up_kernel", 256, 256, UP_SLOT * NS, 200, 64)
    ACC = 64; WF = 16; XF = 44
    DV = 176
    k("s_cmp_ge_u32 s2, 256"); k("s_cbranch_scc1 UP_END")
    k.stamp(True); k.stamp()
    k("s_load_dwordx4 s[4:7], s[0:1], 32")
    k("s_load_dwordx2 s[8:9], s[0:1], 72")
    k("v_lshrrev_b32 v1, 6, v0"); k("v_and_b32 v0, 63, v0"); k("v_readfirstlane_b32 s24, v1")
    k("s_and_b32 s27, s2, 7"); k("s_lshr_b32 s28, s2, 3")
    k("s_lshr_b32 s25, s27, 2"); k("s_lshl_b32 s25, s25, 3"); k("s_lshr_b32 s29, s28, 2"); k("s_add_u32 s25, s25, s29")
    k("s_and_b32 s26, s27, 3"); k("s_lshl_b32 s26, s26, 2"); k("s_and_b32 s29, s28, 3"); k("s_add_u32 s26, s26, s29")
    k("s_lshl_b32 s30, s25, 2"); k("s_add_u32 s30, s30, s24")
    k("v_lshlrev_b32 v1, 4, v0")
    for i in range(7):
        k(f"v_add_u32 v2, {64*i}, v0")
        k("v_mul_u32_u24 v3, 4682, v2"); k("v_lshrrev_b32 v3, 16, v3")
        k("v_mul_u32_u24 v4, 14, v3"); k("v_sub_u32 v4, v2, v4")
        k("v_mul_u32_u24 v3, 3584, v3"); k(f"v_lshl_add_u32 v{DV+i}, v4, 4, v3")
    k("v_lshrrev_b32 v2, 5, v0"); k("v_lshlrev_b32 v2, 3, v2"); k("v_bfe_u32 v3, v0, 2, 2"); k("v_add_u32 v2, v2, v3")
    k("v_mul_u32_u24 v2, 224, v2"); k("v_bfe_u32 v3, v0, 4, 1"); k(f"v_mul_u32_u24 v3, {UP_W3OFF}, v3"); k("v_add_u32 v2, v2, v3")
    k("v_and_b32 v3, 3, v0"); k("v_lshl_add_u32 v8, v3, 3, v2")
    k("s_waitcnt lgkmcnt(0)")
    k("s_cmp_lt_u32 s24, 2"); k("s_cselect_b32 s10, s4, s6"); k("s_cselect_b32 s11, s5, s7")
    srd(k, 12, 10, 512 * 3584); srd(k, 20, 8, WS_SIZE)
    k("s_and_b32 s31, s24, 1"); k("s_mul_i32 s32, s31, 114688"); k("s_mul_i32 s33, s26, 224"); k("s_add_u32 s32, s32, s33")
    k("s_mul_i32 s33, s31, 7168"); k("s_lshr_b32 s34, s24, 1"); k(f"s_mul_i32 s34, s34, {UP_W3OFF}"); k("s_add_u32 s33, s33, s34")
    k("s_lshl_b32 s35, s30, 15"); k(f"s_add_u32 s35, s35, {WS_XN}")

    def dma(slot_sgpr_expr):
        out = []
        for i in range(7):
            out.append(f"s_add_u32 m0, s36, {i*1024}")
            out.append(f"buffer_load_dwordx4 v{DV+i}, s[12:15], s32 offen lds")
        return out
    for ch in range(NS - 1):
        k(f"s_add_u32 s36, s33, {ch*UP_SLOT}")
        for x in dma(0): k(x)
        k("s_add_u32 s32, s32, 229376")
        if ch == 0:
            for s in range(4): k(f"buffer_load_dwordx4 {vr(XF+4*s,4)}, v1, s[20:23], s35 offen offset:{s*1024}")
            k("s_add_u32 s35, s35, 4096")
    for r in range(112): k(f"v_mov_b32 v{ACC+r}, 0")
    k("v_mov_b32 v9, v8")
    k(f"s_mov_b32 s37, {UP_SLOT}")
    k(f"s_mov_b32 s38, {(NS-1)*UP_SLOT}")
    k(f"s_waitcnt vmcnt({4 + 7*(NS-2)})"); k("s_barrier")
    k.stamp()
    def rd(j, s, areg):
        o = s*3584 + j*32
        return [f"ds_read_b64_tr_b16 {vr(WF+4*j,2)}, {areg} offset:{o}", f"ds_read_b64_tr_b16 {vr(WF+4*j+2,2)}, {areg} offset:{o+896}"]
    for j in range(7):
        for x in rd(j, 0, "v9"): k(x)
    k("s_mov_b32 s39, 0")
    k.label("UP_LOOP")
    for s in range(4):
        extra = []
        if s == 3:
            k(f"s_waitcnt vmcnt(3)"); k("s_barrier")
            k("v_add_u32 v10, s37, v8")
            k("s_add_u32 s36, s33, s38")
            extra = dma(0)
        if s < 3: k("s_waitcnt vmcnt(10)")
        for j in range(7):
            k("s_waitcnt lgkmcnt(12)")
            a = vr(ACC + 16*j, 16)
            k(f"v_mfma_f32_32x32x16_bf16 {a}, {vr(WF+4*j,4)}, {vr(XF+4*s,4)}, {a}")
            for x in (rd(j, s+1, "v9") if s < 3 else rd(j, 0, "v10")): k(x)
            for x in extra[2*j:2*j+2]: k(x)
        k(f"buffer_load_dwordx4 {vr(XF+4*s,4)}, v1, s[20:23], s35 offen offset:{s*1024}")
    k("v_mov_b32 v9, v10")
    k("s_add_u32 s35, s35, 4096"); k("s_add_u32 s32, s32, 229376")
    k(f"s_add_u32 s37, s37, {UP_SLOT}"); k(f"s_cmp_eq_u32 s37, {NS*UP_SLOT}"); k("s_cselect_b32 s37, 0, s37")
    k(f"s_add_u32 s38, s38, {UP_SLOT}"); k(f"s_cmp_eq_u32 s38, {NS*UP_SLOT}"); k("s_cselect_b32 s38, 0, s38")
    k("s_add_u32 s39, s39, 1"); k("s_cmp_lt_u32 s39, 8"); k("s_cbranch_scc1 UP_LOOP")
    k.stamp()
    k("s_mul_i32 s40, s30, 112"); k("s_mul_i32 s41, s26, 7"); k("s_add_u32 s40, s40, s41"); k("s_lshl_b32 s40, s40, 10"); k(f"s_add_u32 s40, s40, {WS_H}")
    k("s_add_u32 s41, s40, 4096")
    k("s_waitcnt vmcnt(0) lgkmcnt(0)")
    NL2E = lit(-1.4426950408889634)
    for j in range(7):
        a = ACC + 16*j; t = 16 + (j & 1)*12
        for r in range(8): k(f"v_mul_f32 v{t+r}, {NL2E}, v{a+r}")
        for r in range(8): k(f"v_exp_f32 v{t+r}, v{t+r}")
        for r in range(8): k(f"v_mul_f32 v{a+r}, v{a+r}, v{a+8+r}")
        for r in range(8): k(f"v_add_f32 v{t+r}, 1.0, v{t+r}")
        for r in range(8): k(f"v_rcp_f32 v{t+r}, v{t+r}")
        for r in range(8): k(f"v_mul_f32 v{a+r}, v{a+r}, v{t+r}")
        for r in range(4): k(f"v_cvt_pk_bf16_f32 v{t+8+r}, v{a+2*r}, v{a+2*r+1}")
        k(f"buffer_store_dwordx4 {vr(t+8,4)}, v1, s[20:23], s{40 + (j>>2)} offen offset:{(j&3)*1024}")
    if Kern.DIAG: k("s_waitcnt vmcnt(0)")
    k.stamp(); k.stamp(True)
    k.dump_stamps(2, 24, 2, 8)
    k.label("UP_END")
    k("s_endpgm")
    return k
```

```python
import sys
from common import *
Kern.DIAG = '--diag' in sys.argv
from k1 import gen_k1
from attn import gen_attn
from up import gen_up
from ks import gen_ks
ks = [gen_k1(), gen_attn(), gen_up(), gen_ks("down"), gen_ks("wo")]
build_file(ks, sys.argv[1] if len(sys.argv) > 1 else "../out.s")
```

```python
from common import *
import os
OPT = lambda n, d=0: int(os.environ.get(n, d))

class VM:
    def __init__(self, k): self.k = k; self.ops = []
    def issue(self, tag, text): self.k(text); self.ops.append(tag)
    def wait(self, tag, extra=""):
        last = max(i for i, t in enumerate(self.ops) if t == tag)
        n = len(self.ops) - 1 - last
        assert n <= 63
        self.k(f"s_waitcnt vmcnt({n}){extra}")

HALF = 81920
WOFF = 32768
def wslot(ks):
    if ks < 8: return WOFF + ks*6144
    if ks < 13: return (ks-8)*6144
    return WOFF + (ks-13)*6144
XCH = 5*6144

def gen_k1():
    k = Kern("k1_qkv_kernel", 256, 512, 163840, 192, 64)
    vm = VM(k)
    XF = 64; ACC = 128; WF = 16
    k("s_cmp_ge_u32 s2, 256"); k("s_cbranch_scc1 K1_END")
    k.stamp(True); k.stamp()
    k("s_load_dwordx4 s[4:7], s[0:1], 0")
    k("s_load_dwordx2 s[8:9], s[0:1], 72")
    k("s_load_dwordx4 s[44:47], s[0:1], 32")
    k("s_load_dwordx2 s[48:49], s[0:1], 48")
    k("s_load_dwordx2 s[50:51], s[0:1], 16")
    k("v_lshrrev_b32 v1, 6, v0"); k("v_and_b32 v0, 63, v0"); k("v_readfirstlane_b32 s24, v1")
    k("s_and_b32 s27, s2, 7"); k("s_lshr_b32 s28, s2, 3")
    k("s_lshr_b32 s25, s27, 1"); k("s_lshl_b32 s25, s25, 3"); k("s_lshr_b32 s29, s28, 2"); k("s_add_u32 s25, s25, s29")
    k("s_and_b32 s26, s27, 1"); k("s_lshl_b32 s26, s26, 2"); k("s_and_b32 s29, s28, 3"); k("s_add_u32 s26, s26, s29")
    k("s_bfe_u32 s56, s24, 0x10001"); k("s_lshr_b32 s57, s24, 2"); k("s_and_b32 s59, s24, 1")
    k("s_lshl_b32 s30, s25, 1"); k("s_add_u32 s30, s30, s56")
    k("s_add_u32 s40, s25, s26"); k("s_and_b32 s40, s40, 3")
    k("v_lshrrev_b32 v40, 3, v0"); k("v_lshlrev_b32 v40, 10, v40")
    k("v_lshrrev_b32 v41, 4, v0"); k("v_and_b32 v42, 7, v0")
    k("v_xor_b32 v43, v41, v42"); k("v_lshl_add_u32 v1, v43, 4, v40")
    k("v_xor_b32 v43, 4, v43"); k("v_lshl_add_u32 v2, v43, 4, v40"); k(f"v_add_u32 v2, {8192-1024}, v2")
    k("s_lshl_b32 s31, s30, 15"); k("s_lshl_b32 s33, s57, 9"); k("s_add_u32 s31, s31, s33"); k("s_lshl_b32 s33, s59, 14"); k("s_add_u32 s31, s31, s33")
    k(f"s_mul_i32 s60, s57, {HALF}")
    k("s_lshl_b32 s32, s56, 14"); k("s_add_u32 s32, s32, s60")
    k("s_lshl_b32 s33, s59, 11"); k("s_add_u32 s61, s32, s33")
    k("s_lshl_b32 s41, s40, 7")
    k("s_waitcnt lgkmcnt(0)")
    srd(k, 12, 4, 2048 * 1024)
    for c in range(4):
        k(f"s_add_u32 m0, s61, {c*4096}"); k(f"s_add_u32 s33, s31, s41")
        vm.issue("x", "buffer_load_dwordx4 v1, s[12:15], s33 offen lds")
        vm.issue("x", "buffer_load_dwordx4 v2, s[12:15], s33 offen offset:1024 lds")
        k("s_add_u32 s41, s41, 128"); k("s_and_b32 s41, s41, 511")
    srd(k, 16, 6, 512 * 3072)
    if OPT("XBAR", 1): k("s_barrier")
    k("v_lshrrev_b32 v40, 3, v0"); k("v_mul_u32_u24 v40, 3072, v40")
    k("v_bfe_u32 v41, v0, 2, 1"); k("v_bfe_u32 v42, v0, 4, 1"); k("v_xor_b32 v41, v41, v42"); k("v_lshl_add_u32 v40, v41, 6, v40")
    k("v_and_b32 v41, 3, v0"); k("v_lshl_add_u32 v3, v41, 4, v40")
    k("s_lshl_b32 s35, s26, 7"); k("s_lshl_b32 s36, s57, 4"); k("s_add_u32 s36, s36, s56"); k("s_mul_i32 s36, s36, 49152"); k("s_add_u32 s35, s35, s36")
    k("s_mul_i32 s36, s59, 24576"); k("s_add_u32 s35, s35, s36")
    k("s_lshl_b32 s42, s40, 1")
    k("s_mul_i32 s62, s59, 3072"); k("s_add_u32 s62, s62, s60")
    k("s_mul_i32 s36, s56, 6144"); k("s_add_u32 s63, s62, s36")
    def wdma(i):
        k("s_mul_i32 s33, s42, 98304")
        if wslot(2*i+1) - wslot(2*i) == 6144:
            k(f"s_add_u32 m0, s63, {wslot(2*i)}")
        else:
            k("s_cmp_eq_u32 s56, 0"); k(f"s_cselect_b32 s34, {wslot(2*i)}, {wslot(2*i+1)}") if False else None
            k(f"s_mul_i32 s34, s56, {wslot(2*i+1) - wslot(2*i)}"); k("s_add_u32 s34, s34, s62"); k(f"s_add_u32 m0, s34, {wslot(2*i)}")
        k("s_add_u32 s33, s33, s35")
        for blk in range(3):
            vm.issue(f"w{i}", f"buffer_load_dwordx4 v3, s[16:19], s33 offen offset:{blk*1024} lds")
        k("s_add_u32 s42, s42, 1"); k("s_and_b32 s42, s42, 7")
    NW0 = OPT("NW0", 2)
    for i in range(NW0): wdma(i)
    k.stamp()
    srd(k, 20, 8, WS_SIZE)
    k("v_and_b32 v40, 31, v0"); k("v_lshrrev_b32 v41, 5, v0"); k("v_bfe_u32 v42, v0, 1, 3")
    k("v_lshlrev_b32 v40, 7, v40"); k("v_add_u32 v40, s32, v40")
    for j in range(4):
        k(f"v_or_b32 v43, {2*j}, v41"); k("v_xor_b32 v43, v43, v42"); k(f"v_lshl_add_u32 v{4+j}, v43, 4, v40")
    k("v_mul_u32_u24 v40, 3072, v41"); k("v_bfe_u32 v42, v0, 2, 2"); k("v_lshl_add_u32 v40, v42, 7, v40")
    k("v_bfe_u32 v42, v0, 3, 1"); k("v_xor_b32 v42, s59, v42"); k("v_lshl_add_u32 v40, v42, 6, v40")
    k("v_bfe_u32 v42, v0, 4, 1"); k("v_lshl_add_u32 v40, v42, 5, v40"); k("v_and_b32 v42, 3, v0"); k("v_lshl_add_u32 v8, v42, 3, v40")
    k("v_add_u32 v8, s60, v8"); k(f"v_add_u32 v9, {WOFF}, v8")
    k("v_and_b32 v10, 31, v0"); k("v_lshlrev_b32 v10, 3, v10"); k("s_lshl_b32 s33, s56, 9"); k(f"s_add_u32 s33, s33, {XCH}")
    k("v_add_u32 v15, s33, v10")
    k("s_lshl_b32 s34, s59, 8"); k("s_add_u32 s34, s34, s60"); k("v_add_u32 v10, s34, v15")
    k(f"v_add_u32 v61, {HALF}, v15")
    k("v_mov_b32 v11, 0x3f803f80")
    for r in range(44, 52): k(f"v_mov_b32 v{r}, 0")
    vm.wait("x"); k("s_barrier")
    k.stamp()
    k("s_cmp_lg_u32 s59, 0"); k("s_cbranch_scc1 K1_S1")
    for ch in range(2):
        if ch == 1: k.label("K1_S1")
        order = [0, 1, 2, 3] if ch == 0 else [2, 3, 0, 1]
        for c in order:
            for j in range(4):
                k(f"ds_read_b128 {vr(XF + (c*4+j)*4, 4)}, v{4+j} offset:{c*4096}")
        if ch == 0: saved = list(vm.ops)
        else: vm.ops = list(saved)
        for i in range(NW0, 4): wdma(i)
        for n, c in enumerate(order[:2]):
            k(f"s_waitcnt lgkmcnt({12 - 4*n})")
            for r in range(16):
                x = XF + c*16 + r
                k(f"v_dot2c_f32_bf16 v{44 + (r & 3)}, v{x}, v11")
                k(f"v_dot2c_f32_bf16 v{48 + (r & 3)}, v{x}, v{x}")
        if ch == 0: k("s_branch K1_S2")
    k.label("K1_S2")
    k("s_nop 2")
    k("v_add_f32 v44, v44, v45"); k("v_add_f32 v46, v46, v47"); k("v_add_f32 v48, v48, v49"); k("v_add_f32 v50, v50, v51")
    k("v_add_f32 v44, v44, v46"); k("v_add_f32 v48, v48, v50")
    k("v_mov_b32 v45, v44"); k("v_mov_b32 v49, v48")
    k("v_permlane32_swap_b32 v44, v45"); k("v_permlane32_swap_b32 v48, v49")
    k("v_add_f32 v44, v44, v45"); k("v_add_f32 v45, v48, v49")
    k("s_waitcnt lgkmcnt(0)"); k("s_barrier")
    k("ds_write_b64 v10, v[44:45]")
    wdma(4); wdma(5)
    k.stamp()
    vm.wait("w1", " lgkmcnt(0)"); k("s_barrier")
    k("ds_read_b64 v[44:45], v15"); k("ds_read_b64 v[46:47], v15 offset:256")
    k("ds_read_b64 v[48:49], v61"); k("ds_read_b64 v[50:51], v61 offset:256")
    def wreg(ks, blk): return WF + (ks % 3)*12 + blk*4 if ks % 3 < 2 else 176 + blk*4
    def wreads(ks):
        out = []
        for blk in range(3):
            o = wslot(ks) + blk*1024; b = "v8"
            if o >= WOFF: o -= WOFF; b = "v9"
            d = wreg(ks, blk)
            out.append(f"ds_read_b64_tr_b16 {vr(d,2)}, {b} offset:{o}")
            out.append(f"ds_read_b64_tr_b16 {vr(d+2,2)}, {b} offset:{o+512}")
        return out
    for x in wreads(0): k(x)
    k("s_waitcnt lgkmcnt(6)")
    for x in wreads(1): k(x)
    k("v_add_f32 v44, v44, v46"); k("v_add_f32 v45, v45, v47"); k("v_add_f32 v48, v48, v50"); k("v_add_f32 v49, v49, v51")
    k("v_add_f32 v44, v44, v48"); k("v_add_f32 v48, v45, v49")
    k(f"v_mul_f32 v44, {lit(1/512)}, v44")
    k(f"v_mul_f32 v48, {lit(1/512)}, v48")
    k("v_fma_f32 v48, -v44, v44, v48"); k("v_max_f32 v48, 0, v48")
    k("v_cvt_pk_bf16_f32 v44, v44, v48")
    k("v_and_b32 v48, 0xffff0000, v44"); k("v_lshlrev_b32 v44, 16, v44")
    k(f"v_add_f32 v48, {lit(1e-5)}, v48")
    k("v_cvt_pk_bf16_f32 v48, v48, v48"); k("v_lshlrev_b32 v48, 16, v48")
    k("v_sqrt_f32 v48, v48")
    k("v_cvt_pk_bf16_f32 v48, v48, v48"); k("v_lshlrev_b32 v48, 16, v48")
    k("v_rcp_f32 v12, v48")
    k("v_mov_b32 v13, 0xffff0000")
    k("v_mul_f32 v14, -v44, v12")
    def norm(ks):
        out = []
        for r in range(4):
            x = XF + ks*4 + r; t = 52 + 2*r
            out.append(f"v_lshlrev_b32 v{t}, 16, v{x}")
            out.append(f"v_and_b32 v{t+1}, v13, v{x}")
        for r in range(4):
            t = 52 + 2*r
            out.append(f"v_fma_f32 v{t}, v{t}, v12, v14")
            out.append(f"v_fma_f32 v{t+1}, v{t+1}, v12, v14")
        for r in range(4):
            x = XF + ks*4 + r; t = 52 + 2*r
            out.append(f"v_cvt_pk_bf16_f32 v{x}, v{t}, v{t+1}")
        return out
    def mfmas(ks):
        out = []
        for blk in range(3):
            w = vr(wreg(ks, blk), 4); x = vr(XF + ks*4, 4); a = vr(ACC + blk*16, 16)
            c = "0" if ks == 0 else a
            if blk < 2: out.append(f"v_mfma_f32_32x32x16_bf16 {a}, {w}, {x}, {c}")
            else: out.append(f"v_mfma_f32_32x32x16_bf16 {a}, {x}, {w}, {c}")
        return out
    for x in norm(0): k(x)
    k.stamp()
    for ks in range(16):
        nxt = ks + 1; n2 = ks + 2
        if n2 == 4:
            vm.wait("w3", " lgkmcnt(6)"); k("s_barrier")
            wdma(6); wdma(7)
            k.stamp()
        if n2 == 8:
            vm.wait("w5"); k("s_barrier"); k.stamp()
        if n2 == 12:
            vm.wait("w7"); k("s_barrier"); k.stamp()
            if OPT("PREF", 1):
                k("s_lshl_b32 s33, s2, 3"); k("s_add_u32 s33, s33, s24"); k("s_lshl_b32 s33, s33, 10")
                k("v_lshlrev_b32 v60, 4, v0")
                for (b, n) in ((44, 512*3584), (46, 512*3584), (48, 512*3584), (50, 512*1024)):
                    srd(k, 52, b, n)
                    vm.issue("pf", "buffer_load_dwordx4 v[188:191], v60, s[52:55], s33 offen")
        rd = wreads(n2) if n2 < 16 else []
        nm = norm(nxt) if nxt < 16 else []
        k(f"s_waitcnt lgkmcnt({6 if nxt < 16 else 0})")
        fill = interleave(nm[:18], rd) + nm[18:] if nm else []
        for x in interleave(mfmas(ks), fill): k(x)
    k.stamp()
    k("v_lshlrev_b32 v1, 4, v0")
    k("s_and_b32 s33, s24, 3"); k("s_mul_i32 s33, s33, 6144"); k(f"s_add_u32 s33, s33, {wslot(3)}")
    k("s_add_u32 s34, s33, s60"); k("v_add_u32 v4, s34, v1")
    k(f"s_sub_u32 s34, {HALF}, s60"); k("s_add_u32 s34, s34, s33"); k("v_add_u32 v5, s34, v1")
    k("v_bfe_u32 v40, v0, 4, 1"); k("v_lshlrev_b32 v40, 16, v40"); k("v_lshrrev_b32 v41, 5, v0"); k("v_lshl_add_u32 v40, v41, 8, v40")
    k("v_and_b32 v41, 15, v0"); k("v_lshl_add_u32 v2, v41, 4, v40")
    k("s_lshl_b32 s33, s26, 18"); k("s_lshl_b32 s34, s59, 17"); k("s_add_u32 s33, s33, s34"); k("s_lshl_b32 s34, s30, 10"); k("s_add_u32 s33, s33, s34")
    k("s_lshl_b32 s35, s57, 9"); k("s_add_u32 s35, s35, s33"); k(f"s_add_u32 s35, s35, {WS_V}")
    k("s_lshl_b32 s34, s57, 16"); k("s_add_u32 s33, s33, s34"); k(f"s_add_u32 s34, s33, {WS_K}")
    k(f"v_mov_b32 v40, {lit(QSCALE)}")
    k("s_cmp_lg_u32 s57, 0"); k("s_cbranch_scc1 K1_E1")
    for kh in range(2):
        if kh == 1: k.label("K1_E1")
        mine = 8*kh; other = 8*(1-kh)
        for blk in range(3):
            for q in range(2):
                k(f"ds_write_b128 v4, {vr(ACC + blk*16 + other + 4*q, 4)} offset:{(blk*2+q)*1024}")
        k("s_waitcnt lgkmcnt(0)"); k("s_barrier")
        for blk in range(3):
            for q in range(2):
                k(f"ds_read_b128 {vr(16 + blk*8 + 4*q, 4)}, v5 offset:{(blk*2+q)*1024}")
        st = ["buffer_store_dwordx4 v[44:47], v1, s[20:23], s33 offen", "buffer_store_dwordx4 v[48:51], v1, s[20:23], s34 offen",
              "buffer_store_dwordx4 v[52:55], v2, s[20:23], s35 offen"]
        for blk in range(3):
            k(f"s_waitcnt lgkmcnt({4 - 2*blk})")
            a = ACC + blk*16 + mine
            for r in range(8): k(f"v_add_f32 v{a+r}, v{a+r}, v{16 + blk*8 + r}")
            if blk == 0:
                for r in range(8): k(f"v_mul_f32 v{a+r}, v40, v{a+r}")
            for r in range(4): k(f"v_cvt_pk_bf16_f32 v{44 + blk*4 + r}, v{a+2*r}, v{a+2*r+1}")
            k(st[blk])
        if kh == 0: k("s_branch K1_E2")
    k.label("K1_E2")
    k("s_cmp_lg_u32 s24, 0"); k("s_cbranch_scc1 K1_NF")
    k("v_lshlrev_b32 v40, 2, v0"); k("v_mov_b32 v41, 0"); k("s_lshl_b32 s43, s2, 8"); k(f"s_add_u32 s43, s43, {WS_FLAG}")
    k("buffer_store_dword v41, v40, s[20:23], s43 offen")
    k.label("K1_NF")
    k("s_lshr_b32 s39, s26, 2"); k("s_cmp_lg_u32 s39, s57"); k("s_cbranch_scc1 K1_XD")
    k("s_lshl_b32 s38, s30, 15"); k("s_lshl_b32 s39, s26, 12"); k("s_add_u32 s38, s38, s39"); k("s_lshl_b32 s39, s59, 11"); k("s_add_u32 s38, s38, s39")
    k(f"s_add_u32 s38, s38, {WS_XN}")
    k("s_sub_u32 s39, s26, s40"); k("s_and_b32 s39, s39, 3"); k("s_lshl_b32 s39, s39, 1"); k("s_add_u32 s39, s39, s59")
    def tree(lo, hi):
        if hi - lo == 1:
            k(f"buffer_store_dwordx4 {vr(XF + lo*8, 4)}, v1, s[20:23], s38 offen")
            k(f"buffer_store_dwordx4 {vr(XF + lo*8 + 4, 4)}, v1, s[20:23], s38 offen offset:1024")
            k("s_branch K1_XD")
            return
        mid = (lo + hi) // 2
        k(f"s_cmp_ge_u32 s39, {mid}"); k(f"s_cbranch_scc1 K1_T{mid}_{hi}")
        tree(lo, mid)
        k.label(f"K1_T{mid}_{hi}")
        tree(mid, hi)
    tree(0, 8)
    k.label("K1_XD")
    if Kern.DIAG: k("s_waitcnt vmcnt(0)")
    k.stamp(); k.stamp(True)
    k.dump_stamps(0, 24, 40, 8)
    k.label("K1_END")
    k("s_endpgm")
    print("k1 stamps", getattr(k, "nst", 0))
    return k
```

```python
from common import *
import os
OPT = lambda n, d=0: int(os.environ.get(n, d))

UP_SLOT = 28928
UP_W3OFF = 14464
RING = 0
ONES = 65536
PROG = ONES + 2048
PAIR = PROG + 3072
GB = PAIR + 256
LDS_TOTAL = GB + 3 * UP_SLOT
assert GB % 256 == 0 and LDS_TOTAL <= 163840, (GB, LDS_TOTAL)
MF = "v_mfma_f32_32x32x16_bf16"
HFLAG = WS_FLAG
OFLAG = WS_FLAG + 32768
NST = 11

def gen_k2():
    k = Kern("k2_fused_kernel", 256, 768, LDS_TOTAL, 168, 72)
    k("s_cmp_ge_u32 s2, 256"); k("s_cbranch_scc1 K2_END")
    k.stamp(True); k.stamp()
    k("s_load_dwordx2 s[8:9], s[0:1], 72")
    k("s_load_dwordx4 s[4:7], s[0:1], 32")
    k("v_lshrrev_b32 v1, 6, v0"); k("v_lshlrev_b32 v11, 2, v0"); k("v_readfirstlane_b32 s24, v1")
    k("v_and_b32 v0, 63, v0"); k("v_lshlrev_b32 v1, 4, v0")
    k(f"v_add_u32 v11, {PROG}, v11")
    k("s_cmp_ge_u32 s24, 8"); k("s_cbranch_scc1 K2_GEMM")
    attn_part(k)
    k.label("K2_GEMM")
    if Kern.DIAG: k.nst = 2
    gemm_part(k)
    k.label("K2_END")
    k("s_endpgm")
    return k

def softcheck(k, tag, sval, vdst, vaddr):
    k(f"v_cmp_le_u32 vcc, {sval}, {vdst}")
    k("s_cmp_eq_u64 vcc, -1")
    k(f"s_cbranch_scc0 {tag}_SPIN")
    k.label(f"{tag}_CONT")
    def tail():
        k.label(f"{tag}_SPIN")
        k("s_sleep 1")
        k(f"ds_read_b32 {vdst}, {vaddr}")
        k("s_waitcnt lgkmcnt(0)")
        k(f"v_cmp_le_u32 vcc, {sval}, {vdst}")
        k("s_cmp_eq_u64 vcc, -1")
        k(f"s_cbranch_scc0 {tag}_SPIN")
        k(f"s_branch {tag}_CONT")
    return tail

def finish(k, vtmp):
    if Kern.DIAG:
        k("s_waitcnt vmcnt(0)")
        while k.nst < NST - 1: k.stamp()
        k.stamp(True)
        k.dump_stamps(1, 24, vtmp, 8)
    k("s_endpgm")

def attn_part(k):
    S = [16, 32]; O = [48, 64]; C = 80; P = 96; Q = [104, 108]
    KF = [112, 116]; VF = [[120, 124], [128, 132]]; K0 = 136
    NG = OPT("AT_UNROLL", 2)
    tails = []
    k("s_and_b32 s25, s2, 7"); k("s_lshl_b32 s25, s25, 2"); k("s_bfe_u32 s26, s2, 0x20003"); k("s_add_u32 s25, s25, s26")
    k("s_lshr_b32 s38, s24, 2"); k("s_and_b32 s39, s24, 3")
    k("s_lshr_b32 s26, s2, 5"); k("s_lshl_b32 s26, s26, 3"); k("s_lshl_b32 s28, s39, 1"); k("s_add_u32 s26, s26, s28")
    k("s_lshl_b32 s27, s25, 16")
    k("s_lshr_b32 s28, s39, 1"); k("s_lshl_b32 s28, s28, 21"); k("s_add_u32 s30, s27, s28"); k(f"s_add_u32 s30, s30, {WS_K}")
    k("s_lshl_b32 s28, s38, 15"); k("s_add_u32 s30, s30, s28"); k("s_and_b32 s28, s39, 1"); k("s_lshl_b32 s28, s28, 10"); k("s_add_u32 s30, s30, s28")
    k("s_lshl_b32 s28, s24, 10")
    k("s_lshl_b32 s32, s26, 10"); k("s_add_u32 s32, s32, s27")
    k(f"s_add_u32 s33, s27, {WS_K}")
    k("s_mov_b32 m0, s28")
    k("s_waitcnt lgkmcnt(0)")
    srd(k, 20, 8, WS_SIZE)
    k(f"buffer_load_dwordx4 {vr(Q[0],4)}, v1, s[20:23], s32 offen")
    k(f"buffer_load_dwordx4 {vr(Q[1],4)}, v1, s[20:23], s32 offen offset:1024")
    k(f"buffer_load_dwordx4 {vr(K0,4)}, v1, s[20:23], s33 offen")
    for g in range(3):
        k("buffer_load_dwordx4 v1, s[20:23], s30 offen lds")
        k("s_add_u32 m0, m0, 8192"); k("s_add_u32 s30, s30, 2048")
    k("v_mov_b32 v13, 0"); k("v_mov_b32 v8, 0x3f803f80")
    k("ds_write_b32 v11, v13")
    k(f"v_add_u32 v9, {ONES - PROG + (1<<32)}, v11"); k("ds_write_b32 v9, v8")
    k("s_waitcnt lgkmcnt(0)"); k("s_barrier")
    if OPT("NOATTN"): k("s_endpgm")
    k("v_lshrrev_b32 v2, 5, v0"); k("v_lshlrev_b32 v2, 8, v2"); k("v_and_b32 v3, 15, v0"); k("v_lshl_add_u32 v2, v3, 4, v2")
    k("s_lshl_b32 s29, s38, 12")
    k("v_add_u32 v15, s29, v1")
    k("v_bfe_u32 v10, v0, 4, 1"); k("v_add_u32 v10, -1, v10")
    k(f"s_add_u32 s31, s29, {2048 - ONES + (1<<32)}")
    k("v_and_b32 v3, s31, v10"); k(f"v_add_u32 v3, {ONES}, v3"); k("v_add_u32 v3, v3, v2")
    k("v_and_b32 v12, 3, v0"); k("v_lshlrev_b32 v12, 8, v12"); k("v_lshl_add_u32 v12, v0, 2, v12")
    k(f"s_lshl_b32 s31, s38, 10"); k(f"s_add_u32 s31, s31, {PROG}"); k("v_add_u32 v12, s31, v12")
    k("s_xor_b32 s31, s24, 4"); k("s_lshl_b32 s31, s31, 8"); k(f"s_add_u32 s31, s31, {PROG - 128}")
    k("s_mov_b32 exec_lo, 0"); k("v_lshl_add_u32 v12, v0, 2, s31"); k("s_mov_b32 exec_lo, -1")
    k("s_mov_b32 s40, 0x0000ffff"); k("s_mov_b32 s41, 0x0000ffff")
    for r in range(4): k(f"v_mov_b32 v{VF[1][1]+r}, 0")
    for r in range(32): k(f"v_mov_b32 v{O[0]+r}, 0")
    for r in range(4, 8): k(f"v_mov_b32 v{P+r}, 0")
    k("v_mov_b32 v5, v3"); k("v_add_u32 v6, 8192, v15"); k("v_and_b32 v7, 8192, v10"); k("v_add_u32 v7, v7, v3")
    k("v_lshrrev_b32 v13, 5, v0"); k("v_add_u32 v13, 1, v13")
    k("s_waitcnt vmcnt(3)")
    k(f"{MF} {vr(S[0],16)}, {vr(K0,4)}, {vr(Q[0],4)}, 0")
    k(f"{MF} {vr(S[1],16)}, {vr(K0,4)}, {vr(Q[1],4)}, 0")
    k("s_waitcnt vmcnt(1)")
    k("ds_write_b32 v11, v13")
    k("s_mov_b32 s34, 1")
    k(f"v_max3_f32 v8, v{S[0]}, v{S[0]+1}, v{S[0]+2}")
    for i in range(3, 31, 2): k(f"v_max3_f32 v8, v8, v{S[0]+i}, v{S[0]+i+1}")
    k(f"v_max_f32 v8, v8, v{S[0]+31}")
    k("ds_read_b32 v14, v12")
    k("v_mov_b32 v9, v8"); k("v_permlane32_swap_b32 v8, v9"); k("v_max_f32 v8, v8, v9")
    for r in range(16): k(f"v_xor_b32 v{C+r}, 0x80000000, v8")
    k("s_waitcnt lgkmcnt(0)")
    k("v_cmp_le_u32 vcc, v13, v14"); k("s_setprio 1"); k("s_cmp_eq_u32 vcc_lo, -1"); k("s_cbranch_scc0 AP_SPIN")
    k.label("AP_CONT")
    def tail(tag="AP"):
        k.label(f"{tag}_SPIN"); k("s_sleep 1"); k("ds_read_b32 v14, v12"); k("s_waitcnt lgkmcnt(0)")
        k("v_cmp_le_u32 vcc, v13, v14"); k("s_cmp_eq_u32 vcc_lo, -1"); k(f"s_cbranch_scc0 {tag}_SPIN"); k(f"s_branch {tag}_CONT")
    tails.append(tail)
    k.stamp()
    k(f"ds_read_b128 {vr(KF[0],4)}, v15")
    k(f"ds_read_b128 {vr(VF[0][0],4)}, v5"); k(f"ds_read_b128 {vr(VF[0][1],4)}, v5 offset:512")
    k(f"ds_read_b128 {vr(KF[1],4)}, v15 offset:1024")
    k("s_mov_b32 s37, 16384")
    k("s_waitcnt lgkmcnt(3)")
    k(f"{MF} {vr(S[0],16)}, {vr(KF[0],4)}, {vr(Q[0],4)}, {vr(C,16)}")
    k("s_nop 10")
    k.label("AT_LOOP")
    for gi in range(NG):
      for t in range(2):
        for ab in range(2):
            Sa = S[ab]
            q = []
            def e(i, extra=None):
                k(f"v_exp_f32 v{Sa+i}, v{Sa+i}")
                if extra: k(extra)
                elif q: k(q.pop(0))
            c = lambda i: k(f"v_cvt_pk_bf16_f32 v{P+i}, v{Sa+2*i}, v{Sa+2*i+1}")
            if ab == 0:
                k(f"{MF} {vr(S[1],16)}, {vr(KF[t&1],4)}, {vr(Q[1],4)}, {vr(C,16)}")
                e(0, "ds_read_b32 v14, v12" if t == 0 else None); e(1); e(2); e(3)
                k(f"{MF} {vr(O[1],16)}, {vr(VF[(t+1)&1][1],4)}, {vr(P+4,4)}, {vr(O[1],16)}")
                va, vo = ("v5", 1024) if t == 0 else ("v7", 0)
                e(4, f"ds_read_b128 {vr(VF[(t+1)&1][0],4)}, {va} offset:{vo}")
                e(5)
                e(6, f"ds_read_b128 {vr(VF[(t+1)&1][1],4)}, {va} offset:{vo+512}")
                e(7); e(8)
                for i in range(4): c(i)
                e(9); e(10, "s_waitcnt lgkmcnt(4)")
                k(f"{MF} {vr(O[0],16)}, {vr(VF[t&1][0],4)}, {vr(P,4)}, {vr(O[0],16)}")
                e(11); e(12)
                e(13, "s_waitcnt lgkmcnt(2)")
                if t == 0:
                    k("v_cmp_le_u32 vcc, v13, v14")
                    e(14, "s_setprio 1" if OPT("BAL", 1) else None); e(15, "s_cmp_eq_u32 vcc_lo, -1")
                    if not OPT("X_NOSPIN"): k(f"s_cbranch_scc0 AT{gi}_SPIN")
                    k.label(f"AT{gi}_CONT")
                    k("v_add_u32 v13, 1, v13")
                    if OPT("BAL", 1):
                        k("s_cmp_eq_u32 vcc_hi, 0"); k(f"s_cbranch_scc1 AT{gi}_AHEAD"); k("s_setprio 2"); k.label(f"AT{gi}_AHEAD")
                    def tail(tag=f"AT{gi}"):
                        k.label(f"{tag}_SPIN"); k("s_sleep 1"); k("ds_read_b32 v14, v12"); k("s_waitcnt lgkmcnt(0)")
                        k("v_cmp_le_u32 vcc, v13, v14"); k("s_cmp_eq_u32 vcc_lo, -1"); k(f"s_cbranch_scc0 {tag}_SPIN"); k(f"s_branch {tag}_CONT")
                    tails.append(tail)
                else:
                    e(14); e(15)
                c(4); c(5); c(6); c(7)
            else:
                k(f"{MF} {vr(S[0],16)}, {vr(KF[(t+1)&1],4)}, {vr(Q[0],4)}, {vr(C,16)}")
                if t == 0:
                    e(0, "s_waitcnt vmcnt(0)"); e(1, "ds_write_b32 v11, v13")
                    e(2, f"ds_read_b128 {vr(KF[t&1],4)}, v6 offset:{t*1024}")
                    e(3, "s_cmp_ge_u32 s34, 14")
                else:
                    e(0, f"ds_read_b128 {vr(KF[t&1],4)}, v6 offset:{t*1024}"); e(1); e(2); e(3)
                k(f"{MF} {vr(O[0],16)}, {vr(VF[t&1][1],4)}, {vr(P+4,4)}, {vr(O[0],16)}")
                if t == 0:
                    k(f"s_cbranch_scc1 AT_NODMA{gi}")
                    if not OPT("X_NODMA"): k("buffer_load_dwordx4 v1, s[20:23], s30 offen lds")
                    k.label(f"AT_NODMA{gi}")
                    q += ["s_add_u32 s35, m0, 8192", "s_and_b32 m0, s35, 0xffff", "s_add_u32 s30, s30, 2048"]
                else:
                    q += ["s_add_u32 s34, s34, 1"]
                e(4); e(5); e(6); e(7); e(8)
                for i in range(4): c(i)
                e(9); e(10)
                k(f"{MF} {vr(O[1],16)}, {vr(VF[t&1][0],4)}, {vr(P,4)}, {vr(O[1],16)}")
                if t == 1:
                    k("v_mov_b32 v5, v7"); k("v_add_u32 v6, s37, v15"); k("v_and_b32 v7, s37, v10"); k("v_add_u32 v7, v7, v3")
                    q += ["s_add_u32 s37, s37, 8192", "s_and_b32 s37, s37, 0xffff", "s_cmp_lt_u32 s34, 17"]
                e(11); e(12); e(13); e(14); e(15)
                c(4); c(5); c(6); c(7)
    k("s_cbranch_scc1 AT_LOOP")
    k(f"{MF} {vr(O[1],16)}, {vr(VF[1][1],4)}, {vr(P+4,4)}, {vr(O[1],16)}")
    k.stamp()
    k("s_lshl_b32 s35, s39, 13")
    k("v_add_u32 v4, s35, v15")
    k("v_xor_b32 v5, 4096, v4")
    k("s_lshl_b32 s35, s39, 9"); k("s_add_u32 s35, s35, s29"); k("s_add_u32 s35, s35, 32768")
    k("v_lshl_add_u32 v6, v0, 2, s35"); k("v_xor_b32 v7, 4096, v6")
    k("s_lshl_b32 s35, s39, 2"); k(f"s_add_u32 s35, s35, {PAIR}"); k("v_mov_b32 v8, s35"); k("v_mov_b32 v9, 1")
    for ab in range(2):
        k(f"ds_write_b128 v4, {vr(O[ab],4)} offset:{ab*2048}"); k(f"ds_write_b128 v4, {vr(O[ab]+4,4)} offset:{ab*2048+1024}")
        k(f"ds_write_b32 v6, v{O[ab]+8} offset:{ab*256}")
    k("s_mov_b64 exec, 1")
    k("ds_add_rtn_u32 v9, v8, v9")
    k("s_mov_b64 exec, -1")
    for ab in range(2):
        k(f"ds_read_b128 {vr(S[ab],4)}, v5 offset:{ab*2048}"); k(f"ds_read_b128 {vr(S[ab]+4,4)}, v5 offset:{ab*2048+1024}")
        k(f"ds_read_b32 v{S[ab]+8}, v7 offset:{ab*256}")
    k("s_lshl_b32 s33, s26, 15"); k("s_lshl_b32 s34, s25, 10"); k("s_add_u32 s33, s33, s34"); k(f"s_add_u32 s33, s33, {WS_O}")
    k(f"v_mov_b32 v11, {lit(2.0**30)}"); k(f"v_mov_b32 v10, {lit(2.0**-30)}"); k(f"v_mov_b32 v14, 0x7f800000")
    k("s_waitcnt lgkmcnt(0)")
    k("v_readfirstlane_b32 s35, v9")
    k("s_cmp_eq_u32 s35, 0"); k("s_cbranch_scc1 AT_EXIT")
    for ab in range(2):
        for r in range(9): k(f"v_add_f32 v{O[ab]+r}, v{O[ab]+r}, v{S[ab]+r}")
    k(f"v_add_f32 v8, |v{O[0]}|, |v{O[1]}|")
    for ab in range(2):
        for i in range(1, 8): k(f"v_add_f32 v8, v8, |v{O[ab]+i}|")
    k(f"v_cmp_gt_f32 s[42:43], v14, v8")
    for ab in range(2):
        k(f"v_cmp_gt_f32 s[44:45], v11, v{O[ab]+8}"); k(f"v_cmp_lt_f32 s[46:47], v10, v{O[ab]+8}")
        k("s_and_b64 s[42:43], s[42:43], s[44:45]"); k("s_and_b64 s[42:43], s[42:43], s[46:47]")
    k("s_cmp_eq_u64 s[42:43], -1")
    k("s_cbranch_scc0 AT_SLOW")
    k.label("AT_FIN")
    k("s_add_u32 s34, s33, 32768")
    k(f"v_rcp_f32 v8, v{O[0]+8}"); k(f"v_rcp_f32 v9, v{O[1]+8}")
    for ab in range(2):
        for i in range(8): k(f"v_mul_f32 v{O[ab]+i}, v{8+ab}, v{O[ab]+i}")
        for i in range(4): k(f"v_cvt_pk_bf16_f32 v{P+4*ab+i}, v{O[ab]+2*i}, v{O[ab]+2*i+1}")
        k(f"buffer_store_dwordx4 {vr(P+4*ab,4)}, v1, s[20:23], s{33+ab} offen sc1")
    k("s_lshl_b32 s35, s26, 9"); k("s_lshr_b32 s36, s25, 3"); k("s_lshl_b32 s36, s36, 8"); k("s_add_u32 s35, s35, s36")
    k("s_and_b32 s36, s25, 7"); k("s_lshl_b32 s36, s36, 2"); k("s_add_u32 s35, s35, s36"); k(f"s_add_u32 s35, s35, {OFLAG}")
    k("v_mov_b32 v8, 0"); k("v_mov_b32 v9, 1")
    k("s_mov_b64 exec, 1")
    k("s_waitcnt vmcnt(0)")
    k("buffer_store_dword v9, v8, s[20:23], s35 offen sc1")
    k("s_mov_b64 exec, -1")
    k.label("AT_EXIT")
    finish(k, 8)
    for t in tails: t()
    k.label("AT_SLOW")
    k(f"s_add_u32 s30, s27, {WS_K}"); k(f"s_add_u32 s31, s27, {WS_V}")
    for r in range(8): k(f"v_mov_b32 v{VF[0][0]+r}, 0x3f803f80")
    for ab in range(2):
        k("v_mov_b32 v8, 0xff800000"); k("s_mov_b32 s34, 0")
        k.label(f"AT_S1{ab}")
        k("s_add_u32 s36, s30, s34")
        k(f"buffer_load_dwordx4 {vr(KF[0],4)}, v1, s[20:23], s36 offen")
        k("s_waitcnt vmcnt(0)")
        k(f"{MF} {vr(S[0],16)}, {vr(KF[0],4)}, {vr(Q[ab],4)}, 0")
        for i in range(0, 16, 2): k(f"v_max3_f32 v8, v8, v{S[0]+i}, v{S[0]+i+1}")
        k("s_add_u32 s34, s34, 1024"); k("s_cmp_lt_u32 s34, 65536"); k(f"s_cbranch_scc1 AT_S1{ab}")
        k("v_mov_b32 v9, v8"); k("v_permlane32_swap_b32 v8, v9"); k("v_max_f32 v8, v8, v9")
        for r in range(16): k(f"v_xor_b32 v{C+r}, 0x80000000, v8")
        for r in range(16): k(f"v_mov_b32 v{O[ab]+r}, 0")
        k("s_mov_b32 s34, 0")
        k.label(f"AT_S2{ab}")
        k("s_add_u32 s36, s30, s34"); k("s_add_u32 s35, s31, s34")
        k(f"buffer_load_dwordx4 {vr(KF[0],4)}, v1, s[20:23], s36 offen")
        k("s_mov_b64 exec, s[40:41]")
        k(f"buffer_load_dwordx4 {vr(VF[0][0],4)}, v2, s[20:23], s35 offen")
        k(f"buffer_load_dwordx4 {vr(VF[0][1],4)}, v2, s[20:23], s35 offen offset:512")
        k("s_mov_b64 exec, -1")
        k("s_waitcnt vmcnt(0)")
        k(f"{MF} {vr(S[0],16)}, {vr(KF[0],4)}, {vr(Q[ab],4)}, {vr(C,16)}")
        for i in range(16): k(f"v_exp_f32 v{S[0]+i}, v{S[0]+i}")
        for i in range(8): k(f"v_cvt_pk_bf16_f32 v{P+i}, v{S[0]+2*i}, v{S[0]+2*i+1}")
        k(f"{MF} {vr(O[ab],16)}, {vr(VF[0][0],4)}, {vr(P,4)}, {vr(O[ab],16)}")
        k(f"{MF} {vr(O[ab],16)}, {vr(VF[0][1],4)}, {vr(P+4,4)}, {vr(O[ab],16)}")
        k("s_nop 15")
        k("s_add_u32 s34, s34, 1024"); k("s_cmp_lt_u32 s34, 65536"); k(f"s_cbranch_scc1 AT_S2{ab}")
    k("s_branch AT_FIN")

def gpoll(k, tag, saddr, sleep):
    k("s_mov_b32 s28, 0")
    k.label(f"{tag}_POLL")
    k(f"buffer_load_dword v4, v3, s[20:23], {saddr} offen sc1")
    k("s_waitcnt vmcnt(0)")
    k("v_cmp_eq_u32 vcc, 1, v4")
    k("s_cmp_eq_u64 vcc, -1")
    k(f"s_cbranch_scc1 {tag}_GO")
    k(f"s_sleep {sleep}")
    k("s_add_u32 s28, s28, 1"); k("s_cmp_lt_u32 s28, 0x100000")
    k(f"s_cbranch_scc1 {tag}_POLL")
    k.label(f"{tag}_GO")

def gemm_part(k):
    WF = 16; XF = 32; ACC = 48; DV = 160
    GP = OPT("GPRIO")
    tails = []
    k("s_setprio 3")
    k("s_load_dwordx2 s[48:49], s[0:1], 48")
    k("s_load_dwordx2 s[50:51], s[0:1], 0")
    k("s_load_dwordx2 s[56:57], s[0:1], 16")
    k("s_load_dwordx2 s[58:59], s[0:1], 56")
    k("v_mov_b32 v13, 0")
    k("ds_write_b32 v11, v13")
    k(f"v_lshlrev_b32 v2, 2, v0"); k(f"v_add_u32 v2, {PAIR}, v2"); k("ds_write_b32 v2, v13")
    k("s_sub_u32 s25, s24, 8")
    k("s_mov_b32 s60, 0x7fffffff")
    k("s_and_b32 s27, s2, 7")
    k("s_lshr_b32 s52, s2, 5"); k("s_lshl_b32 s52, s52, 1"); k("s_lshr_b32 s29, s27, 2"); k("s_add_u32 s52, s52, s29")
    k("s_and_b32 s26, s27, 3"); k("s_lshl_b32 s26, s26, 2"); k("s_bfe_u32 s29, s2, 0x20003"); k("s_add_u32 s26, s26, s29")
    k("s_lshl_b32 s30, s52, 2"); k("s_add_u32 s30, s30, s25")
    k("s_waitcnt lgkmcnt(0)"); k("s_barrier")
    if OPT("NOGEMM"): k("s_endpgm")
    for i in range(7):
        k(f"v_add_u32 v2, {64*i}, v0")
        k("v_mul_u32_u24 v3, 4682, v2"); k("v_lshrrev_b32 v3, 16, v3")
        k("v_mul_u32_u24 v4, 14, v3"); k("v_sub_u32 v4, v2, v4")
        k("v_mul_u32_u24 v3, 3584, v3"); k(f"v_lshl_add_u32 v{DV+i}, v4, 4, v3")
    k("s_and_b32 s31, s25, 1"); k("s_mul_i32 s32, s31, 114688"); k("s_mul_i32 s33, s26, 224"); k("s_add_u32 s32, s32, s33")
    k("s_mul_i32 s33, s31, 7168"); k("s_lshr_b32 s34, s25, 1"); k(f"s_mul_i32 s34, s34, {UP_W3OFF}"); k("s_add_u32 s33, s33, s34"); k(f"s_add_u32 s33, s33, {GB}")
    k("s_lshl_b32 s35, s30, 15"); k(f"s_add_u32 s35, s35, {WS_XN}")
    k("s_cmp_lt_u32 s25, 2"); k("s_cselect_b32 s10, s4, s6"); k("s_cselect_b32 s11, s5, s7")
    srd(k, 12, 10, 512 * 3584); srd(k, 20, 8, WS_SIZE)
    def dma():
        out = []
        for i in range(7):
            out.append(f"s_add_u32 m0, s36, {i*1024}")
            out.append(f"buffer_load_dwordx4 v{DV+i}, s[12:15], {'s60' if OPT('X_UPOOB') else 's32'} offen lds")
        return out
    for ch in range(2):
        k(f"s_add_u32 s36, s33, {ch*UP_SLOT}")
        for x in dma(): k(x)
        k("s_add_u32 s32, s32, 229376")
        for s in ([0, 1, 2] if ch == 0 else [3]): k(f"buffer_load_dwordx4 {vr(XF+4*s,4)}, v1, s[20:23], s35 offen offset:{s*1024}")
    k("s_add_u32 s35, s35, 4096")
    k("v_lshrrev_b32 v2, 5, v0"); k("v_lshlrev_b32 v2, 3, v2"); k("v_bfe_u32 v3, v0, 2, 2"); k("v_add_u32 v2, v2, v3")
    k("v_mul_u32_u24 v2, 224, v2"); k("v_bfe_u32 v3, v0, 4, 1"); k(f"v_mul_u32_u24 v3, {UP_W3OFF}, v3"); k("v_add_u32 v2, v2, v3")
    k("v_and_b32 v3, 3, v0"); k("v_lshl_add_u32 v8, v3, 3, v2"); k(f"v_add_u32 v8, {GB}, v8")
    k("v_and_b32 v12, 3, v0"); k("v_lshlrev_b32 v12, 8, v12"); k("v_lshl_add_u32 v12, v0, 2, v12"); k(f"v_add_u32 v12, {PROG + 2048}, v12")
    for r in range(112): k(f"v_mov_b32 v{ACC+r}, 0")
    k("v_mov_b32 v9, v8"); k(f"v_add_u32 v10, {UP_SLOT}, v8")
    k(f"s_mov_b32 s37, {2*UP_SLOT}")
    k("s_mov_b32 s39, 1"); k("v_mov_b32 v13, 1")
    k("s_waitcnt vmcnt(11)")
    k("ds_write_b32 v11, v13"); k("ds_read_b32 v14, v12"); k("s_waitcnt lgkmcnt(0)")
    tails.append(softcheck(k, "UB", "s39", "v14", "v12"))
    k("v_mov_b32 v13, 2")
    k(f"s_setprio {GP}")
    k.stamp()
    def rd(m, areg):
        s, j = divmod(m, 7); o = s*3584 + j*32; d = WF + 4*(m & 3)
        return [f"ds_read_b64_tr_b16 {vr(d,2)}, {areg} offset:{o}", f"ds_read_b64_tr_b16 {vr(d+2,2)}, {areg} offset:{o+896}"]
    for m in range(4):
        for x in rd(m, "v9"): k(x)
    k.label("UP_LOOP")
    extra = []
    for m in range(28):
        s, j = divmod(m, 7)
        if j == 0: k(f"s_waitcnt vmcnt({10 if s < 3 else 3})")
        cnt = 6
        if m in (17, 18, 19, 20): cnt = 7
        if m in (22, 23): cnt = 7
        if m == 24:
            k("s_waitcnt lgkmcnt(4)")
            k("s_add_u32 s39, s39, 1")
            k("s_setprio 3")
            tails.append(softcheck(k, "UP", "s39", "v14", "v12"))
            k("v_add_u32 v13, 1, v13")
            k(f"s_setprio {GP}")
            k("s_add_u32 s36, s33, s37")
            extra = dma()
        else:
            k(f"s_waitcnt lgkmcnt({cnt})")
        a = vr(ACC + 16*j, 16)
        k(f"{MF} {a}, {vr(WF+4*(m&3),4)}, {vr(XF+4*s,4)}, {a}")
        for x in (rd(m+4, "v9") if m < 24 else rd(m+4-28, "v10")): k(x)
        if m == 16:
            k("s_waitcnt vmcnt(3)"); k("ds_write_b32 v11, v13")
        if m == 21: k("ds_read_b32 v14, v12")
        if m >= 24:
            for x in extra[4*(m-24):4*(m-24)+4]: k(x)
        if j == 6: k(f"buffer_load_dwordx4 {vr(XF+4*s,4)}, v1, s[20:23], s35 offen offset:{s*1024}")
    k("s_setprio 3")
    k("v_mov_b32 v9, v10"); k("v_add_u32 v10, s37, v8")
    k(f"s_setprio {GP}")
    k("s_add_u32 s35, s35, 4096"); k("s_add_u32 s32, s32, 229376")
    k(f"s_add_u32 s37, s37, {UP_SLOT}"); k(f"s_cmp_eq_u32 s37, {3*UP_SLOT}"); k("s_cselect_b32 s37, 0, s37")
    k("s_cmp_lt_u32 s39, 9"); k("s_cbranch_scc1 UP_LOOP")
    k.stamp()
    k("s_setprio 3")
    k("s_mul_i32 s40, s30, 112"); k("s_mul_i32 s41, s26, 7"); k("s_add_u32 s40, s40, s41"); k("s_lshl_b32 s40, s40, 10"); k(f"s_add_u32 s40, s40, {WS_H}")
    k("s_add_u32 s41, s40, 4096")
    k("s_waitcnt vmcnt(0) lgkmcnt(0)")
    k("ds_write_b32 v11, v13")
    NL2E = lit(-1.4426950408889634)
    for j in range(7):
        a = ACC + 16*j; t = 16 + (j & 1)*12
        for r in range(8): k(f"v_mul_f32 v{t+r}, {NL2E}, v{a+r}")
        for r in range(8): k(f"v_exp_f32 v{t+r}, v{t+r}")
        for r in range(8): k(f"v_mul_f32 v{a+r}, v{a+r}, v{a+8+r}")
        for r in range(8): k(f"v_add_f32 v{t+r}, 1.0, v{t+r}")
        for r in range(8): k(f"v_rcp_f32 v{t+r}, v{t+r}")
        for r in range(8): k(f"v_mul_f32 v{a+r}, v{a+r}, v{t+r}")
        for r in range(4): k(f"v_cvt_pk_bf16_f32 v{t+8+r}, v{a+2*r}, v{a+2*r+1}")
        k(f"buffer_store_dwordx4 {vr(t+8,4)}, v1, s[20:23], s{40 + (j>>2)} offen offset:{(j&3)*1024} sc1")
    k.stamp()
    ACD = 48; TF = 112; WD = [16, 24]; EP = 144
    k("s_lshl_b32 s53, s52, 1"); k("s_lshr_b32 s28, s26, 3"); k("s_add_u32 s53, s53, s28"); k("s_and_b32 s54, s26, 7")
    srd(k, 12, 48, 1792 * 1024); srd(k, 16, 50, 2048 * 1024)
    k("v_lshrrev_b32 v2, 3, v0"); k("v_lshlrev_b32 v2, 10, v2")
    k("v_bfe_u32 v3, v0, 2, 1"); k("v_bfe_u32 v4, v0, 4, 1"); k("v_xor_b32 v3, v3, v4"); k("v_lshl_add_u32 v2, v3, 6, v2")
    k("v_and_b32 v3, 3, v0"); k("v_lshl_add_u32 v2, v3, 4, v2")
    k("s_lshl_b32 s32, s25, 14"); k(f"s_add_u32 s32, s32, {GB}")
    k("v_lshrrev_b32 v3, 5, v0"); k("v_lshlrev_b32 v3, 2, v3"); k("v_bfe_u32 v4, v0, 2, 2"); k("v_add_u32 v3, v3, v4"); k("v_lshlrev_b32 v3, 7, v3")
    k("v_bfe_u32 v4, v0, 3, 1"); k("v_lshl_add_u32 v3, v4, 6, v3")
    k("v_bfe_u32 v4, v0, 4, 1"); k("v_lshl_add_u32 v3, v4, 5, v3"); k("v_and_b32 v4, 3, v0"); k("v_lshl_add_u32 v3, v4, 3, v3")
    k("v_xor_b32 v4, 64, v3"); k("v_add_u32 v5, s32, v3"); k("v_add_u32 v6, s32, v4")
    k("v_add_u32 v9, 8192, v5"); k("v_add_u32 v10, 8192, v6")
    k(f"s_mul_i32 s33, s25, {28*16384}"); k("s_lshl_b32 s34, s54, 7"); k("s_add_u32 s33, s33, s34")
    k(f"s_mul_i32 s34, s53, {2*112*1024}"); k(f"s_mul_i32 s35, s25, {28*1024}"); k("s_add_u32 s34, s34, s35"); k(f"s_add_u32 s34, s34, {WS_H}")
    k(f"s_add_u32 s35, s34, {112*1024}")
    k("s_lshr_b32 s38, s30, 1"); k("s_lshl_b32 s38, s38, 10"); k("s_lshr_b32 s28, s26, 2"); k("s_lshl_b32 s28, s28, 8"); k("s_add_u32 s38, s38, s28")
    k("s_and_b32 s28, s26, 3"); k("s_lshl_b32 s28, s28, 3"); k("s_add_u32 s38, s38, s28"); k("s_and_b32 s28, s30, 1"); k("s_lshl_b32 s28, s28, 2")
    k("s_add_u32 s38, s38, s28"); k(f"s_add_u32 s38, s38, {HFLAG}")
    k("v_mov_b32 v3, 0"); k("v_mov_b32 v4, 1")
    k("ds_read_b32 v14, v12")
    for r in range(64): k(f"v_mov_b32 v{ACD+r}, 0")
    k("s_mov_b64 exec, 1")
    k("s_waitcnt vmcnt(0)")
    k("buffer_store_dword v4, v3, s[20:23], s38 offen sc1")
    k("s_mov_b64 exec, -1")
    k("s_waitcnt lgkmcnt(0)"); k("s_mov_b32 s39, 10")
    tails.append(softcheck(k, "U9", "s39", "v14", "v12"))
    def wdma(slot):
        return [f"s_add_u32 m0, s36, {slot*2048}", "s_add_u32 s37, s33, 8192",
                "buffer_load_dwordx4 v2, s[12:15], s33 offen lds",
                f"s_add_u32 m0, s36, {slot*2048+1024}", "s_add_u32 s33, s33, 16384",
                "buffer_load_dwordx4 v2, s[12:15], s37 offen lds"]
    k("s_mov_b32 s36, s32")
    for s in range(7):
        for x in wdma(s): k(x)
    k("v_lshrrev_b32 v7, 2, v0"); k("v_and_b32 v8, 3, v0")
    k("s_lshl_b32 s38, s53, 6"); k("s_lshl_b32 s55, s25, 4"); k("s_add_u32 s38, s38, s55")
    k("v_lshlrev_b32 v152, 10, v7"); k("v_lshl_add_u32 v152, v8, 5, v152")
    k("s_lshl_b32 s40, s38, 10"); k("s_lshl_b32 s41, s54, 7"); k("s_add_u32 s40, s40, s41")
    for i in range(2): k(f"buffer_load_dwordx4 {vr(EP+4*i,4)}, v152, s[16:19], s40 offen offset:{16*i}")
    k.stamp()
    k("s_lshl_b32 s38, s53, 10"); k("s_lshl_b32 s28, s25, 8"); k("s_add_u32 s38, s38, s28"); k(f"s_add_u32 s45, s38, {OFLAG}"); k(f"s_add_u32 s38, s38, {HFLAG}")
    k("v_and_b32 v3, 7, v0"); k("v_lshlrev_b32 v3, 2, v3")
    gpoll(k, "DH", "s38", 4)
    k.stamp()
    def tload(s):
        return [f"buffer_load_dwordx4 {vr(TF+8*s,4)}, v1, s[20:23], s34 offen offset:{s*1024} sc1",
                f"buffer_load_dwordx4 {vr(TF+8*s+4,4)}, v1, s[20:23], s35 offen offset:{s*1024} sc1"]
    for s in range(4):
        for x in tload(s): k(x)
    def wreads(slot, buf, other):
        a0, a1 = ("v9", "v10") if other else ("v5", "v6")
        o = slot * 2048
        return [f"ds_read_b64_tr_b16 {vr(WD[buf],2)}, {a0} offset:{o}", f"ds_read_b64_tr_b16 {vr(WD[buf]+2,2)}, {a0} offset:{o+1024}",
                f"ds_read_b64_tr_b16 {vr(WD[buf]+4,2)}, {a1} offset:{o}", f"ds_read_b64_tr_b16 {vr(WD[buf]+6,2)}, {a1} offset:{o+1024}"]
    def mfl(buf, tf):
        out = []
        for a in range(2):
            for b in range(2):
                c = vr(ACD + (a*2+b)*16, 16)
                out.append(f"{MF} {c}, {vr(WD[buf]+4*b,4)}, {vr(tf+4*a,4)}, {c}")
        return out
    for x in wreads(0, 0, False): k(x)
    k("s_mov_b32 s42, 0"); k("s_mov_b32 s43, 0x7fffffff")
    k("s_add_u32 s44, s32, 8192")
    k(f"s_setprio {GP}")
    k("s_waitcnt vmcnt(0)")
    k.label("DN_LOOP")
    k("s_add_u32 s34, s34, 4096"); k("s_add_u32 s35, s35, 4096")
    k("s_cmp_lt_u32 s42, 24"); k("s_cselect_b32 s34, s34, s43"); k("s_cselect_b32 s35, s35, s43")
    for s in range(4):
        k("s_waitcnt vmcnt(14) lgkmcnt(0)")
        for x in interleave(mfl(s & 1, TF + 8*s), wreads((s+1) & 3, (s+1) & 1, s == 3)): k(x)
        for x in tload(s): k(x)
        k(f"s_cmp_lt_u32 s42, {21 - s}"); k("s_cselect_b32 s33, s33, s43")
        w = wdma(3 if s == 0 else s-1)
        if s == 0: w = [x.replace("s36", "s44") for x in w]
        for x in w: k(x)
    k("s_setprio 3")
    k("v_swap_b32 v5, v9"); k("v_swap_b32 v6, v10")
    k(f"s_setprio {GP}")
    k("s_mov_b32 s28, s36"); k("s_mov_b32 s36, s44"); k("s_mov_b32 s44, s28")
    k("s_add_u32 s42, s42, 4"); k("s_cmp_lt_u32 s42, 28"); k("s_cbranch_scc1 DN_LOOP")
    k.stamp()
    k("s_setprio 3")
    k("s_waitcnt vmcnt(0) lgkmcnt(0)")
    srd(k, 12, 56, 512 * 1024); srd(k, 16, 58, 2048 * 1024)
    k(f"s_lshl_b32 s33, s25, 17"); k("s_lshl_b32 s34, s54, 7"); k("s_add_u32 s33, s33, s34")
    k("s_mov_b32 s36, s32")
    for s in range(8):
        for x in wdma(s): k(x)
    k("v_swap_b32 v5, v9"); k("v_swap_b32 v6, v10")
    k(f"s_lshl_b32 s34, s53, 16"); k("s_lshl_b32 s35, s25, 13"); k("s_add_u32 s34, s34, s35"); k(f"s_add_u32 s34, s34, {WS_O}")
    k("s_add_u32 s35, s34, 32768"); k("s_add_u32 s46, s34, 4096"); k("s_add_u32 s47, s35, 4096")
    for r in range(8):
        k(f"v_lshlrev_b32 v{32+2*r}, 16, v{EP+r}"); k(f"v_and_b32 v{33+2*r}, 0xffff0000, v{EP+r}")
    k("v_and_b32 v153, 31, v0"); k("v_mul_u32_u24 v153, 272, v153"); k("v_lshrrev_b32 v4, 5, v0"); k("v_lshl_add_u32 v153, v4, 4, v153")
    k("s_mul_i32 s44, s25, 17408"); k(f"s_add_u32 s44, s44, {GB}"); k("v_add_u32 v153, s44, v153")
    k("v_add_u32 v154, s55, v7"); k("v_mul_u32_u24 v154, 272, v154"); k("v_lshl_add_u32 v154, v8, 6, v154"); k(f"v_add_u32 v154, {GB}, v154")
    k("s_waitcnt vmcnt(0)")
    for x in wreads(0, 0, False): k(x)
    gpoll(k, "DO", "s45", 2)
    k.stamp()
    TO = [112, 120, 128, 136, 144, 156, 112, 120]
    def oload(s):
        sa, sb = ("s34", "s35") if s < 4 else ("s46", "s47")
        t = TO[s]
        return [f"buffer_load_dwordx4 {vr(t,4)}, v1, s[20:23], {sa} offen offset:{(s&3)*1024} sc1",
                f"buffer_load_dwordx4 {vr(t+4,4)}, v1, s[20:23], {sb} offen offset:{(s&3)*1024} sc1"]
    for s in range(6):
        for x in oload(s): k(x)
    for s in range(8):
        left = (5 - s) * 2 + (2 * min(s, 2)) if s < 6 else (7 - s) * 2
        k(f"s_waitcnt vmcnt({left}) lgkmcnt(0)")
        rdl = wreads(s+1, (s+1) & 1, False) if s < 7 else []
        for x in interleave(mfl(s & 1, TO[s]), rdl): k(x)
        if s < 2:
            for x in oload(6 + s): k(x)
    k("v_add_u32 v13, 1, v13"); k("ds_write_b32 v11, v13")
    k("ds_read_b32 v14, v12"); k("s_waitcnt lgkmcnt(0)"); k("s_mov_b32 s39, 11")
    tails.append(softcheck(k, "DB", "s39", "v14", "v12"))
    k.stamp()
    for a in range(2):
        for b in range(2):
            for q in range(4):
                k(f"ds_write_b128 v153, {vr(ACD + (a*2+b)*16 + 4*q, 4)} offset:{a*32*272 + (8*b + 2*q)*16}")
    k("v_add_u32 v13, 1, v13"); k("ds_write_b32 v11, v13")
    k("ds_read_b32 v14, v12"); k("s_waitcnt lgkmcnt(0)"); k("s_mov_b32 s39, 12")
    tails.append(softcheck(k, "DC", "s39", "v14", "v12"))
    for p in range(4):
        for i in range(4): k(f"ds_read_b128 {vr(ACD + p*16 + 4*i, 4)}, v154 offset:{p*17408 + 16*i}")
    k("s_waitcnt lgkmcnt(8)")
    for r in range(16): k(f"v_add_f32 v{ACD+r}, v{ACD+r}, v{32+r}")
    for r in range(16): k(f"v_add_f32 v{ACD+r}, v{ACD+r}, v{ACD+16+r}")
    k("s_waitcnt lgkmcnt(0)")
    for r in range(16): k(f"v_add_f32 v{ACD+32+r}, v{ACD+32+r}, v{ACD+48+r}")
    for r in range(16): k(f"v_add_f32 v{ACD+r}, v{ACD+r}, v{ACD+32+r}")
    for r in range(8): k(f"v_cvt_pk_bf16_f32 v{16+r}, v{ACD+2*r}, v{ACD+2*r+1}")
    for i in range(2): k(f"buffer_store_dwordx4 {vr(16+4*i,4)}, v152, s[16:19], s40 offen offset:{16*i}")
    finish(k, 2)
    for t in tails: t()
```

```python
import sys
from common import *
from k1 import gen_k1
from k2 import gen_k2
a, b = gen_k1(), gen_k2()
build_file([a, b], "../var_a.s")
build_file([a, b], "../var_b.s", order=[a, b, a, b])
build_file([a, b], "../var_c.s", order=[a, a, b])
def empty(i):
    k = Kern(f"e{i}_kernel", 256, 256, 0, 32, 32); k("s_endpgm"); return k
e = empty(0)
build_file([a, b, e], "../var_d.s", order=[e, a, b])
```

```python
import re

TRANS = ("v_exp_", "v_log_", "v_rcp_", "v_rsq_", "v_sqrt_", "v_sin_", "v_cos_")
_REG = re.compile(r"^(-|\|)?(abs\()?([vas])(\d+|\[(\d+):(\d+)\])\)?\|?$")


def regs_of(op):
    op = op.strip()
    if op in ("vcc", "exec"):
        return {(op, 0), (op, 1)}
    if op in ("vcc_lo", "exec_lo"):
        return {(op[:-3], 0)}
    if op in ("vcc_hi", "exec_hi"):
        return {(op[:-3], 1)}
    if op == "m0":
        return {("m0", 0)}
    m = _REG.match(op)
    if not m:
        return set()
    t = m.group(3)
    if m.group(5) is not None:
        return {(t, i) for i in range(int(m.group(5)), int(m.group(6)) + 1)}
    return {(t, int(m.group(4)))}


class Ins:
    __slots__ = ("text", "mn", "ops", "cls", "wr", "rd", "passes", "srcc", "ab", "ws", "label", "target", "data", "mods")

    def __init__(self, text):
        self.text = text
        self.label = None
        self.target = None
        self.wr = set(); self.rd = set(); self.srcc = set(); self.ab = set(); self.data = set()
        self.passes = 0
        self.ws = 1
        t = text.split(";")[0].strip()
        if t.endswith(":"):
            self.label = t[:-1]; self.cls = "label"; self.mn = ""; self.ws = 0; self.ops = []
            return
        if t.startswith(".") or not t:
            self.cls = "dir"; self.mn = ""; self.ws = 0; self.ops = []
            return
        parts = t.split(None, 1)
        mn = parts[0]; self.mn = mn
        rest = parts[1] if len(parts) > 1 else ""
        ops = []; cur = ""; depth = 0
        for ch in rest:
            if ch in "[(": depth += 1
            if ch in "])": depth -= 1
            if ch == "," and depth == 0:
                ops.append(cur.strip()); cur = ""
            else:
                cur += ch
        if cur.strip(): ops.append(cur.strip())
        mods = ""
        if ops:
            sp = ops[-1].split(None, 1)
            ops[-1] = sp[0]
            if len(sp) > 1: mods = sp[1]
        self.ops = ops; self.mods = mods
        R = [regs_of(o) for o in ops]
        if mn.startswith("v_mfma"):
            self.cls = "mfma"
            self.passes = 8 if "32x32x16" in mn else 4 if "16x16x32" in mn else 16
            self.wr = R[0]; self.ab = R[1] | R[2]; self.srcc = R[3]; self.rd = self.ab | self.srcc
        elif mn.startswith("v_"):
            self.cls = "trans" if mn.startswith(TRANS) else "valu"
            if mn.startswith("v_cmp"):
                self.wr = R[0]; self.rd = set().union(*R[1:])
                if mn.startswith("v_cmpx"): self.wr = self.wr | regs_of("exec")
            elif "permlane" in mn and "swap" in mn:
                self.wr = R[0] | R[1]; self.rd = R[0] | R[1]
            elif mn.startswith(("v_add_co", "v_sub_co", "v_addc_co", "v_subb_co", "v_subrev_co", "v_mad_u64", "v_div_scale")):
                self.wr = R[0] | R[1]; self.rd = set().union(*R[2:])
            else:
                self.wr = R[0]; self.rd = set().union(*R[1:]) if len(R) > 1 else set()
                if mn.startswith(("v_fmac", "v_dot2c", "v_mac", "v_pk_fmac", "v_writelane")) or "UNUSED_PRESERVE" in mods:
                    self.rd = self.rd | R[0]
                if mn.startswith("v_cndmask") and len(ops) == 3: self.rd |= regs_of("vcc")
        elif mn.startswith("ds_"):
            self.cls = "ds"
            if mn.startswith(("ds_read", "ds_bpermute", "ds_permute", "ds_swizzle")) or "_rtn" in mn:
                self.wr = R[0]; self.rd = set().union(*R[1:])
            else:
                self.rd = set().union(*R)
        elif mn.startswith(("buffer_", "global_")):
            self.cls = "vmem"
            islds = (" lds" in " " + mods) or "load_lds" in mn
            if mn in ("buffer_inv", "buffer_wbl2"):
                pass
            elif "load" in mn and not islds:
                self.wr = R[0]; self.rd = set().union(*R[1:])
            elif "load" in mn:
                self.rd = set().union(*R) | {("m0", 0)}; self.cls = "dma"
            else:
                self.rd = set().union(*R)
                d = R[0] if mn.startswith("buffer_") else R[1]
                if "x4" in mn or "x3" in mn: self.data = d
                if "atomic" in mn and "sc0" in mods:
                    self.wr = R[0]
        elif mn.startswith("s_"):
            self.cls = "salu"
            if mn == "s_nop":
                self.ws = int(ops[0], 0) + 1
            elif mn.startswith(("s_cbranch", "s_branch")):
                self.target = ops[0]; self.cls = "branch"
            elif mn.startswith(("s_cmp", "s_waitcnt", "s_barrier", "s_setprio", "s_sleep", "s_endpgm", "s_bitcmp")):
                self.rd = set().union(*R) if R else set()
            elif mn.startswith(("s_load", "s_buffer_load", "s_memtime", "s_memrealtime")):
                self.cls = "smem"; self.wr = R[0]; self.rd = set().union(*R[1:]) if len(R) > 1 else set()
            else:
                self.wr = R[0]; self.rd = set().union(*R[1:]) if len(R) > 1 else set()
                if "saveexec" in mn: self.wr = self.wr | regs_of("exec")
        else:
            raise ValueError("unknown instruction: " + text)


def isv(r): return r[0] in ("v", "a")
def iss(r): return r[0] in ("s", "vcc")


def need(prev, cur):
    n = 0
    pv = prev.cls in ("valu", "trans")
    cv = cur.cls in ("valu", "trans")
    if pv:
        wv = {r for r in prev.wr if isv(r)}
        wsg = {r for r in prev.wr if iss(r)}
        if cur.cls == "mfma" and wv & cur.rd: n = max(n, 2)
        if prev.cls == "trans" and cur.cls == "valu" and wv & cur.rd: n = max(n, 1)
        if prev.cls == "trans" and cur.cls in ("vmem", "ds", "dma") and wv & cur.rd: n = max(n, 1)
        if cur.cls in ("vmem", "dma") and wsg & cur.rd: n = max(n, 5)
        if cv and wsg & cur.rd:
            n = max(n, 4 if cur.mn.startswith(("v_readlane", "v_writelane")) else 2)
        if cur.mn.startswith(("v_readfirstlane", "v_readlane")) and wv & cur.rd: n = max(n, 1)
        if cv and ("permlane" in cur.mn or "dpp" in cur.mn or "row_" in cur.mods or "quad_perm" in cur.mods) and wv & cur.rd: n = max(n, 2)
        if prev.mn.startswith("v_dot") and cur.cls != "salu" and cur.mn != prev.mn and wv & (cur.rd | cur.wr): n = max(n, 3)
        if prev.mn.startswith("v_dot") and cur.mn == prev.mn and wv & (cur.rd - cur.wr): n = max(n, 3)
        if ("sdwa" in prev.mn or "op_sel:" in prev.mods) and cv and wv & (cur.rd | cur.wr): n = max(n, 1)
        if ("exec", 0) in prev.wr or ("exec", 1) in prev.wr:
            if cur.cls == "mfma": n = max(n, 4)
            if "permlane" in cur.mn or cur.mn.startswith(("v_readlane", "v_readfirstlane", "v_writelane")): n = max(n, 4)
            if "dpp" in cur.mn: n = max(n, 5)
        if cur.cls == "salu" and wsg & cur.rd: n = max(n, 1)
        if cur.cls == "branch" and "vcc" in cur.mn and ("vcc", 0) in prev.wr: n = max(n, 5)
    if prev.cls == "mfma":
        p = prev.passes
        big = {2: 5, 4: 8, 8: 12, 16: 20}[p]
        if cur.cls == "mfma":
            if prev.wr & cur.ab: n = max(n, big)
            if prev.wr & cur.srcc:
                if not (prev.wr == cur.srcc and prev.passes == cur.passes): n = max(n, {2: 4, 4: 6, 8: 10, 16: 18}[p])
                elif p == 2: n = max(n, 2)
            elif prev.wr & cur.wr:
                n = max(n, {2: 4, 4: 6, 8: 10, 16: 18}[p])
        elif cur.cls in ("valu", "trans", "vmem", "ds", "dma"):
            if prev.wr & (cur.rd | cur.wr): n = max(n, big)
            if cv and prev.srcc & cur.wr: n = max(n, {2: 1, 4: 3, 8: 7, 16: 15}[p])
    if prev.cls == "salu" and ("m0", 0) in prev.wr and cur.cls == "dma": n = max(n, 1)
    if prev.cls == "vmem" and prev.data and prev.data & cur.wr: n = max(n, 2 if cv else 1)
    return n


class Kern:
    def __init__(self, name, grid, block, lds, nvgpr, nsgpr=96, accum=None):
        self.name = name; self.grid = grid; self.block = block; self.lds = lds
        self.nvgpr = nvgpr; self.nsgpr0 = nsgpr; self.nsgpr = 102 if Kern.DIAG else nsgpr; self.accum = accum
        self.ins = []
        self._uid = 0

    def __call__(self, text):
        for line in text.split("\n"):
            line = line.strip()
            if line and not line.startswith(";"):
                ins = Ins(line)
                if self._hop is not None and ins.cls not in ("label", "dir"):
                    sz = 8 if (ins.cls in ("mfma", "ds", "vmem", "dma", "smem") or len(ins.ops) >= 4 or "0x" in line or ins.mn.startswith(("v_cvt_pk", "v_mul_lo", "v_cmp", "v_perm", "v_readlane"))
                               or "|" in line or any(o.lstrip("-").isdigit() and abs(int(o)) > 64 for o in ins.ops) or " -v" in line) else 4
                    if self._hopbytes + sz > 108:
                        self._emit_hop()
                    self._hopbytes += sz
                self.ins.append(ins)

    _hop = None
    def _emit_hop(self):
        n = self._hopn
        self.ins.append(Ins(f"HOP_{self._hop}_{n}:"))
        self.ins.append(Ins(f"s_cbranch_execz HOP_{self._hop}_{n+1}"))
        self._hopn += 1; self._hopbytes = 4
    def hops_begin(self, name):
        self._hop = name; self._hopn = 0; self._emit_hop()
    def hops_end(self, target):
        n = self._hopn
        self.ins.append(Ins(f"HOP_{self._hop}_{n}:"))
        self.ins.append(Ins(f"s_cbranch_execz {target}"))
        self._hop = None
    def warm(self, name, ret):
        self("s_mov_b64 exec, 0"); self(f"s_branch HOP_{name}_0"); self.label(ret); self("s_mov_b64 exec, -1")

    def label(self, l): self.ins.append(Ins(l + ":"))

    DIAG = False
    def stamp(self, real=False):
        if not Kern.DIAG: return
        if not hasattr(self, "nst"): self.nst = 0
        b = self.nsgpr0 + 2 * self.nst
        self("s_memrealtime s[%d:%d]" % (b, b + 1) if real else "s_memtime s[%d:%d]" % (b, b + 1))
        self("s_waitcnt lgkmcnt(0)")
        self.nst += 1
        assert b + 1 < 102

    def dump_stamps(self, kidx, wave_sgpr, vtmp, wsptr):
        if not Kern.DIAG: return
        a, d = vtmp, vtmp + 1
        self(f"s_lshl_b32 s101, s2, 4"); self(f"s_add_u32 s101, s101, s{wave_sgpr}"); self("s_lshl_b32 s101, s101, 7")
        self(f"s_add_u32 s101, s101, {(32 + kidx) << 20}")
        for i in range(self.nst):
            self(f"v_mov_b32 v{a}, s101"); self(f"v_mov_b32 v{d}, s{self.nsgpr0 + 2*i}")
            self(f"global_store_dword v{a}, v{d}, s[{wsptr}:{wsptr+1}] offset:{4*i}")

    def uid(self, p="L"):
        self._uid += 1
        return f"{p}_{self.name}_{self._uid}"

    def _scan_back(self, seq, idx, cur):
        dist = 0; miss = 0
        j = idx - 1
        while j >= 0 and dist < 20:
            p = seq[j]
            if p.cls == "branch" and p.mn == "s_branch": break
            if p.mn == "s_endpgm": break
            if p.cls not in ("label", "dir"):
                n = need(p, cur)
                if n > dist: miss = max(miss, n - dist)
                dist += p.ws
            j -= 1
        return miss

    def finalize(self):
        out = []
        nnop = 0
        for cur in self.ins:
            if cur.cls not in ("label", "dir"):
                miss = self._scan_back(out, len(out), cur)
                while miss > 0:
                    k = min(miss, 16)
                    out.append(Ins(f"s_nop {k-1}")); miss -= k; nnop += 1
            out.append(cur)
        labels = {x.label: i for i, x in enumerate(out) if x.cls == "label"}
        for i, b in enumerate(out):
            if b.cls == "branch" and b.target in labels and not b.target.startswith("HOP_") and b.mn != "s_cbranch_execz":
                t = labels[b.target]
                pre = out[max(0, i - 24):i] + [Ins("s_nop 0")]
                seq = list(pre)
                dist = 0
                for c in out[t:t + 40]:
                    if c.cls not in ("label", "dir"):
                        d = dist; j = len(pre) - 1
                        while j >= 0 and d < 20:
                            p = pre[j]
                            if p.cls not in ("label", "dir"):
                                n = need(p, c)
                                if n > d:
                                    raise RuntimeError(f"{self.name}: hazard across branch {b.text}: '{p.text}' -> '{c.text}' need {n} have {d}")
                                d += p.ws
                            j -= 1
                        dist += c.ws
                        if c.cls == "branch" and c.mn == "s_branch": break
                        if dist >= 20: break
        self.out = out; self.nnop = nnop
        mv = max([r[1] for x in out for r in (x.wr | x.rd) if r[0] == "v"] + [0])
        ma = max([r[1] for x in out for r in (x.wr | x.rd) if r[0] == "a"] + [-1])
        ms = max([r[1] for x in out for r in (x.wr | x.rd) if r[0] == "s"] + [0])
        acc = self.accum if self.accum else (self.nvgpr + 3) // 4 * 4
        assert mv < acc, (self.name, mv, acc)
        assert acc + ma + 1 <= self.nvgpr or ma < 0, (self.name, ma)
        assert ms < self.nsgpr, (self.name, ms)
        self.stats = dict(maxv=mv, maxa=ma, maxs=ms, n=len([x for x in out if x.cls not in ("label", "dir")]), nops=nnop)
        return out

    def text(self):
        out = self.finalize()
        t = [f".globl {self.name}", ".p2align 8", f".type {self.name},@function", f"{self.name}:"]
        for x in out:
            t.append(x.text if x.cls == "label" else "    " + x.text)
        return "\n".join(t)

    def kd(self):
        acc = self.accum if self.accum else min(256, (self.nvgpr + 3) // 4 * 4)
        return "\n".join([".p2align 6", f".amdhsa_kernel {self.name}",
                          f"  .amdhsa_next_free_vgpr {self.nvgpr}", f"  .amdhsa_next_free_sgpr {self.nsgpr}",
                          f"  .amdhsa_accum_offset {acc}", "  .amdhsa_group_segment_fixed_size 0", "  .amdhsa_kernarg_size 80",
                          "  .amdhsa_user_sgpr_count 2", "  .amdhsa_user_sgpr_kernarg_segment_ptr 1",
                          "  .amdhsa_system_sgpr_workgroup_id_x 1",
                          ".end_amdhsa_kernel"])

    def launch_line(self):
        return f"; @launch kernel={self.name} grid=({self.grid},1,1) block=({self.block},1,1) lds={self.lds}"


HEADER = """; Kernarg layout for this problem (80 bytes, ptrs only, base s[0:1]):
"""


def build_file(kerns, path, order=None):
    order = order or kerns
    s = HEADER + "\n".join(k.launch_line() for k in order) + "\n"
    s += '.amdgcn_target "amdgcn-amd-amdhsa--gfx950"\n.text\n'
    for k in kerns:
        s += k.text() + "\n"
        print(k.name, k.stats)
    s += '.section .rodata,"a"\n'
    for k in kerns:
        s += k.kd() + "\n"
    open(path, "w").write(s)
```

```python
from asmgen import *
MB = 1 << 20
WS_Q = 0
WS_K = 2 * MB
WS_V = 4 * MB
WS_XN = 6 * MB
WS_H = 9 * MB
WS_O = 16 * MB
WS_P = 18 * MB
WS_FLAG = 22 * MB
WS_SIZE = 24 * MB
QSCALE = 0.25 * 1.4426950408889634

import struct
def f2u(x): return struct.unpack("<I", struct.pack("<f", x))[0]
def lit(x): return "0x%08x" % f2u(x)

def srd(k, d, base, nbytes):
    k(f"s_mov_b32 s{d}, s{base}")
    k(f"s_and_b32 s{d+1}, s{base+1}, 0xffff")
    k(f"s_mov_b32 s{d+2}, {nbytes}")
    k(f"s_mov_b32 s{d+3}, 0x20000")

def vr(a, n): return f"v[{a}:{a+n-1}]"

def interleave(main, fill, start=0):
    out = []
    n = len(main); m = len(fill)
    done = 0
    for i, x in enumerate(main):
        out.append(x)
        tgt = (i + 1) * m // n
        out.extend(fill[done:tgt]); done = tgt
    return out

class Loop:
    def __init__(self): self.items = []
    def i(self, text): self.items.append(("i", None, text))
    def call(self, fn): self.items.append(("c", None, fn))
    def vm(self, tag, text): self.items.append(("vm", tag, text))
    def ds(self, tag, text): self.items.append(("ds", tag, text))
    def wait(self, vm=None, ds=None): self.items.append(("w", (vm, ds), None))
    def _count(self, pos, kind, tag):
        n = len(self.items); c = 0
        for back in range(1, 3 * n):
            kd, tg, _ = self.items[(pos - back) % n]
            if kd == kind:
                if tg == tag: return c
                c += 1
        raise ValueError(tag)
    def emit(self, k):
        for pos, (kd, tg, tx) in enumerate(self.items):
            if kd == "w":
                parts = []
                if tg[0] is not None:
                    c = min(self._count(pos, "vm", t) for t in (tg[0] if isinstance(tg[0], (list, tuple)) else [tg[0]])); assert c <= 63; parts.append(f"vmcnt({c})")
                if tg[1] is not None:
                    c = min(self._count(pos, "ds", t) for t in (tg[1] if isinstance(tg[1], (list, tuple)) else [tg[1]])); parts.append(f"lgkmcnt({min(c, 15)})")
                k("s_waitcnt " + " ".join(parts))
            elif kd == "c": tx()
            else: k(tx)
```

```python
from common import *
import os
OPT = lambda n, d=0: int(os.environ.get(n, d))
MF = "v_mfma_f32_32x32x16_bf16"
MF16 = "v_mfma_f32_16x16x32_bf16"
SC = 131072
NST1 = 8

def ln_scalars(k, s, q, mask, r, mb):
    k(f"v_mul_f32 {s}, {lit(1/512)}, {s}"); k(f"v_mul_f32 {q}, {lit(1/512)}, {q}")
    k(f"v_fma_f32 {q}, -{s}, {s}, {q}"); k(f"v_max_f32 {q}, 0, {q}")
    k(f"v_cvt_pk_bf16_f32 {s}, {s}, {q}")
    k(f"v_and_b32 {q}, {mask}, {s}"); k(f"v_lshlrev_b32 {mb}, 16, {s}")
    k(f"v_add_f32 {q}, {lit(1e-5)}, {q}")
    k(f"v_cvt_pk_bf16_f32 {q}, {q}, {q}"); k(f"v_lshlrev_b32 {q}, 16, {q}")
    k(f"v_sqrt_f32 {q}, {q}")
    k(f"v_cvt_pk_bf16_f32 {q}, {q}, {q}"); k(f"v_lshlrev_b32 {q}, 16, {q}")
    k(f"v_rcp_f32 {r}, {q}")

def gen_k1():
    k = Kern("k1_qkv_kernel", 256, 512, SC + 4096, 160, 64)
    k("s_cmp_ge_u32 s2, 256"); k("s_cbranch_scc1 K1_END")
    k.stamp(True); k.stamp()
    k("s_load_dwordx4 s[4:7], s[0:1], 0")
    k("s_load_dwordx2 s[8:9], s[0:1], 72")
    k("v_lshrrev_b32 v1, 6, v0"); k("v_and_b32 v0, 63, v0"); k("v_readfirstlane_b32 s24, v1")
    k("s_and_b32 s27, s2, 7"); k("s_lshr_b32 s28, s2, 3")
    k("s_lshr_b32 s25, s27, 1"); k("s_lshl_b32 s25, s25, 3"); k("s_lshr_b32 s29, s28, 2"); k("s_add_u32 s25, s25, s29")
    k("s_and_b32 s26, s27, 1"); k("s_lshl_b32 s26, s26, 2"); k("s_and_b32 s29, s28, 3"); k("s_add_u32 s26, s26, s29")
    k("s_add_u32 s40, s25, s26"); k("s_and_b32 s40, s40, 7")
    k("s_bfe_u32 s56, s24, 0x10001"); k("s_and_b32 s59, s24, 1")
    LD_FIRST = OPT("LDFIRST", 1)
    k("s_cmp_ge_u32 s24, 4" if LD_FIRST else "s_cmp_lt_u32 s24, 4"); k("s_cbranch_scc1 K1_COMP")
    k("s_load_dwordx4 s[48:51], s[0:1], 32")
    k("s_and_b32 s57, s24, 3")
    k("v_lshrrev_b32 v40, 3, v0"); k("v_lshlrev_b32 v44, 10, v40")
    k("v_lshrrev_b32 v41, 4, v0"); k("v_and_b32 v42, 7, v0")
    k("v_xor_b32 v43, v41, v42"); k("v_lshl_add_u32 v1, v43, 4, v44")
    k("v_xor_b32 v43, 4, v43"); k("v_lshl_add_u32 v2, v43, 4, v44"); k(f"v_add_u32 v2, {8192-1024}, v2")
    k("v_mul_u32_u24 v40, 3072, v40"); k("v_and_b32 v41, 1, v41"); k("v_lshlrev_b32 v41, 2, v41"); k("v_xor_b32 v41, v41, v42"); k("v_lshl_add_u32 v3, v41, 4, v40")
    k("s_lshl_b32 s31, s25, 16"); k("s_lshl_b32 s33, s57, 14"); k("s_add_u32 s31, s31, s33")
    k("s_lshl_b32 s32, s57, 11")
    k("s_mul_i32 s35, s57, 49152"); k("s_lshl_b32 s33, s26, 7"); k("s_add_u32 s35, s35, s33")
    k("s_mul_i32 s36, s57, 6144"); k("s_add_u32 s36, s36, 8192")
    k("s_mov_b32 s42, 0"); k("s_mov_b32 s43, 0"); k("s_mov_b32 s41, s40")
    k("s_waitcnt lgkmcnt(0)")
    srd(k, 12, 4, 2048 * 1024); srd(k, 16, 6, 512 * 3072)
    def issue():
        o = ["s_lshl_b32 s33, s41, 7", "s_add_u32 m0, s43, s32", "s_add_u32 s33, s33, s31",
             "buffer_load_dwordx4 v1, s[12:15], s33 offen lds",
             "buffer_load_dwordx4 v2, s[12:15], s33 offen offset:1024 lds",
             "s_mul_i32 s33, s41, 196608", "s_add_u32 m0, s43, s36", "s_add_u32 s33, s33, s35"]
        o += [f"buffer_load_dwordx4 v3, s[16:19], s33 offen offset:{blk*1024} lds" for blk in range(3)]
        o += ["s_add_u32 m0, m0, 3072", "s_add_u32 s33, s33, 24576"]
        o += [f"buffer_load_dwordx4 v3, s[16:19], s33 offen offset:{blk*1024} lds" for blk in range(3)]
        o += ["s_add_u32 s41, s41, 1", "s_and_b32 s41, s41, 7", "s_add_u32 s43, s43, 32768", "s_and_b32 s43, s43, 0x1ffff"]
        return o
    D0 = OPT("D0", 2)
    k.label("K1_LP")
    for x in issue(): k(x)
    k("s_add_u32 s42, s42, 1"); k(f"s_cmp_lt_u32 s42, {D0}"); k("s_cbranch_scc1 K1_LP")
    k("v_and_b32 v48, 31, v0"); k("v_lshrrev_b32 v49, 5, v0"); k("v_bfe_u32 v50, v0, 1, 3")
    k("s_lshl_b32 s33, s56, 12"); k("v_lshl_add_u32 v51, v48, 7, s33")
    k("s_lshl_b32 s33, s59, 2"); k("v_or_b32 v52, s33, v49"); k("v_xor_b32 v52, v52, v50"); k("v_lshl_add_u32 v4, v52, 4, v51"); k("v_xor_b32 v5, 32, v4")
    k("v_mov_b32 v8, v4"); k("v_mov_b32 v9, v5"); k("v_mov_b32 v13, 0xffff0000")
    for r in range(54, 62): k(f"v_mov_b32 v{r}, 0")
    srd(k, 20, 8, WS_SIZE)
    k("s_mov_b32 s42, 0"); k("s_mov_b32 s44, 0")
    k.stamp()
    def stats():
        o = []
        for r in range(8):
            o += [f"v_lshlrev_b32 v{24+2*r}, 16, v{16+r}", f"v_and_b32 v{25+2*r}, v13, v{16+r}"]
        for r in range(16):
            o += [f"v_add_f32 v{54+(r&3)}, v{54+(r&3)}, v{24+r}", f"v_fmac_f32 v{58+(r&3)}, v{24+r}, v{24+r}"]
        return o
    head = ["s_barrier", "ds_read_b128 v[16:19], v8", "ds_read_b128 v[20:23], v9",
            "s_add_u32 s44, s44, 32768", "s_and_b32 s44, s44, 0x1ffff", "v_add_u32 v8, s44, v4", "v_add_u32 v9, s44, v5"]
    nA = 8 - D0
    k.label("K1_LA")
    k(f"s_waitcnt vmcnt({8*(D0-1)})")
    for x in head: k(x)
    iss = issue()
    for x in iss[:5]: k(x)
    k("s_waitcnt lgkmcnt(0)")
    for x in interleave(iss[5:], stats()): k(x)
    k("s_add_u32 s42, s42, 1"); k(f"s_cmp_lt_u32 s42, {nA}"); k("s_cbranch_scc1 K1_LA")
    NPF = OPT("NPF", 4)
    assert D0 == 2
    if NPF:
        k("s_bitcmp1_b32 s24, 0"); k("s_cselect_b32 s10, s50, s48"); k("s_cselect_b32 s11, s51, s49")
        srd(k, 52, 10, 512 * 3584)
        k("s_lshl_b32 s33, s28, 1"); k("s_add_u32 s33, s33, s56"); k(f"s_mul_i32 s33, s33, {NPF*3584}")
        k("s_and_b32 s34, s27, 3"); k("s_mul_i32 s34, s34, 896"); k("s_add_u32 s33, s33, s34")
        k("v_lshlrev_b32 v15, 4, v0")
        for i in range(NPF):
            k("buffer_load_dwordx4 v[64:67], v15, s[52:55], s33 offen"); k("s_add_u32 s33, s33, 3584")
    k(f"s_waitcnt vmcnt({8 + NPF})")
    k.label("K1_LB")
    for x in head: k(x)
    k("s_waitcnt lgkmcnt(0)")
    for x in stats(): k(x)
    k("s_add_u32 s42, s42, 1")
    k(f"s_waitcnt vmcnt({NPF})"); k("s_cmp_lt_u32 s42, 8"); k("s_cbranch_scc1 K1_LB")
    k.stamp()
    k("v_add_f32 v54, v54, v55"); k("v_add_f32 v56, v56, v57"); k("v_add_f32 v58, v58, v59"); k("v_add_f32 v60, v60, v61")
    k("v_add_f32 v54, v54, v56"); k("v_add_f32 v58, v58, v60"); k("v_mov_b32 v55, v54"); k("v_mov_b32 v59, v58")
    k("s_lshl_b32 s33, s56, 9"); k(f"s_add_u32 s33, s33, {SC+2048}"); k("v_lshl_add_u32 v6, v48, 4, s33")
    k("v_permlane32_swap_b32 v54, v55"); k("v_permlane32_swap_b32 v58, v59")
    k("s_lshl_b32 s33, s59, 3"); k("v_add_u32 v7, s33, v6")
    k("v_add_f32 v54, v54, v55"); k("v_add_f32 v55, v58, v59")
    k("ds_write_b64 v7, v[54:55]")
    k("s_waitcnt lgkmcnt(0)"); k("s_barrier")
    k("ds_read_b128 v[54:57], v6")
    k("s_add_u32 s38, s40, 7"); k("s_and_b32 s38, s38, 7"); k("s_lshl_b32 s38, s38, 12"); k("s_lshl_b32 s39, s59, 11"); k("s_add_u32 s38, s38, s39")
    k("s_lshl_b32 s39, s25, 16"); k("s_add_u32 s38, s38, s39"); k("s_lshl_b32 s39, s56, 15"); k("s_add_u32 s38, s38, s39"); k(f"s_add_u32 s38, s38, {WS_XN}")
    k("v_lshlrev_b32 v15, 4, v0")
    k("s_waitcnt lgkmcnt(0)")
    k("v_add_f32 v54, v54, v56"); k("v_add_f32 v55, v55, v57")
    ln_scalars(k, "v54", "v55", "v13", "v12", "v14")
    k("v_mul_f32 v14, -v14, v12")
    for r in range(16): k(f"v_fma_f32 v{24+r}, v{24+r}, v12, v14")
    for r in range(8): k(f"v_cvt_pk_bf16_f32 v{16+r}, v{24+2*r}, v{25+2*r}")
    k("buffer_store_dwordx4 v[16:19], v15, s[20:23], s38 offen")
    k("buffer_store_dwordx4 v[20:23], v15, s[20:23], s38 offen offset:1024")
    k("s_cmp_lg_u32 s57, 0"); k("s_cbranch_scc1 K1_NF")
    k("v_lshlrev_b32 v40, 2, v0"); k("v_mov_b32 v41, 0"); k("s_lshl_b32 s43, s2, 8"); k(f"s_add_u32 s43, s43, {WS_FLAG}")
    k("buffer_store_dword v41, v40, s[20:23], s43 offen")
    k.label("K1_NF")
    if Kern.DIAG:
        while k.nst < NST1 - 1: k.stamp()
        k.stamp(True); k.dump_stamps(0, 24, 40, 8); k.nst = 2
    k("s_endpgm")
    FS = [16, 32, 48, 64]
    ACC = 80; CS = 128; SEL = 140
    k.label("K1_COMP")
    k("v_and_b32 v144, 31, v0"); k("v_lshrrev_b32 v145, 5, v0"); k("v_bfe_u32 v146, v0, 1, 3")
    k("s_lshl_b32 s33, s56, 12"); k("v_lshl_add_u32 v147, v144, 7, s33")
    k("s_lshl_b32 s33, s56, 2"); k("v_or_b32 v148, s33, v145"); k("v_xor_b32 v148, v148, v146"); k("v_lshl_add_u32 v4, v148, 4, v147")
    for j in (1, 2, 3): k(f"v_xor_b32 v{4+j}, {32*j}, v4")
    k("v_mul_u32_u24 v147, 3072, v145"); k("v_bfe_u32 v148, v0, 2, 2"); k("v_lshl_add_u32 v147, v148, 7, v147")
    k("v_bfe_u32 v148, v0, 3, 1"); k("v_xor_b32 v148, s59, v148"); k("v_lshl_add_u32 v147, v148, 6, v147")
    k("v_bfe_u32 v149, v0, 4, 1"); k("v_lshl_add_u32 v147, v149, 5, v147"); k("v_and_b32 v148, 3, v0"); k("v_lshl_add_u32 v147, v148, 3, v147")
    k("s_mul_i32 s33, s56, 12288"); k("s_add_u32 s34, s33, 8192"); k("v_add_u32 v8, s34, v147")
    k(f"s_sub_u32 s34, {8192+12288}, s33"); k("v_add_u32 v9, s34, v147")
    k("v_bfe_u32 v147, v0, 2, 1"); k("v_xor_b32 v147, v147, v149"); k("v_or_b32 v147, v147, v148")
    k("v_cmp_eq_u32 vcc, 0, v147"); k("v_mov_b32 v147, 0x3f803f80")
    k(f"v_cndmask_b32 v{SEL}, 0, v147, vcc")
    for r in (1, 2, 3): k(f"v_mov_b32 v{SEL+r}, v{SEL}")
    for r in range(FS[2], CS + 12): k(f"v_mov_b32 v{r}, 0")
    k("s_lshl_b32 s30, s25, 1"); k("s_add_u32 s30, s30, s56")
    k("s_lshl_b32 s33, s26, 18"); k("s_lshl_b32 s34, s59, 17"); k("s_add_u32 s33, s33, s34"); k("s_lshl_b32 s34, s30, 10"); k("s_add_u32 s33, s33, s34")
    k(f"s_add_u32 s34, s33, {WS_K}"); k(f"s_add_u32 s35, s33, {WS_V}"); k("s_add_u32 s36, s33, 65536"); k("s_add_u32 s37, s34, 65536")
    k("v_lshlrev_b32 v15, 4, v0")
    k("s_lshl_b32 s38, s56, 9"); k(f"s_add_u32 s38, s38, {SC+2048}"); k("v_lshl_add_u32 v1, v144, 4, s38")
    k("s_lshl_b32 s38, s59, 10"); k(f"s_add_u32 s38, s38, {SC}"); k("v_lshl_add_u32 v2, v144, 5, s38")
    k("s_lshl_b32 s38, s56, 4"); k("v_add_u32 v10, s38, v2"); k("v_xor_b32 v2, 16, v10")
    k("s_and_b32 s38, s24, 3"); k("s_lshl_b32 s38, s38, 7"); k(f"s_add_u32 s38, s38, {SC+3072}")
    k("v_lshl_add_u32 v11, v144, 2, s38"); k("v_lshl_add_u32 v14, v145, 4, s38")
    k("v_lshlrev_b32 v3, 16, v149"); k("v_lshl_add_u32 v3, v145, 8, v3"); k("v_and_b32 v148, 15, v0"); k("v_lshl_add_u32 v3, v148, 4, v3")
    k("v_mov_b32 v13, 0xffff0000")
    k("s_mov_b32 s42, 0")
    k("s_waitcnt lgkmcnt(0)")
    srd(k, 20, 8, WS_SIZE)
    k.stamp()
    def reads(j, off):
        f = FS[j]; w = "v8" if j < 2 else "v9"; o = off + (j & 1)*6144
        out = [f"ds_read_b128 {vr(f,4)}, v{4+j} offset:{off}"]
        for blk in range(3):
            out += [f"ds_read_b64_tr_b16 {vr(f+4+4*blk,2)}, {w} offset:{o+blk*1024}", f"ds_read_b64_tr_b16 {vr(f+6+4*blk,2)}, {w} offset:{o+blk*1024+512}"]
        return out
    def mfs(j):
        f = FS[j]; out = []
        for blk in range(3):
            a = vr(ACC + blk*16, 16); w = vr(f+4+4*blk, 4); x = vr(f, 4)
            out.append(f"{MF} {a}, {w}, {x}, {a}" if blk < 2 else f"{MF} {a}, {x}, {w}, {a}")
            if j < 2: out.append(f"{MF16} {vr(CS+4*blk,4)}, {vr(SEL,4)}, {w}, {vr(CS+4*blk,4)}")
        return out
    k.label("K1_CL")
    for p in range(2):
        k("s_barrier")
        for j in range(4):
            if j >= 2: k("s_waitcnt lgkmcnt(7)")
            for x in interleave(mfs((j + 2) & 3), reads(j, p*32768)): k(x)
        if p == 1:
            for i in range(6): k(f"v_xor_b32 v{4+i}, 0x10000, v{4+i}")
            k("s_add_u32 s42, s42, 1"); k("s_cmp_lt_u32 s42, 4")
        k("s_waitcnt lgkmcnt(0)")
    k("s_cbranch_scc1 K1_CL")
    k.stamp()
    for x in mfs(2): k(x)
    k(f"v_mov_b32 v{CS+1}, v{CS+4}"); k(f"v_mov_b32 v{CS+2}, v{CS+8}")
    k(f"ds_write_b128 v10, {vr(CS,4)}")
    for x in mfs(3): k(x)
    k("s_waitcnt lgkmcnt(0)"); k("s_barrier")
    k("ds_read_b128 v[16:19], v1"); k("ds_read_b128 v[20:23], v2")
    k("s_waitcnt lgkmcnt(1)")
    k("v_add_f32 v16, v16, v18"); k("v_add_f32 v17, v17, v19")
    ln_scalars(k, "v16", "v17", "v13", "v12", "v18")
    k("ds_write_b32 v11, v12")
    for q in range(4): k(f"ds_read_b128 {vr(48+4*q,4)}, v14 offset:{q*32}")
    k("v_cvt_pk_bf16_f32 v24, -v18, -v18"); k("v_lshrrev_b32 v25, 16, v24"); k("v_mov_b32 v26, 0"); k("v_mov_b32 v27, 0")
    k("s_mov_b32 exec_lo, 0"); k("v_mov_b32 v24, 0"); k("v_mov_b32 v25, 0"); k("s_mov_b32 exec_lo, -1")
    for b in range(3):
        c = 28 + 4*b
        k(f"v_add_f32 v{c+2}, v{CS+b}, v{20+b}")
        k(f"v_and_b32 v{c+3}, v13, v{c+2}"); k(f"v_sub_f32 v{c+2}, v{c+2}, v{c+3}")
        k(f"v_and_b32 v{c+1}, v13, v{c+2}"); k(f"v_sub_f32 v{c+2}, v{c+2}, v{c+1}")
        k(f"v_lshrrev_b32 v{c+3}, 16, v{c+3}"); k(f"v_or_b32 v{c}, v{c+3}, v{c+1}")
        k(f"v_lshrrev_b32 v{c+1}, 16, v{c+2}"); k(f"v_mov_b32 v{c+2}, 0"); k(f"v_mov_b32 v{c+3}, 0")
    for blk in (1, 2, 0):
        a = vr(ACC + blk*16, 16); c = vr(28+4*blk, 4)
        k(f"{MF} {a}, {c}, v[24:27], {a}" if blk < 2 else f"{MF} {a}, v[24:27], {c}, {a}")
    k(f"v_mul_f32 v10, {lit(QSCALE)}, v12")
    k("s_waitcnt lgkmcnt(0)")
    so = {0: ("s33", "s36"), 1: ("s34", "s37")}
    for blk in (1, 2, 0):
        a = ACC + blk*16
        for h in range(2):
            for r in range(8*h, 8*h+8):
                k(f"v_mul_f32 v{a+r}, {('v10', 'v12', 'v%d' % (48+r))[blk]}, v{a+r}")
            d = 16 + (blk*2+h)*4 if blk < 2 else 64 + 4*h
            if blk == 0: d = 72 + 4*h
            if blk == 1: d = 40 + 4*h
            for r in range(4): k(f"v_cvt_pk_bf16_f32 v{d+r}, v{a+8*h+2*r}, v{a+8*h+2*r+1}")
            if blk < 2: k(f"buffer_store_dwordx4 {vr(d,4)}, v15, s[20:23], {so[blk][h]} offen")
            else: k(f"buffer_store_dwordx4 {vr(d,4)}, v3, s[20:23], s35 offen offset:{512*h}")
    if Kern.DIAG:
        k.stamp()
        k("s_waitcnt vmcnt(0)")
        while k.nst < NST1 - 1: k.stamp()
        k.stamp(True); k.dump_stamps(0, 24, 40, 8)
    k.label("K1_END")
    k("s_endpgm")
    return k
```

```python
import re

TRANS = ("v_exp_", "v_log_", "v_rcp_", "v_rsq_", "v_sqrt_", "v_sin_", "v_cos_")
_REG = re.compile(r"^(-|\|)?(abs\()?([vas])(\d+|\[(\d+):(\d+)\])\)?\|?$")


def regs_of(op):
    op = op.strip()
    if op in ("vcc", "exec"):
        return {(op, 0), (op, 1)}
    if op in ("vcc_lo", "exec_lo"):
        return {(op[:-3], 0)}
    if op in ("vcc_hi", "exec_hi"):
        return {(op[:-3], 1)}
    if op == "m0":
        return {("m0", 0)}
    m = _REG.match(op)
    if not m:
        return set()
    t = m.group(3)
    if m.group(5) is not None:
        return {(t, i) for i in range(int(m.group(5)), int(m.group(6)) + 1)}
    return {(t, int(m.group(4)))}


class Ins:
    __slots__ = ("text", "mn", "ops", "cls", "wr", "rd", "passes", "srcc", "ab", "ws", "label", "target", "data", "mods")

    def __init__(self, text):
        self.text = text
        self.label = None
        self.target = None
        self.wr = set(); self.rd = set(); self.srcc = set(); self.ab = set(); self.data = set()
        self.passes = 0
        self.ws = 1
        t = text.split(";")[0].strip()
        if t.endswith(":"):
            self.label = t[:-1]; self.cls = "label"; self.mn = ""; self.ws = 0; self.ops = []
            return
        if t.startswith(".") or not t:
            self.cls = "dir"; self.mn = ""; self.ws = 0; self.ops = []
            return
        parts = t.split(None, 1)
        mn = parts[0]; self.mn = mn
        rest = parts[1] if len(parts) > 1 else ""
        ops = []; cur = ""; depth = 0
        for ch in rest:
            if ch in "[(": depth += 1
            if ch in "])": depth -= 1
            if ch == "," and depth == 0:
                ops.append(cur.strip()); cur = ""
            else:
                cur += ch
        if cur.strip(): ops.append(cur.strip())
        mods = ""
        if ops:
            sp = ops[-1].split(None, 1)
            ops[-1] = sp[0]
            if len(sp) > 1: mods = sp[1]
        self.ops = ops; self.mods = mods
        R = [regs_of(o) for o in ops]
        if mn.startswith("v_mfma"):
            self.cls = "mfma"
            self.passes = 8 if "32x32x16" in mn else 4 if "16x16x32" in mn else 16
            self.wr = R[0]; self.ab = R[1] | R[2]; self.srcc = R[3]; self.rd = self.ab | self.srcc
        elif mn.startswith("v_"):
            self.cls = "trans" if mn.startswith(TRANS) else "valu"
            if mn.startswith("v_cmp"):
                self.wr = R[0]; self.rd = set().union(*R[1:])
                if mn.startswith("v_cmpx"): self.wr = self.wr | regs_of("exec")
            elif "permlane" in mn and "swap" in mn:
                self.wr = R[0] | R[1]; self.rd = R[0] | R[1]
            elif mn.startswith(("v_add_co", "v_sub_co", "v_addc_co", "v_subb_co", "v_subrev_co", "v_mad_u64", "v_div_scale")):
                self.wr = R[0] | R[1]; self.rd = set().union(*R[2:])
            else:
                self.wr = R[0]; self.rd = set().union(*R[1:]) if len(R) > 1 else set()
                if mn.startswith(("v_fmac", "v_dot2c", "v_mac", "v_pk_fmac", "v_writelane")) or "UNUSED_PRESERVE" in mods:
                    self.rd = self.rd | R[0]
                if mn.startswith("v_cndmask") and len(ops) == 3: self.rd |= regs_of("vcc")
        elif mn.startswith("ds_"):
            self.cls = "ds"
            if mn.startswith(("ds_read", "ds_bpermute", "ds_permute", "ds_swizzle")) or "_rtn" in mn:
                self.wr = R[0]; self.rd = set().union(*R[1:])
            else:
                self.rd = set().union(*R)
        elif mn.startswith(("buffer_", "global_")):
            self.cls = "vmem"
            islds = (" lds" in " " + mods) or "load_lds" in mn
            if mn in ("buffer_inv", "buffer_wbl2"):
                pass
            elif "load" in mn and not islds:
                self.wr = R[0]; self.rd = set().union(*R[1:])
            elif "load" in mn:
                self.rd = set().union(*R) | {("m0", 0)}; self.cls = "dma"
            else:
                self.rd = set().union(*R)
                d = R[0] if mn.startswith("buffer_") else R[1]
                if "x4" in mn or "x3" in mn: self.data = d
                if "atomic" in mn and "sc0" in mods:
                    self.wr = R[0]
        elif mn.startswith("s_"):
            self.cls = "salu"
            if mn == "s_nop":
                self.ws = int(ops[0], 0) + 1
            elif mn.startswith(("s_cbranch", "s_branch")):
                self.target = ops[0]; self.cls = "branch"
            elif mn.startswith(("s_cmp", "s_waitcnt", "s_barrier", "s_setprio", "s_sleep", "s_endpgm", "s_bitcmp")):
                self.rd = set().union(*R) if R else set()
            elif mn.startswith(("s_load", "s_buffer_load", "s_memtime", "s_memrealtime")):
                self.cls = "smem"; self.wr = R[0]; self.rd = set().union(*R[1:]) if len(R) > 1 else set()
            else:
                self.wr = R[0]; self.rd = set().union(*R[1:]) if len(R) > 1 else set()
                if "saveexec" in mn: self.wr = self.wr | regs_of("exec")
        else:
            raise ValueError("unknown instruction: " + text)


def isv(r): return r[0] in ("v", "a")
def iss(r): return r[0] in ("s", "vcc")


def need(prev, cur):
    n = 0
    pv = prev.cls in ("valu", "trans")
    cv = cur.cls in ("valu", "trans")
    if pv:
        wv = {r for r in prev.wr if isv(r)}
        wsg = {r for r in prev.wr if iss(r)}
        if cur.cls == "mfma" and wv & cur.rd: n = max(n, 2)
        if prev.cls == "trans" and cur.cls == "valu" and wv & cur.rd: n = max(n, 1)
        if prev.cls == "trans" and cur.cls in ("vmem", "ds", "dma") and wv & cur.rd: n = max(n, 1)
        if cur.cls in ("vmem", "dma") and wsg & cur.rd: n = max(n, 5)
        if cv and wsg & cur.rd:
            n = max(n, 4 if cur.mn.startswith(("v_readlane", "v_writelane")) else 2)
        if cur.mn.startswith(("v_readfirstlane", "v_readlane")) and wv & cur.rd: n = max(n, 1)
        if cv and ("permlane" in cur.mn or "dpp" in cur.mn or "row_" in cur.mods or "quad_perm" in cur.mods) and wv & cur.rd: n = max(n, 2)
        if prev.mn.startswith("v_dot") and cur.cls != "salu" and cur.mn != prev.mn and wv & (cur.rd | cur.wr): n = max(n, 3)
        if prev.mn.startswith("v_dot") and cur.mn == prev.mn and wv & (cur.rd - cur.wr): n = max(n, 3)
        if ("sdwa" in prev.mn or "op_sel:" in prev.mods) and cv and wv & (cur.rd | cur.wr): n = max(n, 1)
        if ("exec", 0) in prev.wr or ("exec", 1) in prev.wr:
            if cur.cls == "mfma": n = max(n, 4)
            if "permlane" in cur.mn or cur.mn.startswith(("v_readlane", "v_readfirstlane", "v_writelane")): n = max(n, 4)
            if "dpp" in cur.mn: n = max(n, 5)
        if cur.cls == "salu" and wsg & cur.rd: n = max(n, 1)
        if cur.cls == "branch" and "vcc" in cur.mn and ("vcc", 0) in prev.wr: n = max(n, 5)
    if prev.cls == "mfma":
        p = prev.passes
        big = {2: 5, 4: 8, 8: 12, 16: 20}[p]
        if cur.cls == "mfma":
            if prev.wr & cur.ab: n = max(n, big)
            if prev.wr & cur.srcc:
                if not (prev.wr == cur.srcc and prev.passes == cur.passes): n = max(n, {2: 4, 4: 6, 8: 10, 16: 18}[p])
                elif p == 2: n = max(n, 2)
            elif prev.wr & cur.wr:
                n = max(n, {2: 4, 4: 6, 8: 10, 16: 18}[p])
        elif cur.cls in ("valu", "trans", "vmem", "ds", "dma"):
            if prev.wr & (cur.rd | cur.wr): n = max(n, big)
            if cv and prev.srcc & cur.wr: n = max(n, {2: 1, 4: 3, 8: 7, 16: 15}[p])
    if prev.cls == "salu" and ("m0", 0) in prev.wr and cur.cls == "dma": n = max(n, 1)
    if prev.cls == "vmem" and prev.data and prev.data & cur.wr: n = max(n, 2 if cv else 1)
    return n


class Kern:
    def __init__(self, name, grid, block, lds, nvgpr, nsgpr=96, accum=None):
        self.name = name; self.grid = grid; self.block = block; self.lds = lds
        self.nvgpr = nvgpr; self.nsgpr0 = nsgpr; self.nsgpr = 102 if Kern.DIAG else nsgpr; self.accum = accum
        self.ins = []
        self._uid = 0

    def __call__(self, text):
        for line in text.split("\n"):
            line = line.strip()
            if line and not line.startswith(";"):
                ins = Ins(line)
                if self._hop is not None and ins.cls not in ("label", "dir"):
                    sz = 8 if (ins.cls in ("mfma", "ds", "vmem", "dma", "smem") or len(ins.ops) >= 4 or "0x" in line or ins.mn.startswith(("v_cvt_pk", "v_mul_lo", "v_cmp", "v_perm", "v_readlane"))
                               or "|" in line or any(o.lstrip("-").isdigit() and abs(int(o)) > 64 for o in ins.ops) or " -v" in line) else 4
                    if self._hopbytes + sz > 108:
                        self._emit_hop()
                    self._hopbytes += sz
                self.ins.append(ins)

    _hop = None
    def _emit_hop(self):
        n = self._hopn
        self.ins.append(Ins(f"HOP_{self._hop}_{n}:"))
        self.ins.append(Ins(f"s_cbranch_execz HOP_{self._hop}_{n+1}"))
        self._hopn += 1; self._hopbytes = 4
    def hops_begin(self, name):
        self._hop = name; self._hopn = 0; self._emit_hop()
    def hops_end(self, target):
        n = self._hopn
        self.ins.append(Ins(f"HOP_{self._hop}_{n}:"))
        self.ins.append(Ins(f"s_cbranch_execz {target}"))
        self._hop = None
    def warm(self, name, ret):
        self("s_mov_b64 exec, 0"); self(f"s_branch HOP_{name}_0"); self.label(ret); self("s_mov_b64 exec, -1")

    def label(self, l): self.ins.append(Ins(l + ":"))

    DIAG = False
    def stamp(self, real=False):
        if not Kern.DIAG: return
        if not hasattr(self, "nst"): self.nst = 0
        b = self.nsgpr0 + 2 * self.nst
        self("s_memrealtime s[%d:%d]" % (b, b + 1) if real else "s_memtime s[%d:%d]" % (b, b + 1))
        self("s_waitcnt lgkmcnt(0)")
        self.nst += 1
        assert b + 1 < 102

    def dump_stamps(self, kidx, wave_sgpr, vtmp, wsptr):
        if not Kern.DIAG: return
        a, d = vtmp, vtmp + 1
        self(f"s_lshl_b32 s101, s2, 4"); self(f"s_add_u32 s101, s101, s{wave_sgpr}"); self("s_lshl_b32 s101, s101, 7")
        self(f"s_add_u32 s101, s101, {(32 + kidx) << 20}")
        for i in range(self.nst):
            self(f"v_mov_b32 v{a}, s101"); self(f"v_mov_b32 v{d}, s{self.nsgpr0 + 2*i}")
            self(f"global_store_dword v{a}, v{d}, s[{wsptr}:{wsptr+1}] offset:{4*i}")

    def uid(self, p="L"):
        self._uid += 1
        return f"{p}_{self.name}_{self._uid}"

    def _scan_back(self, seq, idx, cur):
        dist = 0; miss = 0
        j = idx - 1
        while j >= 0 and dist < 20:
            p = seq[j]
            if p.cls == "branch" and p.mn == "s_branch": break
            if p.mn == "s_endpgm": break
            if p.cls not in ("label", "dir"):
                n = need(p, cur)
                if n > dist: miss = max(miss, n - dist)
                dist += p.ws
            j -= 1
        return miss

    def finalize(self):
        out = []
        nnop = 0
        for cur in self.ins:
            if cur.cls not in ("label", "dir"):
                miss = self._scan_back(out, len(out), cur)
                while miss > 0:
                    k = min(miss, 16)
                    out.append(Ins(f"s_nop {k-1}")); miss -= k; nnop += 1
            out.append(cur)
        labels = {x.label: i for i, x in enumerate(out) if x.cls == "label"}
        for i, b in enumerate(out):
            if b.cls == "branch" and b.target in labels and not b.target.startswith("HOP_") and b.mn != "s_cbranch_execz":
                t = labels[b.target]
                pre = out[max(0, i - 24):i] + [Ins("s_nop 0")]
                seq = list(pre)
                dist = 0
                for c in out[t:t + 40]:
                    if c.cls not in ("label", "dir"):
                        d = dist; j = len(pre) - 1
                        while j >= 0 and d < 20:
                            p = pre[j]
                            if p.cls not in ("label", "dir"):
                                n = need(p, c)
                                if n > d:
                                    raise RuntimeError(f"{self.name}: hazard across branch {b.text}: '{p.text}' -> '{c.text}' need {n} have {d}")
                                d += p.ws
                            j -= 1
                        dist += c.ws
                        if c.cls == "branch" and c.mn == "s_branch": break
                        if dist >= 20: break
        self.out = out; self.nnop = nnop
        mv = max([r[1] for x in out for r in (x.wr | x.rd) if r[0] == "v"] + [0])
        ma = max([r[1] for x in out for r in (x.wr | x.rd) if r[0] == "a"] + [-1])
        ms = max([r[1] for x in out for r in (x.wr | x.rd) if r[0] == "s"] + [0])
        acc = self.accum if self.accum else (self.nvgpr + 3) // 4 * 4
        assert mv < acc, (self.name, mv, acc)
        assert acc + ma + 1 <= self.nvgpr or ma < 0, (self.name, ma)
        assert ms < self.nsgpr, (self.name, ms)
        self.stats = dict(maxv=mv, maxa=ma, maxs=ms, n=len([x for x in out if x.cls not in ("label", "dir")]), nops=nnop)
        return out

    def text(self):
        out = self.finalize()
        t = [f".globl {self.name}", ".p2align 8", f".type {self.name},@function", f"{self.name}:"]
        for x in out:
            t.append(x.text if x.cls == "label" else "    " + x.text)
        return "\n".join(t)

    def kd(self):
        acc = self.accum if self.accum else min(256, (self.nvgpr + 3) // 4 * 4)
        return "\n".join([".p2align 6", f".amdhsa_kernel {self.name}",
                          f"  .amdhsa_next_free_vgpr {self.nvgpr}", f"  .amdhsa_next_free_sgpr {self.nsgpr}",
                          f"  .amdhsa_accum_offset {acc}", "  .amdhsa_group_segment_fixed_size 0", "  .amdhsa_kernarg_size 80",
                          "  .amdhsa_user_sgpr_count 2", "  .amdhsa_user_sgpr_kernarg_segment_ptr 1",
                          "  .amdhsa_system_sgpr_workgroup_id_x 1",
                          ".end_amdhsa_kernel"])

    def launch_line(self):
        return f"; @launch kernel={self.name} grid=({self.grid},1,1) block=({self.block},1,1) lds={self.lds}"


HEADER = """; Kernarg layout for this problem (80 bytes, ptrs only, base s[0:1]):
"""


def build_file(kerns, path, order=None, single=False):
    order = order or kerns
    if single:
        k0 = kerns[0]
        s = HEADER + f"; @launch grid=({k0.grid},1,1) block=({k0.block},1,1) lds={k0.lds}\n"
    else:
        s = HEADER + "\n".join(k.launch_line() for k in order) + "\n"
    s += '.amdgcn_target "amdgcn-amd-amdhsa--gfx950"\n.text\n'
    for k in kerns:
        s += k.text() + "\n"
        print(k.name, k.stats)
    s += '.section .rodata,"a"\n'
    for k in kerns:
        s += k.kd() + "\n"
    open(path, "w").write(s)
```

```python
from common import *
import os
OPT = lambda n, d=0: int(os.environ.get(n, d))
MF = "v_mfma_f32_32x32x16_bf16"
MF16 = "v_mfma_f32_16x16x32_bf16"
SC = 131072
NST1 = 8
STM = os.environ.get("K1ST", "")

def ln_scalars(k, s, q, mask, r, mb):
    k(f"v_mul_f32 {s}, {lit(1/512)}, {s}"); k(f"v_mul_f32 {q}, {lit(1/512)}, {q}")
    k(f"v_fma_f32 {q}, -{s}, {s}, {q}"); k(f"v_max_f32 {q}, 0, {q}")
    k(f"v_cvt_pk_bf16_f32 {s}, {s}, {q}")
    k(f"v_and_b32 {q}, {mask}, {s}"); k(f"v_lshlrev_b32 {mb}, 16, {s}")
    k(f"v_add_f32 {q}, {lit(1e-5)}, {q}")
    k(f"v_cvt_pk_bf16_f32 {q}, {q}, {q}"); k(f"v_lshlrev_b32 {q}, 16, {q}")
    k(f"v_sqrt_f32 {q}, {q}")
    k(f"v_cvt_pk_bf16_f32 {q}, {q}, {q}"); k(f"v_lshlrev_b32 {q}, 16, {q}")
    k(f"v_rcp_f32 {r}, {q}")

def gen_k1():
    k = Kern("k1_qkv_kernel", 256, 512, SC + 4096, 160, 64)
    k("s_cmp_ge_u32 s2, 256"); k("s_cbranch_scc1 K1_END")
    k.stamp(True); k.stamp()
    k("s_load_dwordx4 s[4:7], s[0:1], 0")
    k("s_load_dwordx2 s[8:9], s[0:1], 72")
    k("v_lshrrev_b32 v1, 6, v0"); k("v_and_b32 v0, 63, v0"); k("v_readfirstlane_b32 s24, v1")
    k("s_and_b32 s27, s2, 7"); k("s_lshr_b32 s28, s2, 3")
    k("s_lshr_b32 s25, s27, 1"); k("s_lshl_b32 s25, s25, 3"); k("s_lshr_b32 s29, s28, 2"); k("s_add_u32 s25, s25, s29")
    k("s_and_b32 s26, s27, 1"); k("s_lshl_b32 s26, s26, 2"); k("s_and_b32 s29, s28, 3"); k("s_add_u32 s26, s26, s29")
    k("s_add_u32 s40, s25, s26"); k("s_and_b32 s40, s40, 7")
    k("s_bfe_u32 s56, s24, 0x10001"); k("s_and_b32 s59, s24, 1")
    LD_FIRST = OPT("LDFIRST", 1)
    k("s_cmp_ge_u32 s24, 4" if LD_FIRST else "s_cmp_lt_u32 s24, 4"); k("s_cbranch_scc1 K1_COMP")
    k("s_load_dwordx4 s[48:51], s[0:1], 32")
    k("s_and_b32 s57, s24, 3")
    k("v_lshrrev_b32 v40, 3, v0"); k("v_lshlrev_b32 v44, 10, v40")
    k("v_lshrrev_b32 v41, 4, v0"); k("v_and_b32 v42, 7, v0")
    k("v_xor_b32 v43, v41, v42"); k("v_lshl_add_u32 v1, v43, 4, v44")
    k("v_xor_b32 v43, 4, v43"); k("v_lshl_add_u32 v2, v43, 4, v44"); k(f"v_add_u32 v2, {8192-1024}, v2")
    k("v_mul_u32_u24 v40, 3072, v40"); k("v_and_b32 v41, 1, v41"); k("v_lshlrev_b32 v41, 2, v41"); k("v_xor_b32 v41, v41, v42"); k("v_lshl_add_u32 v3, v41, 4, v40")
    k("s_lshl_b32 s31, s25, 16"); k("s_lshl_b32 s33, s57, 14"); k("s_add_u32 s31, s31, s33")
    k("s_lshl_b32 s32, s57, 11")
    k("s_mul_i32 s35, s57, 49152"); k("s_lshl_b32 s33, s26, 7"); k("s_add_u32 s35, s35, s33")
    k("s_mul_i32 s36, s57, 6144"); k("s_add_u32 s36, s36, 8192")
    k("s_mov_b32 s42, 0"); k("s_mov_b32 s43, 0"); k("s_mov_b32 s41, s40")
    k("s_waitcnt lgkmcnt(0)")
    srd(k, 12, 4, 2048 * 1024); srd(k, 16, 6, 512 * 3072)
    def issue():
        o = ["s_lshl_b32 s33, s41, 7", "s_add_u32 m0, s43, s32", "s_add_u32 s33, s33, s31",
             "buffer_load_dwordx4 v1, s[12:15], s33 offen lds",
             "buffer_load_dwordx4 v2, s[12:15], s33 offen offset:1024 lds",
             "s_mul_i32 s33, s41, 196608", "s_add_u32 m0, s43, s36", "s_add_u32 s33, s33, s35"]
        o += [f"buffer_load_dwordx4 v3, s[16:19], s33 offen offset:{blk*1024} lds" for blk in range(3)]
        o += ["s_add_u32 m0, m0, 3072", "s_add_u32 s33, s33, 24576"]
        o += [f"buffer_load_dwordx4 v3, s[16:19], s33 offen offset:{blk*1024} lds" for blk in range(3)]
        o += ["s_add_u32 s41, s41, 1", "s_and_b32 s41, s41, 7", "s_add_u32 s43, s43, 32768", "s_and_b32 s43, s43, 0x1ffff"]
        return o
    D0 = OPT("D0", 2)
    k.label("K1_LP")
    for x in issue(): k(x)
    k("s_add_u32 s42, s42, 1"); k(f"s_cmp_lt_u32 s42, {D0}"); k("s_cbranch_scc1 K1_LP")
    k("v_and_b32 v48, 31, v0"); k("v_lshrrev_b32 v49, 5, v0"); k("v_bfe_u32 v50, v0, 1, 3")
    k("s_lshl_b32 s33, s56, 12"); k("v_lshl_add_u32 v51, v48, 7, s33")
    k("s_lshl_b32 s33, s59, 2"); k("v_or_b32 v52, s33, v49"); k("v_xor_b32 v52, v52, v50"); k("v_lshl_add_u32 v4, v52, 4, v51"); k("v_xor_b32 v5, 32, v4")
    k("v_mov_b32 v8, v4"); k("v_mov_b32 v9, v5"); k("v_mov_b32 v13, 0xffff0000")
    for r in range(54, 62): k(f"v_mov_b32 v{r}, 0")
    srd(k, 20, 8, WS_SIZE)
    k("s_mov_b32 s42, 0"); k("s_mov_b32 s44, 0")
    k.stamp()
    def stats():
        o = []
        for r in range(8):
            o += [f"v_lshlrev_b32 v{24+2*r}, 16, v{16+r}", f"v_and_b32 v{25+2*r}, v13, v{16+r}"]
        for r in range(16):
            o += [f"v_add_f32 v{54+(r&3)}, v{54+(r&3)}, v{24+r}", f"v_fmac_f32 v{58+(r&3)}, v{24+r}, v{24+r}"]
        return o
    head = ["s_barrier", "ds_read_b128 v[16:19], v8", "ds_read_b128 v[20:23], v9",
            "s_add_u32 s44, s44, 32768", "s_and_b32 s44, s44, 0x1ffff", "v_add_u32 v8, s44, v4", "v_add_u32 v9, s44, v5"]
    nA = 8 - D0
    k.label("K1_LA")
    k(f"s_waitcnt vmcnt({8*(D0-1)})")
    for x in head: k(x)
    iss = issue()
    for x in iss[:5]: k(x)
    k("s_waitcnt lgkmcnt(0)")
    for x in interleave(iss[5:], stats()): k(x)
    k("s_add_u32 s42, s42, 1"); k(f"s_cmp_lt_u32 s42, {nA}"); k("s_cbranch_scc1 K1_LA")
    NPF = OPT("NPF", 4)
    assert D0 == 2
    if NPF:
        k("s_bitcmp1_b32 s24, 0"); k("s_cselect_b32 s10, s50, s48"); k("s_cselect_b32 s11, s51, s49")
        srd(k, 52, 10, 512 * 3584)
        k("s_lshl_b32 s33, s28, 1"); k("s_add_u32 s33, s33, s56"); k(f"s_mul_i32 s33, s33, {NPF*3584}")
        k("s_and_b32 s34, s27, 3"); k("s_mul_i32 s34, s34, 896"); k("s_add_u32 s33, s33, s34")
        k("v_lshlrev_b32 v15, 4, v0")
        for i in range(NPF):
            k("buffer_load_dwordx4 v[64:67], v15, s[52:55], s33 offen"); k("s_add_u32 s33, s33, 3584")
    k(f"s_waitcnt vmcnt({8 + NPF})")
    k.label("K1_LB")
    for x in head: k(x)
    k("s_waitcnt lgkmcnt(0)")
    for x in stats(): k(x)
    k("s_add_u32 s42, s42, 1")
    k(f"s_waitcnt vmcnt({NPF})"); k("s_cmp_lt_u32 s42, 8"); k("s_cbranch_scc1 K1_LB")
    k.stamp()
    k("v_add_f32 v54, v54, v55"); k("v_add_f32 v56, v56, v57"); k("v_add_f32 v58, v58, v59"); k("v_add_f32 v60, v60, v61")
    k("v_add_f32 v54, v54, v56"); k("v_add_f32 v58, v58, v60"); k("v_mov_b32 v55, v54"); k("v_mov_b32 v59, v58")
    k("s_lshl_b32 s33, s56, 9"); k(f"s_add_u32 s33, s33, {SC+2048}"); k("v_lshl_add_u32 v6, v48, 4, s33")
    k("v_permlane32_swap_b32 v54, v55"); k("v_permlane32_swap_b32 v58, v59")
    k("s_lshl_b32 s33, s59, 3"); k("v_add_u32 v7, s33, v6")
    k("v_add_f32 v54, v54, v55"); k("v_add_f32 v55, v58, v59")
    k("ds_write_b64 v7, v[54:55]")
    k("s_waitcnt lgkmcnt(0)"); k("s_barrier")
    k("ds_read_b128 v[54:57], v6")
    k("s_add_u32 s38, s40, 7"); k("s_and_b32 s38, s38, 7"); k("s_lshl_b32 s38, s38, 12"); k("s_lshl_b32 s39, s59, 11"); k("s_add_u32 s38, s38, s39")
    k("s_lshl_b32 s39, s25, 16"); k("s_add_u32 s38, s38, s39"); k("s_lshl_b32 s39, s56, 15"); k("s_add_u32 s38, s38, s39"); k(f"s_add_u32 s38, s38, {WS_XN}")
    k("v_lshlrev_b32 v15, 4, v0")
    k("s_waitcnt lgkmcnt(0)")
    k("v_add_f32 v54, v54, v56"); k("v_add_f32 v55, v55, v57")
    ln_scalars(k, "v54", "v55", "v13", "v12", "v14")
    k("v_mul_f32 v14, -v14, v12")
    for r in range(16): k(f"v_fma_f32 v{24+r}, v{24+r}, v12, v14")
    for r in range(8): k(f"v_cvt_pk_bf16_f32 v{16+r}, v{24+2*r}, v{25+2*r}")
    k(f"buffer_store_dwordx4 v[16:19], v15, s[20:23], s38 offen {STM}")
    k(f"buffer_store_dwordx4 v[20:23], v15, s[20:23], s38 offen offset:1024 {STM}")
    k("s_cmp_lg_u32 s57, 0"); k("s_cbranch_scc1 K1_NF")
    k("v_lshlrev_b32 v40, 2, v0"); k("v_mov_b32 v41, 0"); k("s_lshl_b32 s43, s2, 8"); k(f"s_add_u32 s43, s43, {WS_FLAG}")
    k("buffer_store_dword v41, v40, s[20:23], s43 offen")
    k.label("K1_NF")
    if Kern.DIAG:
        while k.nst < NST1 - 1: k.stamp()
        k.stamp(True); k.dump_stamps(0, 24, 40, 8); k.nst = 2
    k("s_endpgm")
    FS = [16, 32, 48, 64]
    ACC = 80; CS = 128; SEL = 140
    k.label("K1_COMP")
    k("v_and_b32 v144, 31, v0"); k("v_lshrrev_b32 v145, 5, v0"); k("v_bfe_u32 v146, v0, 1, 3")
    k("s_lshl_b32 s33, s56, 12"); k("v_lshl_add_u32 v147, v144, 7, s33")
    k("s_lshl_b32 s33, s56, 2"); k("v_or_b32 v148, s33, v145"); k("v_xor_b32 v148, v148, v146"); k("v_lshl_add_u32 v4, v148, 4, v147")
    for j in (1, 2, 3): k(f"v_xor_b32 v{4+j}, {32*j}, v4")
    k("v_mul_u32_u24 v147, 3072, v145"); k("v_bfe_u32 v148, v0, 2, 2"); k("v_lshl_add_u32 v147, v148, 7, v147")
    k("v_bfe_u32 v148, v0, 3, 1"); k("v_xor_b32 v148, s59, v148"); k("v_lshl_add_u32 v147, v148, 6, v147")
    k("v_bfe_u32 v149, v0, 4, 1"); k("v_lshl_add_u32 v147, v149, 5, v147"); k("v_and_b32 v148, 3, v0"); k("v_lshl_add_u32 v147, v148, 3, v147")
    k("s_mul_i32 s33, s56, 12288"); k("s_add_u32 s34, s33, 8192"); k("v_add_u32 v8, s34, v147")
    k(f"s_sub_u32 s34, {8192+12288}, s33"); k("v_add_u32 v9, s34, v147")
    k("v_bfe_u32 v147, v0, 2, 1"); k("v_xor_b32 v147, v147, v149"); k("v_or_b32 v147, v147, v148")
    k("v_cmp_eq_u32 vcc, 0, v147"); k("v_mov_b32 v147, 0x3f803f80")
    k(f"v_cndmask_b32 v{SEL}, 0, v147, vcc")
    for r in (1, 2, 3): k(f"v_mov_b32 v{SEL+r}, v{SEL}")
    for r in range(FS[2], CS + 12): k(f"v_mov_b32 v{r}, 0")
    k("s_lshl_b32 s30, s25, 1"); k("s_add_u32 s30, s30, s56")
    k("s_lshl_b32 s33, s26, 18"); k("s_lshl_b32 s34, s59, 17"); k("s_add_u32 s33, s33, s34"); k("s_lshl_b32 s34, s30, 10"); k("s_add_u32 s33, s33, s34")
    k(f"s_add_u32 s34, s33, {WS_K}"); k(f"s_add_u32 s35, s33, {WS_V}"); k("s_add_u32 s36, s33, 65536"); k("s_add_u32 s37, s34, 65536")
    k("v_lshlrev_b32 v15, 4, v0")
    k("s_lshl_b32 s38, s56, 9"); k(f"s_add_u32 s38, s38, {SC+2048}"); k("v_lshl_add_u32 v1, v144, 4, s38")
    k("s_lshl_b32 s38, s59, 10"); k(f"s_add_u32 s38, s38, {SC}"); k("v_lshl_add_u32 v2, v144, 5, s38")
    k("s_lshl_b32 s38, s56, 4"); k("v_add_u32 v10, s38, v2"); k("v_xor_b32 v2, 16, v10")
    k("s_and_b32 s38, s24, 3"); k("s_lshl_b32 s38, s38, 7"); k(f"s_add_u32 s38, s38, {SC+3072}")
    k("v_lshl_add_u32 v11, v144, 2, s38"); k("v_lshl_add_u32 v14, v145, 4, s38")
    k("v_lshlrev_b32 v3, 16, v149"); k("v_lshl_add_u32 v3, v145, 8, v3"); k("v_and_b32 v148, 15, v0"); k("v_lshl_add_u32 v3, v148, 4, v3")
    k("v_mov_b32 v13, 0xffff0000")
    k("s_mov_b32 s42, 0")
    k("s_waitcnt lgkmcnt(0)")
    srd(k, 20, 8, WS_SIZE)
    k.stamp()
    def reads(j, off):
        f = FS[j]; w = "v8" if j < 2 else "v9"; o = off + (j & 1)*6144
        out = [f"ds_read_b128 {vr(f,4)}, v{4+j} offset:{off}"]
        for blk in range(3):
            out += [f"ds_read_b64_tr_b16 {vr(f+4+4*blk,2)}, {w} offset:{o+blk*1024}", f"ds_read_b64_tr_b16 {vr(f+6+4*blk,2)}, {w} offset:{o+blk*1024+512}"]
        return out
    def mfs(j):
        f = FS[j]; out = []
        for blk in range(3):
            a = vr(ACC + blk*16, 16); w = vr(f+4+4*blk, 4); x = vr(f, 4)
            out.append(f"{MF} {a}, {w}, {x}, {a}" if blk < 2 else f"{MF} {a}, {x}, {w}, {a}")
            if j < 2: out.append(f"{MF16} {vr(CS+4*blk,4)}, {vr(SEL,4)}, {w}, {vr(CS+4*blk,4)}")
        return out
    k.label("K1_CL")
    for p in range(2):
        k("s_barrier")
        for j in range(4):
            if j >= 2: k("s_waitcnt lgkmcnt(7)")
            for x in interleave(mfs((j + 2) & 3), reads(j, p*32768)): k(x)
        if p == 1:
            for i in range(6): k(f"v_xor_b32 v{4+i}, 0x10000, v{4+i}")
            k("s_add_u32 s42, s42, 1"); k("s_cmp_lt_u32 s42, 4")
        k("s_waitcnt lgkmcnt(0)")
    k("s_cbranch_scc1 K1_CL")
    k.stamp()
    for x in mfs(2): k(x)
    k(f"v_mov_b32 v{CS+1}, v{CS+4}"); k(f"v_mov_b32 v{CS+2}, v{CS+8}")
    k(f"ds_write_b128 v10, {vr(CS,4)}")
    for x in mfs(3): k(x)
    k("s_waitcnt lgkmcnt(0)"); k("s_barrier")
    k("ds_read_b128 v[16:19], v1"); k("ds_read_b128 v[20:23], v2")
    k("s_waitcnt lgkmcnt(1)")
    k("v_add_f32 v16, v16, v18"); k("v_add_f32 v17, v17, v19")
    ln_scalars(k, "v16", "v17", "v13", "v12", "v18")
    k("ds_write_b32 v11, v12")
    for q in range(4): k(f"ds_read_b128 {vr(48+4*q,4)}, v14 offset:{q*32}")
    k("v_cvt_pk_bf16_f32 v24, -v18, -v18"); k("v_lshrrev_b32 v25, 16, v24"); k("v_mov_b32 v26, 0"); k("v_mov_b32 v27, 0")
    k("s_mov_b32 exec_lo, 0"); k("v_mov_b32 v24, 0"); k("v_mov_b32 v25, 0"); k("s_mov_b32 exec_lo, -1")
    for b in range(3):
        c = 28 + 4*b
        k(f"v_add_f32 v{c+2}, v{CS+b}, v{20+b}")
        k(f"v_and_b32 v{c+3}, v13, v{c+2}"); k(f"v_sub_f32 v{c+2}, v{c+2}, v{c+3}")
        k(f"v_and_b32 v{c+1}, v13, v{c+2}"); k(f"v_sub_f32 v{c+2}, v{c+2}, v{c+1}")
        k(f"v_lshrrev_b32 v{c+3}, 16, v{c+3}"); k(f"v_or_b32 v{c}, v{c+3}, v{c+1}")
        k(f"v_lshrrev_b32 v{c+1}, 16, v{c+2}"); k(f"v_mov_b32 v{c+2}, 0"); k(f"v_mov_b32 v{c+3}, 0")
    for blk in (1, 2, 0):
        a = vr(ACC + blk*16, 16); c = vr(28+4*blk, 4)
        k(f"{MF} {a}, {c}, v[24:27], {a}" if blk < 2 else f"{MF} {a}, v[24:27], {c}, {a}")
    k(f"v_mul_f32 v10, {lit(QSCALE)}, v12")
    k("s_waitcnt lgkmcnt(0)")
    so = {0: ("s33", "s36"), 1: ("s34", "s37")}
    for blk in (1, 2, 0):
        a = ACC + blk*16
        for h in range(2):
            for r in range(8*h, 8*h+8):
                k(f"v_mul_f32 v{a+r}, {('v10', 'v12', 'v%d' % (48+r))[blk]}, v{a+r}")
            d = 16 + (blk*2+h)*4 if blk < 2 else 64 + 4*h
            if blk == 0: d = 72 + 4*h
            if blk == 1: d = 40 + 4*h
            for r in range(4): k(f"v_cvt_pk_bf16_f32 v{d+r}, v{a+8*h+2*r}, v{a+8*h+2*r+1}")
            if blk < 2: k(f"buffer_store_dwordx4 {vr(d,4)}, v15, s[20:23], {so[blk][h]} offen {STM}")
            else: k(f"buffer_store_dwordx4 {vr(d,4)}, v3, s[20:23], s35 offen offset:{512*h} {STM}")
    if Kern.DIAG:
        k.stamp()
        k("s_waitcnt vmcnt(0)")
        while k.nst < NST1 - 1: k.stamp()
        k.stamp(True); k.dump_stamps(0, 24, 40, 8)
    k.label("K1_END")
    k("s_endpgm")
    return k
```

```python
from common import *
import os
OPT = lambda n, d=0: int(os.environ.get(n, d))

UP_SLOT = 28928
UP_W3OFF = 14464
RING = 0
ONES = 65536
PROG = ONES + 2048
PAIR = PROG + 3072
GB = PAIR + 256
LDS_TOTAL = GB + 3 * UP_SLOT
assert GB % 256 == 0 and LDS_TOTAL <= 163840, (GB, LDS_TOTAL)
MF = "v_mfma_f32_32x32x16_bf16"
HFLAG = WS_FLAG
OFLAG = WS_FLAG + 32768
NST = 14

def gen_k2():
    k = Kern("k2_fused_kernel", 256, 768, LDS_TOTAL, 168, 72)
    k("s_cmp_ge_u32 s2, 256"); k("s_cbranch_scc1 K2_END")
    k.stamp(True); k.stamp()
    k("s_load_dwordx2 s[8:9], s[0:1], 72")
    k("s_load_dwordx4 s[4:7], s[0:1], 32")
    k("v_lshrrev_b32 v1, 6, v0"); k("v_lshlrev_b32 v11, 2, v0"); k("v_readfirstlane_b32 s24, v1")
    k("v_and_b32 v0, 63, v0"); k("v_lshlrev_b32 v1, 4, v0")
    k(f"v_add_u32 v11, {PROG}, v11")
    k("s_cmp_ge_u32 s24, 8"); k("s_cbranch_scc1 K2_GEMM")
    attn_part(k)
    k.label("K2_GEMM")
    if Kern.DIAG: k.nst = 2
    gemm_part(k)
    k.label("K2_END")
    k("s_endpgm")
    return k

def softcheck(k, tag, sval, vdst, vaddr):
    k(f"v_cmp_le_u32 vcc, {sval}, {vdst}")
    k("s_cmp_eq_u64 vcc, -1")
    k(f"s_cbranch_scc0 {tag}_SPIN")
    k.label(f"{tag}_CONT")
    def tail():
        k.label(f"{tag}_SPIN")
        k("s_sleep 1")
        k(f"ds_read_b32 {vdst}, {vaddr}")
        k("s_waitcnt lgkmcnt(0)")
        k(f"v_cmp_le_u32 vcc, {sval}, {vdst}")
        k("s_cmp_eq_u64 vcc, -1")
        k(f"s_cbranch_scc0 {tag}_SPIN")
        k(f"s_branch {tag}_CONT")
    return tail

def finish(k, vtmp):
    if Kern.DIAG:
        k("s_waitcnt vmcnt(0)")
        while k.nst < NST - 1: k.stamp()
        k.stamp(True)
        k.dump_stamps(1, 24, vtmp, 8)
    k("s_endpgm")

def attn_part(k):
    S = [16, 32]; O = [48, 64]; C = 80; P = 96; Q = [104, 108]
    KF = [112, 116]; VF = [[120, 124], [128, 132]]; K0 = 136
    NG = OPT("AT_UNROLL", 2)
    tails = []
    k("s_and_b32 s25, s2, 7"); k("s_lshl_b32 s25, s25, 2"); k("s_bfe_u32 s26, s2, 0x20003"); k("s_add_u32 s25, s25, s26")
    k("s_lshr_b32 s38, s24, 2"); k("s_and_b32 s39, s24, 3")
    k("s_lshr_b32 s26, s2, 5"); k("s_lshl_b32 s26, s26, 3"); k("s_lshl_b32 s28, s39, 1"); k("s_add_u32 s26, s26, s28")
    k("s_lshl_b32 s27, s25, 16")
    k("s_lshr_b32 s28, s39, 1"); k("s_lshl_b32 s28, s28, 21"); k("s_add_u32 s30, s27, s28"); k(f"s_add_u32 s30, s30, {WS_K}")
    k("s_lshl_b32 s28, s38, 15"); k("s_add_u32 s30, s30, s28"); k("s_and_b32 s28, s39, 1"); k("s_lshl_b32 s28, s28, 10"); k("s_add_u32 s30, s30, s28")
    k("s_lshl_b32 s28, s24, 10")
    k("s_lshl_b32 s32, s26, 10"); k("s_add_u32 s32, s32, s27")
    k(f"s_add_u32 s33, s27, {WS_K}")
    k("s_mov_b32 m0, s28")
    k("s_waitcnt lgkmcnt(0)")
    srd(k, 20, 8, WS_SIZE)
    k(f"buffer_load_dwordx4 {vr(Q[0],4)}, v1, s[20:23], s32 offen")
    k(f"buffer_load_dwordx4 {vr(Q[1],4)}, v1, s[20:23], s32 offen offset:1024")
    k(f"buffer_load_dwordx4 {vr(K0,4)}, v1, s[20:23], s33 offen")
    for g in range(3):
        k("buffer_load_dwordx4 v1, s[20:23], s30 offen lds")
        k("s_add_u32 m0, m0, 8192"); k("s_add_u32 s30, s30, 2048")
    k("v_mov_b32 v13, 0"); k("v_mov_b32 v8, 0x3f803f80")
    if OPT("ZROWS", 1):
        k("v_and_b32 v9, 44, v0"); k("v_cmp_eq_u32 vcc, 0, v9"); k("v_cndmask_b32 v8, 0, v8, vcc")
    k("ds_write_b32 v11, v13")
    k(f"v_add_u32 v9, {ONES - PROG + (1<<32)}, v11"); k("ds_write_b32 v9, v8")
    k("v_lshrrev_b32 v2, 5, v0"); k("v_lshlrev_b32 v2, 8, v2"); k("v_and_b32 v3, 15, v0"); k("v_lshl_add_u32 v2, v3, 4, v2")
    k("s_lshl_b32 s29, s38, 12")
    k("v_add_u32 v15, s29, v1")
    k("v_bfe_u32 v10, v0, 4, 1"); k("v_add_u32 v10, -1, v10")
    k(f"s_add_u32 s31, s29, {2048 - ONES + (1<<32)}")
    k("v_and_b32 v3, s31, v10"); k(f"v_add_u32 v3, {ONES}, v3"); k("v_add_u32 v3, v3, v2")
    k("v_and_b32 v12, 3, v0"); k("v_lshlrev_b32 v12, 8, v12"); k("v_lshl_add_u32 v12, v0, 2, v12")
    k(f"s_lshl_b32 s31, s38, 10"); k(f"s_add_u32 s31, s31, {PROG}"); k("v_add_u32 v12, s31, v12")
    k("s_xor_b32 s31, s24, 4"); k("s_lshl_b32 s31, s31, 8"); k(f"s_add_u32 s31, s31, {PROG - 128}")
    k("s_mov_b32 exec_lo, 0"); k("v_lshl_add_u32 v12, v0, 2, s31"); k("s_mov_b32 exec_lo, -1")
    k("s_mov_b32 s40, 0x0000ffff"); k("s_mov_b32 s41, 0x0000ffff")
    for r in range(4): k(f"v_mov_b32 v{VF[1][1]+r}, 0")
    for r in range(32): k(f"v_mov_b32 v{O[0]+r}, 0")
    for r in range(4, 8): k(f"v_mov_b32 v{P+r}, 0")
    k("v_mov_b32 v5, v3"); k("v_add_u32 v6, 8192, v15"); k("v_and_b32 v7, 8192, v10"); k("v_add_u32 v7, v7, v3")
    k("v_lshrrev_b32 v13, 5, v0"); k("v_add_u32 v13, 1, v13")
    k("s_waitcnt lgkmcnt(0)"); k("s_barrier")
    if OPT("NOATTN"): k("s_endpgm")
    k("s_waitcnt vmcnt(3)")
    k(f"{MF} {vr(S[0],16)}, {vr(K0,4)}, {vr(Q[0],4)}, 0")
    k(f"{MF} {vr(S[1],16)}, {vr(K0,4)}, {vr(Q[1],4)}, 0")
    k("s_waitcnt vmcnt(1)")
    k("ds_write_b32 v11, v13")
    k("s_mov_b32 s34, 1")
    k(f"v_max3_f32 v8, v{S[0]}, v{S[0]+1}, v{S[0]+2}")
    for i in range(3, 31, 2): k(f"v_max3_f32 v8, v8, v{S[0]+i}, v{S[0]+i+1}")
    k(f"v_max_f32 v8, v8, v{S[0]+31}")
    k("ds_read_b32 v14, v12")
    k("v_mov_b32 v9, v8"); k("v_permlane32_swap_b32 v8, v9"); k("v_max_f32 v8, v8, v9")
    for r in range(16): k(f"v_xor_b32 v{C+r}, 0x80000000, v8")
    k("s_waitcnt lgkmcnt(0)")
    k("v_cmp_le_u32 vcc, v13, v14"); k("s_setprio 1"); k("s_cmp_eq_u32 vcc_lo, -1"); k("s_cbranch_scc0 AP_SPIN")
    k.label("AP_CONT")
    def tail(tag="AP"):
        k.label(f"{tag}_SPIN"); k("s_sleep 1"); k("ds_read_b32 v14, v12"); k("s_waitcnt lgkmcnt(0)")
        k("v_cmp_le_u32 vcc, v13, v14"); k("s_cmp_eq_u32 vcc_lo, -1"); k(f"s_cbranch_scc0 {tag}_SPIN"); k(f"s_branch {tag}_CONT")
    tails.append(tail)
    k.stamp()
    k(f"ds_read_b128 {vr(KF[0],4)}, v15")
    k(f"ds_read_b128 {vr(VF[0][0],4)}, v5"); k(f"ds_read_b128 {vr(VF[0][1],4)}, v5 offset:512")
    k(f"ds_read_b128 {vr(KF[1],4)}, v15 offset:1024")
    k("s_mov_b32 s37, 16384")
    k("s_waitcnt lgkmcnt(3)")
    k(f"{MF} {vr(S[0],16)}, {vr(KF[0],4)}, {vr(Q[0],4)}, {vr(C,16)}")
    k("s_nop 10")
    k.label("AT_LOOP")
    for gi in range(NG):
      for t in range(2):
        for ab in range(2):
            Sa = S[ab]
            q = []
            def e(i, extra=None):
                k(f"v_exp_f32 v{Sa+i}, v{Sa+i}")
                if extra: k(extra)
                elif q: k(q.pop(0))
            c = lambda i: k(f"v_cvt_pk_bf16_f32 v{P+i}, v{Sa+2*i}, v{Sa+2*i+1}")
            if ab == 0:
                k(f"{MF} {vr(S[1],16)}, {vr(KF[t&1],4)}, {vr(Q[1],4)}, {vr(C,16)}")
                e(0, "ds_read_b32 v14, v12" if t == 0 else None); e(1); e(2); e(3)
                k(f"{MF} {vr(O[1],16)}, {vr(VF[(t+1)&1][1],4)}, {vr(P+4,4)}, {vr(O[1],16)}")
                va, vo = ("v5", 1024) if t == 0 else ("v7", 0)
                e(4, f"ds_read_b128 {vr(VF[(t+1)&1][0],4)}, {va} offset:{vo}")
                e(5)
                e(6, f"ds_read_b128 {vr(VF[(t+1)&1][1],4)}, {va} offset:{vo+512}")
                e(7); e(8)
                for i in range(4): c(i)
                e(9); e(10, "s_waitcnt lgkmcnt(4)")
                k(f"{MF} {vr(O[0],16)}, {vr(VF[t&1][0],4)}, {vr(P,4)}, {vr(O[0],16)}")
                e(11); e(12)
                e(13, "s_waitcnt lgkmcnt(2)")
                if t == 0:
                    k("v_cmp_le_u32 vcc, v13, v14")
                    e(14, "s_setprio 1" if OPT("BAL", 1) else None); e(15, "s_cmp_eq_u32 vcc_lo, -1")
                    if not OPT("X_NOSPIN"): k(f"s_cbranch_scc0 AT{gi}_SPIN")
                    k.label(f"AT{gi}_CONT")
                    k("v_add_u32 v13, 1, v13")
                    if OPT("BAL", 1):
                        k("s_cmp_eq_u32 vcc_hi, 0"); k(f"s_cbranch_scc1 AT{gi}_AHEAD"); k("s_setprio 2"); k.label(f"AT{gi}_AHEAD")
                    def tail(tag=f"AT{gi}"):
                        k.label(f"{tag}_SPIN"); k("s_sleep 1"); k("ds_read_b32 v14, v12"); k("s_waitcnt lgkmcnt(0)")
                        k("v_cmp_le_u32 vcc, v13, v14"); k("s_cmp_eq_u32 vcc_lo, -1"); k(f"s_cbranch_scc0 {tag}_SPIN"); k(f"s_branch {tag}_CONT")
                    tails.append(tail)
                else:
                    e(14); e(15)
                c(4); c(5); c(6); c(7)
            else:
                k(f"{MF} {vr(S[0],16)}, {vr(KF[(t+1)&1],4)}, {vr(Q[0],4)}, {vr(C,16)}")
                if t == 0:
                    e(0, "s_waitcnt vmcnt(0)"); e(1, "ds_write_b32 v11, v13")
                    e(2, f"ds_read_b128 {vr(KF[t&1],4)}, v6 offset:{t*1024}")
                    e(3, "s_cmp_ge_u32 s34, 14")
                else:
                    e(0, f"ds_read_b128 {vr(KF[t&1],4)}, v6 offset:{t*1024}"); e(1); e(2); e(3)
                k(f"{MF} {vr(O[0],16)}, {vr(VF[t&1][1],4)}, {vr(P+4,4)}, {vr(O[0],16)}")
                if t == 0:
                    k(f"s_cbranch_scc1 AT_NODMA{gi}")
                    if not OPT("X_NODMA"): k("buffer_load_dwordx4 v1, s[20:23], s30 offen lds")
                    k.label(f"AT_NODMA{gi}")
                    q += ["s_add_u32 s35, m0, 8192", "s_and_b32 m0, s35, 0xffff", "s_add_u32 s30, s30, 2048"]
                else:
                    q += ["s_add_u32 s34, s34, 1"]
                e(4); e(5); e(6); e(7); e(8)
                for i in range(4): c(i)
                e(9); e(10)
                k(f"{MF} {vr(O[1],16)}, {vr(VF[t&1][0],4)}, {vr(P,4)}, {vr(O[1],16)}")
                if t == 1:
                    k("v_mov_b32 v5, v7"); k("v_add_u32 v6, s37, v15"); k("v_and_b32 v7, s37, v10"); k("v_add_u32 v7, v7, v3")
                    q += ["s_add_u32 s37, s37, 8192", "s_and_b32 s37, s37, 0xffff", "s_cmp_lt_u32 s34, 17"]
                e(11); e(12); e(13); e(14); e(15)
                c(4); c(5); c(6); c(7)
    k("s_cbranch_scc1 AT_LOOP")
    k(f"{MF} {vr(O[1],16)}, {vr(VF[1][1],4)}, {vr(P+4,4)}, {vr(O[1],16)}")
    k.stamp()
    k("s_lshl_b32 s35, s39, 13")
    k("v_add_u32 v4, s35, v15")
    k("v_xor_b32 v5, 4096, v4")
    k("s_lshl_b32 s35, s39, 9"); k("s_add_u32 s35, s35, s29"); k("s_add_u32 s35, s35, 32768")
    k("v_lshl_add_u32 v6, v0, 2, s35"); k("v_xor_b32 v7, 4096, v6")
    k("s_lshl_b32 s35, s39, 2"); k(f"s_add_u32 s35, s35, {PAIR}"); k("v_mov_b32 v8, s35"); k("v_mov_b32 v9, 1")
    for ab in range(2):
        k(f"ds_write_b128 v4, {vr(O[ab],4)} offset:{ab*2048}"); k(f"ds_write_b128 v4, {vr(O[ab]+4,4)} offset:{ab*2048+1024}")
        k(f"ds_write_b32 v6, v{O[ab]+8} offset:{ab*256}")
    k("s_mov_b64 exec, 1")
    k("ds_add_rtn_u32 v9, v8, v9")
    k("s_mov_b64 exec, -1")
    for ab in range(2):
        k(f"ds_read_b128 {vr(S[ab],4)}, v5 offset:{ab*2048}"); k(f"ds_read_b128 {vr(S[ab]+4,4)}, v5 offset:{ab*2048+1024}")
        k(f"ds_read_b32 v{S[ab]+8}, v7 offset:{ab*256}")
    k("s_lshl_b32 s33, s26, 15"); k("s_lshl_b32 s34, s25, 10"); k("s_add_u32 s33, s33, s34"); k(f"s_add_u32 s33, s33, {WS_O}")
    k(f"v_mov_b32 v11, {lit(2.0**30)}"); k(f"v_mov_b32 v10, {lit(2.0**-30)}"); k(f"v_mov_b32 v14, 0x7f800000")
    k("s_waitcnt lgkmcnt(0)")
    k.stamp()
    k("v_readfirstlane_b32 s35, v9")
    k("s_cmp_eq_u32 s35, 0"); k("s_cbranch_scc1 AT_EXIT")
    for ab in range(2):
        for r in range(9): k(f"v_add_f32 v{O[ab]+r}, v{O[ab]+r}, v{S[ab]+r}")
    k(f"v_add_f32 v8, |v{O[0]}|, |v{O[1]}|")
    for ab in range(2):
        for i in range(1, 8): k(f"v_add_f32 v8, v8, |v{O[ab]+i}|")
    k(f"v_cmp_gt_f32 s[42:43], v14, v8")
    for ab in range(2):
        k(f"v_cmp_gt_f32 s[44:45], v11, v{O[ab]+8}"); k(f"v_cmp_lt_f32 s[46:47], v10, v{O[ab]+8}")
        k("s_and_b64 s[42:43], s[42:43], s[44:45]"); k("s_and_b64 s[42:43], s[42:43], s[46:47]")
    k("s_cmp_eq_u64 s[42:43], -1")
    k("s_cbranch_scc0 AT_SLOW")
    k.label("AT_FIN")
    k("s_add_u32 s34, s33, 32768")
    k(f"v_rcp_f32 v8, v{O[0]+8}"); k(f"v_rcp_f32 v9, v{O[1]+8}")
    for ab in range(2):
        for i in range(8): k(f"v_mul_f32 v{O[ab]+i}, v{8+ab}, v{O[ab]+i}")
        for i in range(4): k(f"v_cvt_pk_bf16_f32 v{P+4*ab+i}, v{O[ab]+2*i}, v{O[ab]+2*i+1}")
        k(f"buffer_store_dwordx4 {vr(P+4*ab,4)}, v1, s[20:23], s{33+ab} offen sc1")
    k("s_lshl_b32 s35, s26, 7"); k("s_lshl_b32 s36, s25, 2"); k("s_add_u32 s35, s35, s36"); k(f"s_add_u32 s35, s35, {OFLAG}")
    k("v_mov_b32 v8, 0"); k("v_mov_b32 v9, 1")
    k.stamp()
    k("s_mov_b64 exec, 1")
    k("s_waitcnt vmcnt(0)")
    k.stamp()
    k("buffer_store_dword v9, v8, s[20:23], s35 offen sc1")
    k("s_mov_b64 exec, -1")
    k.label("AT_EXIT")
    finish(k, 8)
    for t in tails: t()
    k.label("AT_SLOW")
    k(f"s_add_u32 s30, s27, {WS_K}"); k(f"s_add_u32 s31, s27, {WS_V}")
    for r in range(8): k(f"v_mov_b32 v{VF[0][0]+r}, 0x3f803f80")
    for ab in range(2):
        k("v_mov_b32 v8, 0xff800000"); k("s_mov_b32 s34, 0")
        k.label(f"AT_S1{ab}")
        k("s_add_u32 s36, s30, s34")
        k(f"buffer_load_dwordx4 {vr(KF[0],4)}, v1, s[20:23], s36 offen")
        k("s_waitcnt vmcnt(0)")
        k(f"{MF} {vr(S[0],16)}, {vr(KF[0],4)}, {vr(Q[ab],4)}, 0")
        for i in range(0, 16, 2): k(f"v_max3_f32 v8, v8, v{S[0]+i}, v{S[0]+i+1}")
        k("s_add_u32 s34, s34, 1024"); k("s_cmp_lt_u32 s34, 65536"); k(f"s_cbranch_scc1 AT_S1{ab}")
        k("v_mov_b32 v9, v8"); k("v_permlane32_swap_b32 v8, v9"); k("v_max_f32 v8, v8, v9")
        for r in range(16): k(f"v_xor_b32 v{C+r}, 0x80000000, v8")
        for r in range(16): k(f"v_mov_b32 v{O[ab]+r}, 0")
        k("s_mov_b32 s34, 0")
        k.label(f"AT_S2{ab}")
        k("s_add_u32 s36, s30, s34"); k("s_add_u32 s35, s31, s34")
        k(f"buffer_load_dwordx4 {vr(KF[0],4)}, v1, s[20:23], s36 offen")
        k("s_mov_b64 exec, s[40:41]")
        k(f"buffer_load_dwordx4 {vr(VF[0][0],4)}, v2, s[20:23], s35 offen")
        k(f"buffer_load_dwordx4 {vr(VF[0][1],4)}, v2, s[20:23], s35 offen offset:512")
        k("s_mov_b64 exec, -1")
        k("s_waitcnt vmcnt(0)")
        k(f"{MF} {vr(S[0],16)}, {vr(KF[0],4)}, {vr(Q[ab],4)}, {vr(C,16)}")
        for i in range(16): k(f"v_exp_f32 v{S[0]+i}, v{S[0]+i}")
        for i in range(8): k(f"v_cvt_pk_bf16_f32 v{P+i}, v{S[0]+2*i}, v{S[0]+2*i+1}")
        k(f"{MF} {vr(O[ab],16)}, {vr(VF[0][0],4)}, {vr(P,4)}, {vr(O[ab],16)}")
        k(f"{MF} {vr(O[ab],16)}, {vr(VF[0][1],4)}, {vr(P+4,4)}, {vr(O[ab],16)}")
        k("s_nop 15")
        k("s_add_u32 s34, s34, 1024"); k("s_cmp_lt_u32 s34, 65536"); k(f"s_cbranch_scc1 AT_S2{ab}")
    k("s_branch AT_FIN")

def gpoll(k, tag, saddr, sleep):
    k("s_mov_b32 s28, 0")
    k.label(f"{tag}_POLL")
    k(f"buffer_load_dword v4, v3, s[20:23], {saddr} offen sc1")
    k("s_waitcnt vmcnt(0)")
    k("v_cmp_eq_u32 vcc, 1, v4")
    k("s_cmp_eq_u64 vcc, -1")
    k(f"s_cbranch_scc1 {tag}_GO")
    k(f"s_sleep {sleep}")
    k("s_add_u32 s28, s28, 1"); k("s_cmp_lt_u32 s28, 0x100000")
    k(f"s_cbranch_scc1 {tag}_POLL")
    k.label(f"{tag}_GO")

def gemm_part(k):
    WF = 16; XF = 32; ACC = 48; DV = 160
    GP = OPT("GPRIO"); GP2 = OPT("GPRIO2")
    tails = []
    k("s_setprio 3")
    k("s_load_dwordx2 s[48:49], s[0:1], 48")
    k("s_load_dwordx2 s[50:51], s[0:1], 0")
    k("s_load_dwordx2 s[56:57], s[0:1], 16")
    k("s_load_dwordx2 s[58:59], s[0:1], 56")
    k("v_mov_b32 v13, 0")
    k("ds_write_b32 v11, v13")
    k(f"v_lshlrev_b32 v2, 2, v0"); k(f"v_add_u32 v2, {PAIR}, v2"); k("ds_write_b32 v2, v13")
    k("s_sub_u32 s25, s24, 8")
    k("s_mov_b32 s60, 0x7fffffff")
    k("s_and_b32 s27, s2, 7"); k("s_lshr_b32 s62, s2, 5")
    k("s_lshl_b32 s52, s62, 1"); k("s_lshr_b32 s29, s27, 2"); k("s_add_u32 s52, s52, s29")
    k("s_and_b32 s26, s27, 3"); k("s_lshl_b32 s26, s26, 2"); k("s_bfe_u32 s29, s2, 0x20003"); k("s_add_u32 s26, s26, s29")
    k("s_lshl_b32 s29, s29, 1"); k("s_add_u32 s62, s62, s29"); k("s_and_b32 s62, s62, 7")
    if not OPT("UROT", 0): k("s_mov_b32 s62, 0")
    k("s_lshl_b32 s30, s52, 2"); k("s_add_u32 s30, s30, s25")
    k("s_mov_b32 s28, 4096")
    for i in range(7):
        k(f"v_add_u32 v2, {64*i}, v0")
        k("v_mul_u32_u24 v3, 4682, v2"); k("v_lshrrev_b32 v3, 16, v3")
        k(f"v_mul_u32_u24 v3, {3584 - 224}, v3"); k(f"v_add3_u32 v{DV+i}, v1, v3, {'0' if i < 4 else 's28'}")
    k("s_and_b32 s31, s25, 1"); k("s_mul_i32 s63, s31, 114688"); k("s_mul_i32 s33, s26, 224"); k("s_add_u32 s63, s63, s33")
    k("s_mul_i32 s33, s31, 7168"); k("s_lshr_b32 s34, s25, 1"); k(f"s_mul_i32 s34, s34, {UP_W3OFF}"); k("s_add_u32 s33, s33, s34"); k(f"s_add_u32 s33, s33, {GB}")
    k("s_lshl_b32 s64, s30, 15"); k(f"s_add_u32 s64, s64, {WS_XN}")
    k("s_mul_i32 s32, s62, 229376"); k("s_add_u32 s32, s32, s63")
    k("s_lshl_b32 s35, s62, 12"); k("s_add_u32 s35, s35, s64")
    k("s_mov_b32 s36, s33")
    k("s_waitcnt lgkmcnt(0)"); k("s_barrier")
    if OPT("NOGEMM"): k("s_endpgm")
    k("s_cmp_lt_u32 s25, 2"); k("s_cselect_b32 s10, s4, s6"); k("s_cselect_b32 s11, s5, s7")
    srd(k, 12, 10, 512 * 3584); srd(k, 20, 8, WS_SIZE)
    def dma():
        out = ["s_mov_b32 m0, s36", "s_nop 0"]
        for i in range(7):
            if i == 4: out += ["s_add_u32 m0, s36, 4096", "s_nop 0"]
            out.append(f"buffer_load_dwordx4 v{DV+i}, s[12:15], {'s60' if OPT('X_UPOOB') else 's32'} offen offset:{(i&3)*1024} lds")
        return out
    for x in dma(): k(x)
    for s in range(3): k(f"buffer_load_dwordx4 {vr(XF+4*s,4)}, v1, s[20:23], s35 offen offset:{s*1024}")
    k("s_add_u32 s62, s62, 1"); k("s_and_b32 s62, s62, 7"); k("s_mul_i32 s32, s62, 229376"); k("s_add_u32 s32, s32, s63")
    k(f"s_add_u32 s36, s33, {UP_SLOT}")
    for x in dma(): k(x)
    k(f"buffer_load_dwordx4 {vr(XF+12,4)}, v1, s[20:23], s35 offen offset:3072")
    k("s_lshl_b32 s35, s62, 12"); k("s_add_u32 s35, s35, s64")
    k("s_add_u32 s62, s62, 1"); k("s_and_b32 s62, s62, 7"); k("s_mul_i32 s32, s62, 229376"); k("s_add_u32 s32, s32, s63")
    PF = OPT("PF2", 1)
    if PF:
        srd(k, 16, 48, 1792 * 1024)
        k("v_lshrrev_b32 v15, 3, v0"); k("v_lshlrev_b32 v15, 10, v15"); k("v_and_b32 v2, 7, v0"); k("v_lshl_add_u32 v15, v2, 4, v15")
        k("s_lshr_b32 s61, s2, 5"); k("s_lshl_b32 s61, s61, 2"); k("s_add_u32 s61, s61, s25"); k(f"s_mul_i32 s61, s61, {56*1024}")
        k("s_and_b32 s28, s26, 7"); k("s_lshl_b32 s28, s28, 7"); k("s_add_u32 s61, s61, s28")
        k("buffer_load_dwordx4 v[4:7], v15, s[16:19], s61 offen")
    k("v_lshrrev_b32 v2, 5, v0"); k("v_lshlrev_b32 v2, 3, v2"); k("v_bfe_u32 v3, v0, 2, 2"); k("v_add_u32 v2, v2, v3")
    k("v_mul_u32_u24 v2, 224, v2"); k("v_bfe_u32 v3, v0, 4, 1"); k(f"v_mul_u32_u24 v3, {UP_W3OFF}, v3"); k("v_add_u32 v2, v2, v3")
    k("v_and_b32 v3, 3, v0"); k("v_lshl_add_u32 v8, v3, 3, v2"); k(f"v_add_u32 v8, {GB}, v8")
    k("v_and_b32 v12, 3, v0"); k("v_lshlrev_b32 v12, 8, v12"); k("v_lshl_add_u32 v12, v0, 2, v12"); k(f"v_add_u32 v12, {PROG + 2048}, v12")
    for r in range(112): k(f"v_mov_b32 v{ACC+r}, 0")
    k("v_mov_b32 v9, v8"); k(f"v_add_u32 v10, {UP_SLOT}, v8")
    k(f"s_mov_b32 s37, {2*UP_SLOT}")
    k("s_mov_b32 s39, 1"); k("v_mov_b32 v13, 1")
    k(f"s_waitcnt vmcnt({11+PF})")
    k("ds_write_b32 v11, v13"); k("ds_read_b32 v14, v12"); k("s_waitcnt lgkmcnt(0)")
    tails.append(softcheck(k, "UB", "s39", "v14", "v12"))
    k("v_mov_b32 v13, 2")
    k(f"s_setprio {GP}")
    k.stamp()
    def rd(m, areg):
        s, j = divmod(m, 7); o = s*3584 + j*32; d = WF + 4*(m & 3)
        return [f"ds_read_b64_tr_b16 {vr(d,2)}, {areg} offset:{o}", f"ds_read_b64_tr_b16 {vr(d+2,2)}, {areg} offset:{o+896}"]
    for m in range(4):
        for x in rd(m, "v9"): k(x)
    k.label("UP_LOOP")
    extra = []
    for m in range(28):
        s, j = divmod(m, 7)
        if j == 0: k(f"s_waitcnt vmcnt({(10 if s < 3 else 3) + PF})")
        cnt = 6
        if m in (17, 18, 19, 20): cnt = 7
        if m in (22, 23): cnt = 7
        if m == 24:
            k("s_waitcnt lgkmcnt(4)")
            k("s_add_u32 s39, s39, 1")
            k("s_setprio 3")
            tails.append(softcheck(k, "UP", "s39", "v14", "v12"))
            k("v_add_u32 v13, 1, v13")
            k(f"s_setprio {GP}")
            k("s_add_u32 s36, s33, s37")
            extra = dma()
        else:
            k(f"s_waitcnt lgkmcnt({cnt})")
        a = vr(ACC + 16*j, 16)
        k(f"{MF} {a}, {vr(WF+4*(m&3),4)}, {vr(XF+4*s,4)}, {a}")
        for x in (rd(m+4, "v9") if m < 24 else rd(m+4-28, "v10")): k(x)
        if m == 16:
            k(f"s_waitcnt vmcnt({3+PF})"); k("ds_write_b32 v11, v13")
        if m == 21: k("ds_read_b32 v14, v12")
        if m >= 24:
            for x in extra[[0,4,6,9,11][m-24]:[0,4,6,9,11][m-23]]: k(x)
        if j == 6: k(f"buffer_load_dwordx4 {vr(XF+4*s,4)}, v1, s[20:23], s35 offen offset:{s*1024}")
    if PF:
        k("s_add_u32 s61, s61, 8192"); k("s_cmp_lt_u32 s39, 8"); k("s_cselect_b32 s61, s61, s60")
        k("buffer_load_dwordx4 v[4:7], v15, s[16:19], s61 offen")
    k("s_setprio 3")
    k("v_mov_b32 v9, v10"); k("v_add_u32 v10, s37, v8")
    k(f"s_setprio {GP}")
    k("s_lshl_b32 s35, s62, 12"); k("s_add_u32 s35, s35, s64")
    k("s_add_u32 s62, s62, 1"); k("s_and_b32 s62, s62, 7"); k("s_mul_i32 s32, s62, 229376"); k("s_add_u32 s32, s32, s63")
    k("s_cmp_lt_u32 s39, 7"); k("s_cselect_b32 s32, s32, s60")
    k("s_cmp_lt_u32 s39, 8"); k("s_cselect_b32 s35, s35, s60")
    k(f"s_add_u32 s37, s37, {UP_SLOT}"); k(f"s_cmp_eq_u32 s37, {3*UP_SLOT}"); k("s_cselect_b32 s37, 0, s37")
    k("s_cmp_lt_u32 s39, 9"); k("s_cbranch_scc1 UP_LOOP")
    k.stamp()
    k("s_setprio 3")
    k("s_mul_i32 s40, s30, 112"); k("s_lshr_b32 s41, s26, 2"); k("s_mul_i32 s41, s41, 28"); k("s_add_u32 s40, s40, s41"); k("s_and_b32 s41, s26, 3"); k("s_add_u32 s40, s40, s41")
    k("s_lshl_b32 s40, s40, 10"); k(f"s_add_u32 s40, s40, {WS_H}")
    k("s_waitcnt vmcnt(0) lgkmcnt(0)")
    k("ds_write_b32 v11, v13")
    k("ds_read_b32 v14, v12")
    ACD = 48; TF = 112; WD = [16, 24]; EP = 144
    k("s_lshl_b32 s53, s52, 1"); k("s_lshr_b32 s28, s26, 3"); k("s_add_u32 s53, s53, s28"); k("s_and_b32 s54, s26, 7")
    k("s_lshr_b32 s63, s25, 1"); k("s_and_b32 s64, s25, 1")
    srd(k, 12, 48, 1792 * 1024); srd(k, 16, 50, 2048 * 1024)
    k("v_lshrrev_b32 v2, 3, v0"); k("v_lshlrev_b32 v2, 10, v2")
    k("v_bfe_u32 v3, v0, 2, 1"); k("v_bfe_u32 v4, v0, 4, 1"); k("v_xor_b32 v3, v3, v4"); k("v_lshl_add_u32 v2, v3, 6, v2")
    k("v_and_b32 v3, 3, v0"); k("v_lshl_add_u32 v2, v3, 4, v2")
    k(f"v_add_u32 v15, {8192-1024}, v2")
    k("s_lshl_b32 s32, s25, 14"); k(f"s_add_u32 s32, s32, {GB}")
    k("v_lshrrev_b32 v8, 5, v0"); k("v_lshlrev_b32 v3, 2, v8"); k("v_bfe_u32 v4, v0, 2, 2"); k("v_add_u32 v3, v3, v4"); k("v_lshlrev_b32 v3, 7, v3")
    k("v_bfe_u32 v4, v0, 3, 1"); k("v_xor_b32 v4, s64, v4"); k("v_lshl_add_u32 v3, v4, 6, v3")
    k("v_bfe_u32 v4, v0, 4, 1"); k("v_lshl_add_u32 v3, v4, 5, v3"); k("v_and_b32 v4, 1, v0"); k("v_lshl_add_u32 v3, v4, 4, v3")
    k("v_bfe_u32 v4, v0, 1, 1"); k("v_lshl_add_u32 v3, v4, 3, v3")
    k("v_xor_b32 v4, 64, v3"); k("v_add_u32 v5, s32, v3"); k("v_add_u32 v6, s32, v4")
    k("v_add_u32 v9, 8192, v5"); k("v_add_u32 v10, 8192, v6")
    k(f"s_mul_i32 s33, s25, {28*16384}"); k("s_lshl_b32 s55, s54, 7"); k("s_add_u32 s33, s33, s55")
    k(f"s_mov_b32 s65, {7*16384}"); k(f"s_mov_b32 s66, {(-20*16384) & 0xffffffff}")
    k(f"s_mul_i32 s34, s53, {2*112*1024}"); k(f"s_mul_i32 s35, s25, {28*1024}"); k("s_add_u32 s34, s34, s35"); k(f"s_add_u32 s34, s34, {WS_H}")
    k(f"s_mul_i32 s28, s63, {112*1024}"); k(f"s_add_u32 s35, s34, {112*1024}"); k("s_sub_u32 s35, s35, s28"); k("s_add_u32 s34, s34, s28")
    k("s_lshr_b32 s38, s30, 1"); k("s_lshl_b32 s38, s38, 10"); k("s_lshr_b32 s28, s26, 2"); k("s_lshl_b32 s28, s28, 8"); k("s_add_u32 s38, s38, s28")
    k("s_and_b32 s28, s26, 3"); k("s_lshl_b32 s28, s28, 3"); k("s_add_u32 s38, s38, s28"); k("s_and_b32 s28, s30, 1"); k("s_lshl_b32 s28, s28, 2")
    k("s_add_u32 s38, s38, s28"); k(f"s_add_u32 s38, s38, {HFLAG}")
    k("s_lshl_b32 s45, s53, 10"); k("s_lshl_b32 s28, s25, 8"); k("s_add_u32 s45, s45, s28"); k(f"s_add_u32 s45, s45, {HFLAG}")
    k("v_and_b32 v3, 7, v0"); k("v_lshlrev_b32 v3, 2, v3"); k("v_mov_b32 v7, 0"); k("v_mov_b32 v167, 1")
    k("s_waitcnt lgkmcnt(0)"); k("s_mov_b32 s39, 10")
    tails.append(softcheck(k, "U9", "s39", "v14", "v12"))
    def wdma(n, slot, base="s36"):
        return [f"s_add_u32 m0, {base}, {slot*2048}", "s_nop 0",
                "buffer_load_dwordx4 v2, s[12:15], s33 offen lds",
                "buffer_load_dwordx4 v15, s[12:15], s33 offen offset:1024 lds",
                f"s_add_u32 s33, s33, {'s66' if n % 4 == 3 else 's65'}"]
    k("s_mov_b32 s36, s32")
    NL2E = lit(-1.4426950408889634)
    def flag(off):
        k("s_mov_b64 exec, 1"); k(f"buffer_store_dword v167, v7, s[20:23], s38 offen offset:{off} sc1"); k("s_mov_b64 exec, -1")
    for j in range(7):
        a = ACC + 16*j; t = 16 + (j & 1)*12
        for r in range(8): k(f"v_mul_f32 v{t+r}, {NL2E}, v{a+r}")
        for r in range(8): k(f"v_exp_f32 v{t+r}, v{t+r}")
        for r in range(0, 8, 2): k(f"v_pk_mul_f32 {vr(a+r,2)}, {vr(a+r,2)}, {vr(a+8+r,2)}")
        for r in range(0, 8, 2): k(f"v_pk_add_f32 {vr(t+r,2)}, {vr(t+r,2)}, 1.0 op_sel_hi:[1,0]")
        for r in range(8): k(f"v_rcp_f32 v{t+r}, v{t+r}")
        for r in range(0, 8, 2): k(f"v_pk_mul_f32 {vr(a+r,2)}, {vr(a+r,2)}, {vr(t+r,2)}")
        for r in range(4): k(f"v_cvt_pk_bf16_f32 v{t+8+r}, v{a+2*r}, v{a+2*r+1}")
        if j == 6:
            k("s_waitcnt vmcnt(8)"); flag(0)
        k(f"buffer_store_dwordx4 {vr(t+8,4)}, v1, s[20:23], s40 offen sc1")
        k("s_add_u32 s40, s40, 4096")
        for x in wdma(j, j): k(x)
    k.stamp()
    k(f"buffer_load_dword v4, v3, s[20:23], s45 offen sc1")
    for r in range(64): k(f"v_mov_b32 v{ACD+r}, 0")
    k("v_and_b32 v152, 31, v0"); k("v_lshlrev_b32 v152, 10, v152"); k("v_lshl_add_u32 v152, v8, 4, v152")
    k("s_lshl_b32 s40, s53, 16"); k("s_lshl_b32 s41, s63, 15"); k("s_add_u32 s40, s40, s41"); k("s_add_u32 s40, s40, s55")
    k("s_lshl_b32 s41, s64, 6"); k("s_add_u32 s40, s40, s41")
    k("s_waitcnt vmcnt(3)"); flag(32)
    k("s_waitcnt vmcnt(1)")
    k("v_cmp_eq_u32 vcc, 1, v4"); k("s_cmp_eq_u64 vcc, -1"); k("s_cbranch_scc1 DH_GO")
    gpoll(k, "DH", "s45", 4)
    k.stamp()
    def tload(s):
        return [f"buffer_load_dwordx4 {vr(TF+8*s,4)}, v1, s[20:23], s34 offen offset:{s*1024} sc1",
                f"buffer_load_dwordx4 {vr(TF+8*s+4,4)}, v1, s[20:23], s35 offen offset:{s*1024} sc1"]
    for s in range(4):
        for x in tload(s): k(x)
    def wreads(slot, buf, other):
        a0, a1 = ("v9", "v10") if other else ("v5", "v6")
        o = slot * 2048
        return [f"ds_read_b64_tr_b16 {vr(WD[buf],2)}, {a0} offset:{o}", f"ds_read_b64_tr_b16 {vr(WD[buf]+2,2)}, {a0} offset:{o+1024}",
                f"ds_read_b64_tr_b16 {vr(WD[buf]+4,2)}, {a1} offset:{o}", f"ds_read_b64_tr_b16 {vr(WD[buf]+6,2)}, {a1} offset:{o+1024}"]
    def mfl(buf, tf):
        out = []
        for a in range(2):
            for b in range(2):
                c = vr(ACD + (a*2+b)*16, 16)
                out.append(f"{MF} {c}, {vr(WD[buf]+4*b,4)}, {vr(tf+4*a,4)}, {c}")
        return out
    for x in wreads(0, 0, False): k(x)
    k("s_mov_b32 s42, 0"); k("s_mov_b32 s43, 0x7fffffff")
    k("s_add_u32 s44, s32, 8192"); k("s_add_u32 s45, s45, 32")
    k("s_lshl_b32 s67, s25, 17"); k("s_add_u32 s67, s67, s55"); k("s_and_b32 s57, s57, 0xffff")
    k(f"s_setprio {GP2}")
    k("s_waitcnt vmcnt(0)")
    for i in range(2): k(f"buffer_load_dwordx4 {vr(EP+4*i,4)}, v152, s[16:19], s40 offen offset:{32*i}")
    k.label("DN_LOOP")
    k("s_cmp_lg_u32 s42, 12"); k("s_cbranch_scc1 DB_GO")
    gpoll(k, "DB", "s45", 4)
    k("s_add_u32 s34, s34, 4096"); k("s_add_u32 s35, s35, 4096")
    k("s_cmp_lt_u32 s42, 24"); k("s_cselect_b32 s34, s34, s43"); k("s_cselect_b32 s35, s35, s43")
    for s in range(4):
        k("s_waitcnt vmcnt(14) lgkmcnt(0)")
        for x in interleave(mfl(s & 1, TF + 8*s), wreads((s+1) & 3, (s+1) & 1, s == 3)): k(x)
        for x in tload(s): k(x)
        if s == 1:
            k("s_cmp_eq_u32 s42, 20")
            k("s_cselect_b32 s12, s56, s12"); k("s_cselect_b32 s13, s57, s13"); k(f"s_cselect_b32 s14, {512*1024}, s14")
            k("s_cselect_b32 s33, s67, s33"); k("s_cselect_b32 s65, 16384, s65"); k("s_cselect_b32 s66, 16384, s66")
        for x in (wdma(s+7, 3, "s44") if s == 0 else wdma(s+7, s-1)): k(x)
    k("s_setprio 3")
    k("v_swap_b32 v5, v9"); k("v_swap_b32 v6, v10")
    k(f"s_setprio {GP2}")
    k("s_mov_b32 s28, s36"); k("s_mov_b32 s36, s44"); k("s_mov_b32 s44, s28")
    k("s_add_u32 s42, s42, 4"); k("s_cmp_lt_u32 s42, 28"); k("s_cbranch_scc1 DN_LOOP")
    k.stamp()
    k("s_setprio 3")
    for x in wdma(0, 3, "s44"): k(x)
    srd(k, 16, 58, 2048 * 1024)
    for r in range(8):
        k(f"v_lshlrev_b32 v{32+2*r}, 16, v{EP+r}"); k(f"v_and_b32 v{33+2*r}, 0xffff0000, v{EP+r}")
    k("v_mov_b32 v160, v152")
    k(f"s_lshl_b32 s34, s53, 16"); k("s_lshl_b32 s35, s25, 13"); k("s_add_u32 s34, s34, s35"); k(f"s_add_u32 s34, s34, {WS_O}")
    k("s_lshl_b32 s28, s63, 15"); k("s_add_u32 s35, s34, 32768"); k("s_sub_u32 s35, s35, s28"); k("s_add_u32 s34, s34, s28")
    k("s_add_u32 s46, s34, 4096"); k("s_add_u32 s47, s35, 4096")
    k("s_lshl_b32 s45, s53, 8"); k("s_lshl_b32 s28, s25, 5"); k("s_add_u32 s45, s45, s28"); k(f"s_add_u32 s45, s45, {OFLAG}")
    for r in range(16): k(f"v_add_f32 v{ACD+r}, v{ACD+r}, v{32+r}")
    k("v_add_u32 v161, s32, v1")
    for t in (1, 2, 3):
        k(f"s_xor_b32 s28, s25, {t}"); k("s_lshl_b32 s28, s28, 14"); k(f"s_add_u32 s28, s28, {GB + (t-1)*4096}"); k(f"v_add_u32 v{161+t}, s28, v1")
    k("v_add_u32 v13, 1, v13")
    OG = [[112, 120, 128, 136], [32, 40, 144, 152]]
    k("s_mov_b32 s44, 0x11"); k("s_mov_b32 s28, 0")
    k("s_waitcnt lgkmcnt(0)")
    k.label("WO_POLL")
    k("buffer_load_dword v4, v3, s[20:23], s45 offen sc1")
    k("s_waitcnt vmcnt(0)")
    k("v_cmp_eq_u32 vcc, 1, v4")
    k("s_add_u32 s28, s28, 1"); k("s_cmp_lt_u32 s28, 0x100000"); k("s_cselect_b32 s42, vcc_lo, -1")
    k("s_lshr_b32 s29, s42, 1"); k("s_and_b32 s42, s42, s29"); k("s_lshr_b32 s29, s42, 2"); k("s_and_b32 s42, s42, s29")
    k("s_and_b32 s42, s42, s44")
    k("s_cbranch_scc1 WO_GO")
    k(f"s_sleep {OPT('WSLEEP', 3)}"); k("s_branch WO_POLL")
    k.label("WO_GO")
    k("s_andn2_b32 s44, s44, s42")
    for g in range(2):
        k(f"s_bitcmp1_b32 s42, {4*g}"); k(f"s_cbranch_scc0 WO_L{g}")
        sa, sb = ("s34", "s35") if g == 0 else ("s46", "s47")
        for h in range(4):
            k(f"buffer_load_dwordx4 {vr(OG[g][h],4)}, v1, s[20:23], {sa} offen offset:{h*1024} sc1")
            k(f"buffer_load_dwordx4 {vr(OG[g][h]+4,4)}, v1, s[20:23], {sb} offen offset:{h*1024} sc1")
        k.label(f"WO_L{g}")
    for g in range(2):
        k(f"s_bitcmp1_b32 s42, {4*g}"); k(f"s_cbranch_scc0 WO_C{g}")
        for x in wreads(0, 0, g == 1): k(x)
        if g == 0:
            k("s_bitcmp1_b32 s42, 4"); k("s_cbranch_scc1 WO_W8"); k("s_waitcnt vmcnt(0)"); k.label("WO_W8"); k("s_waitcnt vmcnt(8)")
        else: k("s_waitcnt vmcnt(0)")
        for h in range(4):
            k("s_waitcnt lgkmcnt(0)")
            for x in interleave(mfl(h & 1, OG[g][h]), wreads(h+1, (h+1) & 1, g == 1) if h < 3 else []): k(x)
        k.label(f"WO_C{g}")
    k("s_cmp_lg_u32 s44, 0"); k("s_cbranch_scc1 WO_POLL")
    k.stamp()
    k("s_nop 5")
    for t in (1, 2, 3):
        for q in range(4): k(f"ds_write_b128 v161, {vr(ACD + t*16 + 4*q, 4)} offset:{(t-1)*4096 + q*1024}")
    k("ds_write_b32 v11, v13")
    k("ds_read_b32 v14, v12"); k("s_waitcnt lgkmcnt(0)"); k("s_mov_b32 s39, 11")
    tails.append(softcheck(k, "DC", "s39", "v14", "v12"))
    k.stamp()
    for q in range(4):
        for t in (1, 2, 3): k(f"ds_read_b128 {vr(ACD + t*16 + 4*q, 4)}, v{161+t} offset:{q*1024}")
    for q in range(4):
        k(f"s_waitcnt lgkmcnt({9 - 3*q})")
        for r in range(4*q, 4*q+4): k(f"v_add_f32 v{ACD+16+r}, v{ACD+16+r}, v{ACD+32+r}"); k(f"v_add_f32 v{ACD+r}, v{ACD+r}, v{ACD+48+r}")
        for r in range(4*q, 4*q+4): k(f"v_add_f32 v{ACD+r}, v{ACD+r}, v{ACD+16+r}")
        for r in range(2*q, 2*q+2): k(f"v_cvt_pk_bf16_f32 v{16+r}, v{ACD+2*r}, v{ACD+2*r+1}")
        if q & 1: k(f"buffer_store_dwordx4 {vr(16+4*(q>>1),4)}, v160, s[16:19], s40 offen offset:{32*(q>>1)}")
    k.stamp()
    finish(k, 2)
    for t in tails: t()
```

```python
from common import *
import os
OPT = lambda n, d=0: int(os.environ.get(n, d))
MF = "v_mfma_f32_32x32x16_bf16"
MF16 = "v_mfma_f32_16x16x32_bf16"
UP_SLOT = 28928
UP_W3OFF = 14464
GB = 65536
ONES = GB + 3 * UP_SLOT
PROG = ONES + 2048
PAIR = PROG + 3072
SC = PAIR + 256
LDS_TOTAL = SC + 4096
assert ONES % 256 == 0 and LDS_TOTAL <= 163840 and ONES >= 131072
HFLAG = WS_FLAG
OFLAG = WS_FLAG + 32768
QFLAG = WS_FLAG + 131072
FSTR = 8192 + 256
XFLAG = WS_FLAG + 393216
RELAY = PAIR + 64
EPOCH = WS_FLAG + 65536 + 4096
TAG = "s70"
NST = 14
NAME = "parallel_sum__softmax_full_mha__glu_gated_swiglu__prompt_kernel"

def load_tag(k):
    k(f"s_add_u32 s68, s8, {EPOCH}"); k("s_addc_u32 s69, s9, 0")
    k(f"s_load_dword {TAG}, s[68:69], 0"); k("s_waitcnt lgkmcnt(0)")
    k(f"s_mul_i32 {TAG}, {TAG}, 0x9e3779b1"); k(f"s_add_u32 {TAG}, {TAG}, 0x7f4a7c15")

def ln_scalars(k, s, q, mask, r, mb):
    k(f"v_mul_f32 {s}, {lit(1/512)}, {s}"); k(f"v_mul_f32 {q}, {lit(1/512)}, {q}")
    k(f"v_fma_f32 {q}, -{s}, {s}, {q}"); k(f"v_max_f32 {q}, 0, {q}")
    k(f"v_cvt_pk_bf16_f32 {s}, {s}, {q}")
    k(f"v_and_b32 {q}, {mask}, {s}"); k(f"v_lshlrev_b32 {mb}, 16, {s}")
    k(f"v_add_f32 {q}, {lit(1e-5)}, {q}")
    k(f"v_cvt_pk_bf16_f32 {q}, {q}, {q}"); k(f"v_lshlrev_b32 {q}, 16, {q}")
    k(f"v_sqrt_f32 {q}, {q}")
    k(f"v_cvt_pk_bf16_f32 {q}, {q}, {q}"); k(f"v_lshlrev_b32 {q}, 16, {q}")
    k(f"v_rcp_f32 {r}, {q}")

def qkv_part(k):
    k("s_and_b32 s27, s2, 7"); k("s_lshr_b32 s28, s2, 3")
    k("s_lshr_b32 s25, s27, 1"); k("s_lshl_b32 s25, s25, 3"); k("s_lshr_b32 s29, s28, 2"); k("s_add_u32 s25, s25, s29")
    k("s_and_b32 s26, s27, 1"); k("s_lshl_b32 s26, s26, 2"); k("s_and_b32 s29, s28, 3"); k("s_add_u32 s26, s26, s29")
    k("s_add_u32 s40, s25, s26"); k("s_and_b32 s40, s40, 7")
    k("s_bfe_u32 s56, s24, 0x10001"); k("s_and_b32 s59, s24, 1")
    LD_FIRST = OPT("LDFIRST", 1)
    k("s_cmp_ge_u32 s24, 4" if LD_FIRST else "s_cmp_lt_u32 s24, 4"); k("s_cbranch_scc1 K1_COMP")
    k("s_and_b32 s57, s24, 3")
    k("v_lshrrev_b32 v40, 3, v0"); k("v_lshlrev_b32 v44, 10, v40")
    k("v_lshrrev_b32 v41, 4, v0"); k("v_and_b32 v42, 7, v0")
    k("v_xor_b32 v43, v41, v42"); k("v_lshl_add_u32 v1, v43, 4, v44")
    k("v_xor_b32 v43, 4, v43"); k("v_lshl_add_u32 v2, v43, 4, v44"); k(f"v_add_u32 v2, {8192-1024}, v2")
    k("v_mul_u32_u24 v40, 3072, v40"); k("v_and_b32 v41, 1, v41"); k("v_lshlrev_b32 v41, 2, v41"); k("v_xor_b32 v41, v41, v42"); k("v_lshl_add_u32 v3, v41, 4, v40")
    k("s_lshl_b32 s31, s25, 16"); k("s_lshl_b32 s33, s57, 14"); k("s_add_u32 s31, s31, s33")
    k("s_lshl_b32 s32, s57, 11")
    k("s_mul_i32 s35, s57, 49152"); k("s_lshl_b32 s33, s26, 7"); k("s_add_u32 s35, s35, s33")
    k("s_mul_i32 s36, s57, 6144"); k("s_add_u32 s36, s36, 8192")
    k("s_mov_b32 s42, 0"); k("s_mov_b32 s43, 0"); k("s_mov_b32 s41, s40")
    k("s_waitcnt lgkmcnt(0)")
    srd(k, 12, 4, 2048 * 1024); srd(k, 16, 6, 512 * 3072)
    def issue():
        o = ["s_lshl_b32 s33, s41, 7", "s_add_u32 m0, s43, s32", "s_add_u32 s33, s33, s31",
             "buffer_load_dwordx4 v1, s[12:15], s33 offen lds",
             "buffer_load_dwordx4 v2, s[12:15], s33 offen offset:1024 lds",
             "s_mul_i32 s33, s41, 196608", "s_add_u32 m0, s43, s36", "s_add_u32 s33, s33, s35"]
        o += [f"buffer_load_dwordx4 v3, s[16:19], s33 offen offset:{blk*1024} lds" for blk in range(3)]
        o += ["s_add_u32 m0, m0, 3072", "s_add_u32 s33, s33, 24576"]
        o += [f"buffer_load_dwordx4 v3, s[16:19], s33 offen offset:{blk*1024} lds" for blk in range(3)]
        o += ["s_add_u32 s41, s41, 1", "s_and_b32 s41, s41, 7", "s_add_u32 s43, s43, 32768", "s_and_b32 s43, s43, 0x1ffff"]
        return o
    D0 = OPT("D0", 2)
    k.label("K1_LP")
    for x in issue(): k(x)
    k("s_add_u32 s42, s42, 1"); k(f"s_cmp_lt_u32 s42, {D0}"); k("s_cbranch_scc1 K1_LP")
    k("v_and_b32 v48, 31, v0"); k("v_lshrrev_b32 v49, 5, v0"); k("v_bfe_u32 v50, v0, 1, 3")
    k("s_lshl_b32 s33, s56, 12"); k("v_lshl_add_u32 v51, v48, 7, s33")
    k("s_lshl_b32 s33, s59, 2"); k("v_or_b32 v52, s33, v49"); k("v_xor_b32 v52, v52, v50"); k("v_lshl_add_u32 v4, v52, 4, v51"); k("v_xor_b32 v5, 32, v4")
    k("v_mov_b32 v8, v4"); k("v_mov_b32 v9, v5"); k("v_mov_b32 v13, 0xffff0000")
    for r in range(54, 62): k(f"v_mov_b32 v{r}, 0")
    srd(k, 20, 8, WS_SIZE); load_tag(k)
    k("s_mov_b32 s42, 0"); k("s_mov_b32 s44, 0")
    k.stamp()
    def stats():
        o = []
        for r in range(8):
            o += [f"v_lshlrev_b32 v{24+2*r}, 16, v{16+r}", f"v_and_b32 v{25+2*r}, v13, v{16+r}"]
        for r in range(16):
            o += [f"v_add_f32 v{54+(r&3)}, v{54+(r&3)}, v{24+r}", f"v_fmac_f32 v{58+(r&3)}, v{24+r}, v{24+r}"]
        return o
    head = ["s_barrier", "ds_read_b128 v[16:19], v8", "ds_read_b128 v[20:23], v9",
            "s_add_u32 s44, s44, 32768", "s_and_b32 s44, s44, 0x1ffff", "v_add_u32 v8, s44, v4", "v_add_u32 v9, s44, v5"]
    nA = 8 - D0
    k.label("K1_LA")
    k(f"s_waitcnt vmcnt({8*(D0-1)})")
    for x in head: k(x)
    iss = issue()
    for x in iss[:5]: k(x)
    k("s_waitcnt lgkmcnt(0)")
    for x in interleave(iss[5:], stats()): k(x)
    k("s_add_u32 s42, s42, 1"); k(f"s_cmp_lt_u32 s42, {nA}"); k("s_cbranch_scc1 K1_LA")
    NPF = 0
    assert D0 == 2
    if NPF:
        k("s_bitcmp1_b32 s24, 0"); k("s_cselect_b32 s10, s50, s48"); k("s_cselect_b32 s11, s51, s49")
        srd(k, 52, 10, 512 * 3584)
        k("s_lshl_b32 s33, s28, 1"); k("s_add_u32 s33, s33, s56"); k(f"s_mul_i32 s33, s33, {NPF*3584}")
        k("s_and_b32 s34, s27, 3"); k("s_mul_i32 s34, s34, 896"); k("s_add_u32 s33, s33, s34")
        k("v_lshlrev_b32 v15, 4, v0")
        for i in range(NPF):
            k("buffer_load_dwordx4 v[64:67], v15, s[52:55], s33 offen"); k("s_add_u32 s33, s33, 3584")
    k(f"s_waitcnt vmcnt({8 + NPF})")
    k.label("K1_LB")
    for x in head: k(x)
    k("s_waitcnt lgkmcnt(0)")
    for x in stats(): k(x)
    k("s_add_u32 s42, s42, 1")
    k(f"s_waitcnt vmcnt({NPF})"); k("s_cmp_lt_u32 s42, 8"); k("s_cbranch_scc1 K1_LB")
    k.stamp()
    k("v_add_f32 v54, v54, v55"); k("v_add_f32 v56, v56, v57"); k("v_add_f32 v58, v58, v59"); k("v_add_f32 v60, v60, v61")
    k("v_add_f32 v54, v54, v56"); k("v_add_f32 v58, v58, v60"); k("v_mov_b32 v55, v54"); k("v_mov_b32 v59, v58")
    k("s_lshl_b32 s33, s56, 9"); k(f"s_add_u32 s33, s33, {SC+2048}"); k("v_lshl_add_u32 v6, v48, 4, s33")
    k("v_permlane32_swap_b32 v54, v55"); k("v_permlane32_swap_b32 v58, v59")
    k("s_lshl_b32 s33, s59, 3"); k("v_add_u32 v7, s33, v6")
    k("v_add_f32 v54, v54, v55"); k("v_add_f32 v55, v58, v59")
    k("ds_write_b64 v7, v[54:55]")
    k("s_waitcnt lgkmcnt(0)"); k("s_barrier")
    k("ds_read_b128 v[54:57], v6")
    k("s_add_u32 s38, s40, 7"); k("s_and_b32 s38, s38, 7"); k("s_lshl_b32 s38, s38, 12"); k("s_lshl_b32 s39, s59, 11"); k("s_add_u32 s38, s38, s39")
    k("s_lshl_b32 s39, s25, 16"); k("s_add_u32 s38, s38, s39"); k("s_lshl_b32 s39, s56, 15"); k("s_add_u32 s38, s38, s39"); k(f"s_add_u32 s38, s38, {WS_XN}")
    k("v_lshlrev_b32 v15, 4, v0")
    k("s_waitcnt lgkmcnt(0)")
    k("v_add_f32 v54, v54, v56"); k("v_add_f32 v55, v55, v57")
    ln_scalars(k, "v54", "v55", "v13", "v12", "v14")
    k("v_mul_f32 v14, -v14, v12")
    for r in range(16): k(f"v_fma_f32 v{24+r}, v{24+r}, v12, v14")
    for r in range(8): k(f"v_cvt_pk_bf16_f32 v{16+r}, v{24+2*r}, v{25+2*r}")
    k("buffer_store_dwordx4 v[16:19], v15, s[20:23], s38 offen sc1")
    k("buffer_store_dwordx4 v[20:23], v15, s[20:23], s38 offen offset:1024 sc1")
    k("s_add_u32 s44, s40, 7"); k("s_and_b32 s44, s44, 7"); k("s_lshl_b32 s44, s44, 1"); k("s_add_u32 s44, s44, s59"); k("s_lshl_b32 s44, s44, 7")
    k("s_lshr_b32 s39, s25, 1"); k(f"s_mul_i32 s39, s39, {FSTR}"); k("s_add_u32 s44, s44, s39"); k("s_and_b32 s39, s25, 1"); k("s_lshl_b32 s39, s39, 12"); k("s_add_u32 s44, s44, s39")
    k("s_lshl_b32 s39, s56, 11"); k("s_add_u32 s44, s44, s39"); k(f"s_add_u32 s44, s44, {XFLAG}")
    k("s_branch AT_ENTRY")
    if Kern.DIAG: k.nst = 2
    FS = [16, 32, 48, 64]
    ACC = 80; CS = 128; SEL = 140
    k.label("K1_COMP")
    k("v_and_b32 v144, 31, v0"); k("v_lshrrev_b32 v145, 5, v0"); k("v_bfe_u32 v146, v0, 1, 3")
    k("s_lshl_b32 s33, s56, 12"); k("v_lshl_add_u32 v147, v144, 7, s33")
    k("s_lshl_b32 s33, s56, 2"); k("v_or_b32 v148, s33, v145"); k("v_xor_b32 v148, v148, v146"); k("v_lshl_add_u32 v4, v148, 4, v147")
    for j in (1, 2, 3): k(f"v_xor_b32 v{4+j}, {32*j}, v4")
    k("v_mul_u32_u24 v147, 3072, v145"); k("v_bfe_u32 v148, v0, 2, 2"); k("v_lshl_add_u32 v147, v148, 7, v147")
    k("v_bfe_u32 v148, v0, 3, 1"); k("v_xor_b32 v148, s59, v148"); k("v_lshl_add_u32 v147, v148, 6, v147")
    k("v_bfe_u32 v149, v0, 4, 1"); k("v_lshl_add_u32 v147, v149, 5, v147"); k("v_and_b32 v148, 3, v0"); k("v_lshl_add_u32 v147, v148, 3, v147")
    k("s_mul_i32 s33, s56, 12288"); k("s_add_u32 s34, s33, 8192"); k("v_add_u32 v8, s34, v147")
    k(f"s_sub_u32 s34, {8192+12288}, s33"); k("v_add_u32 v9, s34, v147")
    k("v_bfe_u32 v147, v0, 2, 1"); k("v_xor_b32 v147, v147, v149"); k("v_or_b32 v147, v147, v148")
    k("v_cmp_eq_u32 vcc, 0, v147"); k("v_mov_b32 v147, 0x3f803f80")
    k(f"v_cndmask_b32 v{SEL}, 0, v147, vcc")
    for r in (1, 2, 3): k(f"v_mov_b32 v{SEL+r}, v{SEL}")
    for r in range(FS[2], CS + 12): k(f"v_mov_b32 v{r}, 0")
    k("s_lshl_b32 s30, s25, 1"); k("s_add_u32 s30, s30, s56")
    k("s_lshl_b32 s33, s26, 18"); k("s_lshl_b32 s34, s59, 17"); k("s_add_u32 s33, s33, s34"); k("s_lshl_b32 s34, s30, 10"); k("s_add_u32 s33, s33, s34")
    k(f"s_add_u32 s34, s33, {WS_K}"); k(f"s_add_u32 s35, s33, {WS_V}"); k("s_add_u32 s36, s33, 65536"); k("s_add_u32 s37, s34, 65536")
    k("v_lshlrev_b32 v15, 4, v0")
    k("s_lshl_b32 s38, s56, 9"); k(f"s_add_u32 s38, s38, {SC+2048}"); k("v_lshl_add_u32 v1, v144, 4, s38")
    k("s_lshl_b32 s38, s59, 10"); k(f"s_add_u32 s38, s38, {SC}"); k("v_lshl_add_u32 v2, v144, 5, s38")
    k("s_lshl_b32 s38, s56, 4"); k("v_add_u32 v10, s38, v2"); k("v_xor_b32 v2, 16, v10")
    k("s_and_b32 s38, s24, 3"); k("s_lshl_b32 s38, s38, 7"); k(f"s_add_u32 s38, s38, {SC+3072}")
    k("v_lshl_add_u32 v11, v144, 2, s38"); k("v_lshl_add_u32 v14, v145, 4, s38")
    k("v_lshlrev_b32 v3, 16, v149"); k("v_lshl_add_u32 v3, v145, 8, v3"); k("v_and_b32 v148, 15, v0"); k("v_lshl_add_u32 v3, v148, 4, v3")
    k("v_mov_b32 v13, 0xffff0000")
    k("s_mov_b32 s42, 0")
    k("s_waitcnt lgkmcnt(0)")
    srd(k, 20, 8, WS_SIZE); load_tag(k)
    k.stamp()
    def reads(j, off):
        f = FS[j]; w = "v8" if j < 2 else "v9"; o = off + (j & 1)*6144
        out = [f"ds_read_b128 {vr(f,4)}, v{4+j} offset:{off}"]
        for blk in range(3):
            out += [f"ds_read_b64_tr_b16 {vr(f+4+4*blk,2)}, {w} offset:{o+blk*1024}", f"ds_read_b64_tr_b16 {vr(f+6+4*blk,2)}, {w} offset:{o+blk*1024+512}"]
        return out
    def mfs(j):
        f = FS[j]; out = []
        for blk in range(3):
            a = vr(ACC + blk*16, 16); w = vr(f+4+4*blk, 4); x = vr(f, 4)
            out.append(f"{MF} {a}, {w}, {x}, {a}" if blk < 2 else f"{MF} {a}, {x}, {w}, {a}")
            if j < 2: out.append(f"{MF16} {vr(CS+4*blk,4)}, {vr(SEL,4)}, {w}, {vr(CS+4*blk,4)}")
        return out
    k.label("K1_CL")
    for p in range(2):
        k("s_barrier")
        for j in range(4):
            if j >= 2: k("s_waitcnt lgkmcnt(7)")
            for x in interleave(mfs((j + 2) & 3), reads(j, p*32768)): k(x)
        if p == 1:
            for i in range(6): k(f"v_xor_b32 v{4+i}, 0x10000, v{4+i}")
            k("s_add_u32 s42, s42, 1"); k("s_cmp_lt_u32 s42, 4")
        k("s_waitcnt lgkmcnt(0)")
    k("s_cbranch_scc1 K1_CL")
    k.stamp()
    for x in mfs(2): k(x)
    k(f"v_mov_b32 v{CS+1}, v{CS+4}"); k(f"v_mov_b32 v{CS+2}, v{CS+8}")
    k(f"ds_write_b128 v10, {vr(CS,4)}")
    for x in mfs(3): k(x)
    k("s_waitcnt lgkmcnt(0)"); k("s_barrier")
    k("ds_read_b128 v[16:19], v1"); k("ds_read_b128 v[20:23], v2")
    k("s_waitcnt lgkmcnt(1)")
    k("v_add_f32 v16, v16, v18"); k("v_add_f32 v17, v17, v19")
    ln_scalars(k, "v16", "v17", "v13", "v12", "v18")
    k("ds_write_b32 v11, v12")
    for q in range(4): k(f"ds_read_b128 {vr(48+4*q,4)}, v14 offset:{q*32}")
    k("v_cvt_pk_bf16_f32 v24, -v18, -v18"); k("v_lshrrev_b32 v25, 16, v24"); k("v_mov_b32 v26, 0"); k("v_mov_b32 v27, 0")
    k("s_mov_b32 exec_lo, 0"); k("v_mov_b32 v24, 0"); k("v_mov_b32 v25, 0"); k("s_mov_b32 exec_lo, -1")
    for b in range(3):
        c = 28 + 4*b
        k(f"v_add_f32 v{c+2}, v{CS+b}, v{20+b}")
        k(f"v_and_b32 v{c+3}, v13, v{c+2}"); k(f"v_sub_f32 v{c+2}, v{c+2}, v{c+3}")
        k(f"v_and_b32 v{c+1}, v13, v{c+2}"); k(f"v_sub_f32 v{c+2}, v{c+2}, v{c+1}")
        k(f"v_lshrrev_b32 v{c+3}, 16, v{c+3}"); k(f"v_or_b32 v{c}, v{c+3}, v{c+1}")
        k(f"v_lshrrev_b32 v{c+1}, 16, v{c+2}"); k(f"v_mov_b32 v{c+2}, 0"); k(f"v_mov_b32 v{c+3}, 0")
    for blk in (1, 2, 0):
        a = vr(ACC + blk*16, 16); c = vr(28+4*blk, 4)
        k(f"{MF} {a}, {c}, v[24:27], {a}" if blk < 2 else f"{MF} {a}, v[24:27], {c}, {a}")
    k(f"v_mul_f32 v10, {lit(QSCALE)}, v12")
    k("s_waitcnt lgkmcnt(0)")
    so = {0: ("s33", "s36"), 1: ("s34", "s37")}
    for blk in (1, 2, 0):
        a = ACC + blk*16
        for h in range(2):
            for r in range(8*h, 8*h+8):
                k(f"v_mul_f32 v{a+r}, {('v10', 'v12', 'v%d' % (48+r))[blk]}, v{a+r}")
            d = 16 + (blk*2+h)*4 if blk < 2 else 64 + 4*h
            if blk == 0: d = 72 + 4*h
            if blk == 1: d = 40 + 4*h
            for r in range(4): k(f"v_cvt_pk_bf16_f32 v{d+r}, v{a+8*h+2*r}, v{a+8*h+2*r+1}")
            if blk < 2: k(f"buffer_store_dwordx4 {vr(d,4)}, v15, s[20:23], {so[blk][h]} offen sc1")
            else: k(f"buffer_store_dwordx4 {vr(d,4)}, v3, s[20:23], s35 offen offset:{512*h} sc1")
    k("s_lshl_b32 s44, s26, 1"); k("s_add_u32 s44, s44, s59"); k(f"s_mul_i32 s44, s44, {FSTR}"); k("s_lshl_b32 s39, s30, 7"); k("s_add_u32 s44, s44, s39"); k(f"s_add_u32 s44, s44, {QFLAG}")

def softcheck(k, tag, sval, vdst, vaddr):
    k(f"v_cmp_le_u32 vcc, {sval}, {vdst}")
    k("s_cmp_eq_u64 vcc, -1")
    k(f"s_cbranch_scc0 {tag}_SPIN")
    k.label(f"{tag}_CONT")
    def tail():
        k.label(f"{tag}_SPIN")
        k("s_sleep 1")
        k(f"ds_read_b32 {vdst}, {vaddr}")
        k("s_waitcnt lgkmcnt(0)")
        k(f"v_cmp_le_u32 vcc, {sval}, {vdst}")
        k("s_cmp_eq_u64 vcc, -1")
        k(f"s_cbranch_scc0 {tag}_SPIN")
        k(f"s_branch {tag}_CONT")
    return tail

def finish(k, vtmp):
    if Kern.DIAG:
        k("s_waitcnt vmcnt(0)")
        while k.nst < NST - 1: k.stamp()
        k.stamp(True)
        k.dump_stamps(1, 24, vtmp, 8)
    k("s_endpgm")

def attn_part(k):
    S = [16, 32]; O = [48, 64]; C = 80; P = 96; Q = [104, 108]
    KF = [112, 116]; VF = [[120, 124], [128, 132]]; K0 = 136
    NG = OPT("AT_UNROLL", 2)
    tails = []
    k.label("AT_ENTRY")
    k.stamp()
    k("s_nop 1")
    k("v_lshlrev_b32 v1, 4, v0"); k("s_lshl_b32 s28, s24, 8"); k(f"s_add_u32 s28, s28, {PROG}"); k("v_lshl_add_u32 v11, v0, 2, s28")
    k("s_and_b32 s25, s2, 7"); k("s_lshl_b32 s25, s25, 2"); k("s_bfe_u32 s26, s2, 0x20003"); k("s_add_u32 s25, s25, s26")
    k("s_lshr_b32 s38, s24, 2"); k("s_and_b32 s39, s24, 3")
    k("s_lshr_b32 s26, s2, 5"); k("s_lshl_b32 s26, s26, 3"); k("s_lshl_b32 s28, s39, 1"); k("s_add_u32 s26, s26, s28")
    k("s_lshl_b32 s27, s25, 16")
    k("s_lshr_b32 s28, s39, 1"); k("s_lshl_b32 s28, s28, 21"); k("s_add_u32 s30, s27, s28"); k(f"s_add_u32 s30, s30, {WS_K}")
    k("s_lshl_b32 s28, s38, 15"); k("s_add_u32 s30, s30, s28"); k("s_and_b32 s28, s39, 1"); k("s_lshl_b32 s28, s28, 10"); k("s_add_u32 s30, s30, s28")
    k("s_lshl_b32 s28, s24, 10")
    k("s_lshl_b32 s32, s26, 10"); k("s_add_u32 s32, s32, s27")
    k(f"s_add_u32 s33, s27, {WS_K}")
    k("s_mov_b32 m0, s28")
    k("v_lshrrev_b32 v2, 5, v0"); k("v_lshlrev_b32 v2, 8, v2"); k("v_and_b32 v3, 15, v0"); k("v_lshl_add_u32 v2, v3, 4, v2")
    k("s_lshl_b32 s29, s38, 12")
    k("v_add_u32 v15, s29, v1")
    k("v_bfe_u32 v10, v0, 4, 1"); k("v_add_u32 v10, -1, v10")
    k(f"s_add_u32 s31, s29, {2048 - ONES + (1<<32)}")
    k("v_and_b32 v3, s31, v10"); k(f"v_add_u32 v3, {ONES}, v3"); k("v_add_u32 v3, v3, v2")
    k("v_and_b32 v12, 3, v0"); k("v_lshlrev_b32 v12, 8, v12"); k("v_lshl_add_u32 v12, v0, 2, v12")
    k(f"s_lshl_b32 s31, s38, 10"); k(f"s_add_u32 s31, s31, {PROG}"); k("v_add_u32 v12, s31, v12")
    k("s_xor_b32 s31, s24, 4"); k("s_lshl_b32 s31, s31, 8"); k(f"s_add_u32 s31, s31, {PROG - 128}")
    k("s_mov_b32 exec_lo, 0"); k("v_lshl_add_u32 v12, v0, 2, s31"); k("s_mov_b32 exec_lo, -1")
    k("s_mov_b32 s40, 0x0000ffff"); k("s_mov_b32 s41, 0x0000ffff")
    for r in range(4): k(f"v_mov_b32 v{VF[1][1]+r}, 0")
    for r in range(32): k(f"v_mov_b32 v{O[0]+r}, 0")
    for r in range(4, 8): k(f"v_mov_b32 v{P+r}, 0")
    k("v_mov_b32 v5, v3"); k("v_add_u32 v6, 8192, v15"); k("v_and_b32 v7, 8192, v10"); k("v_add_u32 v7, v7, v3")
    k("v_lshrrev_b32 v13, 5, v0"); k("v_add_u32 v13, 1, v13")
    k("v_mov_b32 v142, 0"); k(f"v_mov_b32 v143, {TAG}")
    k("s_mov_b64 exec, 1")
    k("s_waitcnt vmcnt(0)")
    k("buffer_store_dword v143, v142, s[20:23], s44 offen sc1")
    k(f"v_mov_b32 v140, {RELAY+8}"); k("v_mov_b32 v141, 1"); k("ds_add_u32 v140, v141")
    k("s_mov_b64 exec, -1")
    k.stamp()
    k("s_lshr_b32 s45, s25, 1"); k(f"s_mul_i32 s45, s45, {FSTR}"); k(f"s_add_u32 s45, s45, {QFLAG}"); k("v_lshlrev_b32 v140, 7, v0")
    k(f"v_mov_b32 v142, {RELAY}")
    k("s_cmp_lg_u32 s24, 4"); k("s_cbranch_scc1 AQ_REL")
    gpoll(k, "AQ", "s45", OPT("QSLEEP", 4), "v141", "v140", "s46")
    k("v_mov_b32 v141, 1"); k("ds_write_b32 v142, v141"); k("s_branch AQ_DONE")
    k.label("AQ_REL")
    k("s_sleep 1"); k("ds_read_b32 v141, v142"); k("s_waitcnt lgkmcnt(0)"); k("v_cmp_eq_u32 vcc, 1, v141"); k("s_cmp_eq_u64 vcc, -1"); k("s_cbranch_scc0 AQ_REL")
    k.label("AQ_DONE")
    k.stamp()
    k(f"buffer_load_dwordx4 {vr(Q[0],4)}, v1, s[20:23], s32 offen sc1")
    k(f"buffer_load_dwordx4 {vr(Q[1],4)}, v1, s[20:23], s32 offen offset:1024 sc1")
    k(f"buffer_load_dwordx4 {vr(K0,4)}, v1, s[20:23], s33 offen sc1")
    for g in range(3):
        k("buffer_load_dwordx4 v1, s[20:23], s30 offen sc1 lds")
        k("s_add_u32 m0, m0, 8192"); k("s_add_u32 s30, s30, 2048")
    k("s_waitcnt vmcnt(3)")
    k(f"{MF} {vr(S[0],16)}, {vr(K0,4)}, {vr(Q[0],4)}, 0")
    k(f"{MF} {vr(S[1],16)}, {vr(K0,4)}, {vr(Q[1],4)}, 0")
    k("s_waitcnt vmcnt(1)")
    k("ds_write_b32 v11, v13")
    k("s_mov_b32 s34, 1")
    k(f"v_max3_f32 v8, v{S[0]}, v{S[0]+1}, v{S[0]+2}")
    for i in range(3, 31, 2): k(f"v_max3_f32 v8, v8, v{S[0]+i}, v{S[0]+i+1}")
    k(f"v_max_f32 v8, v8, v{S[0]+31}")
    k("ds_read_b32 v14, v12")
    k("v_mov_b32 v9, v8"); k("v_permlane32_swap_b32 v8, v9"); k("v_max_f32 v8, v8, v9")
    for r in range(16): k(f"v_xor_b32 v{C+r}, 0x80000000, v8")
    k("s_waitcnt lgkmcnt(0)")
    k("v_cmp_le_u32 vcc, v13, v14"); k("s_setprio 1"); k("s_cmp_eq_u32 vcc_lo, -1"); k("s_cbranch_scc0 AP_SPIN")
    k.label("AP_CONT")
    def tail(tag="AP"):
        k.label(f"{tag}_SPIN"); k("s_sleep 1"); k("ds_read_b32 v14, v12"); k("s_waitcnt lgkmcnt(0)")
        k("v_cmp_le_u32 vcc, v13, v14"); k("s_cmp_eq_u32 vcc_lo, -1"); k(f"s_cbranch_scc0 {tag}_SPIN"); k(f"s_branch {tag}_CONT")
    tails.append(tail)
    k.stamp()
    k(f"ds_read_b128 {vr(KF[0],4)}, v15")
    k(f"ds_read_b128 {vr(VF[0][0],4)}, v5"); k(f"ds_read_b128 {vr(VF[0][1],4)}, v5 offset:512")
    k(f"ds_read_b128 {vr(KF[1],4)}, v15 offset:1024")
    k("s_mov_b32 s37, 16384")
    k("s_waitcnt lgkmcnt(3)")
    k(f"{MF} {vr(S[0],16)}, {vr(KF[0],4)}, {vr(Q[0],4)}, {vr(C,16)}")
    k("s_nop 10")
    k.label("AT_LOOP")
    for gi in range(NG):
      for t in range(2):
        for ab in range(2):
            Sa = S[ab]
            q = []
            def e(i, extra=None):
                k(f"v_exp_f32 v{Sa+i}, v{Sa+i}")
                if extra: k(extra)
                elif q: k(q.pop(0))
            c = lambda i: k(f"v_cvt_pk_bf16_f32 v{P+i}, v{Sa+2*i}, v{Sa+2*i+1}")
            if ab == 0:
                k(f"{MF} {vr(S[1],16)}, {vr(KF[t&1],4)}, {vr(Q[1],4)}, {vr(C,16)}")
                e(0, "ds_read_b32 v14, v12" if t == 0 else None); e(1); e(2); e(3)
                k(f"{MF} {vr(O[1],16)}, {vr(VF[(t+1)&1][1],4)}, {vr(P+4,4)}, {vr(O[1],16)}")
                va, vo = ("v5", 1024) if t == 0 else ("v7", 0)
                e(4, f"ds_read_b128 {vr(VF[(t+1)&1][0],4)}, {va} offset:{vo}")
                e(5)
                e(6, f"ds_read_b128 {vr(VF[(t+1)&1][1],4)}, {va} offset:{vo+512}")
                e(7); e(8)
                for i in range(4): c(i)
                e(9); e(10, "s_waitcnt lgkmcnt(4)")
                k(f"{MF} {vr(O[0],16)}, {vr(VF[t&1][0],4)}, {vr(P,4)}, {vr(O[0],16)}")
                e(11); e(12)
                e(13, "s_waitcnt lgkmcnt(2)")
                if t == 0:
                    k("v_cmp_le_u32 vcc, v13, v14")
                    e(14, "s_setprio 1" if OPT("BAL", 1) else None); e(15, "s_cmp_eq_u32 vcc_lo, -1")
                    if not OPT("X_NOSPIN"): k(f"s_cbranch_scc0 AT{gi}_SPIN")
                    k.label(f"AT{gi}_CONT")
                    k("v_add_u32 v13, 1, v13")
                    if OPT("BAL", 1):
                        k("s_cmp_eq_u32 vcc_hi, 0"); k(f"s_cbranch_scc1 AT{gi}_AHEAD"); k("s_setprio 2"); k.label(f"AT{gi}_AHEAD")
                    def tail(tag=f"AT{gi}"):
                        k.label(f"{tag}_SPIN"); k("s_sleep 1"); k("ds_read_b32 v14, v12"); k("s_waitcnt lgkmcnt(0)")
                        k("v_cmp_le_u32 vcc, v13, v14"); k("s_cmp_eq_u32 vcc_lo, -1"); k(f"s_cbranch_scc0 {tag}_SPIN"); k(f"s_branch {tag}_CONT")
                    tails.append(tail)
                else:
                    e(14); e(15)
                c(4); c(5); c(6); c(7)
            else:
                k(f"{MF} {vr(S[0],16)}, {vr(KF[(t+1)&1],4)}, {vr(Q[0],4)}, {vr(C,16)}")
                if t == 0:
                    e(0, "s_waitcnt vmcnt(0)"); e(1, "ds_write_b32 v11, v13")
                    e(2, f"ds_read_b128 {vr(KF[t&1],4)}, v6 offset:{t*1024}")
                    e(3, "s_cmp_ge_u32 s34, 14")
                else:
                    e(0, f"ds_read_b128 {vr(KF[t&1],4)}, v6 offset:{t*1024}"); e(1); e(2); e(3)
                k(f"{MF} {vr(O[0],16)}, {vr(VF[t&1][1],4)}, {vr(P+4,4)}, {vr(O[0],16)}")
                if t == 0:
                    k(f"s_cbranch_scc1 AT_NODMA{gi}")
                    k("buffer_load_dwordx4 v1, s[20:23], s30 offen sc1 lds")
                    k.label(f"AT_NODMA{gi}")
                    q += ["s_add_u32 s35, m0, 8192", "s_and_b32 m0, s35, 0xffff", "s_add_u32 s30, s30, 2048"]
                else:
                    q += ["s_add_u32 s34, s34, 1"]
                e(4); e(5); e(6); e(7); e(8)
                for i in range(4): c(i)
                e(9); e(10)
                k(f"{MF} {vr(O[1],16)}, {vr(VF[t&1][0],4)}, {vr(P,4)}, {vr(O[1],16)}")
                if t == 1:
                    k("v_mov_b32 v5, v7"); k("v_add_u32 v6, s37, v15"); k("v_and_b32 v7, s37, v10"); k("v_add_u32 v7, v7, v3")
                    q += ["s_add_u32 s37, s37, 8192", "s_and_b32 s37, s37, 0xffff", "s_cmp_lt_u32 s34, 17"]
                e(11); e(12); e(13); e(14); e(15)
                c(4); c(5); c(6); c(7)
    k("s_cbranch_scc1 AT_LOOP")
    k(f"{MF} {vr(O[1],16)}, {vr(VF[1][1],4)}, {vr(P+4,4)}, {vr(O[1],16)}")
    k.stamp()
    k("s_lshl_b32 s35, s39, 13")
    k("v_add_u32 v4, s35, v15")
    k("v_xor_b32 v5, 4096, v4")
    k("s_lshl_b32 s35, s39, 9"); k("s_add_u32 s35, s35, s29"); k("s_add_u32 s35, s35, 32768")
    k("v_lshl_add_u32 v6, v0, 2, s35"); k("v_xor_b32 v7, 4096, v6")
    k("s_lshl_b32 s35, s39, 2"); k(f"s_add_u32 s35, s35, {PAIR}"); k("v_mov_b32 v8, s35"); k("v_mov_b32 v9, 1")
    for ab in range(2):
        k(f"ds_write_b128 v4, {vr(O[ab],4)} offset:{ab*2048}"); k(f"ds_write_b128 v4, {vr(O[ab]+4,4)} offset:{ab*2048+1024}")
        k(f"ds_write_b32 v6, v{O[ab]+8} offset:{ab*256}")
    k("s_mov_b64 exec, 1")
    k("ds_add_rtn_u32 v9, v8, v9")
    k("s_mov_b64 exec, -1")
    for ab in range(2):
        k(f"ds_read_b128 {vr(S[ab],4)}, v5 offset:{ab*2048}"); k(f"ds_read_b128 {vr(S[ab]+4,4)}, v5 offset:{ab*2048+1024}")
        k(f"ds_read_b32 v{S[ab]+8}, v7 offset:{ab*256}")
    k("s_lshl_b32 s33, s26, 15"); k("s_lshl_b32 s34, s25, 10"); k("s_add_u32 s33, s33, s34"); k(f"s_add_u32 s33, s33, {WS_O}")
    k(f"v_mov_b32 v11, {lit(2.0**30)}"); k(f"v_mov_b32 v10, {lit(2.0**-30)}"); k(f"v_mov_b32 v14, 0x7f800000")
    k("s_waitcnt lgkmcnt(0)")
    k("v_readfirstlane_b32 s35, v9")
    k("s_cmp_eq_u32 s35, 0"); k("s_cbranch_scc1 AT_EXIT")
    for ab in range(2):
        for r in range(9): k(f"v_add_f32 v{O[ab]+r}, v{O[ab]+r}, v{S[ab]+r}")
    k(f"v_add_f32 v8, |v{O[0]}|, |v{O[1]}|")
    for ab in range(2):
        for i in range(1, 8): k(f"v_add_f32 v8, v8, |v{O[ab]+i}|")
    k(f"v_cmp_gt_f32 s[42:43], v14, v8")
    for ab in range(2):
        k(f"v_cmp_gt_f32 s[44:45], v11, v{O[ab]+8}"); k(f"v_cmp_lt_f32 s[46:47], v10, v{O[ab]+8}")
        k("s_and_b64 s[42:43], s[42:43], s[44:45]"); k("s_and_b64 s[42:43], s[42:43], s[46:47]")
    k("s_cmp_eq_u64 s[42:43], -1")
    k("s_cbranch_scc0 AT_SLOW")
    k.label("AT_FIN")
    k("s_add_u32 s34, s33, 32768")
    k(f"v_rcp_f32 v8, v{O[0]+8}"); k(f"v_rcp_f32 v9, v{O[1]+8}")
    for ab in range(2):
        for i in range(8): k(f"v_mul_f32 v{O[ab]+i}, v{8+ab}, v{O[ab]+i}")
        for i in range(4): k(f"v_cvt_pk_bf16_f32 v{P+4*ab+i}, v{O[ab]+2*i}, v{O[ab]+2*i+1}")
        k(f"buffer_store_dwordx4 {vr(P+4*ab,4)}, v1, s[20:23], s{33+ab} offen sc1")
    k("s_lshl_b32 s35, s26, 7"); k("s_lshl_b32 s36, s25, 2"); k("s_add_u32 s35, s35, s36"); k(f"s_add_u32 s35, s35, {OFLAG}")
    k("v_mov_b32 v8, 0"); k(f"v_mov_b32 v9, {TAG}")
    k("s_mov_b64 exec, 1")
    k("s_waitcnt vmcnt(0)")
    k("buffer_store_dword v9, v8, s[20:23], s35 offen sc1")
    k("s_mov_b64 exec, -1")
    k.label("AT_EXIT")
    finish(k, 8)
    for t in tails: t()
    k.label("AT_SLOW")
    k(f"s_add_u32 s30, s27, {WS_K}"); k(f"s_add_u32 s31, s27, {WS_V}")
    for r in range(8): k(f"v_mov_b32 v{VF[0][0]+r}, 0x3f803f80")
    for ab in range(2):
        k("v_mov_b32 v8, 0xff800000"); k("s_mov_b32 s34, 0")
        k.label(f"AT_S1{ab}")
        k("s_add_u32 s36, s30, s34")
        k(f"buffer_load_dwordx4 {vr(KF[0],4)}, v1, s[20:23], s36 offen sc1")
        k("s_waitcnt vmcnt(0)")
        k(f"{MF} {vr(S[0],16)}, {vr(KF[0],4)}, {vr(Q[ab],4)}, 0")
        for i in range(0, 16, 2): k(f"v_max3_f32 v8, v8, v{S[0]+i}, v{S[0]+i+1}")
        k("s_add_u32 s34, s34, 1024"); k("s_cmp_lt_u32 s34, 65536"); k(f"s_cbranch_scc1 AT_S1{ab}")
        k("v_mov_b32 v9, v8"); k("v_permlane32_swap_b32 v8, v9"); k("v_max_f32 v8, v8, v9")
        for r in range(16): k(f"v_xor_b32 v{C+r}, 0x80000000, v8")
        for r in range(16): k(f"v_mov_b32 v{O[ab]+r}, 0")
        k("s_mov_b32 s34, 0")
        k.label(f"AT_S2{ab}")
        k("s_add_u32 s36, s30, s34"); k("s_add_u32 s35, s31, s34")
        k(f"buffer_load_dwordx4 {vr(KF[0],4)}, v1, s[20:23], s36 offen sc1")
        k("s_mov_b64 exec, s[40:41]")
        k(f"buffer_load_dwordx4 {vr(VF[0][0],4)}, v2, s[20:23], s35 offen sc1")
        k(f"buffer_load_dwordx4 {vr(VF[0][1],4)}, v2, s[20:23], s35 offen offset:512 sc1")
        k("s_mov_b64 exec, -1")
        k("s_waitcnt vmcnt(0)")
        k(f"{MF} {vr(S[0],16)}, {vr(KF[0],4)}, {vr(Q[ab],4)}, {vr(C,16)}")
        for i in range(16): k(f"v_exp_f32 v{S[0]+i}, v{S[0]+i}")
        for i in range(8): k(f"v_cvt_pk_bf16_f32 v{P+i}, v{S[0]+2*i}, v{S[0]+2*i+1}")
        k(f"{MF} {vr(O[ab],16)}, {vr(VF[0][0],4)}, {vr(P,4)}, {vr(O[ab],16)}")
        k(f"{MF} {vr(O[ab],16)}, {vr(VF[0][1],4)}, {vr(P+4,4)}, {vr(O[ab],16)}")
        k("s_nop 15")
        k("s_add_u32 s34, s34, 1024"); k("s_cmp_lt_u32 s34, 65536"); k(f"s_cbranch_scc1 AT_S2{ab}")
    k("s_branch AT_FIN")

def gpoll(k, tag, saddr, sleep, vd="v4", va="v3", cnt="s28"):
    k(f"s_mov_b32 {cnt}, 0")
    k.label(f"{tag}_POLL")
    k(f"buffer_load_dword {vd}, {va}, s[20:23], {saddr} offen sc1")
    k("s_waitcnt vmcnt(0)")
    k(f"v_cmp_eq_u32 vcc, {TAG}, {vd}")
    k("s_cmp_eq_u64 vcc, -1")
    k(f"s_cbranch_scc1 {tag}_GO")
    k(f"s_sleep {sleep}")
    k(f"s_add_u32 {cnt}, {cnt}, 1"); k(f"s_cmp_lt_u32 {cnt}, 0x100000")
    k(f"s_cbranch_scc1 {tag}_POLL")
    k.label(f"{tag}_GO")

def gemm_part(k):
    WF = 16; XF = 32; ACC = 48; DV = 160
    GP = OPT("GPRIO"); GP2 = OPT("GPRIO2")
    tails = []
    k("s_load_dwordx4 s[4:7], s[0:1], 32")
    k("s_load_dwordx2 s[48:49], s[0:1], 48")
    k("s_load_dwordx2 s[50:51], s[0:1], 0")
    k("s_load_dwordx2 s[56:57], s[0:1], 16")
    k("s_load_dwordx2 s[58:59], s[0:1], 56")
    k("v_lshlrev_b32 v1, 4, v0"); k("s_lshl_b32 s28, s24, 8"); k(f"s_add_u32 s28, s28, {PROG}"); k("v_lshl_add_u32 v11, v0, 2, s28")
    k("v_mov_b32 v13, 0"); k("v_mov_b32 v14, 0x3f803f80")
    k("v_and_b32 v2, 44, v0"); k("v_cmp_eq_u32 vcc, 0, v2"); k("v_cndmask_b32 v14, 0, v14, vcc")
    k("ds_write_b32 v11, v13"); k("v_add_u32 v2, -1024, v11"); k("ds_write_b32 v2, v13"); k("v_add_u32 v2, -2048, v11"); k("ds_write_b32 v2, v13")
    k(f"v_lshlrev_b32 v2, 2, v0"); k(f"v_add_u32 v2, {PAIR}, v2"); k("ds_write_b32 v2, v13")
    k("v_add_u32 v2, -4096, v11"); k("ds_write_b32 v2, v14"); k("ds_write_b32 v2, v14 offset:1024")
    k("s_sub_u32 s25, s24, 8")
    k("s_mov_b32 s60, 0x7fffffff")
    k("s_and_b32 s27, s2, 7"); k("s_lshr_b32 s62, s2, 5")
    k("s_lshl_b32 s52, s62, 1"); k("s_lshr_b32 s29, s27, 2"); k("s_add_u32 s52, s52, s29")
    k("s_and_b32 s26, s27, 3"); k("s_lshl_b32 s26, s26, 2"); k("s_bfe_u32 s29, s2, 0x20003"); k("s_add_u32 s26, s26, s29")
    k("s_lshl_b32 s29, s29, 1"); k("s_add_u32 s62, s62, s29"); k("s_and_b32 s62, s62, 7")
    if not OPT("UROT", 0): k("s_mov_b32 s62, 0")
    k("s_lshl_b32 s30, s52, 2"); k("s_add_u32 s30, s30, s25")
    k("s_mov_b32 s28, 4096")
    for i in range(7):
        k(f"v_add_u32 v2, {64*i}, v0")
        k("v_mul_u32_u24 v3, 4682, v2"); k("v_lshrrev_b32 v3, 16, v3")
        k(f"v_mul_u32_u24 v3, {3584 - 224}, v3"); k(f"v_add3_u32 v{DV+i}, v1, v3, {'0' if i < 4 else 's28'}")
    k("s_and_b32 s31, s25, 1"); k("s_mul_i32 s63, s31, 114688"); k("s_mul_i32 s33, s26, 224"); k("s_add_u32 s63, s63, s33")
    k("s_mul_i32 s33, s31, 7168"); k("s_lshr_b32 s34, s25, 1"); k(f"s_mul_i32 s34, s34, {UP_W3OFF}"); k("s_add_u32 s33, s33, s34"); k(f"s_add_u32 s33, s33, {GB}")
    k("s_lshl_b32 s64, s30, 15"); k(f"s_add_u32 s64, s64, {WS_XN}")
    k("s_mul_i32 s32, s62, 229376"); k("s_add_u32 s32, s32, s63")
    k("s_lshl_b32 s35, s62, 12"); k("s_add_u32 s35, s35, s64")
    k("s_mov_b32 s36, s33")
    k("s_waitcnt lgkmcnt(0)")
    k("s_cmp_lt_u32 s25, 2"); k("s_cselect_b32 s10, s4, s6"); k("s_cselect_b32 s11, s5, s7")
    srd(k, 12, 10, 512 * 3584); srd(k, 20, 8, WS_SIZE); load_tag(k)
    def dma():
        out = ["s_mov_b32 m0, s36", "s_nop 0"]
        for i in range(7):
            if i == 4: out += ["s_add_u32 m0, s36, 4096", "s_nop 0"]
            out.append(f"buffer_load_dwordx4 v{DV+i}, s[12:15], s32 offen offset:{(i&3)*1024} lds")
        return out
    PF = OPT("PF2", 1)
    if PF:
        srd(k, 16, 48, 1792 * 1024)
        k("v_lshrrev_b32 v15, 3, v0"); k("v_lshlrev_b32 v15, 10, v15"); k("v_and_b32 v2, 7, v0"); k("v_lshl_add_u32 v15, v2, 4, v15")
        k("s_lshr_b32 s61, s2, 5"); k("s_lshl_b32 s61, s61, 2"); k("s_add_u32 s61, s61, s25"); k(f"s_mul_i32 s61, s61, {56*1024}")
        k("s_and_b32 s28, s26, 7"); k("s_lshl_b32 s28, s28, 7"); k("s_add_u32 s61, s61, s28")
    k("v_lshrrev_b32 v2, 5, v0"); k("v_lshlrev_b32 v2, 3, v2"); k("v_bfe_u32 v3, v0, 2, 2"); k("v_add_u32 v2, v2, v3")
    k("v_mul_u32_u24 v2, 224, v2"); k("v_bfe_u32 v3, v0, 4, 1"); k(f"v_mul_u32_u24 v3, {UP_W3OFF}, v3"); k("v_add_u32 v2, v2, v3")
    k("v_and_b32 v3, 3, v0"); k("v_lshl_add_u32 v8, v3, 3, v2"); k(f"v_add_u32 v8, {GB}, v8")
    k("v_and_b32 v12, 3, v0"); k("v_lshlrev_b32 v12, 8, v12"); k("v_lshl_add_u32 v12, v0, 2, v12"); k(f"v_add_u32 v12, {PROG + 2048}, v12")
    for r in range(112): k(f"v_mov_b32 v{ACC+r}, 0")
    k("v_mov_b32 v9, v8"); k(f"v_add_u32 v10, {UP_SLOT}, v8")
    k(f"s_mov_b32 s37, {2*UP_SLOT}")
    k("s_mov_b32 s39, 1"); k("v_mov_b32 v13, 1")
    k(f"s_mul_i32 s45, s52, {FSTR}"); k(f"s_add_u32 s45, s45, {XFLAG}"); k("v_lshlrev_b32 v3, 7, v0"); k(f"v_mov_b32 v2, {RELAY+4}")
    NPF = OPT("NPF", 4)
    for i in range(9):
        k("s_barrier")
        if i == OPT("PFAT", 5) and NPF:
            k("s_lshr_b32 s28, s2, 3"); k("s_lshl_b32 s28, s28, 1"); k("s_add_u32 s28, s28, s31"); k(f"s_mul_i32 s28, s28, {NPF*3584}")
            k("s_and_b32 s29, s27, 3"); k("s_mul_i32 s29, s29, 896"); k("s_add_u32 s28, s28, s29")
            for j in range(NPF):
                k("buffer_load_dwordx4 v[4:7], v1, s[12:15], s28 offen"); k("s_add_u32 s28, s28, 3584")
    k.stamp()
    if OPT("WDELAY", 1):
        k.label("UW_REL")
        k("s_sleep 2"); k("ds_read_b32 v4, v2 offset:4"); k("s_waitcnt lgkmcnt(0)"); k("v_cmp_eq_u32 vcc, 8, v4"); k("s_cmp_eq_u64 vcc, -1"); k("s_cbranch_scc0 UW_REL")
    k("s_setprio 3")
    for x in dma(): k(x)
    k("s_add_u32 s62, s62, 1"); k("s_and_b32 s62, s62, 7"); k("s_mul_i32 s32, s62, 229376"); k("s_add_u32 s32, s32, s63")
    k(f"s_add_u32 s36, s33, {UP_SLOT}")
    for x in dma(): k(x)
    k("s_waitcnt vmcnt(7)")
    k("ds_write_b32 v11, v13")
    k("s_cmp_lg_u32 s25, 0"); k("s_cbranch_scc1 UX_REL")
    gpoll(k, "UX", "s45", OPT("XSLEEP", 6))
    k("v_mov_b32 v4, 1"); k("ds_write_b32 v2, v4"); k("s_branch UX_DONE")
    k.label("UX_REL")
    k("s_sleep 2"); k("ds_read_b32 v4, v2"); k("s_waitcnt lgkmcnt(0)"); k("v_cmp_eq_u32 vcc, 1, v4"); k("s_cmp_eq_u64 vcc, -1"); k("s_cbranch_scc0 UX_REL")
    k("s_waitcnt vmcnt(0)")
    k.label("UX_DONE")
    for s in range(4): k(f"buffer_load_dwordx4 {vr(XF+4*s,4)}, v1, s[20:23], s35 offen offset:{s*1024} sc1")
    if PF: k("buffer_load_dwordx4 v[4:7], v15, s[16:19], s61 offen")
    k("s_lshl_b32 s35, s62, 12"); k("s_add_u32 s35, s35, s64")
    k("s_add_u32 s62, s62, 1"); k("s_and_b32 s62, s62, 7"); k("s_mul_i32 s32, s62, 229376"); k("s_add_u32 s32, s32, s63")
    k("ds_read_b32 v14, v12"); k("s_waitcnt lgkmcnt(0)")
    tails.append(softcheck(k, "UB", "s39", "v14", "v12"))
    k("v_mov_b32 v13, 2")
    k(f"s_setprio {GP}")
    k(f"s_waitcnt vmcnt({1+PF})")
    k.stamp()
    def rd(m, areg):
        s, j = divmod(m, 7); o = s*3584 + j*32; d = WF + 4*(m & 3)
        return [f"ds_read_b64_tr_b16 {vr(d,2)}, {areg} offset:{o}", f"ds_read_b64_tr_b16 {vr(d+2,2)}, {areg} offset:{o+896}"]
    for m in range(4):
        for x in rd(m, "v9"): k(x)
    k.label("UP_LOOP")
    extra = []
    for m in range(28):
        s, j = divmod(m, 7)
        if j == 0: k(f"s_waitcnt vmcnt({(10 if s < 3 else 3) + PF})")
        cnt = 6
        if m in (17, 18, 19, 20): cnt = 7
        if m in (22, 23): cnt = 7
        if m == 24:
            k("s_waitcnt lgkmcnt(4)")
            k("s_add_u32 s39, s39, 1")
            k("s_setprio 3")
            tails.append(softcheck(k, "UP", "s39", "v14", "v12"))
            k("v_add_u32 v13, 1, v13")
            k(f"s_setprio {GP}")
            k("s_add_u32 s36, s33, s37")
            extra = dma()
        else:
            k(f"s_waitcnt lgkmcnt({cnt})")
        a = vr(ACC + 16*j, 16)
        k(f"{MF} {a}, {vr(WF+4*(m&3),4)}, {vr(XF+4*s,4)}, {a}")
        for x in (rd(m+4, "v9") if m < 24 else rd(m+4-28, "v10")): k(x)
        if m == 16:
            k(f"s_waitcnt vmcnt({3+PF})"); k("ds_write_b32 v11, v13")
        if m == 21: k("ds_read_b32 v14, v12")
        if m >= 24:
            for x in extra[[0,4,6,9,11][m-24]:[0,4,6,9,11][m-23]]: k(x)
        if j == 6: k(f"buffer_load_dwordx4 {vr(XF+4*s,4)}, v1, s[20:23], s35 offen offset:{s*1024} sc1")
    if PF:
        k("s_add_u32 s61, s61, 8192"); k("s_cmp_lt_u32 s39, 8"); k("s_cselect_b32 s61, s61, s60")
        k("buffer_load_dwordx4 v[4:7], v15, s[16:19], s61 offen")
    k("s_setprio 3")
    k("v_mov_b32 v9, v10"); k("v_add_u32 v10, s37, v8")
    k(f"s_setprio {GP}")
    k("s_lshl_b32 s35, s62, 12"); k("s_add_u32 s35, s35, s64")
    k("s_add_u32 s62, s62, 1"); k("s_and_b32 s62, s62, 7"); k("s_mul_i32 s32, s62, 229376"); k("s_add_u32 s32, s32, s63")
    k("s_cmp_lt_u32 s39, 7"); k("s_cselect_b32 s32, s32, s60")
    k("s_cmp_lt_u32 s39, 8"); k("s_cselect_b32 s35, s35, s60")
    k(f"s_add_u32 s37, s37, {UP_SLOT}"); k(f"s_cmp_eq_u32 s37, {3*UP_SLOT}"); k("s_cselect_b32 s37, 0, s37")
    k("s_cmp_lt_u32 s39, 9"); k("s_cbranch_scc1 UP_LOOP")
    k.stamp()
    k("s_setprio 3")
    k("s_mul_i32 s40, s30, 112"); k("s_lshr_b32 s41, s26, 2"); k("s_mul_i32 s41, s41, 28"); k("s_add_u32 s40, s40, s41"); k("s_and_b32 s41, s26, 3"); k("s_add_u32 s40, s40, s41")
    k("s_lshl_b32 s40, s40, 10"); k(f"s_add_u32 s40, s40, {WS_H}")
    k("s_waitcnt vmcnt(0) lgkmcnt(0)")
    k("ds_write_b32 v11, v13")
    k("ds_read_b32 v14, v12")
    ACD = 48; TF = 112; WD = [16, 24]; EP = 144
    k("s_lshl_b32 s53, s52, 1"); k("s_lshr_b32 s28, s26, 3"); k("s_add_u32 s53, s53, s28"); k("s_and_b32 s54, s26, 7")
    k("s_lshr_b32 s63, s25, 1"); k("s_and_b32 s64, s25, 1")
    srd(k, 12, 48, 1792 * 1024); srd(k, 16, 50, 2048 * 1024)
    k("v_lshrrev_b32 v2, 3, v0"); k("v_lshlrev_b32 v2, 10, v2")
    k("v_bfe_u32 v3, v0, 2, 1"); k("v_bfe_u32 v4, v0, 4, 1"); k("v_xor_b32 v3, v3, v4"); k("v_lshl_add_u32 v2, v3, 6, v2")
    k("v_and_b32 v3, 3, v0"); k("v_lshl_add_u32 v2, v3, 4, v2")
    k(f"v_add_u32 v15, {8192-1024}, v2")
    k("s_lshl_b32 s32, s25, 14"); k(f"s_add_u32 s32, s32, {GB}")
    k("v_lshrrev_b32 v8, 5, v0"); k("v_lshlrev_b32 v3, 2, v8"); k("v_bfe_u32 v4, v0, 2, 2"); k("v_add_u32 v3, v3, v4"); k("v_lshlrev_b32 v3, 7, v3")
    k("v_bfe_u32 v4, v0, 3, 1"); k("v_xor_b32 v4, s64, v4"); k("v_lshl_add_u32 v3, v4, 6, v3")
    k("v_bfe_u32 v4, v0, 4, 1"); k("v_lshl_add_u32 v3, v4, 5, v3"); k("v_and_b32 v4, 1, v0"); k("v_lshl_add_u32 v3, v4, 4, v3")
    k("v_bfe_u32 v4, v0, 1, 1"); k("v_lshl_add_u32 v3, v4, 3, v3")
    k("v_xor_b32 v4, 64, v3"); k("v_add_u32 v5, s32, v3"); k("v_add_u32 v6, s32, v4")
    k("v_add_u32 v9, 8192, v5"); k("v_add_u32 v10, 8192, v6")
    k(f"s_mul_i32 s33, s25, {28*16384}"); k("s_lshl_b32 s55, s54, 7"); k("s_add_u32 s33, s33, s55")
    k(f"s_mov_b32 s65, {7*16384}"); k(f"s_mov_b32 s66, {(-20*16384) & 0xffffffff}")
    k(f"s_mul_i32 s34, s53, {2*112*1024}"); k(f"s_mul_i32 s35, s25, {28*1024}"); k("s_add_u32 s34, s34, s35"); k(f"s_add_u32 s34, s34, {WS_H}")
    k(f"s_mul_i32 s28, s63, {112*1024}"); k(f"s_add_u32 s35, s34, {112*1024}"); k("s_sub_u32 s35, s35, s28"); k("s_add_u32 s34, s34, s28")
    k("s_lshr_b32 s38, s30, 1"); k("s_lshl_b32 s38, s38, 10"); k("s_lshr_b32 s28, s26, 2"); k("s_lshl_b32 s28, s28, 8"); k("s_add_u32 s38, s38, s28")
    k("s_and_b32 s28, s26, 3"); k("s_lshl_b32 s28, s28, 3"); k("s_add_u32 s38, s38, s28"); k("s_and_b32 s28, s30, 1"); k("s_lshl_b32 s28, s28, 2")
    k("s_add_u32 s38, s38, s28"); k(f"s_add_u32 s38, s38, {HFLAG}")
    k("s_lshl_b32 s45, s53, 10"); k("s_lshl_b32 s28, s25, 8"); k("s_add_u32 s45, s45, s28"); k(f"s_add_u32 s45, s45, {HFLAG}")
    k("v_and_b32 v3, 7, v0"); k("v_lshlrev_b32 v3, 2, v3"); k("v_mov_b32 v7, 0"); k(f"v_mov_b32 v167, {TAG}")
    k("s_waitcnt lgkmcnt(0)"); k("s_mov_b32 s39, 10")
    tails.append(softcheck(k, "U9", "s39", "v14", "v12"))
    def wdma(n, slot, base="s36"):
        return [f"s_add_u32 m0, {base}, {slot*2048}", "s_nop 0",
                "buffer_load_dwordx4 v2, s[12:15], s33 offen lds",
                "buffer_load_dwordx4 v15, s[12:15], s33 offen offset:1024 lds",
                f"s_add_u32 s33, s33, {'s66' if n % 4 == 3 else 's65'}"]
    k("s_mov_b32 s36, s32")
    NL2E = lit(-1.4426950408889634)
    def flag(off):
        k("s_mov_b64 exec, 1"); k(f"buffer_store_dword v167, v7, s[20:23], s38 offen offset:{off} sc1"); k("s_mov_b64 exec, -1")
    for j in range(7):
        a = ACC + 16*j; t = 16 + (j & 1)*12
        for r in range(8): k(f"v_mul_f32 v{t+r}, {NL2E}, v{a+r}")
        for r in range(8): k(f"v_exp_f32 v{t+r}, v{t+r}")
        for r in range(0, 8, 2): k(f"v_pk_mul_f32 {vr(a+r,2)}, {vr(a+r,2)}, {vr(a+8+r,2)}")
        for r in range(0, 8, 2): k(f"v_pk_add_f32 {vr(t+r,2)}, {vr(t+r,2)}, 1.0 op_sel_hi:[1,0]")
        for r in range(8): k(f"v_rcp_f32 v{t+r}, v{t+r}")
        for r in range(0, 8, 2): k(f"v_pk_mul_f32 {vr(a+r,2)}, {vr(a+r,2)}, {vr(t+r,2)}")
        for r in range(4): k(f"v_cvt_pk_bf16_f32 v{t+8+r}, v{a+2*r}, v{a+2*r+1}")
        if j == 6:
            k("s_waitcnt vmcnt(8)"); flag(0)
        k(f"buffer_store_dwordx4 {vr(t+8,4)}, v1, s[20:23], s40 offen sc1")
        k("s_add_u32 s40, s40, 4096")
        for x in wdma(j, j): k(x)
    k.stamp()
    k(f"buffer_load_dword v4, v3, s[20:23], s45 offen sc1")
    for r in range(64): k(f"v_mov_b32 v{ACD+r}, 0")
    k("v_and_b32 v152, 31, v0"); k("v_lshlrev_b32 v152, 10, v152"); k("v_lshl_add_u32 v152, v8, 4, v152")
    k("s_lshl_b32 s40, s53, 16"); k("s_lshl_b32 s41, s63, 15"); k("s_add_u32 s40, s40, s41"); k("s_add_u32 s40, s40, s55")
    k("s_lshl_b32 s41, s64, 6"); k("s_add_u32 s40, s40, s41")
    k("s_waitcnt vmcnt(3)"); flag(32)
    k("s_waitcnt vmcnt(1)")
    k(f"v_cmp_eq_u32 vcc, {TAG}, v4"); k("s_cmp_eq_u64 vcc, -1"); k("s_cbranch_scc1 DH_GO")
    gpoll(k, "DH", "s45", 4)
    k.stamp()
    def tload(s):
        return [f"buffer_load_dwordx4 {vr(TF+8*s,4)}, v1, s[20:23], s34 offen offset:{s*1024} sc1",
                f"buffer_load_dwordx4 {vr(TF+8*s+4,4)}, v1, s[20:23], s35 offen offset:{s*1024} sc1"]
    for s in range(4):
        for x in tload(s): k(x)
    def wreads(slot, buf, other):
        a0, a1 = ("v9", "v10") if other else ("v5", "v6")
        o = slot * 2048
        return [f"ds_read_b64_tr_b16 {vr(WD[buf],2)}, {a0} offset:{o}", f"ds_read_b64_tr_b16 {vr(WD[buf]+2,2)}, {a0} offset:{o+1024}",
                f"ds_read_b64_tr_b16 {vr(WD[buf]+4,2)}, {a1} offset:{o}", f"ds_read_b64_tr_b16 {vr(WD[buf]+6,2)}, {a1} offset:{o+1024}"]
    def mfl(buf, tf):
        out = []
        for a in range(2):
            for b in range(2):
                c = vr(ACD + (a*2+b)*16, 16)
                out.append(f"{MF} {c}, {vr(WD[buf]+4*b,4)}, {vr(tf+4*a,4)}, {c}")
        return out
    for x in wreads(0, 0, False): k(x)
    k("s_mov_b32 s42, 0"); k("s_mov_b32 s43, 0x7fffffff")
    k("s_add_u32 s44, s32, 8192"); k("s_add_u32 s45, s45, 32")
    k("s_lshl_b32 s67, s25, 17"); k("s_add_u32 s67, s67, s55"); k("s_and_b32 s57, s57, 0xffff")
    k(f"s_setprio {GP2}")
    k("s_waitcnt vmcnt(0)")
    for i in range(2): k(f"buffer_load_dwordx4 {vr(EP+4*i,4)}, v152, s[16:19], s40 offen offset:{32*i}")
    k.label("DN_LOOP")
    k("s_cmp_lg_u32 s42, 12"); k("s_cbranch_scc1 DB_GO")
    gpoll(k, "DB", "s45", 4)
    k("s_add_u32 s34, s34, 4096"); k("s_add_u32 s35, s35, 4096")
    k("s_cmp_lt_u32 s42, 24"); k("s_cselect_b32 s34, s34, s43"); k("s_cselect_b32 s35, s35, s43")
    for s in range(4):
        k("s_waitcnt vmcnt(14) lgkmcnt(0)")
        for x in interleave(mfl(s & 1, TF + 8*s), wreads((s+1) & 3, (s+1) & 1, s == 3)): k(x)
        for x in tload(s): k(x)
        if s == 1:
            k("s_cmp_eq_u32 s42, 20")
            k("s_cselect_b32 s12, s56, s12"); k("s_cselect_b32 s13, s57, s13"); k(f"s_cselect_b32 s14, {512*1024}, s14")
            k("s_cselect_b32 s33, s67, s33"); k("s_cselect_b32 s65, 16384, s65"); k("s_cselect_b32 s66, 16384, s66")
        for x in (wdma(s+7, 3, "s44") if s == 0 else wdma(s+7, s-1)): k(x)
    k("s_setprio 3")
    k("v_swap_b32 v5, v9"); k("v_swap_b32 v6, v10")
    k(f"s_setprio {GP2}")
    k("s_mov_b32 s28, s36"); k("s_mov_b32 s36, s44"); k("s_mov_b32 s44, s28")
    k("s_add_u32 s42, s42, 4"); k("s_cmp_lt_u32 s42, 28"); k("s_cbranch_scc1 DN_LOOP")
    k.stamp()
    k("s_setprio 3")
    for x in wdma(0, 3, "s44"): k(x)
    srd(k, 16, 58, 2048 * 1024)
    for r in range(8):
        k(f"v_lshlrev_b32 v{32+2*r}, 16, v{EP+r}"); k(f"v_and_b32 v{33+2*r}, 0xffff0000, v{EP+r}")
    k("v_mov_b32 v160, v152")
    k(f"s_lshl_b32 s34, s53, 16"); k("s_lshl_b32 s35, s25, 13"); k("s_add_u32 s34, s34, s35"); k(f"s_add_u32 s34, s34, {WS_O}")
    k("s_lshl_b32 s28, s63, 15"); k("s_add_u32 s35, s34, 32768"); k("s_sub_u32 s35, s35, s28"); k("s_add_u32 s34, s34, s28")
    k("s_add_u32 s46, s34, 4096"); k("s_add_u32 s47, s35, 4096")
    k("s_lshl_b32 s45, s53, 8"); k("s_lshl_b32 s28, s25, 5"); k("s_add_u32 s45, s45, s28"); k(f"s_add_u32 s45, s45, {OFLAG}")
    for r in range(16): k(f"v_add_f32 v{ACD+r}, v{ACD+r}, v{32+r}")
    k("v_add_u32 v161, s32, v1")
    for t in (1, 2, 3):
        k(f"s_xor_b32 s28, s25, {t}"); k("s_lshl_b32 s28, s28, 14"); k(f"s_add_u32 s28, s28, {GB + (t-1)*4096}"); k(f"v_add_u32 v{161+t}, s28, v1")
    k("v_add_u32 v13, 1, v13")
    OG = [[112, 120, 128, 136], [32, 40, 144, 152]]
    k("s_mov_b32 s44, 0x11"); k("s_mov_b32 s28, 0")
    k("s_waitcnt lgkmcnt(0)")
    k.label("WO_POLL")
    k("buffer_load_dword v4, v3, s[20:23], s45 offen sc1")
    k("s_waitcnt vmcnt(0)")
    k(f"v_cmp_eq_u32 vcc, {TAG}, v4")
    k("s_add_u32 s28, s28, 1"); k("s_cmp_lt_u32 s28, 0x100000"); k("s_cselect_b32 s42, vcc_lo, -1")
    k("s_lshr_b32 s29, s42, 1"); k("s_and_b32 s42, s42, s29"); k("s_lshr_b32 s29, s42, 2"); k("s_and_b32 s42, s42, s29")
    k("s_and_b32 s42, s42, s44")
    k("s_cbranch_scc1 WO_GO")
    k(f"s_sleep {OPT('WSLEEP', 3)}"); k("s_branch WO_POLL")
    k.label("WO_GO")
    k("s_andn2_b32 s44, s44, s42")
    for g in range(2):
        k(f"s_bitcmp1_b32 s42, {4*g}"); k(f"s_cbranch_scc0 WO_L{g}")
        sa, sb = ("s34", "s35") if g == 0 else ("s46", "s47")
        for h in range(4):
            k(f"buffer_load_dwordx4 {vr(OG[g][h],4)}, v1, s[20:23], {sa} offen offset:{h*1024} sc1")
            k(f"buffer_load_dwordx4 {vr(OG[g][h]+4,4)}, v1, s[20:23], {sb} offen offset:{h*1024} sc1")
        k.label(f"WO_L{g}")
    for g in range(2):
        k(f"s_bitcmp1_b32 s42, {4*g}"); k(f"s_cbranch_scc0 WO_C{g}")
        for x in wreads(0, 0, g == 1): k(x)
        if g == 0:
            k("s_bitcmp1_b32 s42, 4"); k("s_cbranch_scc1 WO_W8"); k("s_waitcnt vmcnt(0)"); k.label("WO_W8"); k("s_waitcnt vmcnt(8)")
        else: k("s_waitcnt vmcnt(0)")
        for h in range(4):
            k("s_waitcnt lgkmcnt(0)")
            for x in interleave(mfl(h & 1, OG[g][h]), wreads(h+1, (h+1) & 1, g == 1) if h < 3 else []): k(x)
        k.label(f"WO_C{g}")
    k("s_cmp_lg_u32 s44, 0"); k("s_cbranch_scc1 WO_POLL")
    k.stamp()
    k("s_nop 5")
    for t in (1, 2, 3):
        for q in range(4): k(f"ds_write_b128 v161, {vr(ACD + t*16 + 4*q, 4)} offset:{(t-1)*4096 + q*1024}")
    k("ds_write_b32 v11, v13")
    k("ds_read_b32 v14, v12"); k("s_waitcnt lgkmcnt(0)"); k("s_mov_b32 s39, 11")
    tails.append(softcheck(k, "DC", "s39", "v14", "v12"))
    k.stamp()
    for q in range(4):
        for t in (1, 2, 3): k(f"ds_read_b128 {vr(ACD + t*16 + 4*q, 4)}, v{161+t} offset:{q*1024}")
    for q in range(4):
        k(f"s_waitcnt lgkmcnt({9 - 3*q})")
        for r in range(4*q, 4*q+4): k(f"v_add_f32 v{ACD+16+r}, v{ACD+16+r}, v{ACD+32+r}"); k(f"v_add_f32 v{ACD+r}, v{ACD+r}, v{ACD+48+r}")
        for r in range(4*q, 4*q+4): k(f"v_add_f32 v{ACD+r}, v{ACD+r}, v{ACD+16+r}")
        for r in range(2*q, 2*q+2): k(f"v_cvt_pk_bf16_f32 v{16+r}, v{ACD+2*r}, v{ACD+2*r+1}")
        if q & 1: k(f"buffer_store_dwordx4 {vr(16+4*(q>>1),4)}, v160, s[16:19], s40 offen offset:{32*(q>>1)}")
    k("s_add_u32 s28, s2, s25"); k("s_cmp_lg_u32 s28, 0"); k("s_cbranch_scc1 G_NOEP")
    k(f"v_mov_b32 v2, 0"); k(f"v_mov_b32 v3, {TAG}"); k(f"s_mov_b32 s28, {EPOCH}")
    k("s_mov_b64 exec, 1"); k("buffer_store_dword v3, v2, s[20:23], s28 offen sc1"); k("s_mov_b64 exec, -1")
    k.label("G_NOEP")
    finish(k, 2)
    for t in tails: t()

def gen_mega():
    k = Kern(NAME, 256, 768, LDS_TOTAL, 168, 72)
    k("s_cmp_ge_u32 s2, 256"); k("s_cbranch_scc1 M_END")
    k.stamp(True); k.stamp()
    k("s_load_dwordx2 s[8:9], s[0:1], 72")
    k("s_load_dwordx4 s[4:7], s[0:1], 0")
    k("v_lshrrev_b32 v1, 6, v0"); k("v_and_b32 v0, 63, v0"); k("v_readfirstlane_b32 s24, v1")
    k("s_cmp_ge_u32 s24, 8"); k("s_cbranch_scc1 M_GEMM")
    qkv_part(k)
    attn_part(k)
    k.label("M_GEMM")
    if Kern.DIAG: k.nst = 2
    k("s_waitcnt lgkmcnt(0)")
    gemm_part(k)
    k.label("M_END")
    k("s_endpgm")
    return k
```

```python
from common import *
import os
OPT = lambda n, d=0: int(os.environ.get(n, d))
MF = "v_mfma_f32_32x32x16_bf16"
MF16 = "v_mfma_f32_16x16x32_bf16"
UP_SLOT = 28928
UP_W3OFF = 14464
GB = 65536
ONES = GB + 3 * UP_SLOT
PROG = ONES + 2048
PAIR = PROG + 3072
SC = PAIR + 256
LDS_TOTAL = SC + 4096
assert ONES % 256 == 0 and LDS_TOTAL <= 163840 and ONES >= 131072
HFLAG = WS_FLAG
OFLAG = WS_FLAG + 32768
QFLAG = WS_FLAG + 131072
FSTR = 8192 + 256
XFLAG = WS_FLAG + 393216
RELAY = PAIR + 64
EPOCH = WS_FLAG + 65536 + 4096
TAG = "s70"
NST = 14
NAME = "parallel_sum__softmax_full_mha__glu_gated_swiglu__prompt_kernel"

def load_tag(k):
    k(f"s_add_u32 s68, s8, {EPOCH}"); k("s_addc_u32 s69, s9, 0")
    k(f"s_load_dword {TAG}, s[68:69], 0"); k("s_waitcnt lgkmcnt(0)")
    k(f"s_mul_i32 {TAG}, {TAG}, 0x9e3779b1"); k(f"s_add_u32 {TAG}, {TAG}, 0x7f4a7c15")

def ln_scalars(k, s, q, mask, r, mb):
    k(f"v_mul_f32 {s}, {lit(1/512)}, {s}"); k(f"v_mul_f32 {q}, {lit(1/512)}, {q}")
    k(f"v_fma_f32 {q}, -{s}, {s}, {q}"); k(f"v_max_f32 {q}, 0, {q}")
    k(f"v_cvt_pk_bf16_f32 {s}, {s}, {q}")
    k(f"v_and_b32 {q}, {mask}, {s}"); k(f"v_lshlrev_b32 {mb}, 16, {s}")
    k(f"v_add_f32 {q}, {lit(1e-5)}, {q}")
    k(f"v_cvt_pk_bf16_f32 {q}, {q}, {q}"); k(f"v_lshlrev_b32 {q}, 16, {q}")
    k(f"v_sqrt_f32 {q}, {q}")
    k(f"v_cvt_pk_bf16_f32 {q}, {q}, {q}"); k(f"v_lshlrev_b32 {q}, 16, {q}")
    k(f"v_rcp_f32 {r}, {q}")

def qkv_part(k):
    k("s_and_b32 s27, s2, 7"); k("s_lshr_b32 s28, s2, 3")
    k("s_lshr_b32 s25, s27, 1"); k("s_lshl_b32 s25, s25, 3"); k("s_lshr_b32 s29, s28, 2"); k("s_add_u32 s25, s25, s29")
    k("s_and_b32 s26, s27, 1"); k("s_lshl_b32 s26, s26, 2"); k("s_and_b32 s29, s28, 3"); k("s_add_u32 s26, s26, s29")
    k("s_add_u32 s40, s25, s26"); k("s_and_b32 s40, s40, 7")
    k("s_bfe_u32 s56, s24, 0x10001"); k("s_and_b32 s59, s24, 1")
    LD_FIRST = OPT("LDFIRST", 1)
    k("s_cmp_ge_u32 s24, 4" if LD_FIRST else "s_cmp_lt_u32 s24, 4"); k("s_cbranch_scc1 K1_COMP")
    k("s_and_b32 s57, s24, 3")
    k("v_lshrrev_b32 v40, 3, v0"); k("v_lshlrev_b32 v44, 10, v40")
    k("v_lshrrev_b32 v41, 4, v0"); k("v_and_b32 v42, 7, v0")
    k("v_xor_b32 v43, v41, v42"); k("v_lshl_add_u32 v1, v43, 4, v44")
    k("v_xor_b32 v43, 4, v43"); k("v_lshl_add_u32 v2, v43, 4, v44"); k(f"v_add_u32 v2, {8192-1024}, v2")
    k("v_mul_u32_u24 v40, 3072, v40"); k("v_and_b32 v41, 1, v41"); k("v_lshlrev_b32 v41, 2, v41"); k("v_xor_b32 v41, v41, v42"); k("v_lshl_add_u32 v3, v41, 4, v40")
    k("s_lshl_b32 s31, s25, 16"); k("s_lshl_b32 s33, s57, 14"); k("s_add_u32 s31, s31, s33")
    k("s_lshl_b32 s32, s57, 11")
    k("s_mul_i32 s35, s57, 49152"); k("s_lshl_b32 s33, s26, 7"); k("s_add_u32 s35, s35, s33")
    k("s_mul_i32 s36, s57, 6144"); k("s_add_u32 s36, s36, 8192")
    k("s_mov_b32 s42, 0"); k("s_mov_b32 s43, 0x10000"); k("s_mov_b32 s41, s40")
    k("s_waitcnt lgkmcnt(0)")
    srd(k, 12, 4, 2048 * 1024); srd(k, 16, 6, 512 * 3072)
    def issue():
        o = ["s_lshl_b32 s33, s41, 7", "s_add_u32 m0, s43, s32", "s_add_u32 s33, s33, s31",
             "buffer_load_dwordx4 v1, s[12:15], s33 offen lds",
             "buffer_load_dwordx4 v2, s[12:15], s33 offen offset:1024 lds",
             "s_mul_i32 s33, s41, 196608", "s_add_u32 m0, s43, s36", "s_add_u32 s33, s33, s35"]
        o += [f"buffer_load_dwordx4 v3, s[16:19], s33 offen offset:{blk*1024} lds" for blk in range(3)]
        o += ["s_add_u32 m0, m0, 3072", "s_add_u32 s33, s33, 24576"]
        o += [f"buffer_load_dwordx4 v3, s[16:19], s33 offen offset:{blk*1024} lds" for blk in range(3)]
        o += ["s_add_u32 s41, s41, 1", "s_and_b32 s41, s41, 7", "s_add_u32 s43, s43, 32768", "s_and_b32 s43, s43, 0x1ffff"]
        return o
    D0 = OPT("D0", 2)
    k.label("K1_LP")
    for x in issue(): k(x)
    k("s_add_u32 s42, s42, 1"); k(f"s_cmp_lt_u32 s42, {D0}"); k("s_cbranch_scc1 K1_LP")
    k("v_and_b32 v48, 31, v0"); k("v_lshrrev_b32 v49, 5, v0"); k("v_bfe_u32 v50, v0, 1, 3")
    k("s_lshl_b32 s33, s56, 12"); k("v_lshl_add_u32 v51, v48, 7, s33")
    k("s_lshl_b32 s33, s59, 2"); k("v_or_b32 v52, s33, v49"); k("v_xor_b32 v52, v52, v50"); k("v_lshl_add_u32 v4, v52, 4, v51"); k("v_xor_b32 v5, 32, v4")
    k("v_add_u32 v8, 0x10000, v4"); k("v_add_u32 v9, 0x10000, v5"); k("v_mov_b32 v13, 0xffff0000")
    for r in range(54, 62): k(f"v_mov_b32 v{r}, 0")
    srd(k, 20, 8, WS_SIZE); load_tag(k)
    k("s_mov_b32 s42, 0"); k("s_mov_b32 s44, 0x10000")
    k.stamp()
    def stats():
        o = []
        for r in range(8):
            o += [f"v_lshlrev_b32 v{24+2*r}, 16, v{16+r}", f"v_and_b32 v{25+2*r}, v13, v{16+r}"]
        for r in range(16):
            o += [f"v_add_f32 v{54+(r&3)}, v{54+(r&3)}, v{24+r}", f"v_fmac_f32 v{58+(r&3)}, v{24+r}, v{24+r}"]
        return o
    head = ["s_barrier", "ds_read_b128 v[16:19], v8", "ds_read_b128 v[20:23], v9",
            "s_add_u32 s44, s44, 32768", "s_and_b32 s44, s44, 0x1ffff", "v_add_u32 v8, s44, v4", "v_add_u32 v9, s44, v5"]
    nA = 8 - D0
    k.label("K1_LA")
    k(f"s_waitcnt vmcnt({8*(D0-1)})")
    for x in head: k(x)
    iss = issue()
    for x in iss[:5]: k(x)
    k("s_waitcnt lgkmcnt(0)")
    for x in interleave(iss[5:], stats()): k(x)
    k("s_add_u32 s42, s42, 1"); k(f"s_cmp_lt_u32 s42, {nA}"); k("s_cbranch_scc1 K1_LA")
    NPF = 0
    assert D0 == 2
    if NPF:
        k("s_bitcmp1_b32 s24, 0"); k("s_cselect_b32 s10, s50, s48"); k("s_cselect_b32 s11, s51, s49")
        srd(k, 52, 10, 512 * 3584)
        k("s_lshl_b32 s33, s28, 1"); k("s_add_u32 s33, s33, s56"); k(f"s_mul_i32 s33, s33, {NPF*3584}")
        k("s_and_b32 s34, s27, 3"); k("s_mul_i32 s34, s34, 896"); k("s_add_u32 s33, s33, s34")
        k("v_lshlrev_b32 v15, 4, v0")
        for i in range(NPF):
            k("buffer_load_dwordx4 v[64:67], v15, s[52:55], s33 offen"); k("s_add_u32 s33, s33, 3584")
    k(f"s_waitcnt vmcnt({8 + NPF})")
    k.label("K1_LB")
    for x in head: k(x)
    k("s_waitcnt lgkmcnt(0)")
    for x in stats(): k(x)
    k("s_add_u32 s42, s42, 1")
    k(f"s_waitcnt vmcnt({NPF})"); k("s_cmp_lt_u32 s42, 8"); k("s_cbranch_scc1 K1_LB")
    k.stamp()
    k("v_add_f32 v54, v54, v55"); k("v_add_f32 v56, v56, v57"); k("v_add_f32 v58, v58, v59"); k("v_add_f32 v60, v60, v61")
    k("v_add_f32 v54, v54, v56"); k("v_add_f32 v58, v58, v60"); k("v_mov_b32 v55, v54"); k("v_mov_b32 v59, v58")
    k("s_lshl_b32 s33, s56, 9"); k(f"s_add_u32 s33, s33, {SC+2048}"); k("v_lshl_add_u32 v6, v48, 4, s33")
    k("v_permlane32_swap_b32 v54, v55"); k("v_permlane32_swap_b32 v58, v59")
    k("s_lshl_b32 s33, s59, 3"); k("v_add_u32 v7, s33, v6")
    k("v_add_f32 v54, v54, v55"); k("v_add_f32 v55, v58, v59")
    k("ds_write_b64 v7, v[54:55]")
    k("s_waitcnt lgkmcnt(0)"); k("s_barrier")
    k("ds_read_b128 v[54:57], v6")
    k("s_add_u32 s38, s40, 7"); k("s_and_b32 s38, s38, 7"); k("s_lshl_b32 s38, s38, 12"); k("s_lshl_b32 s39, s59, 11"); k("s_add_u32 s38, s38, s39")
    k("s_lshl_b32 s39, s25, 16"); k("s_add_u32 s38, s38, s39"); k("s_lshl_b32 s39, s56, 15"); k("s_add_u32 s38, s38, s39"); k(f"s_add_u32 s38, s38, {WS_XN}")
    k("v_lshlrev_b32 v15, 4, v0")
    k("s_waitcnt lgkmcnt(0)")
    k("v_add_f32 v54, v54, v56"); k("v_add_f32 v55, v55, v57")
    ln_scalars(k, "v54", "v55", "v13", "v12", "v14")
    k("v_mul_f32 v14, -v14, v12")
    for r in range(16): k(f"v_fma_f32 v{24+r}, v{24+r}, v12, v14")
    for r in range(8): k(f"v_cvt_pk_bf16_f32 v{16+r}, v{24+2*r}, v{25+2*r}")
    k("buffer_store_dwordx4 v[16:19], v15, s[20:23], s38 offen sc1")
    k("buffer_store_dwordx4 v[20:23], v15, s[20:23], s38 offen offset:1024 sc1")
    k("s_add_u32 s44, s40, 7"); k("s_and_b32 s44, s44, 7"); k("s_lshl_b32 s44, s44, 1"); k("s_add_u32 s44, s44, s59"); k("s_lshl_b32 s44, s44, 7")
    k("s_lshr_b32 s39, s25, 1"); k(f"s_mul_i32 s39, s39, {FSTR}"); k("s_add_u32 s44, s44, s39"); k("s_and_b32 s39, s25, 1"); k("s_lshl_b32 s39, s39, 12"); k("s_add_u32 s44, s44, s39")
    k("s_lshl_b32 s39, s56, 11"); k("s_add_u32 s44, s44, s39"); k(f"s_add_u32 s44, s44, {XFLAG}")
    k("s_branch AT_ENTRY")
    if Kern.DIAG: k.nst = 2
    FS = [16, 32, 48, 64]
    ACC = 80; CS = 128; SEL = 140
    k.label("K1_COMP")
    k("v_and_b32 v144, 31, v0"); k("v_lshrrev_b32 v145, 5, v0"); k("v_bfe_u32 v146, v0, 1, 3")
    k("s_lshl_b32 s33, s56, 12"); k("v_lshl_add_u32 v147, v144, 7, s33")
    k("s_lshl_b32 s33, s56, 2"); k("v_or_b32 v148, s33, v145"); k("v_xor_b32 v148, v148, v146"); k("v_lshl_add_u32 v4, v148, 4, v147")
    for j in (1, 2, 3): k(f"v_xor_b32 v{4+j}, {32*j}, v4")
    k("v_mul_u32_u24 v147, 3072, v145"); k("v_bfe_u32 v148, v0, 2, 2"); k("v_lshl_add_u32 v147, v148, 7, v147")
    k("v_bfe_u32 v148, v0, 3, 1"); k("v_xor_b32 v148, s59, v148"); k("v_lshl_add_u32 v147, v148, 6, v147")
    k("v_bfe_u32 v149, v0, 4, 1"); k("v_lshl_add_u32 v147, v149, 5, v147"); k("v_and_b32 v148, 3, v0"); k("v_lshl_add_u32 v147, v148, 3, v147")
    k("s_mul_i32 s33, s56, 12288"); k("s_add_u32 s34, s33, 8192"); k("v_add_u32 v8, s34, v147")
    k(f"s_sub_u32 s34, {8192+12288}, s33"); k("v_add_u32 v9, s34, v147")
    k("v_bfe_u32 v147, v0, 2, 1"); k("v_xor_b32 v147, v147, v149"); k("v_or_b32 v147, v147, v148")
    k("v_cmp_eq_u32 vcc, 0, v147"); k("v_mov_b32 v147, 0x3f803f80")
    k(f"v_cndmask_b32 v{SEL}, 0, v147, vcc")
    for r in (1, 2, 3): k(f"v_mov_b32 v{SEL+r}, v{SEL}")
    for r in range(FS[2], CS + 12): k(f"v_mov_b32 v{r}, 0")
    k("s_lshl_b32 s30, s25, 1"); k("s_add_u32 s30, s30, s56")
    k("s_lshl_b32 s33, s26, 18"); k("s_lshl_b32 s34, s59, 17"); k("s_add_u32 s33, s33, s34"); k("s_lshl_b32 s34, s30, 10"); k("s_add_u32 s33, s33, s34")
    k(f"s_add_u32 s34, s33, {WS_K}"); k(f"s_add_u32 s35, s33, {WS_V}"); k("s_add_u32 s36, s33, 65536"); k("s_add_u32 s37, s34, 65536")
    k("v_lshlrev_b32 v15, 4, v0")
    k("s_lshl_b32 s38, s56, 9"); k(f"s_add_u32 s38, s38, {SC+2048}"); k("v_lshl_add_u32 v1, v144, 4, s38")
    k("s_lshl_b32 s38, s59, 10"); k(f"s_add_u32 s38, s38, {SC}"); k("v_lshl_add_u32 v2, v144, 5, s38")
    k("s_lshl_b32 s38, s56, 4"); k("v_add_u32 v10, s38, v2"); k("v_xor_b32 v2, 16, v10")
    k("s_and_b32 s38, s24, 3"); k("s_lshl_b32 s38, s38, 7"); k(f"s_add_u32 s38, s38, {SC+3072}")
    k("v_lshl_add_u32 v11, v144, 2, s38"); k("v_lshl_add_u32 v14, v145, 4, s38")
    k("v_lshlrev_b32 v3, 16, v149"); k("v_lshl_add_u32 v3, v145, 8, v3"); k("v_and_b32 v148, 15, v0"); k("v_lshl_add_u32 v3, v148, 4, v3")
    k("v_mov_b32 v13, 0xffff0000")
    k("s_mov_b32 s42, 0")
    k("s_waitcnt lgkmcnt(0)")
    srd(k, 20, 8, WS_SIZE); load_tag(k)
    k.stamp()
    def reads(j, off):
        f = FS[j]; w = "v8" if j < 2 else "v9"; o = off + (j & 1)*6144
        out = [f"ds_read_b128 {vr(f,4)}, v{4+j} offset:{off}"]
        for blk in range(3):
            out += [f"ds_read_b64_tr_b16 {vr(f+4+4*blk,2)}, {w} offset:{o+blk*1024}", f"ds_read_b64_tr_b16 {vr(f+6+4*blk,2)}, {w} offset:{o+blk*1024+512}"]
        return out
    def mfs(j):
        f = FS[j]; out = []
        for blk in range(3):
            a = vr(ACC + blk*16, 16); w = vr(f+4+4*blk, 4); x = vr(f, 4)
            out.append(f"{MF} {a}, {w}, {x}, {a}" if blk < 2 else f"{MF} {a}, {x}, {w}, {a}")
            if j < 2: out.append(f"{MF16} {vr(CS+4*blk,4)}, {vr(SEL,4)}, {w}, {vr(CS+4*blk,4)}")
        return out
    for i in range(6): k(f"v_xor_b32 v{4+i}, 0x10000, v{4+i}")
    k.label("K1_CL")
    for p in range(2):
        k("s_barrier")
        for j in range(4):
            if j >= 2: k("s_waitcnt lgkmcnt(7)")
            for x in interleave(mfs((j + 2) & 3), reads(j, p*32768)): k(x)
        if p == 1:
            for i in range(6): k(f"v_xor_b32 v{4+i}, 0x10000, v{4+i}")
            k("s_add_u32 s42, s42, 1"); k("s_cmp_lt_u32 s42, 4")
        k("s_waitcnt lgkmcnt(0)")
    k("s_cbranch_scc1 K1_CL")
    k.stamp()
    for x in mfs(2): k(x)
    k(f"v_mov_b32 v{CS+1}, v{CS+4}"); k(f"v_mov_b32 v{CS+2}, v{CS+8}")
    k(f"ds_write_b128 v10, {vr(CS,4)}")
    for x in mfs(3): k(x)
    k("s_waitcnt lgkmcnt(0)"); k("s_barrier")
    k("ds_read_b128 v[16:19], v1"); k("ds_read_b128 v[20:23], v2")
    k("s_waitcnt lgkmcnt(1)")
    k("v_add_f32 v16, v16, v18"); k("v_add_f32 v17, v17, v19")
    ln_scalars(k, "v16", "v17", "v13", "v12", "v18")
    k("ds_write_b32 v11, v12")
    for q in range(4): k(f"ds_read_b128 {vr(48+4*q,4)}, v14 offset:{q*32}")
    k("v_cvt_pk_bf16_f32 v24, -v18, -v18"); k("v_lshrrev_b32 v25, 16, v24"); k("v_mov_b32 v26, 0"); k("v_mov_b32 v27, 0")
    k("s_mov_b32 exec_lo, 0"); k("v_mov_b32 v24, 0"); k("v_mov_b32 v25, 0"); k("s_mov_b32 exec_lo, -1")
    for b in range(3):
        c = 28 + 4*b
        k(f"v_add_f32 v{c+2}, v{CS+b}, v{20+b}")
        k(f"v_and_b32 v{c+3}, v13, v{c+2}"); k(f"v_sub_f32 v{c+2}, v{c+2}, v{c+3}")
        k(f"v_and_b32 v{c+1}, v13, v{c+2}"); k(f"v_sub_f32 v{c+2}, v{c+2}, v{c+1}")
        k(f"v_lshrrev_b32 v{c+3}, 16, v{c+3}"); k(f"v_or_b32 v{c}, v{c+3}, v{c+1}")
        k(f"v_lshrrev_b32 v{c+1}, 16, v{c+2}"); k(f"v_mov_b32 v{c+2}, 0"); k(f"v_mov_b32 v{c+3}, 0")
    for blk in (1, 2, 0):
        a = vr(ACC + blk*16, 16); c = vr(28+4*blk, 4)
        k(f"{MF} {a}, {c}, v[24:27], {a}" if blk < 2 else f"{MF} {a}, v[24:27], {c}, {a}")
    k(f"v_mul_f32 v10, {lit(QSCALE)}, v12")
    k("s_waitcnt lgkmcnt(0)")
    so = {0: ("s33", "s36"), 1: ("s34", "s37")}
    for blk in (1, 2, 0):
        a = ACC + blk*16
        for h in range(2):
            for r in range(8*h, 8*h+8):
                k(f"v_mul_f32 v{a+r}, {('v10', 'v12', 'v%d' % (48+r))[blk]}, v{a+r}")
            d = 16 + (blk*2+h)*4 if blk < 2 else 64 + 4*h
            if blk == 0: d = 72 + 4*h
            if blk == 1: d = 40 + 4*h
            for r in range(4): k(f"v_cvt_pk_bf16_f32 v{d+r}, v{a+8*h+2*r}, v{a+8*h+2*r+1}")
            if blk < 2: k(f"buffer_store_dwordx4 {vr(d,4)}, v15, s[20:23], {so[blk][h]} offen sc1")
            else: k(f"buffer_store_dwordx4 {vr(d,4)}, v3, s[20:23], s35 offen offset:{512*h} sc1")
    k("s_lshl_b32 s44, s26, 1"); k("s_add_u32 s44, s44, s59"); k(f"s_mul_i32 s44, s44, {FSTR}"); k("s_lshl_b32 s39, s30, 7"); k("s_add_u32 s44, s44, s39"); k(f"s_add_u32 s44, s44, {QFLAG}")

def softcheck(k, tag, sval, vdst, vaddr):
    k(f"v_cmp_le_u32 vcc, {sval}, {vdst}")
    k("s_cmp_eq_u64 vcc, -1")
    k(f"s_cbranch_scc0 {tag}_SPIN")
    k.label(f"{tag}_CONT")
    def tail():
        k.label(f"{tag}_SPIN")
        k("s_sleep 1")
        k(f"ds_read_b32 {vdst}, {vaddr}")
        k("s_waitcnt lgkmcnt(0)")
        k(f"v_cmp_le_u32 vcc, {sval}, {vdst}")
        k("s_cmp_eq_u64 vcc, -1")
        k(f"s_cbranch_scc0 {tag}_SPIN")
        k(f"s_branch {tag}_CONT")
    return tail

def finish(k, vtmp):
    if Kern.DIAG:
        k("s_waitcnt vmcnt(0)")
        while k.nst < NST - 1: k.stamp()
        k.stamp(True)
        k.dump_stamps(1, 24, vtmp, 8)
    k("s_endpgm")

def attn_part(k):
    S = [16, 32]; O = [48, 64]; C = 80; P = 96; Q = [104, 108]
    KF = [112, 116]; VF = [[120, 124], [128, 132]]; K0 = 136
    NG = OPT("AT_UNROLL", 2)
    tails = []
    k.label("AT_ENTRY")
    k.stamp()
    if OPT("GOEARLY"):
        k("s_mov_b64 exec, 1"); k(f"v_mov_b32 v150, {RELAY+8}"); k("v_mov_b32 v151, 1"); k("ds_add_u32 v150, v151"); k("s_mov_b64 exec, -1")
    k("s_nop 1")
    k("v_lshlrev_b32 v1, 4, v0"); k("s_lshl_b32 s28, s24, 8"); k(f"s_add_u32 s28, s28, {PROG}"); k("v_lshl_add_u32 v11, v0, 2, s28")
    k("s_and_b32 s25, s2, 7"); k("s_lshl_b32 s25, s25, 2"); k("s_bfe_u32 s26, s2, 0x20003"); k("s_add_u32 s25, s25, s26")
    k("s_lshr_b32 s38, s24, 2"); k("s_and_b32 s39, s24, 3")
    k("s_lshr_b32 s26, s2, 5"); k("s_lshl_b32 s26, s26, 3"); k("s_lshl_b32 s28, s39, 1"); k("s_add_u32 s26, s26, s28")
    k("s_lshl_b32 s27, s25, 16")
    k("s_lshr_b32 s28, s39, 1"); k("s_lshl_b32 s28, s28, 21"); k("s_add_u32 s30, s27, s28"); k(f"s_add_u32 s30, s30, {WS_K}")
    k("s_lshl_b32 s28, s38, 15"); k("s_add_u32 s30, s30, s28"); k("s_and_b32 s28, s39, 1"); k("s_lshl_b32 s28, s28, 10"); k("s_add_u32 s30, s30, s28")
    k("s_lshl_b32 s28, s24, 10")
    k("s_lshl_b32 s32, s26, 10"); k("s_add_u32 s32, s32, s27")
    k(f"s_add_u32 s33, s27, {WS_K}")
    k("s_mov_b32 m0, s28")
    k("v_lshrrev_b32 v2, 5, v0"); k("v_lshlrev_b32 v2, 8, v2"); k("v_and_b32 v3, 15, v0"); k("v_lshl_add_u32 v2, v3, 4, v2")
    k("s_lshl_b32 s29, s38, 12")
    k("v_add_u32 v15, s29, v1")
    k("v_bfe_u32 v10, v0, 4, 1"); k("v_add_u32 v10, -1, v10")
    k(f"s_add_u32 s31, s29, {2048 - ONES + (1<<32)}")
    k("v_and_b32 v3, s31, v10"); k(f"v_add_u32 v3, {ONES}, v3"); k("v_add_u32 v3, v3, v2")
    k("v_and_b32 v12, 3, v0"); k("v_lshlrev_b32 v12, 8, v12"); k("v_lshl_add_u32 v12, v0, 2, v12")
    k(f"s_lshl_b32 s31, s38, 10"); k(f"s_add_u32 s31, s31, {PROG}"); k("v_add_u32 v12, s31, v12")
    k("s_xor_b32 s31, s24, 4"); k("s_lshl_b32 s31, s31, 8"); k(f"s_add_u32 s31, s31, {PROG - 128}")
    k("s_mov_b32 exec_lo, 0"); k("v_lshl_add_u32 v12, v0, 2, s31"); k("s_mov_b32 exec_lo, -1")
    k("s_mov_b32 s40, 0x0000ffff"); k("s_mov_b32 s41, 0x0000ffff")
    for r in range(4): k(f"v_mov_b32 v{VF[1][1]+r}, 0")
    for r in range(32): k(f"v_mov_b32 v{O[0]+r}, 0")
    for r in range(4, 8): k(f"v_mov_b32 v{P+r}, 0")
    k("v_mov_b32 v5, v3"); k("v_add_u32 v6, 8192, v15"); k("v_and_b32 v7, 8192, v10"); k("v_add_u32 v7, v7, v3")
    k("v_lshrrev_b32 v13, 5, v0"); k("v_add_u32 v13, 1, v13")
    k("v_mov_b32 v142, 0"); k(f"v_mov_b32 v143, {TAG}")
    k("s_mov_b64 exec, 1")
    k("s_waitcnt vmcnt(0)")
    k("buffer_store_dword v143, v142, s[20:23], s44 offen sc1")
    if not OPT("GOEARLY"): k(f"v_mov_b32 v140, {RELAY+8}"); k("v_mov_b32 v141, 1"); k("ds_add_u32 v140, v141")
    k("s_mov_b64 exec, -1")
    k.stamp()
    k("s_lshr_b32 s45, s25, 1"); k(f"s_mul_i32 s45, s45, {FSTR}"); k(f"s_add_u32 s45, s45, {QFLAG}"); k("v_lshlrev_b32 v140, 7, v0")
    k(f"v_mov_b32 v142, {RELAY}")
    if OPT("WARM", 1):
        k("s_cmp_ge_u32 s24, 4"); k("s_cbranch_scc1 AQ_NW")
        k("s_mov_b64 exec, 0")
        for w, nm in enumerate(("WA", "WB", "WC", "WD")):
            k(f"s_cmp_eq_u32 s24, {w}"); k(f"s_cbranch_scc1 HOP_{nm}_0")
        k.label("AQ_WR"); k("s_mov_b64 exec, -1")
        k.label("AQ_NW")
    k("s_cmp_lg_u32 s24, 4"); k("s_cbranch_scc1 AQ_REL")
    gpoll(k, "AQ", "s45", OPT("QSLEEP", 4), "v141", "v140", "s46")
    k("v_mov_b32 v141, 1"); k("ds_write_b32 v142, v141"); k("s_branch AQ_DONE")
    k.label("AQ_REL")
    k("s_sleep 1"); k("ds_read_b32 v141, v142"); k("s_waitcnt lgkmcnt(0)"); k("v_cmp_eq_u32 vcc, 1, v141"); k("s_cmp_eq_u64 vcc, -1"); k("s_cbranch_scc0 AQ_REL")
    k.label("AQ_DONE")
    if OPT("WARM", 1): k.hops_begin("WA")
    k.stamp()
    k(f"buffer_load_dwordx4 {vr(Q[0],4)}, v1, s[20:23], s32 offen sc1")
    k(f"buffer_load_dwordx4 {vr(Q[1],4)}, v1, s[20:23], s32 offen offset:1024 sc1")
    k(f"buffer_load_dwordx4 {vr(K0,4)}, v1, s[20:23], s33 offen sc1")
    for g in range(3):
        k("buffer_load_dwordx4 v1, s[20:23], s30 offen sc1 lds")
        k("s_add_u32 m0, m0, 8192"); k("s_add_u32 s30, s30, 2048")
    k("s_waitcnt vmcnt(3)")
    k(f"{MF} {vr(S[0],16)}, {vr(K0,4)}, {vr(Q[0],4)}, 0")
    k(f"{MF} {vr(S[1],16)}, {vr(K0,4)}, {vr(Q[1],4)}, 0")
    k("s_waitcnt vmcnt(1)")
    k("ds_write_b32 v11, v13")
    k("s_mov_b32 s34, 1")
    k(f"v_max3_f32 v8, v{S[0]}, v{S[0]+1}, v{S[0]+2}")
    for i in range(3, 31, 2): k(f"v_max3_f32 v8, v8, v{S[0]+i}, v{S[0]+i+1}")
    k(f"v_max_f32 v8, v8, v{S[0]+31}")
    k("ds_read_b32 v14, v12")
    k("v_mov_b32 v9, v8"); k("v_permlane32_swap_b32 v8, v9"); k("v_max_f32 v8, v8, v9")
    for r in range(16): k(f"v_xor_b32 v{C+r}, 0x80000000, v8")
    k("s_waitcnt lgkmcnt(0)")
    k("v_cmp_le_u32 vcc, v13, v14"); k("s_setprio 1"); k("s_cmp_eq_u32 vcc_lo, -1"); k("s_cbranch_scc0 AP_SPIN")
    k.label("AP_CONT")
    def tail(tag="AP"):
        k.label(f"{tag}_SPIN"); k("s_sleep 1"); k("ds_read_b32 v14, v12"); k("s_waitcnt lgkmcnt(0)")
        k("v_cmp_le_u32 vcc, v13, v14"); k("s_cmp_eq_u32 vcc_lo, -1"); k(f"s_cbranch_scc0 {tag}_SPIN"); k(f"s_branch {tag}_CONT")
    tails.append(tail)
    k.stamp()
    k(f"ds_read_b128 {vr(KF[0],4)}, v15")
    k(f"ds_read_b128 {vr(VF[0][0],4)}, v5"); k(f"ds_read_b128 {vr(VF[0][1],4)}, v5 offset:512")
    k(f"ds_read_b128 {vr(KF[1],4)}, v15 offset:1024")
    k("s_mov_b32 s37, 16384")
    k("s_waitcnt lgkmcnt(3)")
    k(f"{MF} {vr(S[0],16)}, {vr(KF[0],4)}, {vr(Q[0],4)}, {vr(C,16)}")
    k("s_nop 10")
    if OPT("WARM", 1): k.hops_end("AQ_WR")
    k.label("AT_LOOP")
    for gi in range(NG):
      if OPT("WARM", 1) == 2:
          if gi: k.hops_end("AQ_WR")
          k.hops_begin("WB" if gi == 0 else "WC")
      for t in range(2):
        for ab in range(2):
            Sa = S[ab]
            q = []
            def e(i, extra=None):
                k(f"v_exp_f32 v{Sa+i}, v{Sa+i}")
                if extra: k(extra)
                elif q: k(q.pop(0))
            c = lambda i: k(f"v_cvt_pk_bf16_f32 v{P+i}, v{Sa+2*i}, v{Sa+2*i+1}")
            if ab == 0:
                k(f"{MF} {vr(S[1],16)}, {vr(KF[t&1],4)}, {vr(Q[1],4)}, {vr(C,16)}")
                e(0, "ds_read_b32 v14, v12" if t == 0 else None); e(1); e(2); e(3)
                k(f"{MF} {vr(O[1],16)}, {vr(VF[(t+1)&1][1],4)}, {vr(P+4,4)}, {vr(O[1],16)}")
                va, vo = ("v5", 1024) if t == 0 else ("v7", 0)
                e(4, f"ds_read_b128 {vr(VF[(t+1)&1][0],4)}, {va} offset:{vo}")
                e(5)
                e(6, f"ds_read_b128 {vr(VF[(t+1)&1][1],4)}, {va} offset:{vo+512}")
                e(7); e(8)
                for i in range(4): c(i)
                e(9); e(10, "s_waitcnt lgkmcnt(4)")
                k(f"{MF} {vr(O[0],16)}, {vr(VF[t&1][0],4)}, {vr(P,4)}, {vr(O[0],16)}")
                e(11); e(12)
                e(13, "s_waitcnt lgkmcnt(2)")
                if t == 0:
                    k("v_cmp_le_u32 vcc, v13, v14")
                    e(14, "s_setprio 1" if OPT("BAL", 1) else None); e(15, "s_cmp_eq_u32 vcc_lo, -1")
                    if not OPT("X_NOSPIN"): k(f"s_cbranch_scc0 AT{gi}_SPIN")
                    k.label(f"AT{gi}_CONT")
                    k("v_add_u32 v13, 1, v13")
                    if OPT("BAL", 1):
                        k("s_cmp_eq_u32 vcc_hi, 0"); k(f"s_cbranch_scc1 AT{gi}_AHEAD"); k("s_setprio 2"); k.label(f"AT{gi}_AHEAD")
                    def tail(tag=f"AT{gi}"):
                        k.label(f"{tag}_SPIN"); k("s_sleep 1"); k("ds_read_b32 v14, v12"); k("s_waitcnt lgkmcnt(0)")
                        k("v_cmp_le_u32 vcc, v13, v14"); k("s_cmp_eq_u32 vcc_lo, -1"); k(f"s_cbranch_scc0 {tag}_SPIN"); k(f"s_branch {tag}_CONT")
                    tails.append(tail)
                else:
                    e(14); e(15)
                c(4); c(5); c(6); c(7)
            else:
                k(f"{MF} {vr(S[0],16)}, {vr(KF[(t+1)&1],4)}, {vr(Q[0],4)}, {vr(C,16)}")
                if t == 0:
                    e(0, "s_waitcnt vmcnt(0)"); e(1, "ds_write_b32 v11, v13")
                    e(2, f"ds_read_b128 {vr(KF[t&1],4)}, v6 offset:{t*1024}")
                    e(3, "s_cmp_ge_u32 s34, 14")
                else:
                    e(0, f"ds_read_b128 {vr(KF[t&1],4)}, v6 offset:{t*1024}"); e(1); e(2); e(3)
                k(f"{MF} {vr(O[0],16)}, {vr(VF[t&1][1],4)}, {vr(P+4,4)}, {vr(O[0],16)}")
                if t == 0:
                    k(f"s_cbranch_scc1 AT_NODMA{gi}")
                    k("buffer_load_dwordx4 v1, s[20:23], s30 offen sc1 lds")
                    k.label(f"AT_NODMA{gi}")
                    q += ["s_add_u32 s35, m0, 8192", "s_and_b32 m0, s35, 0xffff", "s_add_u32 s30, s30, 2048"]
                else:
                    q += ["s_add_u32 s34, s34, 1"]
                e(4); e(5); e(6); e(7); e(8)
                for i in range(4): c(i)
                e(9); e(10)
                k(f"{MF} {vr(O[1],16)}, {vr(VF[t&1][0],4)}, {vr(P,4)}, {vr(O[1],16)}")
                if t == 1:
                    k("v_mov_b32 v5, v7"); k("v_add_u32 v6, s37, v15"); k("v_and_b32 v7, s37, v10"); k("v_add_u32 v7, v7, v3")
                    q += ["s_add_u32 s37, s37, 8192", "s_and_b32 s37, s37, 0xffff", "s_cmp_lt_u32 s34, 17"]
                e(11); e(12); e(13); e(14); e(15)
                c(4); c(5); c(6); c(7)
    if OPT("WARM", 1) == 2: k.hops_end("AQ_WR")
    k("s_cbranch_scc1 AT_LOOP")
    if OPT("WARM", 1): k.hops_begin("WD")
    k(f"{MF} {vr(O[1],16)}, {vr(VF[1][1],4)}, {vr(P+4,4)}, {vr(O[1],16)}")
    k.stamp()
    k("s_lshl_b32 s35, s39, 13")
    k("v_add_u32 v4, s35, v15")
    k("v_xor_b32 v5, 4096, v4")
    k("s_lshl_b32 s35, s39, 9"); k("s_add_u32 s35, s35, s29"); k("s_add_u32 s35, s35, 32768")
    k("v_lshl_add_u32 v6, v0, 2, s35"); k("v_xor_b32 v7, 4096, v6")
    k("s_lshl_b32 s35, s39, 2"); k(f"s_add_u32 s35, s35, {PAIR}"); k("v_mov_b32 v8, s35"); k("v_mov_b32 v9, 1")
    for ab in range(2):
        k(f"ds_write_b128 v4, {vr(O[ab],4)} offset:{ab*2048}"); k(f"ds_write_b128 v4, {vr(O[ab]+4,4)} offset:{ab*2048+1024}")
        k(f"ds_write_b32 v6, v{O[ab]+8} offset:{ab*256}")
    k("s_mov_b64 exec, 1")
    k("ds_add_rtn_u32 v9, v8, v9")
    k("s_mov_b64 exec, -1")
    for ab in range(2):
        k(f"ds_read_b128 {vr(S[ab],4)}, v5 offset:{ab*2048}"); k(f"ds_read_b128 {vr(S[ab]+4,4)}, v5 offset:{ab*2048+1024}")
        k(f"ds_read_b32 v{S[ab]+8}, v7 offset:{ab*256}")
    k("s_lshl_b32 s33, s26, 15"); k("s_lshl_b32 s34, s25, 10"); k("s_add_u32 s33, s33, s34"); k(f"s_add_u32 s33, s33, {WS_O}")
    k(f"v_mov_b32 v11, {lit(2.0**30)}"); k(f"v_mov_b32 v10, {lit(2.0**-30)}"); k(f"v_mov_b32 v14, 0x7f800000")
    k("s_waitcnt lgkmcnt(0)")
    k("v_readfirstlane_b32 s35, v9")
    k("s_cmp_eq_u32 s35, 0"); k("s_cbranch_scc1 AT_EXIT")
    for ab in range(2):
        for r in range(9): k(f"v_add_f32 v{O[ab]+r}, v{O[ab]+r}, v{S[ab]+r}")
    k(f"v_add_f32 v8, |v{O[0]}|, |v{O[1]}|")
    for ab in range(2):
        for i in range(1, 8): k(f"v_add_f32 v8, v8, |v{O[ab]+i}|")
    k(f"v_cmp_gt_f32 s[42:43], v14, v8")
    for ab in range(2):
        k(f"v_cmp_gt_f32 s[44:45], v11, v{O[ab]+8}"); k(f"v_cmp_lt_f32 s[46:47], v10, v{O[ab]+8}")
        k("s_and_b64 s[42:43], s[42:43], s[44:45]"); k("s_and_b64 s[42:43], s[42:43], s[46:47]")
    k("s_cmp_eq_u64 s[42:43], -1")
    k("s_cbranch_scc0 AT_SLOW")
    k.label("AT_FIN")
    k("s_add_u32 s34, s33, 32768")
    k(f"v_rcp_f32 v8, v{O[0]+8}"); k(f"v_rcp_f32 v9, v{O[1]+8}")
    for ab in range(2):
        for i in range(8): k(f"v_mul_f32 v{O[ab]+i}, v{8+ab}, v{O[ab]+i}")
        for i in range(4): k(f"v_cvt_pk_bf16_f32 v{P+4*ab+i}, v{O[ab]+2*i}, v{O[ab]+2*i+1}")
        k(f"buffer_store_dwordx4 {vr(P+4*ab,4)}, v1, s[20:23], s{33+ab} offen sc1")
    k("s_lshl_b32 s35, s26, 7"); k("s_lshl_b32 s36, s25, 2"); k("s_add_u32 s35, s35, s36"); k(f"s_add_u32 s35, s35, {OFLAG}")
    k("v_mov_b32 v8, 0"); k(f"v_mov_b32 v9, {TAG}")
    k("s_mov_b64 exec, 1")
    k("s_waitcnt vmcnt(0)")
    k("buffer_store_dword v9, v8, s[20:23], s35 offen sc1")
    k("s_mov_b64 exec, -1")
    if OPT("WARM", 1): k.hops_end("AQ_WR")
    k.label("AT_EXIT")
    finish(k, 8)
    for t in tails: t()
    k.label("AT_SLOW")
    k(f"s_add_u32 s30, s27, {WS_K}"); k(f"s_add_u32 s31, s27, {WS_V}")
    for r in range(8): k(f"v_mov_b32 v{VF[0][0]+r}, 0x3f803f80")
    for ab in range(2):
        k("v_mov_b32 v8, 0xff800000"); k("s_mov_b32 s34, 0")
        k.label(f"AT_S1{ab}")
        k("s_add_u32 s36, s30, s34")
        k(f"buffer_load_dwordx4 {vr(KF[0],4)}, v1, s[20:23], s36 offen sc1")
        k("s_waitcnt vmcnt(0)")
        k(f"{MF} {vr(S[0],16)}, {vr(KF[0],4)}, {vr(Q[ab],4)}, 0")
        for i in range(0, 16, 2): k(f"v_max3_f32 v8, v8, v{S[0]+i}, v{S[0]+i+1}")
        k("s_add_u32 s34, s34, 1024"); k("s_cmp_lt_u32 s34, 65536"); k(f"s_cbranch_scc1 AT_S1{ab}")
        k("v_mov_b32 v9, v8"); k("v_permlane32_swap_b32 v8, v9"); k("v_max_f32 v8, v8, v9")
        for r in range(16): k(f"v_xor_b32 v{C+r}, 0x80000000, v8")
        for r in range(16): k(f"v_mov_b32 v{O[ab]+r}, 0")
        k("s_mov_b32 s34, 0")
        k.label(f"AT_S2{ab}")
        k("s_add_u32 s36, s30, s34"); k("s_add_u32 s35, s31, s34")
        k(f"buffer_load_dwordx4 {vr(KF[0],4)}, v1, s[20:23], s36 offen sc1")
        k("s_mov_b64 exec, s[40:41]")
        k(f"buffer_load_dwordx4 {vr(VF[0][0],4)}, v2, s[20:23], s35 offen sc1")
        k(f"buffer_load_dwordx4 {vr(VF[0][1],4)}, v2, s[20:23], s35 offen offset:512 sc1")
        k("s_mov_b64 exec, -1")
        k("s_waitcnt vmcnt(0)")
        k(f"{MF} {vr(S[0],16)}, {vr(KF[0],4)}, {vr(Q[ab],4)}, {vr(C,16)}")
        for i in range(16): k(f"v_exp_f32 v{S[0]+i}, v{S[0]+i}")
        for i in range(8): k(f"v_cvt_pk_bf16_f32 v{P+i}, v{S[0]+2*i}, v{S[0]+2*i+1}")
        k(f"{MF} {vr(O[ab],16)}, {vr(VF[0][0],4)}, {vr(P,4)}, {vr(O[ab],16)}")
        k(f"{MF} {vr(O[ab],16)}, {vr(VF[0][1],4)}, {vr(P+4,4)}, {vr(O[ab],16)}")
        k("s_nop 15")
        k("s_add_u32 s34, s34, 1024"); k("s_cmp_lt_u32 s34, 65536"); k(f"s_cbranch_scc1 AT_S2{ab}")
    k("s_branch AT_FIN")

def gpoll(k, tag, saddr, sleep, vd="v4", va="v3", cnt="s28"):
    k(f"s_mov_b32 {cnt}, 0")
    k.label(f"{tag}_POLL")
    k(f"buffer_load_dword {vd}, {va}, s[20:23], {saddr} offen sc1")
    k("s_waitcnt vmcnt(0)")
    k(f"v_cmp_eq_u32 vcc, {TAG}, {vd}")
    k("s_cmp_eq_u64 vcc, -1")
    k(f"s_cbranch_scc1 {tag}_GO")
    k(f"s_sleep {sleep}")
    k(f"s_add_u32 {cnt}, {cnt}, 1"); k(f"s_cmp_lt_u32 {cnt}, 0x100000")
    k(f"s_cbranch_scc1 {tag}_POLL")
    k.label(f"{tag}_GO")

def gemm_part(k):
    WF = 16; XF = 32; ACC = 48; DV = 160
    GP = OPT("GPRIO"); GP2 = OPT("GPRIO2")
    tails = []
    k("s_load_dwordx4 s[4:7], s[0:1], 32")
    k("s_load_dwordx2 s[48:49], s[0:1], 48")
    k("s_load_dwordx2 s[50:51], s[0:1], 0")
    k("s_load_dwordx2 s[56:57], s[0:1], 16")
    k("s_load_dwordx2 s[58:59], s[0:1], 56")
    k("v_lshlrev_b32 v1, 4, v0"); k("s_lshl_b32 s28, s24, 8"); k(f"s_add_u32 s28, s28, {PROG}"); k("v_lshl_add_u32 v11, v0, 2, s28")
    k("v_mov_b32 v13, 0"); k("v_mov_b32 v14, 0x3f803f80")
    k("v_and_b32 v2, 44, v0"); k("v_cmp_eq_u32 vcc, 0, v2"); k("v_cndmask_b32 v14, 0, v14, vcc")
    k("ds_write_b32 v11, v13"); k("v_add_u32 v2, -1024, v11"); k("ds_write_b32 v2, v13"); k("v_add_u32 v2, -2048, v11"); k("ds_write_b32 v2, v13")
    k(f"v_lshlrev_b32 v2, 2, v0"); k(f"v_add_u32 v2, {PAIR}, v2"); k("ds_write_b32 v2, v13")
    k("v_add_u32 v2, -4096, v11"); k("ds_write_b32 v2, v14"); k("ds_write_b32 v2, v14 offset:1024")
    k("s_sub_u32 s25, s24, 8")
    k("s_mov_b32 s60, 0x7fffffff")
    k("s_and_b32 s27, s2, 7"); k("s_lshr_b32 s62, s2, 5")
    k("s_lshl_b32 s52, s62, 1"); k("s_lshr_b32 s29, s27, 2"); k("s_add_u32 s52, s52, s29")
    k("s_and_b32 s26, s27, 3"); k("s_lshl_b32 s26, s26, 2"); k("s_bfe_u32 s29, s2, 0x20003"); k("s_add_u32 s26, s26, s29")
    k("s_lshl_b32 s29, s29, 1"); k("s_add_u32 s62, s62, s29"); k("s_and_b32 s62, s62, 7")
    if not OPT("UROT", 0): k("s_mov_b32 s62, 0")
    k("s_lshl_b32 s30, s52, 2"); k("s_add_u32 s30, s30, s25")
    k("s_mov_b32 s28, 4096")
    for i in range(7):
        k(f"v_add_u32 v2, {64*i}, v0")
        k("v_mul_u32_u24 v3, 4682, v2"); k("v_lshrrev_b32 v3, 16, v3")
        k(f"v_mul_u32_u24 v3, {3584 - 224}, v3"); k(f"v_add3_u32 v{DV+i}, v1, v3, {'0' if i < 4 else 's28'}")
    k("s_and_b32 s31, s25, 1"); k("s_mul_i32 s63, s31, 114688"); k("s_mul_i32 s33, s26, 224"); k("s_add_u32 s63, s63, s33")
    k("s_mul_i32 s33, s31, 7168"); k("s_lshr_b32 s34, s25, 1"); k(f"s_mul_i32 s34, s34, {UP_W3OFF}"); k("s_add_u32 s33, s33, s34"); k(f"s_add_u32 s33, s33, {GB}")
    k("s_lshl_b32 s64, s30, 15"); k(f"s_add_u32 s64, s64, {WS_XN}")
    k("s_mul_i32 s32, s62, 229376"); k("s_add_u32 s32, s32, s63")
    k("s_lshl_b32 s35, s62, 12"); k("s_add_u32 s35, s35, s64")
    k("s_mov_b32 s36, s33")
    k("s_waitcnt lgkmcnt(0)")
    k("s_cmp_lt_u32 s25, 2"); k("s_cselect_b32 s10, s4, s6"); k("s_cselect_b32 s11, s5, s7")
    srd(k, 12, 10, 512 * 3584); srd(k, 20, 8, WS_SIZE); load_tag(k)
    def dma():
        out = ["s_mov_b32 m0, s36", "s_nop 0"]
        for i in range(7):
            if i == 4: out += ["s_add_u32 m0, s36, 4096", "s_nop 0"]
            out.append(f"buffer_load_dwordx4 v{DV+i}, s[12:15], s32 offen offset:{(i&3)*1024} lds")
        return out
    PF = OPT("PF2", 1)
    if PF:
        srd(k, 16, 48, 1792 * 1024)
        k("v_lshrrev_b32 v15, 3, v0"); k("v_lshlrev_b32 v15, 10, v15"); k("v_and_b32 v2, 7, v0"); k("v_lshl_add_u32 v15, v2, 4, v15")
        k("s_lshr_b32 s61, s2, 5"); k("s_lshl_b32 s61, s61, 2"); k("s_add_u32 s61, s61, s25"); k(f"s_mul_i32 s61, s61, {56*1024}")
        k("s_and_b32 s28, s26, 7"); k("s_lshl_b32 s28, s28, 7"); k("s_add_u32 s61, s61, s28")
    k("v_lshrrev_b32 v2, 5, v0"); k("v_lshlrev_b32 v2, 3, v2"); k("v_bfe_u32 v3, v0, 2, 2"); k("v_add_u32 v2, v2, v3")
    k("v_mul_u32_u24 v2, 224, v2"); k("v_bfe_u32 v3, v0, 4, 1"); k(f"v_mul_u32_u24 v3, {UP_W3OFF}, v3"); k("v_add_u32 v2, v2, v3")
    k("v_and_b32 v3, 3, v0"); k("v_lshl_add_u32 v8, v3, 3, v2"); k(f"v_add_u32 v8, {GB}, v8")
    k("v_and_b32 v12, 3, v0"); k("v_lshlrev_b32 v12, 8, v12"); k("v_lshl_add_u32 v12, v0, 2, v12"); k(f"v_add_u32 v12, {PROG + 2048}, v12")
    for r in range(112): k(f"v_mov_b32 v{ACC+r}, 0")
    k("v_mov_b32 v9, v8"); k(f"v_add_u32 v10, {UP_SLOT}, v8")
    k(f"s_mov_b32 s37, {2*UP_SLOT}")
    k("s_mov_b32 s39, 1"); k("v_mov_b32 v13, 1")
    k(f"s_mul_i32 s45, s52, {FSTR}"); k(f"s_add_u32 s45, s45, {XFLAG}"); k("v_lshlrev_b32 v3, 7, v0"); k(f"v_mov_b32 v2, {RELAY+4}")
    NPF = OPT("NPF", 4)
    if OPT("X_EARLY2"):
        EB = OPT("EB", 7)
        for i in range(9):
            if i == 8: k("s_waitcnt vmcnt(0)"); k("ds_write_b32 v11, v13")
            k("s_barrier")
            if i == OPT("PFAT", 5) and NPF:
                k("s_lshr_b32 s28, s2, 3"); k("s_lshl_b32 s28, s28, 1"); k("s_add_u32 s28, s28, s31"); k(f"s_mul_i32 s28, s28, {NPF*3584}")
                k("s_and_b32 s29, s27, 3"); k("s_mul_i32 s29, s29, 896"); k("s_add_u32 s28, s28, s29")
                for j in range(NPF):
                    k("buffer_load_dwordx4 v[4:7], v1, s[12:15], s28 offen"); k("s_add_u32 s28, s28, 3584")
            if i == EB - 1:
                for s in range(4): k(f"buffer_load_dwordx4 {vr(XF+4*s,4)}, v1, s[20:23], s35 offen offset:{s*1024} sc1")
                for x in dma(): k(x)
                k("s_add_u32 s62, s62, 1"); k("s_and_b32 s62, s62, 7"); k("s_mul_i32 s32, s62, 229376"); k("s_add_u32 s32, s32, s63")
                k(f"s_add_u32 s36, s33, {UP_SLOT}")
                for x in dma(): k(x)
        k.stamp()
    else:
        for i in range(9):
            k("s_barrier")
            if i == OPT("PFAT", 5) and NPF:
                k("s_lshr_b32 s28, s2, 3"); k("s_lshl_b32 s28, s28, 1"); k("s_add_u32 s28, s28, s31"); k(f"s_mul_i32 s28, s28, {NPF*3584}")
                k("s_and_b32 s29, s27, 3"); k("s_mul_i32 s29, s29, 896"); k("s_add_u32 s28, s28, s29")
                for j in range(NPF):
                    k("buffer_load_dwordx4 v[4:7], v1, s[12:15], s28 offen"); k("s_add_u32 s28, s28, 3584")
        k.stamp()
        if OPT("WDELAY", 1):
            k.label("UW_REL")
            k("s_sleep 2"); k("ds_read_b32 v4, v2 offset:4"); k("s_waitcnt lgkmcnt(0)"); k("v_cmp_eq_u32 vcc, 8, v4"); k("s_cmp_eq_u64 vcc, -1"); k("s_cbranch_scc0 UW_REL")
        k("s_setprio 3")
        for x in dma(): k(x)
        k("s_add_u32 s62, s62, 1"); k("s_and_b32 s62, s62, 7"); k("s_mul_i32 s32, s62, 229376"); k("s_add_u32 s32, s32, s63")
        k(f"s_add_u32 s36, s33, {UP_SLOT}")
        for x in dma(): k(x)
        k("s_waitcnt vmcnt(7)")
        k("ds_write_b32 v11, v13")
        if OPT("X_EARLY"): k("s_waitcnt vmcnt(0)"); k("s_branch UX_DONE")
        k("s_cmp_lg_u32 s25, 0"); k("s_cbranch_scc1 UX_REL")
        gpoll(k, "UX", "s45", OPT("XSLEEP", 6))
        k("v_mov_b32 v4, 1"); k("ds_write_b32 v2, v4"); k("s_branch UX_DONE")
        k.label("UX_REL")
        k("s_sleep 2"); k("ds_read_b32 v4, v2"); k("s_waitcnt lgkmcnt(0)"); k("v_cmp_eq_u32 vcc, 1, v4"); k("s_cmp_eq_u64 vcc, -1"); k("s_cbranch_scc0 UX_REL")
        k("s_waitcnt vmcnt(0)")
        k.label("UX_DONE")
        for s in range(4): k(f"buffer_load_dwordx4 {vr(XF+4*s,4)}, v1, s[20:23], s35 offen offset:{s*1024} sc1")
    if PF: k("buffer_load_dwordx4 v[4:7], v15, s[16:19], s61 offen")
    k("s_lshl_b32 s35, s62, 12"); k("s_add_u32 s35, s35, s64")
    k("s_add_u32 s62, s62, 1"); k("s_and_b32 s62, s62, 7"); k("s_mul_i32 s32, s62, 229376"); k("s_add_u32 s32, s32, s63")
    k("ds_read_b32 v14, v12"); k("s_waitcnt lgkmcnt(0)")
    tails.append(softcheck(k, "UB", "s39", "v14", "v12"))
    k("v_mov_b32 v13, 2")
    k(f"s_setprio {GP}")
    k(f"s_waitcnt vmcnt({1+PF})")
    k.stamp()
    def rd(m, areg):
        s, j = divmod(m, 7); o = s*3584 + j*32; d = WF + 4*(m & 3)
        return [f"ds_read_b64_tr_b16 {vr(d,2)}, {areg} offset:{o}", f"ds_read_b64_tr_b16 {vr(d+2,2)}, {areg} offset:{o+896}"]
    for m in range(4):
        for x in rd(m, "v9"): k(x)
    k.label("UP_LOOP")
    extra = []
    for m in range(28):
        s, j = divmod(m, 7)
        if j == 0: k(f"s_waitcnt vmcnt({(10 if s < 3 else 3) + PF})")
        cnt = 6
        if m in (17, 18, 19, 20): cnt = 7
        if m in (22, 23): cnt = 7
        if m == 24:
            k("s_waitcnt lgkmcnt(4)")
            k("s_add_u32 s39, s39, 1")
            k("s_setprio 3")
            tails.append(softcheck(k, "UP", "s39", "v14", "v12"))
            k("v_add_u32 v13, 1, v13")
            k(f"s_setprio {GP}")
            k("s_add_u32 s36, s33, s37")
            extra = dma()
        else:
            k(f"s_waitcnt lgkmcnt({cnt})")
        a = vr(ACC + 16*j, 16)
        k(f"{MF} {a}, {vr(WF+4*(m&3),4)}, {vr(XF+4*s,4)}, {a}")
        for x in (rd(m+4, "v9") if m < 24 else rd(m+4-28, "v10")): k(x)
        if m == 16:
            k(f"s_waitcnt vmcnt({3+PF})"); k("ds_write_b32 v11, v13")
        if m == 21: k("ds_read_b32 v14, v12")
        if m >= 24:
            for x in extra[[0,4,6,9,11][m-24]:[0,4,6,9,11][m-23]]: k(x)
        if j == 6: k(f"buffer_load_dwordx4 {vr(XF+4*s,4)}, v1, s[20:23], s35 offen offset:{s*1024} sc1")
    if PF:
        k("s_add_u32 s61, s61, 8192"); k("s_cmp_lt_u32 s39, 8"); k("s_cselect_b32 s61, s61, s60")
        k("buffer_load_dwordx4 v[4:7], v15, s[16:19], s61 offen")
    k("s_setprio 3")
    k("v_mov_b32 v9, v10"); k("v_add_u32 v10, s37, v8")
    k(f"s_setprio {GP}")
    k("s_lshl_b32 s35, s62, 12"); k("s_add_u32 s35, s35, s64")
    k("s_add_u32 s62, s62, 1"); k("s_and_b32 s62, s62, 7"); k("s_mul_i32 s32, s62, 229376"); k("s_add_u32 s32, s32, s63")
    k("s_cmp_lt_u32 s39, 7"); k("s_cselect_b32 s32, s32, s60")
    k("s_cmp_lt_u32 s39, 8"); k("s_cselect_b32 s35, s35, s60")
    k(f"s_add_u32 s37, s37, {UP_SLOT}"); k(f"s_cmp_eq_u32 s37, {3*UP_SLOT}"); k("s_cselect_b32 s37, 0, s37")
    k("s_cmp_lt_u32 s39, 9"); k("s_cbranch_scc1 UP_LOOP")
    k.stamp()
    k("s_setprio 3")
    k("s_mul_i32 s40, s30, 112"); k("s_lshr_b32 s41, s26, 2"); k("s_mul_i32 s41, s41, 28"); k("s_add_u32 s40, s40, s41"); k("s_and_b32 s41, s26, 3"); k("s_add_u32 s40, s40, s41")
    k("s_lshl_b32 s40, s40, 10"); k(f"s_add_u32 s40, s40, {WS_H}")
    k("s_waitcnt vmcnt(0) lgkmcnt(0)")
    k("ds_write_b32 v11, v13")
    k("ds_read_b32 v14, v12")
    ACD = 48; TF = 112; WD = [16, 24]; EP = 144
    k("s_lshl_b32 s53, s52, 1"); k("s_lshr_b32 s28, s26, 3"); k("s_add_u32 s53, s53, s28"); k("s_and_b32 s54, s26, 7")
    k("s_lshr_b32 s63, s25, 1"); k("s_and_b32 s64, s25, 1")
    srd(k, 12, 48, 1792 * 1024); srd(k, 16, 50, 2048 * 1024)
    k("v_lshrrev_b32 v2, 3, v0"); k("v_lshlrev_b32 v2, 10, v2")
    k("v_bfe_u32 v3, v0, 2, 1"); k("v_bfe_u32 v4, v0, 4, 1"); k("v_xor_b32 v3, v3, v4"); k("v_lshl_add_u32 v2, v3, 6, v2")
    k("v_and_b32 v3, 3, v0"); k("v_lshl_add_u32 v2, v3, 4, v2")
    k(f"v_add_u32 v15, {8192-1024}, v2")
    k("s_lshl_b32 s32, s25, 14"); k(f"s_add_u32 s32, s32, {GB}")
    k("v_lshrrev_b32 v8, 5, v0"); k("v_lshlrev_b32 v3, 2, v8"); k("v_bfe_u32 v4, v0, 2, 2"); k("v_add_u32 v3, v3, v4"); k("v_lshlrev_b32 v3, 7, v3")
    k("v_bfe_u32 v4, v0, 3, 1"); k("v_xor_b32 v4, s64, v4"); k("v_lshl_add_u32 v3, v4, 6, v3")
    k("v_bfe_u32 v4, v0, 4, 1"); k("v_lshl_add_u32 v3, v4, 5, v3"); k("v_and_b32 v4, 1, v0"); k("v_lshl_add_u32 v3, v4, 4, v3")
    k("v_bfe_u32 v4, v0, 1, 1"); k("v_lshl_add_u32 v3, v4, 3, v3")
    k("v_xor_b32 v4, 64, v3"); k("v_add_u32 v5, s32, v3"); k("v_add_u32 v6, s32, v4")
    k("v_add_u32 v9, 8192, v5"); k("v_add_u32 v10, 8192, v6")
    k(f"s_mul_i32 s33, s25, {28*16384}"); k("s_lshl_b32 s55, s54, 7"); k("s_add_u32 s33, s33, s55")
    k(f"s_mov_b32 s65, {7*16384}"); k(f"s_mov_b32 s66, {(-20*16384) & 0xffffffff}")
    k(f"s_mul_i32 s34, s53, {2*112*1024}"); k(f"s_mul_i32 s35, s25, {28*1024}"); k("s_add_u32 s34, s34, s35"); k(f"s_add_u32 s34, s34, {WS_H}")
    k(f"s_mul_i32 s28, s63, {112*1024}"); k(f"s_add_u32 s35, s34, {112*1024}"); k("s_sub_u32 s35, s35, s28"); k("s_add_u32 s34, s34, s28")
    k("s_lshr_b32 s38, s30, 1"); k("s_lshl_b32 s38, s38, 10"); k("s_lshr_b32 s28, s26, 2"); k("s_lshl_b32 s28, s28, 8"); k("s_add_u32 s38, s38, s28")
    k("s_and_b32 s28, s26, 3"); k("s_lshl_b32 s28, s28, 3"); k("s_add_u32 s38, s38, s28"); k("s_and_b32 s28, s30, 1"); k("s_lshl_b32 s28, s28, 2")
    k("s_add_u32 s38, s38, s28"); k(f"s_add_u32 s38, s38, {HFLAG}")
    k("s_lshl_b32 s45, s53, 10"); k("s_lshl_b32 s28, s25, 8"); k("s_add_u32 s45, s45, s28"); k(f"s_add_u32 s45, s45, {HFLAG}")
    k("v_and_b32 v3, 7, v0"); k("v_lshlrev_b32 v3, 2, v3"); k("v_mov_b32 v7, 0"); k(f"v_mov_b32 v167, {TAG}")
    k("s_waitcnt lgkmcnt(0)"); k("s_mov_b32 s39, 10")
    tails.append(softcheck(k, "U9", "s39", "v14", "v12"))
    def wdma(n, slot, base="s36"):
        return [f"s_add_u32 m0, {base}, {slot*2048}", "s_nop 0",
                "buffer_load_dwordx4 v2, s[12:15], s33 offen lds",
                "buffer_load_dwordx4 v15, s[12:15], s33 offen offset:1024 lds",
                f"s_add_u32 s33, s33, {'s66' if n % 4 == 3 else 's65'}"]
    k("s_mov_b32 s36, s32")
    NL2E = lit(-1.4426950408889634)
    def flag(off):
        k("s_mov_b64 exec, 1"); k(f"buffer_store_dword v167, v7, s[20:23], s38 offen offset:{off} sc1"); k("s_mov_b64 exec, -1")
    for j in range(7):
        a = ACC + 16*j; t = 16 + (j & 1)*12
        for r in range(8): k(f"v_mul_f32 v{t+r}, {NL2E}, v{a+r}")
        for r in range(8): k(f"v_exp_f32 v{t+r}, v{t+r}")
        for r in range(0, 8, 2): k(f"v_pk_mul_f32 {vr(a+r,2)}, {vr(a+r,2)}, {vr(a+8+r,2)}")
        for r in range(0, 8, 2): k(f"v_pk_add_f32 {vr(t+r,2)}, {vr(t+r,2)}, 1.0 op_sel_hi:[1,0]")
        for r in range(8): k(f"v_rcp_f32 v{t+r}, v{t+r}")
        for r in range(0, 8, 2): k(f"v_pk_mul_f32 {vr(a+r,2)}, {vr(a+r,2)}, {vr(t+r,2)}")
        for r in range(4): k(f"v_cvt_pk_bf16_f32 v{t+8+r}, v{a+2*r}, v{a+2*r+1}")
        if j == 6:
            k("s_waitcnt vmcnt(8)"); flag(0)
        k(f"buffer_store_dwordx4 {vr(t+8,4)}, v1, s[20:23], s40 offen sc1")
        k("s_add_u32 s40, s40, 4096")
        for x in wdma(j, j): k(x)
    k.stamp()
    k(f"buffer_load_dword v4, v3, s[20:23], s45 offen sc1")
    for r in range(64): k(f"v_mov_b32 v{ACD+r}, 0")
    k("v_and_b32 v152, 31, v0"); k("v_lshlrev_b32 v152, 10, v152"); k("v_lshl_add_u32 v152, v8, 4, v152")
    k("s_lshl_b32 s40, s53, 16"); k("s_lshl_b32 s41, s63, 15"); k("s_add_u32 s40, s40, s41"); k("s_add_u32 s40, s40, s55")
    k("s_lshl_b32 s41, s64, 6"); k("s_add_u32 s40, s40, s41")
    k("s_waitcnt vmcnt(3)"); flag(32)
    k("s_waitcnt vmcnt(1)")
    k(f"v_cmp_eq_u32 vcc, {TAG}, v4"); k("s_cmp_eq_u64 vcc, -1"); k("s_cbranch_scc1 DH_GO")
    gpoll(k, "DH", "s45", 4)
    k.stamp()
    def tload(s):
        return [f"buffer_load_dwordx4 {vr(TF+8*s,4)}, v1, s[20:23], s34 offen offset:{s*1024} sc1",
                f"buffer_load_dwordx4 {vr(TF+8*s+4,4)}, v1, s[20:23], s35 offen offset:{s*1024} sc1"]
    for s in range(4):
        for x in tload(s): k(x)
    def wreads(slot, buf, other):
        a0, a1 = ("v9", "v10") if other else ("v5", "v6")
        o = slot * 2048
        return [f"ds_read_b64_tr_b16 {vr(WD[buf],2)}, {a0} offset:{o}", f"ds_read_b64_tr_b16 {vr(WD[buf]+2,2)}, {a0} offset:{o+1024}",
                f"ds_read_b64_tr_b16 {vr(WD[buf]+4,2)}, {a1} offset:{o}", f"ds_read_b64_tr_b16 {vr(WD[buf]+6,2)}, {a1} offset:{o+1024}"]
    def mfl(buf, tf):
        out = []
        for a in range(2):
            for b in range(2):
                c = vr(ACD + (a*2+b)*16, 16)
                out.append(f"{MF} {c}, {vr(WD[buf]+4*b,4)}, {vr(tf+4*a,4)}, {c}")
        return out
    for x in wreads(0, 0, False): k(x)
    k("s_mov_b32 s42, 0"); k("s_mov_b32 s43, 0x7fffffff")
    k("s_add_u32 s44, s32, 8192"); k("s_add_u32 s45, s45, 32")
    k("s_lshl_b32 s67, s25, 17"); k("s_add_u32 s67, s67, s55"); k("s_and_b32 s57, s57, 0xffff")
    k(f"s_setprio {GP2}")
    k("s_waitcnt vmcnt(0)")
    for i in range(2): k(f"buffer_load_dwordx4 {vr(EP+4*i,4)}, v152, s[16:19], s40 offen offset:{32*i}")
    k.label("DN_LOOP")
    k("s_cmp_lg_u32 s42, 12"); k("s_cbranch_scc1 DB_GO")
    gpoll(k, "DB", "s45", 4)
    k("s_add_u32 s34, s34, 4096"); k("s_add_u32 s35, s35, 4096")
    k("s_cmp_lt_u32 s42, 24"); k("s_cselect_b32 s34, s34, s43"); k("s_cselect_b32 s35, s35, s43")
    for s in range(4):
        k("s_waitcnt vmcnt(14) lgkmcnt(0)")
        for x in interleave(mfl(s & 1, TF + 8*s), wreads((s+1) & 3, (s+1) & 1, s == 3)): k(x)
        for x in tload(s): k(x)
        if s == 1:
            k("s_cmp_eq_u32 s42, 20")
            k("s_cselect_b32 s12, s56, s12"); k("s_cselect_b32 s13, s57, s13"); k(f"s_cselect_b32 s14, {512*1024}, s14")
            k("s_cselect_b32 s33, s67, s33"); k("s_cselect_b32 s65, 16384, s65"); k("s_cselect_b32 s66, 16384, s66")
        for x in (wdma(s+7, 3, "s44") if s == 0 else wdma(s+7, s-1)): k(x)
    k("s_setprio 3")
    k("v_swap_b32 v5, v9"); k("v_swap_b32 v6, v10")
    k(f"s_setprio {GP2}")
    k("s_mov_b32 s28, s36"); k("s_mov_b32 s36, s44"); k("s_mov_b32 s44, s28")
    k("s_add_u32 s42, s42, 4"); k("s_cmp_lt_u32 s42, 28"); k("s_cbranch_scc1 DN_LOOP")
    k.stamp()
    k("s_setprio 3")
    for x in wdma(0, 3, "s44"): k(x)
    srd(k, 16, 58, 2048 * 1024)
    for r in range(8):
        k(f"v_lshlrev_b32 v{32+2*r}, 16, v{EP+r}"); k(f"v_and_b32 v{33+2*r}, 0xffff0000, v{EP+r}")
    k("v_mov_b32 v160, v152")
    k(f"s_lshl_b32 s34, s53, 16"); k("s_lshl_b32 s35, s25, 13"); k("s_add_u32 s34, s34, s35"); k(f"s_add_u32 s34, s34, {WS_O}")
    k("s_lshl_b32 s28, s63, 15"); k("s_add_u32 s35, s34, 32768"); k("s_sub_u32 s35, s35, s28"); k("s_add_u32 s34, s34, s28")
    k("s_add_u32 s46, s34, 4096"); k("s_add_u32 s47, s35, 4096")
    k("s_lshl_b32 s45, s53, 8"); k("s_lshl_b32 s28, s25, 5"); k("s_add_u32 s45, s45, s28"); k(f"s_add_u32 s45, s45, {OFLAG}")
    for r in range(16): k(f"v_add_f32 v{ACD+r}, v{ACD+r}, v{32+r}")
    k("v_add_u32 v161, s32, v1")
    for t in (1, 2, 3):
        k(f"s_xor_b32 s28, s25, {t}"); k("s_lshl_b32 s28, s28, 14"); k(f"s_add_u32 s28, s28, {GB + (t-1)*4096}"); k(f"v_add_u32 v{161+t}, s28, v1")
    k("v_add_u32 v13, 1, v13")
    OG = [[112, 120, 128, 136], [32, 40, 144, 152]]
    k("s_mov_b32 s44, 0x11"); k("s_mov_b32 s28, 0")
    k("s_waitcnt lgkmcnt(0)")
    k.label("WO_POLL")
    k("buffer_load_dword v4, v3, s[20:23], s45 offen sc1")
    k("s_waitcnt vmcnt(0)")
    k(f"v_cmp_eq_u32 vcc, {TAG}, v4")
    k("s_add_u32 s28, s28, 1"); k("s_cmp_lt_u32 s28, 0x100000"); k("s_cselect_b32 s42, vcc_lo, -1")
    k("s_lshr_b32 s29, s42, 1"); k("s_and_b32 s42, s42, s29"); k("s_lshr_b32 s29, s42, 2"); k("s_and_b32 s42, s42, s29")
    k("s_and_b32 s42, s42, s44")
    k("s_cbranch_scc1 WO_GO")
    k(f"s_sleep {OPT('WSLEEP', 3)}"); k("s_branch WO_POLL")
    k.label("WO_GO")
    if OPT("WARM", 1) == 1: k.hops_begin("WB")
    k("s_andn2_b32 s44, s44, s42")
    for g in range(2):
        k(f"s_bitcmp1_b32 s42, {4*g}"); k(f"s_cbranch_scc0 WO_L{g}")
        sa, sb = ("s34", "s35") if g == 0 else ("s46", "s47")
        for h in range(4):
            k(f"buffer_load_dwordx4 {vr(OG[g][h],4)}, v1, s[20:23], {sa} offen offset:{h*1024} sc1")
            k(f"buffer_load_dwordx4 {vr(OG[g][h]+4,4)}, v1, s[20:23], {sb} offen offset:{h*1024} sc1")
        k.label(f"WO_L{g}")
    for g in range(2):
        k(f"s_bitcmp1_b32 s42, {4*g}"); k(f"s_cbranch_scc0 WO_C{g}")
        for x in wreads(0, 0, g == 1): k(x)
        if g == 0:
            k("s_bitcmp1_b32 s42, 4"); k("s_cbranch_scc1 WO_W8"); k("s_waitcnt vmcnt(0)"); k.label("WO_W8"); k("s_waitcnt vmcnt(8)")
        else: k("s_waitcnt vmcnt(0)")
        for h in range(4):
            k("s_waitcnt lgkmcnt(0)")
            for x in interleave(mfl(h & 1, OG[g][h]), wreads(h+1, (h+1) & 1, g == 1) if h < 3 else []): k(x)
        k.label(f"WO_C{g}")
    if OPT("WARM", 1) == 1: k.hops_end("AQ_WR"); k.hops_begin("WC")
    k("s_cmp_lg_u32 s44, 0"); k("s_cbranch_scc1 WO_POLL")
    k.stamp()
    k("s_nop 5")
    for t in (1, 2, 3):
        for q in range(4): k(f"ds_write_b128 v161, {vr(ACD + t*16 + 4*q, 4)} offset:{(t-1)*4096 + q*1024}")
    k("ds_write_b32 v11, v13")
    k("ds_read_b32 v14, v12"); k("s_waitcnt lgkmcnt(0)"); k("s_mov_b32 s39, 11")
    tails.append(softcheck(k, "DC", "s39", "v14", "v12"))
    k.stamp()
    for q in range(4):
        for t in (1, 2, 3): k(f"ds_read_b128 {vr(ACD + t*16 + 4*q, 4)}, v{161+t} offset:{q*1024}")
    for q in range(4):
        k(f"s_waitcnt lgkmcnt({9 - 3*q})")
        for r in range(4*q, 4*q+4): k(f"v_add_f32 v{ACD+16+r}, v{ACD+16+r}, v{ACD+32+r}"); k(f"v_add_f32 v{ACD+r}, v{ACD+r}, v{ACD+48+r}")
        for r in range(4*q, 4*q+4): k(f"v_add_f32 v{ACD+r}, v{ACD+r}, v{ACD+16+r}")
        for r in range(2*q, 2*q+2): k(f"v_cvt_pk_bf16_f32 v{16+r}, v{ACD+2*r}, v{ACD+2*r+1}")
        if q & 1: k(f"buffer_store_dwordx4 {vr(16+4*(q>>1),4)}, v160, s[16:19], s40 offen offset:{32*(q>>1)}")
    if OPT("WARM", 1) == 1: k.hops_end("AQ_WR")
    k("s_add_u32 s28, s2, s25"); k("s_cmp_lg_u32 s28, 0"); k("s_cbranch_scc1 G_NOEP")
    k(f"v_mov_b32 v2, 0"); k(f"v_mov_b32 v3, {TAG}"); k(f"s_mov_b32 s28, {EPOCH}")
    k("s_mov_b64 exec, 1"); k("buffer_store_dword v3, v2, s[20:23], s28 offen sc1"); k("s_mov_b64 exec, -1")
    k.label("G_NOEP")
    finish(k, 2)
    for t in tails: t()

def gen_mega():
    k = Kern(NAME, 256, 768, LDS_TOTAL, 168, 72)
    k("s_cmp_ge_u32 s2, 256"); k("s_cbranch_scc1 M_END")
    k.stamp(True); k.stamp()
    k("s_load_dwordx2 s[8:9], s[0:1], 72")
    k("s_load_dwordx4 s[4:7], s[0:1], 0")
    k("v_lshrrev_b32 v1, 6, v0"); k("v_and_b32 v0, 63, v0"); k("v_readfirstlane_b32 s24, v1")
    k("s_cmp_ge_u32 s24, 8"); k("s_cbranch_scc1 M_GEMM")
    qkv_part(k)
    attn_part(k)
    k.label("M_GEMM")
    if Kern.DIAG: k.nst = 2
    k("s_waitcnt lgkmcnt(0)")
    gemm_part(k)
    k.label("M_END")
    k("s_endpgm")
    return k
```

```python
import re

TRANS = ("v_exp_", "v_log_", "v_rcp_", "v_rsq_", "v_sqrt_", "v_sin_", "v_cos_")
_REG = re.compile(r"^(-|\|)?(abs\()?([vas])(\d+|\[(\d+):(\d+)\])\)?\|?$")


def regs_of(op):
    op = op.strip()
    if op in ("vcc", "exec"):
        return {(op, 0), (op, 1)}
    if op in ("vcc_lo", "exec_lo"):
        return {(op[:-3], 0)}
    if op in ("vcc_hi", "exec_hi"):
        return {(op[:-3], 1)}
    if op == "m0":
        return {("m0", 0)}
    m = _REG.match(op)
    if not m:
        return set()
    t = m.group(3)
    if m.group(5) is not None:
        return {(t, i) for i in range(int(m.group(5)), int(m.group(6)) + 1)}
    return {(t, int(m.group(4)))}


class Ins:
    __slots__ = ("text", "mn", "ops", "cls", "wr", "rd", "passes", "srcc", "ab", "ws", "label", "target", "data", "mods")

    def __init__(self, text):
        self.text = text
        self.label = None
        self.target = None
        self.wr = set(); self.rd = set(); self.srcc = set(); self.ab = set(); self.data = set()
        self.passes = 0
        self.ws = 1
        t = text.split(";")[0].strip()
        if t.endswith(":"):
            self.label = t[:-1]; self.cls = "label"; self.mn = ""; self.ws = 0; self.ops = []
            return
        if t.startswith(".") or not t:
            self.cls = "dir"; self.mn = ""; self.ws = 0; self.ops = []
            return
        parts = t.split(None, 1)
        mn = parts[0]; self.mn = mn
        rest = parts[1] if len(parts) > 1 else ""
        ops = []; cur = ""; depth = 0
        for ch in rest:
            if ch in "[(": depth += 1
            if ch in "])": depth -= 1
            if ch == "," and depth == 0:
                ops.append(cur.strip()); cur = ""
            else:
                cur += ch
        if cur.strip(): ops.append(cur.strip())
        mods = ""
        if ops:
            sp = ops[-1].split(None, 1)
            ops[-1] = sp[0]
            if len(sp) > 1: mods = sp[1]
        self.ops = ops; self.mods = mods
        R = [regs_of(o) for o in ops]
        if mn.startswith("v_mfma"):
            self.cls = "mfma"
            self.passes = 8 if "32x32x16" in mn else 4 if "16x16x32" in mn else 16
            self.wr = R[0]; self.ab = R[1] | R[2]; self.srcc = R[3]; self.rd = self.ab | self.srcc
        elif mn.startswith("v_"):
            self.cls = "trans" if mn.startswith(TRANS) else "valu"
            if mn.startswith("v_cmp"):
                self.wr = R[0]; self.rd = set().union(*R[1:])
                if mn.startswith("v_cmpx"): self.wr = self.wr | regs_of("exec")
            elif "permlane" in mn and "swap" in mn:
                self.wr = R[0] | R[1]; self.rd = R[0] | R[1]
            elif mn.startswith(("v_add_co", "v_sub_co", "v_addc_co", "v_subb_co", "v_subrev_co", "v_mad_u64", "v_div_scale")):
                self.wr = R[0] | R[1]; self.rd = set().union(*R[2:])
            else:
                self.wr = R[0]; self.rd = set().union(*R[1:]) if len(R) > 1 else set()
                if mn.startswith(("v_fmac", "v_dot2c", "v_mac", "v_pk_fmac", "v_writelane")) or "UNUSED_PRESERVE" in mods:
                    self.rd = self.rd | R[0]
                if mn.startswith("v_cndmask") and len(ops) == 3: self.rd |= regs_of("vcc")
        elif mn.startswith("ds_"):
            self.cls = "ds"
            if mn.startswith(("ds_read", "ds_bpermute", "ds_permute", "ds_swizzle")) or "_rtn" in mn:
                self.wr = R[0]; self.rd = set().union(*R[1:])
            else:
                self.rd = set().union(*R)
        elif mn.startswith(("buffer_", "global_")):
            self.cls = "vmem"
            islds = (" lds" in " " + mods) or "load_lds" in mn
            if mn in ("buffer_inv", "buffer_wbl2"):
                pass
            elif "load" in mn and not islds:
                self.wr = R[0]; self.rd = set().union(*R[1:])
            elif "load" in mn:
                self.rd = set().union(*R) | {("m0", 0)}; self.cls = "dma"
            else:
                self.rd = set().union(*R)
                d = R[0] if mn.startswith("buffer_") else R[1]
                if "x4" in mn or "x3" in mn: self.data = d
                if "atomic" in mn and "sc0" in mods:
                    self.wr = R[0]
        elif mn.startswith("s_"):
            self.cls = "salu"
            if mn == "s_nop":
                self.ws = int(ops[0], 0) + 1
            elif mn.startswith(("s_cbranch", "s_branch")):
                self.target = ops[0]; self.cls = "branch"
            elif mn.startswith(("s_cmp", "s_waitcnt", "s_barrier", "s_setprio", "s_sleep", "s_endpgm", "s_bitcmp")):
                self.rd = set().union(*R) if R else set()
            elif mn.startswith(("s_load", "s_buffer_load", "s_memtime", "s_memrealtime")):
                self.cls = "smem"; self.wr = R[0]; self.rd = set().union(*R[1:]) if len(R) > 1 else set()
            else:
                self.wr = R[0]; self.rd = set().union(*R[1:]) if len(R) > 1 else set()
                if "saveexec" in mn: self.wr = self.wr | regs_of("exec")
        else:
            raise ValueError("unknown instruction: " + text)


def isv(r): return r[0] in ("v", "a")
def iss(r): return r[0] in ("s", "vcc")


def need(prev, cur):
    n = 0
    pv = prev.cls in ("valu", "trans")
    cv = cur.cls in ("valu", "trans")
    if pv:
        wv = {r for r in prev.wr if isv(r)}
        wsg = {r for r in prev.wr if iss(r)}
        if cur.cls == "mfma" and wv & cur.rd: n = max(n, 2)
        if prev.cls == "trans" and cur.cls == "valu" and wv & cur.rd: n = max(n, 1)
        if prev.cls == "trans" and cur.cls in ("vmem", "ds", "dma") and wv & cur.rd: n = max(n, 1)
        if cur.cls in ("vmem", "dma") and wsg & cur.rd: n = max(n, 5)
        if cv and wsg & cur.rd:
            n = max(n, 4 if cur.mn.startswith(("v_readlane", "v_writelane")) else 2)
        if cur.mn.startswith(("v_readfirstlane", "v_readlane")) and wv & cur.rd: n = max(n, 1)
        if cv and ("permlane" in cur.mn or "dpp" in cur.mn or "row_" in cur.mods or "quad_perm" in cur.mods) and wv & cur.rd: n = max(n, 2)
        if prev.mn.startswith("v_dot") and cur.cls != "salu" and cur.mn != prev.mn and wv & (cur.rd | cur.wr): n = max(n, 3)
        if prev.mn.startswith("v_dot") and cur.mn == prev.mn and wv & (cur.rd - cur.wr): n = max(n, 3)
        if ("sdwa" in prev.mn or "op_sel:" in prev.mods) and cv and wv & (cur.rd | cur.wr): n = max(n, 1)
        if ("exec", 0) in prev.wr or ("exec", 1) in prev.wr:
            if cur.cls == "mfma": n = max(n, 4)
            if "permlane" in cur.mn or cur.mn.startswith(("v_readlane", "v_readfirstlane", "v_writelane")): n = max(n, 4)
            if "dpp" in cur.mn: n = max(n, 5)
        if cur.cls == "salu" and wsg & cur.rd: n = max(n, 1)
        if cur.cls == "branch" and "vcc" in cur.mn and ("vcc", 0) in prev.wr: n = max(n, 5)
    if prev.cls == "mfma":
        p = prev.passes
        big = {2: 5, 4: 8, 8: 12, 16: 20}[p]
        if cur.cls == "mfma":
            if prev.wr & cur.ab: n = max(n, big)
            if prev.wr & cur.srcc:
                if not (prev.wr == cur.srcc and prev.passes == cur.passes): n = max(n, {2: 4, 4: 6, 8: 10, 16: 18}[p])
                elif p == 2: n = max(n, 2)
            elif prev.wr & cur.wr:
                n = max(n, {2: 4, 4: 6, 8: 10, 16: 18}[p])
        elif cur.cls in ("valu", "trans", "vmem", "ds", "dma"):
            if prev.wr & (cur.rd | cur.wr): n = max(n, big)
            if cv and prev.srcc & cur.wr: n = max(n, {2: 1, 4: 3, 8: 7, 16: 15}[p])
    if prev.cls == "salu" and ("m0", 0) in prev.wr and cur.cls == "dma": n = max(n, 1)
    if prev.cls == "vmem" and prev.data and prev.data & cur.wr: n = max(n, 2 if cv else 1)
    return n


class Kern:
    def __init__(self, name, grid, block, lds, nvgpr, nsgpr=96, accum=None):
        self.name = name; self.grid = grid; self.block = block; self.lds = lds
        self.nvgpr = nvgpr; self.nsgpr0 = nsgpr; self.nsgpr = 102 if Kern.DIAG else nsgpr; self.accum = accum
        self.ins = []
        self._uid = 0

    def __call__(self, text):
        for line in text.split("\n"):
            line = line.strip()
            if line and not line.startswith(";"):
                ins = Ins(line)
                if self._hop is not None and ins.cls not in ("label", "dir"):
                    sz = 8 if (ins.cls in ("mfma", "ds", "vmem", "dma", "smem") or len(ins.ops) >= 4 or "0x" in line or ins.mn.startswith(("v_cvt_pk", "v_mul_lo", "v_cmp", "v_perm", "v_readlane"))
                               or "|" in line or any(o.lstrip("-").isdigit() and abs(int(o)) > 64 for o in ins.ops) or " -v" in line) else 4
                    if self._hopbytes + sz > 108:
                        self._emit_hop()
                    self._hopbytes += sz
                self.ins.append(ins)

    _hop = None
    def _emit_hop(self):
        n = self._hopn
        self.ins.append(Ins(f"HOP_{self._hop}_{n}:"))
        g = self._hopgrp
        self.ins.append(Ins(f"s_cbranch_execz {g[1] if g and (n + 1) % g[0] == 0 else 'HOP_%s_%d' % (self._hop, n + 1)}"))
        self._hopn += 1; self._hopbytes = 4
    def hops_begin(self, name, group=None):
        self._hop = name; self._hopn = 0; self._hopgrp = group; self._emit_hop()
    def hops_end(self, target):
        n = self._hopn
        self.ins.append(Ins(f"HOP_{self._hop}_{n}:"))
        self.ins.append(Ins(f"s_cbranch_execz {target}"))
        print("hops", self._hop, n + 1)
        self._hop = None
    def warm(self, name, ret):
        self("s_mov_b64 exec, 0"); self(f"s_branch HOP_{name}_0"); self.label(ret); self("s_mov_b64 exec, -1")

    def label(self, l): self.ins.append(Ins(l + ":"))

    DIAG = False
    def stamp(self, real=False):
        if not Kern.DIAG: return
        if not hasattr(self, "nst"): self.nst = 0
        b = self.nsgpr0 + 2 * self.nst
        if Kern.DIAG == "lite" and not real:
            self.nst += 1; return
        self("s_memrealtime s[%d:%d]" % (b, b + 1) if real else "s_memtime s[%d:%d]" % (b, b + 1))
        self("s_waitcnt lgkmcnt(0)")
        self.nst += 1
        assert b + 1 < 102

    def dump_stamps(self, kidx, wave_sgpr, vtmp, wsptr):
        if not Kern.DIAG: return
        a, d = vtmp, vtmp + 1
        self(f"s_lshl_b32 s101, s2, 4"); self(f"s_add_u32 s101, s101, s{wave_sgpr}"); self("s_lshl_b32 s101, s101, 7")
        self(f"s_add_u32 s101, s101, {(32 + kidx) << 20}")
        for i in range(self.nst):
            if Kern.DIAG == "lite" and i not in (0, self.nst - 1): continue
            if Kern.DIAG == "lite" and i:
                self(f"v_mov_b32 v{a}, s101"); self(f"v_mov_b32 v{d}, s{self.nsgpr0 + 2*i}")
                self(f"global_store_dword v{a}, v{d}, s[{wsptr}:{wsptr+1}] offset:4"); continue
            self(f"v_mov_b32 v{a}, s101"); self(f"v_mov_b32 v{d}, s{self.nsgpr0 + 2*i}")
            self(f"global_store_dword v{a}, v{d}, s[{wsptr}:{wsptr+1}] offset:{4*i}")

    def uid(self, p="L"):
        self._uid += 1
        return f"{p}_{self.name}_{self._uid}"

    def _scan_back(self, seq, idx, cur):
        dist = 0; miss = 0
        j = idx - 1
        while j >= 0 and dist < 20:
            p = seq[j]
            if p.cls == "branch" and p.mn == "s_branch": break
            if p.mn == "s_endpgm": break
            if p.cls not in ("label", "dir"):
                n = need(p, cur)
                if n > dist: miss = max(miss, n - dist)
                dist += p.ws
            j -= 1
        return miss

    def finalize(self):
        out = []
        nnop = 0
        for cur in self.ins:
            if cur.cls not in ("label", "dir"):
                miss = self._scan_back(out, len(out), cur)
                while miss > 0:
                    k = min(miss, 16)
                    out.append(Ins(f"s_nop {k-1}")); miss -= k; nnop += 1
            out.append(cur)
        labels = {x.label: i for i, x in enumerate(out) if x.cls == "label"}
        for i, b in enumerate(out):
            if b.cls == "branch" and b.target in labels and not b.target.startswith("HOP_") and b.mn != "s_cbranch_execz":
                t = labels[b.target]
                pre = out[max(0, i - 24):i] + [Ins("s_nop 0")]
                seq = list(pre)
                dist = 0
                for c in out[t:t + 40]:
                    if c.cls not in ("label", "dir"):
                        d = dist; j = len(pre) - 1
                        while j >= 0 and d < 20:
                            p = pre[j]
                            if p.cls not in ("label", "dir"):
                                n = need(p, c)
                                if n > d:
                                    raise RuntimeError(f"{self.name}: hazard across branch {b.text}: '{p.text}' -> '{c.text}' need {n} have {d}")
                                d += p.ws
                            j -= 1
                        dist += c.ws
                        if c.cls == "branch" and c.mn == "s_branch": break
                        if dist >= 20: break
        self.out = out; self.nnop = nnop
        mv = max([r[1] for x in out for r in (x.wr | x.rd) if r[0] == "v"] + [0])
        ma = max([r[1] for x in out for r in (x.wr | x.rd) if r[0] == "a"] + [-1])
        ms = max([r[1] for x in out for r in (x.wr | x.rd) if r[0] == "s"] + [0])
        acc = self.accum if self.accum else (self.nvgpr + 3) // 4 * 4
        assert mv < acc, (self.name, mv, acc)
        assert acc + ma + 1 <= self.nvgpr or ma < 0, (self.name, ma)
        assert ms < self.nsgpr, (self.name, ms)
        self.stats = dict(maxv=mv, maxa=ma, maxs=ms, n=len([x for x in out if x.cls not in ("label", "dir")]), nops=nnop)
        return out

    def text(self):
        out = self.finalize()
        t = [f".globl {self.name}", ".p2align 8", f".type {self.name},@function", f"{self.name}:"]
        for x in out:
            t.append(x.text if x.cls == "label" else "    " + x.text)
        return "\n".join(t)

    def kd(self):
        acc = self.accum if self.accum else min(256, (self.nvgpr + 3) // 4 * 4)
        return "\n".join([".p2align 6", f".amdhsa_kernel {self.name}",
                          f"  .amdhsa_next_free_vgpr {self.nvgpr}", f"  .amdhsa_next_free_sgpr {self.nsgpr}",
                          f"  .amdhsa_accum_offset {acc}", "  .amdhsa_group_segment_fixed_size 0", "  .amdhsa_kernarg_size 80",
                          "  .amdhsa_user_sgpr_count 2", "  .amdhsa_user_sgpr_kernarg_segment_ptr 1",
                          "  .amdhsa_system_sgpr_workgroup_id_x 1",
                          ".end_amdhsa_kernel"])

    def launch_line(self):
        return f"; @launch kernel={self.name} grid=({self.grid},1,1) block=({self.block},1,1) lds={self.lds}"


HEADER = """; Kernarg layout for this problem (80 bytes, ptrs only, base s[0:1]):
"""


def build_file(kerns, path, order=None, single=False):
    order = order or kerns
    if single:
        k0 = kerns[0]
        s = HEADER + f"; @launch grid=({k0.grid},1,1) block=({k0.block},1,1) lds={k0.lds}\n"
    else:
        s = HEADER + "\n".join(k.launch_line() for k in order) + "\n"
    s += '.amdgcn_target "amdgcn-amd-amdhsa--gfx950"\n.text\n'
    for k in kerns:
        s += k.text() + "\n"
        print(k.name, k.stats)
    s += '.section .rodata,"a"\n'
    for k in kerns:
        s += k.kd() + "\n"
    open(path, "w").write(s)
```

```python
from common import *
import os
OPT = lambda n, d=0: int(os.environ.get(n, d))
MF = "v_mfma_f32_32x32x16_bf16"
MF16 = "v_mfma_f32_16x16x32_bf16"
UP_SLOT = 28928
UP_W3OFF = 14464
GB = 65536
ONES = GB + 3 * UP_SLOT
PROG = ONES + 2048
PAIR = PROG + 3072
SC = PAIR + 256
LDS_TOTAL = SC + 4096
assert ONES % 256 == 0 and LDS_TOTAL <= 163840 and ONES >= 131072
HFLAG = WS_FLAG
OFLAG = WS_FLAG + 32768
QFLAG = WS_FLAG + 131072
FSTR = 8192 + 256
XFLAG = WS_FLAG + 393216
RELAY = PAIR + 64
EPOCH = WS_FLAG + 65536 + 4096
TAG = "s70"
HS = 65536 + OPT("HPAD", 0)
QB = 24 * MB
if OPT("LAY") == 1:
    HS = 3 * 65536 + OPT("HPAD", 0); WS_Q = QB; WS_K = QB + 65536; WS_V = QB + 131072
elif OPT("HPAD") or OPT("RPAD"):
    WS_Q = QB; WS_K = QB + 32 * HS + OPT("RPAD"); WS_V = QB + 64 * HS + 2 * OPT("RPAD")
WS_SIZE = 32 * MB
NST = 14
NAME = "parallel_sum__softmax_full_mha__glu_gated_swiglu__prompt_kernel"

def load_tag(k):
    k(f"s_add_u32 s68, s8, {EPOCH}"); k("s_addc_u32 s69, s9, 0")
    k(f"s_load_dword {TAG}, s[68:69], 0"); k("s_waitcnt lgkmcnt(0)")
    k(f"s_mul_i32 {TAG}, {TAG}, 0x9e3779b1"); k(f"s_add_u32 {TAG}, {TAG}, 0x7f4a7c15")

def ln_scalars(k, s, q, mask, r, mb):
    k(f"v_mul_f32 {s}, {lit(1/512)}, {s}"); k(f"v_mul_f32 {q}, {lit(1/512)}, {q}")
    k(f"v_fma_f32 {q}, -{s}, {s}, {q}"); k(f"v_max_f32 {q}, 0, {q}")
    k(f"v_cvt_pk_bf16_f32 {s}, {s}, {q}")
    k(f"v_and_b32 {q}, {mask}, {s}"); k(f"v_lshlrev_b32 {mb}, 16, {s}")
    k(f"v_add_f32 {q}, {lit(1e-5)}, {q}")
    k(f"v_cvt_pk_bf16_f32 {q}, {q}, {q}"); k(f"v_lshlrev_b32 {q}, 16, {q}")
    k(f"v_sqrt_f32 {q}, {q}")
    k(f"v_cvt_pk_bf16_f32 {q}, {q}, {q}"); k(f"v_lshlrev_b32 {q}, 16, {q}")
    k(f"v_rcp_f32 {r}, {q}")

def qkv_part(k):
    k("s_and_b32 s27, s2, 7"); k("s_lshr_b32 s28, s2, 3")
    k("s_lshr_b32 s25, s27, 1"); k("s_lshl_b32 s25, s25, 3"); k("s_lshr_b32 s29, s28, 2"); k("s_add_u32 s25, s25, s29")
    k("s_and_b32 s26, s27, 1"); k("s_lshl_b32 s26, s26, 2"); k("s_and_b32 s29, s28, 3"); k("s_add_u32 s26, s26, s29")
    k("s_add_u32 s40, s25, s26"); k("s_and_b32 s40, s40, 7")
    if OPT("ROTM", 11) == 1: k("s_lshr_b32 s40, s25, 1"); k("s_add_u32 s40, s40, s26"); k("s_and_b32 s40, s40, 7")
    if OPT("ROTM") == 2: k("s_lshr_b32 s40, s25, 2"); k("s_add_u32 s40, s40, s26"); k("s_and_b32 s40, s40, 7")
    if OPT("ROTM") == 3: k("s_mov_b32 s40, s26")
    if OPT("ROTM", 11) >= 8:
        rm = OPT("ROTM", 11)
        if rm == 8: k("s_mov_b32 s40, 0")
        if rm == 9: k("s_and_b32 s40, s26, 1"); k("s_lshl_b32 s40, s40, 2")
        if rm == 10: k("s_and_b32 s40, s25, 1"); k("s_lshl_b32 s40, s40, 2")
        if rm == 11: k("s_lshr_b32 s40, s27, 0")
    elif OPT("ROTM", 11) >= 4:
        k("s_and_b32 s40, s26, 3"); k("s_lshl_b32 s40, s40, 1"); k("s_lshr_b32 s29, s26, 2"); k("s_add_u32 s40, s40, s29")
        k(f"s_and_b32 s29, s25, {(7, 6, 4, 0)[OPT('ROTM', 7) - 4]}"); k("s_add_u32 s40, s40, s29"); k("s_and_b32 s40, s40, 7")
    k("s_bfe_u32 s56, s24, 0x10001"); k("s_and_b32 s59, s24, 1")
    LD_FIRST = OPT("LDFIRST", 1)
    k("s_cmp_ge_u32 s24, 4" if LD_FIRST else "s_cmp_lt_u32 s24, 4"); k("s_cbranch_scc1 K1_COMP")
    k("s_and_b32 s57, s24, 3")
    k("v_lshrrev_b32 v40, 3, v0"); k("v_lshlrev_b32 v44, 10, v40")
    k("v_lshrrev_b32 v41, 4, v0"); k("v_and_b32 v42, 7, v0")
    k("v_xor_b32 v43, v41, v42"); k("v_lshl_add_u32 v1, v43, 4, v44")
    k("v_xor_b32 v43, 4, v43"); k("v_lshl_add_u32 v2, v43, 4, v44"); k(f"v_add_u32 v2, {8192-1024}, v2")
    k("v_mul_u32_u24 v40, 3072, v40"); k("v_and_b32 v41, 1, v41"); k("v_lshlrev_b32 v41, 2, v41"); k("v_xor_b32 v41, v41, v42"); k("v_lshl_add_u32 v3, v41, 4, v40")
    k("s_lshl_b32 s31, s25, 16"); k("s_lshl_b32 s33, s57, 14"); k("s_add_u32 s31, s31, s33")
    k("s_lshl_b32 s32, s57, 11")
    k("s_mul_i32 s35, s57, 49152"); k("s_lshl_b32 s33, s26, 7"); k("s_add_u32 s35, s35, s33")
    k("s_mul_i32 s36, s57, 6144"); k("s_add_u32 s36, s36, 8192")
    k("s_mov_b32 s42, 0"); k("s_mov_b32 s43, 0x10000"); k("s_mov_b32 s41, s40")
    k("s_waitcnt lgkmcnt(0)")
    srd(k, 12, 4, 2048 * 1024); srd(k, 16, 6, 512 * 3072)
    def issue():
        o = ["s_lshl_b32 s33, s41, 7", "s_add_u32 m0, s43, s32", "s_add_u32 s33, s33, s31",
             "buffer_load_dwordx4 v1, s[12:15], s33 offen lds",
             "buffer_load_dwordx4 v2, s[12:15], s33 offen offset:1024 lds",
             "s_mul_i32 s33, s41, 196608", "s_add_u32 m0, s43, s36", "s_add_u32 s33, s33, s35"]
        o += [f"buffer_load_dwordx4 v3, s[16:19], s33 offen offset:{blk*1024} lds" for blk in range(3)]
        o += ["s_add_u32 m0, m0, 3072", "s_add_u32 s33, s33, 24576"]
        o += [f"buffer_load_dwordx4 v3, s[16:19], s33 offen offset:{blk*1024} lds" for blk in range(3)]
        o += ["s_add_u32 s41, s41, 1", "s_and_b32 s41, s41, 7", "s_add_u32 s43, s43, 32768", "s_and_b32 s43, s43, 0x1ffff"]
        return o
    D0 = 3 if OPT("DEEP", 2) == 2 else 2
    k.label("K1_LP")
    for x in issue(): k(x)
    k("s_add_u32 s42, s42, 1"); k(f"s_cmp_lt_u32 s42, {D0}"); k("s_cbranch_scc1 K1_LP")
    k("v_and_b32 v48, 31, v0"); k("v_lshrrev_b32 v49, 5, v0"); k("v_bfe_u32 v50, v0, 1, 3")
    k("s_lshl_b32 s33, s56, 12"); k("v_lshl_add_u32 v51, v48, 7, s33")
    k("s_lshl_b32 s33, s59, 2"); k("v_or_b32 v52, s33, v49"); k("v_xor_b32 v52, v52, v50"); k("v_lshl_add_u32 v4, v52, 4, v51"); k("v_xor_b32 v5, 32, v4")
    k("v_add_u32 v8, 0x10000, v4"); k("v_add_u32 v9, 0x10000, v5"); k("v_mov_b32 v13, 0xffff0000")
    for r in range(54, 62): k(f"v_mov_b32 v{r}, 0")
    srd(k, 20, 8, WS_SIZE)
    k("s_mov_b32 s42, 0"); k("s_mov_b32 s44, 0x10000")
    k.stamp()
    KEEP = OPT("ROTM", 11) >= 8
    if KEEP: k("s_sub_u32 s45, s26, s40"); k("s_and_b32 s45, s45, 7")
    def keep():
        if KEEP:
            l = k.uid("KP"); k("s_cmp_lg_u32 s42, s45"); k(f"s_cbranch_scc1 {l}")
            for r in range(16): k(f"v_mov_b32 v{64+r}, v{24+r}")
            k.label(l)
    def stats():
        o = []
        for r in range(8):
            o += [f"v_lshlrev_b32 v{24+2*r}, 16, v{16+r}", f"v_and_b32 v{25+2*r}, v13, v{16+r}"]
        for r in range(16):
            o += [f"v_add_f32 v{54+(r&3)}, v{54+(r&3)}, v{24+r}", f"v_fmac_f32 v{58+(r&3)}, v{24+r}, v{24+r}"]
        return o
    head = ["s_barrier", "ds_read_b128 v[16:19], v8", "ds_read_b128 v[20:23], v9",
            "s_add_u32 s44, s44, 32768", "s_and_b32 s44, s44, 0x1ffff", "v_add_u32 v8, s44, v4", "v_add_u32 v9, s44, v5"]
    DEEP = OPT("DEEP", 2)
    if DEEP == 1:
        k("s_waitcnt vmcnt(8)")
        for x in head: k(x)
        iss = issue()
        for x in iss[:5]: k(x)
        k("s_waitcnt lgkmcnt(0)")
        for x in interleave(iss[5:] + issue(), stats()): k(x)
        keep()
        k("s_mov_b32 s42, 1")
    k.label("K1_LA")
    k(f"s_waitcnt vmcnt({16 if DEEP else 8})")
    for x in head: k(x)
    iss = issue()
    for x in iss[:5]: k(x)
    k("s_waitcnt lgkmcnt(0)")
    for x in interleave(iss[5:], stats()): k(x)
    keep()
    k("s_add_u32 s42, s42, 1"); k(f"s_cmp_lt_u32 s42, {5 if DEEP else 6}"); k("s_cbranch_scc1 K1_LA")
    k(f"s_waitcnt vmcnt({16 if DEEP else 8})")
    k.label("K1_LB")
    for x in head: k(x)
    k("s_waitcnt lgkmcnt(0)")
    for x in stats(): k(x)
    keep()
    k("s_add_u32 s42, s42, 1")
    if DEEP:
        k("s_waitcnt vmcnt(8)"); k("s_cmp_lt_u32 s42, 7"); k("s_cbranch_scc1 K1_LB")
    k("s_waitcnt vmcnt(0)"); k("s_cmp_lt_u32 s42, 8"); k("s_cbranch_scc1 K1_LB")
    k.stamp()
    k("v_add_f32 v54, v54, v55"); k("v_add_f32 v56, v56, v57"); k("v_add_f32 v58, v58, v59"); k("v_add_f32 v60, v60, v61")
    k("v_add_f32 v54, v54, v56"); k("v_add_f32 v58, v58, v60"); k("v_mov_b32 v55, v54"); k("v_mov_b32 v59, v58")
    k("s_lshl_b32 s33, s56, 9"); k(f"s_add_u32 s33, s33, {SC+2048}"); k("v_lshl_add_u32 v6, v48, 4, s33")
    k("v_permlane32_swap_b32 v54, v55"); k("v_permlane32_swap_b32 v58, v59")
    k("s_lshl_b32 s33, s59, 3"); k("v_add_u32 v7, s33, v6")
    k("v_add_f32 v54, v54, v55"); k("v_add_f32 v55, v58, v59")
    k("ds_write_b64 v7, v[54:55]")
    k("s_waitcnt lgkmcnt(0)"); k("s_barrier")
    k("ds_read_b128 v[54:57], v6")
    if KEEP: k("s_add_u32 s40, s26, 1")
    k("s_add_u32 s38, s40, 7"); k("s_and_b32 s38, s38, 7"); k("s_lshl_b32 s38, s38, 12"); k("s_lshl_b32 s39, s59, 11"); k("s_add_u32 s38, s38, s39")
    k("s_lshl_b32 s39, s25, 16"); k("s_add_u32 s38, s38, s39"); k("s_lshl_b32 s39, s56, 15"); k("s_add_u32 s38, s38, s39"); k(f"s_add_u32 s38, s38, {WS_XN}")
    k("v_lshlrev_b32 v15, 4, v0")
    k("s_waitcnt lgkmcnt(0)")
    k("v_add_f32 v54, v54, v56"); k("v_add_f32 v55, v55, v57")
    ln_scalars(k, "v54", "v55", "v13", "v12", "v14")
    k("v_mul_f32 v14, -v14, v12")
    for r in range(16): k(f"v_fma_f32 v{24+r}, v{(64 if KEEP else 24)+r}, v12, v14")
    for r in range(8): k(f"v_cvt_pk_bf16_f32 v{16+r}, v{24+2*r}, v{25+2*r}")
    if OPT("XNLATE"):
        k(f"v_mov_b32 v40, {RELAY+8}")
        k.label("XN_W"); k("s_sleep 1"); k("ds_read_b32 v41, v40"); k("s_waitcnt lgkmcnt(0)"); k("v_cmp_le_u32 vcc, 4, v41"); k("s_cmp_eq_u64 vcc, -1"); k("s_cbranch_scc0 XN_W")
    k("buffer_store_dwordx4 v[16:19], v15, s[20:23], s38 offen sc1")
    k("buffer_store_dwordx4 v[20:23], v15, s[20:23], s38 offen offset:1024 sc1")
    k("s_add_u32 s44, s40, 7"); k("s_and_b32 s44, s44, 7"); k("s_lshl_b32 s44, s44, 1"); k("s_add_u32 s44, s44, s59"); k("s_lshl_b32 s44, s44, 7")
    k("s_lshr_b32 s39, s25, 1"); k(f"s_mul_i32 s39, s39, {FSTR}"); k("s_add_u32 s44, s44, s39"); k("s_and_b32 s39, s25, 1"); k("s_lshl_b32 s39, s39, 12"); k("s_add_u32 s44, s44, s39")
    k("s_lshl_b32 s39, s56, 11"); k("s_add_u32 s44, s44, s39"); k(f"s_add_u32 s44, s44, {XFLAG}")
    k("s_branch AT_ENTRY")
    if Kern.DIAG: k.nst = 2
    FS = [16, 32, 48, 64]
    ACC = 80; CS = 128; SEL = 140
    k.label("K1_COMP")
    k("v_and_b32 v144, 31, v0"); k("v_lshrrev_b32 v145, 5, v0"); k("v_bfe_u32 v146, v0, 1, 3")
    k("s_lshl_b32 s33, s56, 12"); k("v_lshl_add_u32 v147, v144, 7, s33")
    k("s_lshl_b32 s33, s56, 2"); k("v_or_b32 v148, s33, v145"); k("v_xor_b32 v148, v148, v146"); k("v_lshl_add_u32 v4, v148, 4, v147")
    for j in (1, 2, 3): k(f"v_xor_b32 v{4+j}, {32*j}, v4")
    k("v_mul_u32_u24 v147, 3072, v145"); k("v_bfe_u32 v148, v0, 2, 2"); k("v_lshl_add_u32 v147, v148, 7, v147")
    k("v_bfe_u32 v148, v0, 3, 1"); k("v_xor_b32 v148, s59, v148"); k("v_lshl_add_u32 v147, v148, 6, v147")
    k("v_bfe_u32 v149, v0, 4, 1"); k("v_lshl_add_u32 v147, v149, 5, v147"); k("v_and_b32 v148, 3, v0"); k("v_lshl_add_u32 v147, v148, 3, v147")
    k("s_mul_i32 s33, s56, 12288"); k("s_add_u32 s34, s33, 8192"); k("v_add_u32 v8, s34, v147")
    k(f"s_sub_u32 s34, {8192+12288}, s33"); k("v_add_u32 v9, s34, v147")
    k("v_bfe_u32 v147, v0, 2, 1"); k("v_xor_b32 v147, v147, v149"); k("v_or_b32 v147, v147, v148")
    k("v_cmp_eq_u32 vcc, 0, v147"); k("v_mov_b32 v147, 0x3f803f80")
    k(f"v_cndmask_b32 v{SEL}, 0, v147, vcc")
    for r in (1, 2, 3): k(f"v_mov_b32 v{SEL+r}, v{SEL}")
    for r in range(FS[2], CS + 12): k(f"v_mov_b32 v{r}, 0")
    k("s_lshl_b32 s30, s25, 1"); k("s_add_u32 s30, s30, s56")
    k("s_lshl_b32 s33, s26, 1"); k("s_add_u32 s33, s33, s59"); k(f"s_mul_i32 s33, s33, {2*HS}"); k("s_lshl_b32 s34, s30, 10"); k("s_add_u32 s33, s33, s34")
    k(f"s_add_u32 s34, s33, {WS_K}"); k(f"s_add_u32 s35, s33, {WS_V}"); k(f"s_add_u32 s33, s33, {WS_Q}"); k(f"s_add_u32 s36, s33, {HS}"); k(f"s_add_u32 s37, s34, {HS}")
    k("v_lshlrev_b32 v15, 4, v0")
    k("s_lshl_b32 s38, s56, 9"); k(f"s_add_u32 s38, s38, {SC+2048}"); k("v_lshl_add_u32 v1, v144, 4, s38")
    k("s_lshl_b32 s38, s59, 10"); k(f"s_add_u32 s38, s38, {SC}"); k("v_lshl_add_u32 v2, v144, 5, s38")
    k("s_lshl_b32 s38, s56, 4"); k("v_add_u32 v10, s38, v2"); k("v_xor_b32 v2, 16, v10")
    k("s_and_b32 s38, s24, 3"); k("s_lshl_b32 s38, s38, 7"); k(f"s_add_u32 s38, s38, {SC+3072}")
    k("v_lshl_add_u32 v11, v144, 2, s38"); k("v_lshl_add_u32 v14, v145, 4, s38")
    k(f"v_mul_u32_u24 v3, {HS}, v149"); k("v_lshl_add_u32 v3, v145, 8, v3"); k("v_and_b32 v148, 15, v0"); k("v_lshl_add_u32 v3, v148, 4, v3")
    k("v_mov_b32 v13, 0xffff0000")
    k("s_mov_b32 s42, 0")
    k("s_waitcnt lgkmcnt(0)")
    srd(k, 20, 8, WS_SIZE)
    if OPT("TOUCH", 0):
        k("v_mov_b32 v150, 0"); k(f"s_mov_b32 s38, {EPOCH + 256}"); k(f"s_add_u32 s39, s33, {WS_XN - WS_Q}")
        k("s_mov_b64 exec, 1")
        for sg in ("s33", "s34", "s35", "s38"): k(f"buffer_load_dword v151, v150, s[20:23], {sg} offen sc1")
        k("s_mov_b64 exec, -1")
    QG = OPT("QWARM", 0)
    if QG:
        k("s_mov_b64 exec, 0")
        for w in range(4):
            k(f"s_cmp_eq_u32 s24, {4+w}"); k(f"s_cbranch_scc1 HOP_QE_{w*QG}")
        k.label("QE_WR"); k("s_mov_b64 exec, -1")
    k.stamp()
    def reads(j, off):
        f = FS[j]; w = "v8" if j < 2 else "v9"; o = off + (j & 1)*6144
        out = [f"ds_read_b128 {vr(f,4)}, v{4+j} offset:{off}"]
        for blk in range(3):
            out += [f"ds_read_b64_tr_b16 {vr(f+4+4*blk,2)}, {w} offset:{o+blk*1024}", f"ds_read_b64_tr_b16 {vr(f+6+4*blk,2)}, {w} offset:{o+blk*1024+512}"]
        return out
    def mfs(j):
        f = FS[j]; out = []
        for blk in range(3):
            a = vr(ACC + blk*16, 16); w = vr(f+4+4*blk, 4); x = vr(f, 4)
            out.append(f"{MF} {a}, {w}, {x}, {a}" if blk < 2 else f"{MF} {a}, {x}, {w}, {a}")
            if j < 2: out.append(f"{MF16} {vr(CS+4*blk,4)}, {vr(SEL,4)}, {w}, {vr(CS+4*blk,4)}")
        return out
    for i in range(6): k(f"v_xor_b32 v{4+i}, 0x10000, v{4+i}")
    k.label("K1_CL")
    for p in range(2):
        k("s_barrier")
        for j in range(4):
            if j >= 2: k("s_waitcnt lgkmcnt(7)")
            for x in interleave(mfs((j + 2) & 3), reads(j, p*32768)): k(x)
        if p == 1:
            for i in range(6): k(f"v_xor_b32 v{4+i}, 0x10000, v{4+i}")
            k("s_add_u32 s42, s42, 1"); k("s_cmp_lt_u32 s42, 4")
        k("s_waitcnt lgkmcnt(0)")
    k("s_cbranch_scc1 K1_CL")
    k.stamp()
    if QG: k.hops_begin("QE", (QG, "QE_WR"))
    for x in mfs(2): k(x)
    k(f"v_mov_b32 v{CS+1}, v{CS+4}"); k(f"v_mov_b32 v{CS+2}, v{CS+8}")
    k(f"ds_write_b128 v10, {vr(CS,4)}")
    for x in mfs(3): k(x)
    k("s_waitcnt lgkmcnt(0)"); k("s_barrier")
    k("ds_read_b128 v[16:19], v1"); k("ds_read_b128 v[20:23], v2")
    k("s_waitcnt lgkmcnt(1)")
    k("v_add_f32 v16, v16, v18"); k("v_add_f32 v17, v17, v19")
    ln_scalars(k, "v16", "v17", "v13", "v12", "v18")
    k("ds_write_b32 v11, v12")
    for q in range(4): k(f"ds_read_b128 {vr(48+4*q,4)}, v14 offset:{q*32}")
    k("v_cvt_pk_bf16_f32 v24, -v18, -v18"); k("v_lshrrev_b32 v25, 16, v24"); k("v_mov_b32 v26, 0"); k("v_mov_b32 v27, 0")
    k("s_mov_b32 exec_lo, 0"); k("v_mov_b32 v24, 0"); k("v_mov_b32 v25, 0"); k("s_mov_b32 exec_lo, -1")
    for b in range(3):
        c = 28 + 4*b
        k(f"v_add_f32 v{c+2}, v{CS+b}, v{20+b}")
        k(f"v_and_b32 v{c+3}, v13, v{c+2}"); k(f"v_sub_f32 v{c+2}, v{c+2}, v{c+3}")
        k(f"v_and_b32 v{c+1}, v13, v{c+2}"); k(f"v_sub_f32 v{c+2}, v{c+2}, v{c+1}")
        k(f"v_lshrrev_b32 v{c+3}, 16, v{c+3}"); k(f"v_or_b32 v{c}, v{c+3}, v{c+1}")
        k(f"v_lshrrev_b32 v{c+1}, 16, v{c+2}"); k(f"v_mov_b32 v{c+2}, 0"); k(f"v_mov_b32 v{c+3}, 0")
    for blk in (1, 2, 0):
        a = vr(ACC + blk*16, 16); c = vr(28+4*blk, 4)
        k(f"{MF} {a}, {c}, v[24:27], {a}" if blk < 2 else f"{MF} {a}, v[24:27], {c}, {a}")
    k(f"v_mul_f32 v10, {lit(QSCALE)}, v12")
    k("s_waitcnt lgkmcnt(0)")
    so = {0: ("s33", "s36"), 1: ("s34", "s37")}
    for blk in (1, 2, 0):
        a = ACC + blk*16
        for h in range(2):
            for r in range(8*h, 8*h+8):
                k(f"v_mul_f32 v{a+r}, {('v10', 'v12', 'v%d' % (48+r))[blk]}, v{a+r}")
            d = 16 + (blk*2+h)*4 if blk < 2 else 64 + 4*h
            if blk == 0: d = 72 + 4*h
            if blk == 1: d = 40 + 4*h
            for r in range(4): k(f"v_cvt_pk_bf16_f32 v{d+r}, v{a+8*h+2*r}, v{a+8*h+2*r+1}")
            if blk < 2: k(f"buffer_store_dwordx4 {vr(d,4)}, v15, s[20:23], {so[blk][h]} offen sc1")
            else: k(f"buffer_store_dwordx4 {vr(d,4)}, v3, s[20:23], s35 offen offset:{512*h} sc1")
    k("s_lshl_b32 s44, s26, 1"); k("s_add_u32 s44, s44, s59"); k(f"s_mul_i32 s44, s44, {FSTR}"); k("s_lshl_b32 s39, s30, 7"); k("s_add_u32 s44, s44, s39"); k(f"s_add_u32 s44, s44, {QFLAG}")

def softcheck(k, tag, sval, vdst, vaddr):
    k(f"v_cmp_le_u32 vcc, {sval}, {vdst}")
    k("s_cmp_eq_u64 vcc, -1")
    k(f"s_cbranch_scc0 {tag}_SPIN")
    k.label(f"{tag}_CONT")
    def tail():
        k.label(f"{tag}_SPIN")
        k("s_sleep 1")
        k(f"ds_read_b32 {vdst}, {vaddr}")
        k("s_waitcnt lgkmcnt(0)")
        k(f"v_cmp_le_u32 vcc, {sval}, {vdst}")
        k("s_cmp_eq_u64 vcc, -1")
        k(f"s_cbranch_scc0 {tag}_SPIN")
        k(f"s_branch {tag}_CONT")
    return tail

def finish(k, vtmp):
    if Kern.DIAG:
        k("s_waitcnt vmcnt(0)")
        while k.nst < NST - 1: k.stamp()
        k.stamp(True)
        k.dump_stamps(1, 24, vtmp, 8)
    k("s_endpgm")

def attn_part(k):
    S = [16, 32]; O = [48, 64]; C = 80; P = 96; Q = [104, 108]
    KF = [112, 116]; VF = [[120, 124], [128, 132]]; K0 = 136
    NG = OPT("AT_UNROLL", 2)
    tails = []
    k.label("AT_ENTRY")
    k.stamp()
    k(f"v_mov_b32 v150, {RELAY+12}"); k("ds_read_b32 v143, v150")
    if OPT("GOEARLY"):
        k("s_mov_b64 exec, 1"); k(f"v_mov_b32 v150, {RELAY+8}"); k("v_mov_b32 v151, 1"); k("ds_add_u32 v150, v151"); k("s_mov_b64 exec, -1")
    k("s_nop 1")
    k("v_lshlrev_b32 v1, 4, v0"); k("s_lshl_b32 s28, s24, 8"); k(f"s_add_u32 s28, s28, {PROG}"); k("v_lshl_add_u32 v11, v0, 2, s28")
    k("s_and_b32 s25, s2, 7"); k("s_lshl_b32 s25, s25, 2"); k("s_bfe_u32 s26, s2, 0x20003"); k("s_add_u32 s25, s25, s26")
    k("s_lshr_b32 s38, s24, 2"); k("s_and_b32 s39, s24, 3")
    k("s_lshr_b32 s26, s2, 5"); k("s_lshl_b32 s26, s26, 3"); k("s_lshl_b32 s28, s39, 1"); k("s_add_u32 s26, s26, s28")
    k(f"s_mul_i32 s27, s25, {HS}")
    k("s_lshr_b32 s28, s39, 1"); k(f"s_mul_i32 s28, s28, {WS_V - WS_K}"); k("s_add_u32 s30, s27, s28"); k(f"s_add_u32 s30, s30, {WS_K}")
    k("s_lshl_b32 s28, s38, 15"); k("s_add_u32 s30, s30, s28"); k("s_and_b32 s28, s39, 1"); k("s_lshl_b32 s28, s28, 10"); k("s_add_u32 s30, s30, s28")
    k("s_lshl_b32 s28, s24, 10")
    k("s_lshl_b32 s32, s26, 10"); k("s_add_u32 s32, s32, s27"); k(f"s_add_u32 s32, s32, {WS_Q}")
    k(f"s_add_u32 s33, s27, {WS_K}")
    k("s_mov_b32 m0, s28")
    k("v_lshrrev_b32 v2, 5, v0"); k("v_lshlrev_b32 v2, 8, v2"); k("v_and_b32 v3, 15, v0"); k("v_lshl_add_u32 v2, v3, 4, v2")
    k("s_lshl_b32 s29, s38, 12")
    k("v_add_u32 v15, s29, v1")
    k("v_bfe_u32 v10, v0, 4, 1"); k("v_add_u32 v10, -1, v10")
    k(f"s_add_u32 s31, s29, {2048 - ONES + (1<<32)}")
    k("v_and_b32 v3, s31, v10"); k(f"v_add_u32 v3, {ONES}, v3"); k("v_add_u32 v3, v3, v2")
    k("v_and_b32 v12, 3, v0"); k("v_lshlrev_b32 v12, 8, v12"); k("v_lshl_add_u32 v12, v0, 2, v12")
    k(f"s_lshl_b32 s31, s38, 10"); k(f"s_add_u32 s31, s31, {PROG}"); k("v_add_u32 v12, s31, v12")
    k("s_xor_b32 s31, s24, 4"); k("s_lshl_b32 s31, s31, 8"); k(f"s_add_u32 s31, s31, {PROG - 128}")
    k("s_mov_b32 exec_lo, 0"); k("v_lshl_add_u32 v12, v0, 2, s31"); k("s_mov_b32 exec_lo, -1")
    k("s_mov_b32 s40, 0x0000ffff"); k("s_mov_b32 s41, 0x0000ffff")
    for r in range(4): k(f"v_mov_b32 v{VF[1][1]+r}, 0")
    for r in range(32): k(f"v_mov_b32 v{O[0]+r}, 0")
    for r in range(4, 8): k(f"v_mov_b32 v{P+r}, 0")
    k("v_mov_b32 v5, v3"); k("v_add_u32 v6, 8192, v15"); k("v_and_b32 v7, 8192, v10"); k("v_add_u32 v7, v7, v3")
    k("v_lshrrev_b32 v13, 5, v0"); k("v_add_u32 v13, 1, v13")
    if OPT("QWARM", 0): k.hops_end("QE_WR")
    k("v_mov_b32 v142, 0"); k("s_waitcnt lgkmcnt(0)"); k(f"v_readfirstlane_b32 {TAG}, v143")
    k("s_mov_b64 exec, 1")
    k("s_waitcnt vmcnt(0)")
    k("buffer_store_dword v143, v142, s[20:23], s44 offen sc1")
    if not OPT("GOEARLY"): k(f"v_mov_b32 v140, {RELAY+8}"); k("v_mov_b32 v141, 1"); k("ds_add_u32 v140, v141")
    k("s_mov_b64 exec, -1")
    k.stamp()
    k("s_lshr_b32 s45, s25, 1"); k(f"s_mul_i32 s45, s45, {FSTR}"); k(f"s_add_u32 s45, s45, {QFLAG}"); k("v_lshlrev_b32 v140, 7, v0")
    k(f"v_mov_b32 v142, {RELAY}")
    if OPT("WARM", 2):
        k("s_cmp_ge_u32 s24, 4"); k("s_cbranch_scc1 AQ_NW")
        k("s_mov_b64 exec, 0")
        for w, nm in enumerate(("WA", "WB", "WC", "WD")):
            k(f"s_cmp_eq_u32 s24, {w}"); k(f"s_cbranch_scc1 HOP_{nm}_0")
        k.label("AQ_WR"); k("s_mov_b64 exec, -1")
        k.label("AQ_NW")
    k("s_cmp_lg_u32 s24, 4"); k("s_cbranch_scc1 AQ_REL")
    gpoll(k, "AQ", "s45", OPT("QSLEEP", 4), "v141", "v140", "s46")
    k("v_mov_b32 v141, 1"); k("ds_write_b32 v142, v141"); k("s_branch AQ_DONE")
    k.label("AQ_REL")
    k("s_sleep 1"); k("ds_read_b32 v141, v142"); k("s_waitcnt lgkmcnt(0)"); k("v_cmp_eq_u32 vcc, 1, v141"); k("s_cmp_eq_u64 vcc, -1"); k("s_cbranch_scc0 AQ_REL")
    k.label("AQ_DONE")
    if OPT("WARM", 2): k.hops_begin("WA")
    k.stamp()
    k(f"buffer_load_dwordx4 {vr(Q[0],4)}, v1, s[20:23], s32 offen sc1")
    k(f"buffer_load_dwordx4 {vr(Q[1],4)}, v1, s[20:23], s32 offen offset:1024 sc1")
    k(f"buffer_load_dwordx4 {vr(K0,4)}, v1, s[20:23], s33 offen sc1")
    for g in range(3):
        k("buffer_load_dwordx4 v1, s[20:23], s30 offen sc1 lds")
        k("s_add_u32 m0, m0, 8192"); k("s_add_u32 s30, s30, 2048")
    k("s_waitcnt vmcnt(3)")
    k(f"{MF} {vr(S[0],16)}, {vr(K0,4)}, {vr(Q[0],4)}, 0")
    k(f"{MF} {vr(S[1],16)}, {vr(K0,4)}, {vr(Q[1],4)}, 0")
    k("s_waitcnt vmcnt(1)")
    k("ds_write_b32 v11, v13")
    k("s_mov_b32 s34, 1")
    k(f"v_max3_f32 v8, v{S[0]}, v{S[0]+1}, v{S[0]+2}")
    for i in range(3, 31, 2): k(f"v_max3_f32 v8, v8, v{S[0]+i}, v{S[0]+i+1}")
    k(f"v_max_f32 v8, v8, v{S[0]+31}")
    k("ds_read_b32 v14, v12")
    k("v_mov_b32 v9, v8"); k("v_permlane32_swap_b32 v8, v9"); k("v_max_f32 v8, v8, v9")
    for r in range(16): k(f"v_xor_b32 v{C+r}, 0x80000000, v8")
    k("s_waitcnt lgkmcnt(0)")
    k("v_cmp_le_u32 vcc, v13, v14"); k("s_setprio 1"); k("s_cmp_eq_u32 vcc_lo, -1"); k("s_cbranch_scc0 AP_SPIN")
    k.label("AP_CONT")
    def tail(tag="AP"):
        k.label(f"{tag}_SPIN"); k("s_sleep 1"); k("ds_read_b32 v14, v12"); k("s_waitcnt lgkmcnt(0)")
        k("v_cmp_le_u32 vcc, v13, v14"); k("s_cmp_eq_u32 vcc_lo, -1"); k(f"s_cbranch_scc0 {tag}_SPIN"); k(f"s_branch {tag}_CONT")
    tails.append(tail)
    k.stamp()
    k(f"ds_read_b128 {vr(KF[0],4)}, v15")
    k(f"ds_read_b128 {vr(VF[0][0],4)}, v5"); k(f"ds_read_b128 {vr(VF[0][1],4)}, v5 offset:512")
    k(f"ds_read_b128 {vr(KF[1],4)}, v15 offset:1024")
    k("s_mov_b32 s37, 16384")
    k("s_waitcnt lgkmcnt(3)")
    k(f"{MF} {vr(S[0],16)}, {vr(KF[0],4)}, {vr(Q[0],4)}, {vr(C,16)}")
    k("s_nop 10")
    if OPT("WARM", 2): k.hops_end("AQ_WR")
    k.label("AT_LOOP")
    for gi in range(NG):
      if OPT("WARM", 2) == 2:
          if gi: k.hops_end("AQ_WR")
          k.hops_begin("WB" if gi == 0 else "WC")
      for t in range(2):
        for ab in range(2):
            Sa = S[ab]
            q = []
            def e(i, extra=None):
                k(f"v_exp_f32 v{Sa+i}, v{Sa+i}")
                if extra: k(extra)
                elif q: k(q.pop(0))
            c = lambda i: k(f"v_cvt_pk_bf16_f32 v{P+i}, v{Sa+2*i}, v{Sa+2*i+1}")
            if ab == 0:
                k(f"{MF} {vr(S[1],16)}, {vr(KF[t&1],4)}, {vr(Q[1],4)}, {vr(C,16)}")
                e(0, "ds_read_b32 v14, v12" if t == 0 else None); e(1); e(2); e(3)
                k(f"{MF} {vr(O[1],16)}, {vr(VF[(t+1)&1][1],4)}, {vr(P+4,4)}, {vr(O[1],16)}")
                va, vo = ("v5", 1024) if t == 0 else ("v7", 0)
                e(4, f"ds_read_b128 {vr(VF[(t+1)&1][0],4)}, {va} offset:{vo}")
                e(5)
                e(6, f"ds_read_b128 {vr(VF[(t+1)&1][1],4)}, {va} offset:{vo+512}")
                e(7); e(8)
                for i in range(4): c(i)
                e(9); e(10, "s_waitcnt lgkmcnt(4)")
                k(f"{MF} {vr(O[0],16)}, {vr(VF[t&1][0],4)}, {vr(P,4)}, {vr(O[0],16)}")
                e(11); e(12)
                e(13, "s_waitcnt lgkmcnt(2)")
                if t == 0:
                    k("v_cmp_le_u32 vcc, v13, v14")
                    e(14, "s_setprio 1" if OPT("BAL", 1) else None); e(15, "s_cmp_eq_u32 vcc_lo, -1")
                    if not OPT("X_NOSPIN"): k(f"s_cbranch_scc0 AT{gi}_SPIN")
                    k.label(f"AT{gi}_CONT")
                    k("v_add_u32 v13, 1, v13")
                    if OPT("BAL", 1):
                        k("s_cmp_eq_u32 vcc_hi, 0"); k(f"s_cbranch_scc1 AT{gi}_AHEAD"); k("s_setprio 2"); k.label(f"AT{gi}_AHEAD")
                    def tail(tag=f"AT{gi}"):
                        k.label(f"{tag}_SPIN"); k("s_sleep 1"); k("ds_read_b32 v14, v12"); k("s_waitcnt lgkmcnt(0)")
                        k("v_cmp_le_u32 vcc, v13, v14"); k("s_cmp_eq_u32 vcc_lo, -1"); k(f"s_cbranch_scc0 {tag}_SPIN"); k(f"s_branch {tag}_CONT")
                    tails.append(tail)
                else:
                    e(14); e(15)
                c(4); c(5); c(6); c(7)
            else:
                k(f"{MF} {vr(S[0],16)}, {vr(KF[(t+1)&1],4)}, {vr(Q[0],4)}, {vr(C,16)}")
                if t == 0:
                    e(0, "s_waitcnt vmcnt(0)"); e(1, "ds_write_b32 v11, v13")
                    e(2, f"ds_read_b128 {vr(KF[t&1],4)}, v6 offset:{t*1024}")
                    e(3, "s_cmp_ge_u32 s34, 14")
                else:
                    e(0, f"ds_read_b128 {vr(KF[t&1],4)}, v6 offset:{t*1024}"); e(1); e(2); e(3)
                k(f"{MF} {vr(O[0],16)}, {vr(VF[t&1][1],4)}, {vr(P+4,4)}, {vr(O[0],16)}")
                if t == 0:
                    k(f"s_cbranch_scc1 AT_NODMA{gi}")
                    k("buffer_load_dwordx4 v1, s[20:23], s30 offen sc1 lds")
                    k.label(f"AT_NODMA{gi}")
                    q += ["s_add_u32 s35, m0, 8192", "s_and_b32 m0, s35, 0xffff", "s_add_u32 s30, s30, 2048"]
                else:
                    q += ["s_add_u32 s34, s34, 1"]
                e(4); e(5); e(6); e(7); e(8)
                for i in range(4): c(i)
                e(9); e(10)
                k(f"{MF} {vr(O[1],16)}, {vr(VF[t&1][0],4)}, {vr(P,4)}, {vr(O[1],16)}")
                if t == 1:
                    k("v_mov_b32 v5, v7"); k("v_add_u32 v6, s37, v15"); k("v_and_b32 v7, s37, v10"); k("v_add_u32 v7, v7, v3")
                    q += ["s_add_u32 s37, s37, 8192", "s_and_b32 s37, s37, 0xffff", "s_cmp_lt_u32 s34, 17"]
                e(11); e(12); e(13); e(14); e(15)
                c(4); c(5); c(6); c(7)
    if OPT("WARM", 2) == 2: k.hops_end("AQ_WR")
    k("s_cbranch_scc1 AT_LOOP")
    if OPT("WARM", 2): k.hops_begin("WD")
    k(f"{MF} {vr(O[1],16)}, {vr(VF[1][1],4)}, {vr(P+4,4)}, {vr(O[1],16)}")
    k.stamp()
    k("s_lshl_b32 s35, s39, 13")
    k("v_add_u32 v4, s35, v15")
    k("v_xor_b32 v5, 4096, v4")
    k("s_lshl_b32 s35, s39, 9"); k("s_add_u32 s35, s35, s29"); k("s_add_u32 s35, s35, 32768")
    k("v_lshl_add_u32 v6, v0, 2, s35"); k("v_xor_b32 v7, 4096, v6")
    k("s_lshl_b32 s35, s39, 2"); k(f"s_add_u32 s35, s35, {PAIR}"); k("v_mov_b32 v8, s35"); k("v_mov_b32 v9, 1")
    for ab in range(2):
        k(f"ds_write_b128 v4, {vr(O[ab],4)} offset:{ab*2048}"); k(f"ds_write_b128 v4, {vr(O[ab]+4,4)} offset:{ab*2048+1024}")
        k(f"ds_write_b32 v6, v{O[ab]+8} offset:{ab*256}")
    k("s_mov_b64 exec, 1")
    k("ds_add_rtn_u32 v9, v8, v9")
    k("s_mov_b64 exec, -1")
    for ab in range(2):
        k(f"ds_read_b128 {vr(S[ab],4)}, v5 offset:{ab*2048}"); k(f"ds_read_b128 {vr(S[ab]+4,4)}, v5 offset:{ab*2048+1024}")
        k(f"ds_read_b32 v{S[ab]+8}, v7 offset:{ab*256}")
    k("s_lshl_b32 s33, s26, 15"); k("s_lshl_b32 s34, s25, 10"); k("s_add_u32 s33, s33, s34"); k(f"s_add_u32 s33, s33, {WS_O}")
    k(f"v_mov_b32 v11, {lit(2.0**30)}"); k(f"v_mov_b32 v10, {lit(2.0**-30)}"); k(f"v_mov_b32 v14, 0x7f800000")
    k("s_waitcnt lgkmcnt(0)")
    k("v_readfirstlane_b32 s35, v9")
    k("s_cmp_eq_u32 s35, 0"); k("s_cbranch_scc1 AT_EXIT")
    for ab in range(2):
        for r in range(9): k(f"v_add_f32 v{O[ab]+r}, v{O[ab]+r}, v{S[ab]+r}")
    k(f"v_add_f32 v8, |v{O[0]}|, |v{O[1]}|")
    for ab in range(2):
        for i in range(1, 8): k(f"v_add_f32 v8, v8, |v{O[ab]+i}|")
    k(f"v_cmp_gt_f32 s[42:43], v14, v8")
    for ab in range(2):
        k(f"v_cmp_gt_f32 s[44:45], v11, v{O[ab]+8}"); k(f"v_cmp_lt_f32 s[46:47], v10, v{O[ab]+8}")
        k("s_and_b64 s[42:43], s[42:43], s[44:45]"); k("s_and_b64 s[42:43], s[42:43], s[46:47]")
    k("s_cmp_eq_u64 s[42:43], -1")
    k("s_cbranch_scc0 AT_SLOW")
    k.label("AT_FIN")
    k("s_add_u32 s34, s33, 32768")
    k(f"v_rcp_f32 v8, v{O[0]+8}"); k(f"v_rcp_f32 v9, v{O[1]+8}")
    for ab in range(2):
        for i in range(8): k(f"v_mul_f32 v{O[ab]+i}, v{8+ab}, v{O[ab]+i}")
        for i in range(4): k(f"v_cvt_pk_bf16_f32 v{P+4*ab+i}, v{O[ab]+2*i}, v{O[ab]+2*i+1}")
        k(f"buffer_store_dwordx4 {vr(P+4*ab,4)}, v1, s[20:23], s{33+ab} offen sc1")
    k("s_lshl_b32 s35, s26, 7"); k("s_lshl_b32 s36, s25, 2"); k("s_add_u32 s35, s35, s36"); k(f"s_add_u32 s35, s35, {OFLAG}")
    k("v_mov_b32 v8, 0"); k(f"v_mov_b32 v9, {TAG}")
    k("s_mov_b64 exec, 1")
    k("s_waitcnt vmcnt(0)")
    k("buffer_store_dword v9, v8, s[20:23], s35 offen sc1")
    k("s_mov_b64 exec, -1")
    if OPT("WARM", 2): k.hops_end("AQ_WR")
    k.label("AT_EXIT")
    finish(k, 8)
    for t in tails: t()
    k.label("AT_SLOW")
    k(f"s_add_u32 s30, s27, {WS_K}"); k(f"s_add_u32 s31, s27, {WS_V}")
    for r in range(8): k(f"v_mov_b32 v{VF[0][0]+r}, 0x3f803f80")
    for ab in range(2):
        k("v_mov_b32 v8, 0xff800000"); k("s_mov_b32 s34, 0")
        k.label(f"AT_S1{ab}")
        k("s_add_u32 s36, s30, s34")
        k(f"buffer_load_dwordx4 {vr(KF[0],4)}, v1, s[20:23], s36 offen sc1")
        k("s_waitcnt vmcnt(0)")
        k(f"{MF} {vr(S[0],16)}, {vr(KF[0],4)}, {vr(Q[ab],4)}, 0")
        for i in range(0, 16, 2): k(f"v_max3_f32 v8, v8, v{S[0]+i}, v{S[0]+i+1}")
        k("s_add_u32 s34, s34, 1024"); k("s_cmp_lt_u32 s34, 65536"); k(f"s_cbranch_scc1 AT_S1{ab}")
        k("v_mov_b32 v9, v8"); k("v_permlane32_swap_b32 v8, v9"); k("v_max_f32 v8, v8, v9")
        for r in range(16): k(f"v_xor_b32 v{C+r}, 0x80000000, v8")
        for r in range(16): k(f"v_mov_b32 v{O[ab]+r}, 0")
        k("s_mov_b32 s34, 0")
        k.label(f"AT_S2{ab}")
        k("s_add_u32 s36, s30, s34"); k("s_add_u32 s35, s31, s34")
        k(f"buffer_load_dwordx4 {vr(KF[0],4)}, v1, s[20:23], s36 offen sc1")
        k("s_mov_b64 exec, s[40:41]")
        k(f"buffer_load_dwordx4 {vr(VF[0][0],4)}, v2, s[20:23], s35 offen sc1")
        k(f"buffer_load_dwordx4 {vr(VF[0][1],4)}, v2, s[20:23], s35 offen offset:512 sc1")
        k("s_mov_b64 exec, -1")
        k("s_waitcnt vmcnt(0)")
        k(f"{MF} {vr(S[0],16)}, {vr(KF[0],4)}, {vr(Q[ab],4)}, {vr(C,16)}")
        for i in range(16): k(f"v_exp_f32 v{S[0]+i}, v{S[0]+i}")
        for i in range(8): k(f"v_cvt_pk_bf16_f32 v{P+i}, v{S[0]+2*i}, v{S[0]+2*i+1}")
        k(f"{MF} {vr(O[ab],16)}, {vr(VF[0][0],4)}, {vr(P,4)}, {vr(O[ab],16)}")
        k(f"{MF} {vr(O[ab],16)}, {vr(VF[0][1],4)}, {vr(P+4,4)}, {vr(O[ab],16)}")
        k("s_nop 15")
        k("s_add_u32 s34, s34, 1024"); k("s_cmp_lt_u32 s34, 65536"); k(f"s_cbranch_scc1 AT_S2{ab}")
    k("s_branch AT_FIN")

def gpoll(k, tag, saddr, sleep, vd="v4", va="v3", cnt="s28", mask=None):
    k(f"s_mov_b32 {cnt}, 0")
    if mask: k(f"s_mov_b64 exec, {mask}")
    k.label(f"{tag}_POLL")
    k(f"buffer_load_dword {vd}, {va}, s[20:23], {saddr} offen sc1")
    k("s_waitcnt vmcnt(0)")
    k(f"v_cmp_ne_u32 vcc, {TAG}, {vd}")
    k("s_cmp_eq_u64 vcc, 0")
    k(f"s_cbranch_scc1 {tag}_OUT")
    if OPT("NARROW", 1): k("s_mov_b64 exec, vcc")
    k(f"s_sleep {sleep}")
    k(f"s_add_u32 {cnt}, {cnt}, 1"); k(f"s_cmp_lt_u32 {cnt}, 0x100000")
    k(f"s_cbranch_scc1 {tag}_POLL")
    k.label(f"{tag}_OUT")
    k("s_mov_b64 exec, -1")
    k.label(f"{tag}_GO")

def gemm_part(k):
    WF = 16; XF = 32; ACC = 48; DV = 160
    GP = OPT("GPRIO"); GP2 = OPT("GPRIO2")
    tails = []
    g0 = len(k.ins)
    k("s_load_dwordx4 s[4:7], s[0:1], 32")
    k("s_load_dwordx2 s[48:49], s[0:1], 48")
    k("s_load_dwordx2 s[50:51], s[0:1], 0")
    k("s_load_dwordx2 s[56:57], s[0:1], 16")
    k("s_load_dwordx2 s[58:59], s[0:1], 56")
    k("v_lshlrev_b32 v1, 4, v0"); k("s_lshl_b32 s28, s24, 8"); k(f"s_add_u32 s28, s28, {PROG}"); k("v_lshl_add_u32 v11, v0, 2, s28")
    k("v_mov_b32 v13, 0"); k("v_mov_b32 v14, 0x3f803f80")
    k("v_and_b32 v2, 44, v0"); k("v_cmp_eq_u32 vcc, 0, v2"); k("v_cndmask_b32 v14, 0, v14, vcc")
    k("ds_write_b32 v11, v13"); k("v_add_u32 v2, -1024, v11"); k("ds_write_b32 v2, v13"); k("v_add_u32 v2, -2048, v11"); k("ds_write_b32 v2, v13")
    k(f"v_lshlrev_b32 v2, 2, v0"); k(f"v_add_u32 v2, {PAIR}, v2"); k("ds_write_b32 v2, v13")
    k("v_add_u32 v2, -4096, v11"); k("ds_write_b32 v2, v14"); k("ds_write_b32 v2, v14 offset:1024")
    k("s_sub_u32 s25, s24, 8")
    k("s_mov_b32 s60, 0x7fffffff")
    k("s_and_b32 s27, s2, 7"); k("s_lshr_b32 s62, s2, 5")
    k("s_lshl_b32 s52, s62, 1"); k("s_lshr_b32 s29, s27, 2"); k("s_add_u32 s52, s52, s29")
    k("s_and_b32 s26, s27, 3"); k("s_lshl_b32 s26, s26, 2"); k("s_bfe_u32 s29, s2, 0x20003"); k("s_add_u32 s26, s26, s29")
    k("s_lshl_b32 s29, s29, 1"); k("s_add_u32 s62, s62, s29"); k("s_and_b32 s62, s62, 7")
    if not OPT("UROT", 0): k("s_mov_b32 s62, 0")
    k("s_lshl_b32 s30, s52, 2"); k("s_add_u32 s30, s30, s25")
    k("s_mov_b32 s28, 4096")
    for i in range(7):
        k(f"v_add_u32 v2, {64*i}, v0")
        k("v_mul_u32_u24 v3, 4682, v2"); k("v_lshrrev_b32 v3, 16, v3")
        k(f"v_mul_u32_u24 v3, {3584 - 224}, v3"); k(f"v_add3_u32 v{DV+i}, v1, v3, {'0' if i < 4 else 's28'}")
    k("s_and_b32 s31, s25, 1"); k("s_mul_i32 s63, s31, 114688"); k("s_mul_i32 s33, s26, 224"); k("s_add_u32 s63, s63, s33")
    k("s_mul_i32 s33, s31, 7168"); k("s_lshr_b32 s34, s25, 1"); k(f"s_mul_i32 s34, s34, {UP_W3OFF}"); k("s_add_u32 s33, s33, s34"); k(f"s_add_u32 s33, s33, {GB}")
    k("s_lshl_b32 s64, s30, 15"); k(f"s_add_u32 s64, s64, {WS_XN}")
    k("s_mul_i32 s32, s62, 229376"); k("s_add_u32 s32, s32, s63")
    k("s_lshl_b32 s35, s62, 12"); k("s_add_u32 s35, s35, s64")
    k("s_mov_b32 s36, s33")
    k("s_waitcnt lgkmcnt(0)")
    k("s_cmp_lt_u32 s25, 2"); k("s_cselect_b32 s10, s4, s6"); k("s_cselect_b32 s11, s5, s7")
    srd(k, 12, 10, 512 * 3584); srd(k, 20, 8, WS_SIZE)
    k("v_mov_b32 v16, 0"); k(f"s_mov_b32 s28, {EPOCH}"); k("buffer_load_dword v17, v16, s[20:23], s28 offen sc1")
    def dma():
        out = ["s_mov_b32 m0, s36", "s_nop 0"]
        for i in range(7):
            if i == 4: out += ["s_add_u32 m0, s36, 4096", "s_nop 0"]
            out.append(f"buffer_load_dwordx4 v{DV+i}, s[12:15], s32 offen offset:{(i&3)*1024} lds")
        return out
    PF = OPT("PF2", 1)
    if PF:
        srd(k, 16, 48, 1792 * 1024)
        k("v_lshrrev_b32 v15, 3, v0"); k("v_lshlrev_b32 v15, 10, v15"); k("v_and_b32 v2, 7, v0"); k("v_lshl_add_u32 v15, v2, 4, v15")
        k("s_lshr_b32 s61, s2, 5"); k("s_lshl_b32 s61, s61, 2"); k("s_add_u32 s61, s61, s25"); k(f"s_mul_i32 s61, s61, {56*1024}")
        k("s_and_b32 s28, s26, 7"); k("s_lshl_b32 s28, s28, 7"); k("s_add_u32 s61, s61, s28")
    k("v_lshrrev_b32 v2, 5, v0"); k("v_lshlrev_b32 v2, 3, v2"); k("v_bfe_u32 v3, v0, 2, 2"); k("v_add_u32 v2, v2, v3")
    k("v_mul_u32_u24 v2, 224, v2"); k("v_bfe_u32 v3, v0, 4, 1"); k(f"v_mul_u32_u24 v3, {UP_W3OFF}, v3"); k("v_add_u32 v2, v2, v3")
    k("v_and_b32 v3, 3, v0"); k("v_lshl_add_u32 v8, v3, 3, v2"); k(f"v_add_u32 v8, {GB}, v8")
    k("v_and_b32 v12, 3, v0"); k("v_lshlrev_b32 v12, 8, v12"); k("v_lshl_add_u32 v12, v0, 2, v12"); k(f"v_add_u32 v12, {PROG + 2048}, v12")
    for r in range(112): k(f"v_mov_b32 v{ACC+r}, 0")
    k("v_mov_b32 v9, v8"); k(f"v_add_u32 v10, {UP_SLOT}, v8")
    k(f"s_mov_b32 s37, {2*UP_SLOT}")
    k("s_mov_b32 s39, 1"); k("v_mov_b32 v13, 1")
    k(f"s_mul_i32 s45, s52, {FSTR}"); k(f"s_add_u32 s45, s45, {XFLAG}"); k("v_lshlrev_b32 v3, 7, v0"); k(f"v_mov_b32 v2, {RELAY+4}")
    NPF = OPT("NPF", 4)
    EW = OPT("EW", 9)
    def w01():
        for x in dma(): k(x)
        k("s_add_u32 s62, s62, 1"); k("s_and_b32 s62, s62, 7"); k("s_mul_i32 s32, s62, 229376"); k("s_add_u32 s32, s32, s63")
        k(f"s_add_u32 s36, s33, {UP_SLOT}")
        for x in dma(): k(x)
    NSP = OPT("NSP", 2)
    n = len(k.ins) - g0
    for i in reversed(range(NSP)):
        k.ins.insert(g0 + OPT("SP0", 120) + i * (n - OPT("SP0", 120)) // NSP, Ins("s_barrier"))
    for i in range(9):
        if i >= NSP: k("s_barrier")
        if i == OPT("PFAT", 5) and NPF:
            k("s_lshr_b32 s28, s2, 3"); k("s_lshl_b32 s28, s28, 1"); k("s_add_u32 s28, s28, s31"); k(f"s_mul_i32 s28, s28, {NPF*3584}")
            k("s_and_b32 s29, s27, 3"); k("s_mul_i32 s29, s29, 896"); k("s_add_u32 s28, s28, s29")
            if OPT("PFOFF"): k(f"s_add_u32 s28, s28, {128*3584}")
            for j in range(NPF):
                k("buffer_load_dwordx4 v[4:7], v1, s[12:15], s28 offen"); k("s_add_u32 s28, s28, 3584")
        if i == EW: w01()
        if i == 3:
            k("s_waitcnt vmcnt(0)"); k(f"v_readfirstlane_b32 {TAG}, v17")
            k(f"s_mul_i32 {TAG}, {TAG}, 0x9e3779b1"); k(f"s_add_u32 {TAG}, {TAG}, 0x7f4a7c15")
            k(f"v_mov_b32 v17, {TAG}"); k("ds_write_b32 v2, v17 offset:8"); k("s_waitcnt lgkmcnt(0)")
    k.stamp()
    k.label("UW_REL")
    if OPT("GLATE"):
        k(f"v_mov_b32 v5, {RELAY}")
        k("s_sleep 2"); k("ds_read_b32 v4, v5"); k("s_waitcnt lgkmcnt(0)"); k("v_cmp_eq_u32 vcc, 1, v4"); k("s_cmp_eq_u64 vcc, -1"); k("s_cbranch_scc0 UW_REL")
    else:
        k("s_sleep 2"); k("ds_read_b32 v4, v2 offset:4"); k("s_waitcnt lgkmcnt(0)"); k("v_cmp_eq_u32 vcc, 8, v4"); k("s_cmp_eq_u64 vcc, -1"); k("s_cbranch_scc0 UW_REL")
    k("s_setprio 3")
    if EW > 8: w01()
    k("s_waitcnt vmcnt(7)")
    k("ds_write_b32 v11, v13")
    k("s_cmp_lg_u32 s25, 0"); k("s_cbranch_scc1 UX_REL")
    gpoll(k, "UX", "s45", OPT("XSLEEP", 6))
    k("v_mov_b32 v4, 1"); k("ds_write_b32 v2, v4"); k("s_branch UX_DONE")
    k.label("UX_REL")
    k("s_sleep 2"); k("ds_read_b32 v4, v2"); k("s_waitcnt lgkmcnt(0)"); k("v_cmp_eq_u32 vcc, 1, v4"); k("s_cmp_eq_u64 vcc, -1"); k("s_cbranch_scc0 UX_REL")
    k("s_waitcnt vmcnt(0)")
    k.label("UX_DONE")
    for s in range(4): k(f"buffer_load_dwordx4 {vr(XF+4*s,4)}, v1, s[20:23], s35 offen offset:{s*1024} sc1")
    if PF: k("buffer_load_dwordx4 v[4:7], v15, s[16:19], s61 offen")
    k("s_lshl_b32 s35, s62, 12"); k("s_add_u32 s35, s35, s64")
    k("s_add_u32 s62, s62, 1"); k("s_and_b32 s62, s62, 7"); k("s_mul_i32 s32, s62, 229376"); k("s_add_u32 s32, s32, s63")
    k("ds_read_b32 v14, v12"); k("s_waitcnt lgkmcnt(0)")
    tails.append(softcheck(k, "UB", "s39", "v14", "v12"))
    k("v_mov_b32 v13, 2")
    k(f"s_setprio {GP}")
    k(f"s_waitcnt vmcnt({1+PF})")
    k.stamp()
    def rd(m, areg):
        s, j = divmod(m, 7); o = s*3584 + j*32; d = WF + 4*(m & 3)
        return [f"ds_read_b64_tr_b16 {vr(d,2)}, {areg} offset:{o}", f"ds_read_b64_tr_b16 {vr(d+2,2)}, {areg} offset:{o+896}"]
    for m in range(4):
        for x in rd(m, "v9"): k(x)
    k.label("UP_LOOP")
    extra = []
    for m in range(28):
        s, j = divmod(m, 7)
        if j == 0: k(f"s_waitcnt vmcnt({(10 if s < 3 else 3) + PF})")
        cnt = 6
        if m in (17, 18, 19, 20): cnt = 7
        if m in (22, 23): cnt = 7
        if m == 24:
            k("s_waitcnt lgkmcnt(4)")
            k("s_add_u32 s39, s39, 1")
            k("s_setprio 3")
            tails.append(softcheck(k, "UP", "s39", "v14", "v12"))
            k("v_add_u32 v13, 1, v13")
            k(f"s_setprio {GP}")
            k("s_add_u32 s36, s33, s37")
            extra = dma()
        else:
            k(f"s_waitcnt lgkmcnt({cnt})")
        a = vr(ACC + 16*j, 16)
        k(f"{MF} {a}, {vr(WF+4*(m&3),4)}, {vr(XF+4*s,4)}, {a}")
        for x in (rd(m+4, "v9") if m < 24 else rd(m+4-28, "v10")): k(x)
        if m == 16:
            k(f"s_waitcnt vmcnt({3+PF})"); k("ds_write_b32 v11, v13")
        if m == 21: k("ds_read_b32 v14, v12")
        if m >= 24:
            for x in extra[[0,4,6,9,11][m-24]:[0,4,6,9,11][m-23]]: k(x)
        if j == 6: k(f"buffer_load_dwordx4 {vr(XF+4*s,4)}, v1, s[20:23], s35 offen offset:{s*1024} sc1")
    if PF:
        k("s_add_u32 s61, s61, 8192"); k("s_cmp_lt_u32 s39, 8"); k("s_cselect_b32 s61, s61, s60")
        k("buffer_load_dwordx4 v[4:7], v15, s[16:19], s61 offen")
    k("s_setprio 3")
    k("v_mov_b32 v9, v10"); k("v_add_u32 v10, s37, v8")
    k(f"s_setprio {GP}")
    k("s_lshl_b32 s35, s62, 12"); k("s_add_u32 s35, s35, s64")
    k("s_add_u32 s62, s62, 1"); k("s_and_b32 s62, s62, 7"); k("s_mul_i32 s32, s62, 229376"); k("s_add_u32 s32, s32, s63")
    k("s_cmp_lt_u32 s39, 7"); k("s_cselect_b32 s32, s32, s60")
    k("s_cmp_lt_u32 s39, 8"); k("s_cselect_b32 s35, s35, s60")
    k(f"s_add_u32 s37, s37, {UP_SLOT}"); k(f"s_cmp_eq_u32 s37, {3*UP_SLOT}"); k("s_cselect_b32 s37, 0, s37")
    k("s_cmp_lt_u32 s39, 9"); k("s_cbranch_scc1 UP_LOOP")
    k.stamp()
    k("s_setprio 3")
    k("s_mul_i32 s40, s30, 112"); k("s_lshr_b32 s41, s26, 2"); k("s_mul_i32 s41, s41, 28"); k("s_add_u32 s40, s40, s41"); k("s_and_b32 s41, s26, 3"); k("s_add_u32 s40, s40, s41")
    k("s_lshl_b32 s40, s40, 10"); k(f"s_add_u32 s40, s40, {WS_H}")
    k("s_waitcnt vmcnt(0) lgkmcnt(0)")
    k("ds_write_b32 v11, v13")
    k("ds_read_b32 v14, v12")
    ACD = 48; TF = 112; WD = [16, 24]; EP = 144
    k("s_lshl_b32 s53, s52, 1"); k("s_lshr_b32 s28, s26, 3"); k("s_add_u32 s53, s53, s28"); k("s_and_b32 s54, s26, 7")
    k("s_lshr_b32 s63, s25, 1"); k("s_and_b32 s64, s25, 1")
    srd(k, 12, 48, 1792 * 1024); srd(k, 16, 50, 2048 * 1024)
    k("v_lshrrev_b32 v2, 3, v0"); k("v_lshlrev_b32 v2, 10, v2")
    k("v_bfe_u32 v3, v0, 2, 1"); k("v_bfe_u32 v4, v0, 4, 1"); k("v_xor_b32 v3, v3, v4"); k("v_lshl_add_u32 v2, v3, 6, v2")
    k("v_and_b32 v3, 3, v0"); k("v_lshl_add_u32 v2, v3, 4, v2")
    k(f"v_add_u32 v15, {8192-1024}, v2")
    k("s_lshl_b32 s32, s25, 14"); k(f"s_add_u32 s32, s32, {GB}")
    k("v_lshrrev_b32 v8, 5, v0"); k("v_lshlrev_b32 v3, 2, v8"); k("v_bfe_u32 v4, v0, 2, 2"); k("v_add_u32 v3, v3, v4"); k("v_lshlrev_b32 v3, 7, v3")
    k("v_bfe_u32 v4, v0, 3, 1"); k("v_xor_b32 v4, s64, v4"); k("v_lshl_add_u32 v3, v4, 6, v3")
    k("v_bfe_u32 v4, v0, 4, 1"); k("v_lshl_add_u32 v3, v4, 5, v3"); k("v_and_b32 v4, 1, v0"); k("v_lshl_add_u32 v3, v4, 4, v3")
    k("v_bfe_u32 v4, v0, 1, 1"); k("v_lshl_add_u32 v3, v4, 3, v3")
    k("v_xor_b32 v4, 64, v3"); k("v_add_u32 v5, s32, v3"); k("v_add_u32 v6, s32, v4")
    k("v_add_u32 v9, 8192, v5"); k("v_add_u32 v10, 8192, v6")
    k(f"s_mul_i32 s33, s25, {28*16384}"); k("s_lshl_b32 s55, s54, 7"); k("s_add_u32 s33, s33, s55")
    k(f"s_mov_b32 s65, {7*16384}"); k(f"s_mov_b32 s66, {(-20*16384) & 0xffffffff}")
    k(f"s_mul_i32 s34, s53, {2*112*1024}"); k(f"s_mul_i32 s35, s25, {28*1024}"); k("s_add_u32 s34, s34, s35"); k(f"s_add_u32 s34, s34, {WS_H}")
    k(f"s_mul_i32 s28, s63, {112*1024}"); k(f"s_add_u32 s35, s34, {112*1024}"); k("s_sub_u32 s35, s35, s28"); k("s_add_u32 s34, s34, s28")
    k("s_lshr_b32 s38, s30, 1"); k("s_lshl_b32 s38, s38, 10"); k("s_lshr_b32 s28, s26, 2"); k("s_lshl_b32 s28, s28, 8"); k("s_add_u32 s38, s38, s28")
    k("s_and_b32 s28, s26, 3"); k("s_lshl_b32 s28, s28, 3"); k("s_add_u32 s38, s38, s28"); k("s_and_b32 s28, s30, 1"); k("s_lshl_b32 s28, s28, 2")
    k("s_add_u32 s38, s38, s28"); k(f"s_add_u32 s38, s38, {HFLAG}")
    k("s_lshl_b32 s45, s53, 10"); k("s_lshl_b32 s28, s25, 8"); k("s_add_u32 s45, s45, s28"); k(f"s_add_u32 s45, s45, {HFLAG}")
    k("v_and_b32 v3, 7, v0"); k("v_lshlrev_b32 v3, 2, v3"); k("v_mov_b32 v7, 0"); k(f"v_mov_b32 v167, {TAG}")
    k("s_waitcnt lgkmcnt(0)"); k("s_mov_b32 s39, 10")
    tails.append(softcheck(k, "U9", "s39", "v14", "v12"))
    def wdma(n, slot, base="s36"):
        return [f"s_add_u32 m0, {base}, {slot*2048}", "s_nop 0",
                "buffer_load_dwordx4 v2, s[12:15], s33 offen lds",
                "buffer_load_dwordx4 v15, s[12:15], s33 offen offset:1024 lds",
                f"s_add_u32 s33, s33, {'s66' if n % 4 == 3 else 's65'}"]
    k("s_mov_b32 s36, s32")
    NL2E = lit(-1.4426950408889634)
    def flag(off):
        k("s_mov_b64 exec, 1"); k(f"buffer_store_dword v167, v7, s[20:23], s38 offen offset:{off} sc1"); k("s_mov_b64 exec, -1")
    for j in range(7):
        a = ACC + 16*j; t = 16 + (j & 1)*12
        for r in range(8): k(f"v_mul_f32 v{t+r}, {NL2E}, v{a+r}")
        for r in range(8): k(f"v_exp_f32 v{t+r}, v{t+r}")
        for r in range(0, 8, 2): k(f"v_pk_mul_f32 {vr(a+r,2)}, {vr(a+r,2)}, {vr(a+8+r,2)}")
        for r in range(0, 8, 2): k(f"v_pk_add_f32 {vr(t+r,2)}, {vr(t+r,2)}, 1.0 op_sel_hi:[1,0]")
        for r in range(8): k(f"v_rcp_f32 v{t+r}, v{t+r}")
        for r in range(0, 8, 2): k(f"v_pk_mul_f32 {vr(a+r,2)}, {vr(a+r,2)}, {vr(t+r,2)}")
        for r in range(4): k(f"v_cvt_pk_bf16_f32 v{t+8+r}, v{a+2*r}, v{a+2*r+1}")
        if j == 6:
            k("s_waitcnt vmcnt(8)"); flag(0)
        k(f"buffer_store_dwordx4 {vr(t+8,4)}, v1, s[20:23], s40 offen sc1")
        k("s_add_u32 s40, s40, 4096")
        for x in wdma(j, j): k(x)
    k.stamp()
    k(f"buffer_load_dword v4, v3, s[20:23], s45 offen sc1")
    for r in range(64): k(f"v_mov_b32 v{ACD+r}, 0")
    k("v_and_b32 v152, 31, v0"); k("v_lshlrev_b32 v152, 10, v152"); k("v_lshl_add_u32 v152, v8, 4, v152")
    k("s_lshl_b32 s40, s53, 16"); k("s_lshl_b32 s41, s63, 15"); k("s_add_u32 s40, s40, s41"); k("s_add_u32 s40, s40, s55")
    k("s_lshl_b32 s41, s64, 6"); k("s_add_u32 s40, s40, s41")
    k("s_waitcnt vmcnt(3)"); flag(32)
    k("s_waitcnt vmcnt(1)")
    k(f"v_cmp_eq_u32 vcc, {TAG}, v4"); k("s_cmp_eq_u64 vcc, -1"); k("s_cbranch_scc1 DH_GO")
    gpoll(k, "DH", "s45", 4)
    k.stamp()
    def tload(s):
        return [f"buffer_load_dwordx4 {vr(TF+8*s,4)}, v1, s[20:23], s34 offen offset:{s*1024} sc1",
                f"buffer_load_dwordx4 {vr(TF+8*s+4,4)}, v1, s[20:23], s35 offen offset:{s*1024} sc1"]
    for s in range(4):
        for x in tload(s): k(x)
    def wreads(slot, buf, other):
        a0, a1 = ("v9", "v10") if other else ("v5", "v6")
        o = slot * 2048
        return [f"ds_read_b64_tr_b16 {vr(WD[buf],2)}, {a0} offset:{o}", f"ds_read_b64_tr_b16 {vr(WD[buf]+2,2)}, {a0} offset:{o+1024}",
                f"ds_read_b64_tr_b16 {vr(WD[buf]+4,2)}, {a1} offset:{o}", f"ds_read_b64_tr_b16 {vr(WD[buf]+6,2)}, {a1} offset:{o+1024}"]
    def mfl(buf, tf):
        out = []
        for a in range(2):
            for b in range(2):
                c = vr(ACD + (a*2+b)*16, 16)
                out.append(f"{MF} {c}, {vr(WD[buf]+4*b,4)}, {vr(tf+4*a,4)}, {c}")
        return out
    for x in wreads(0, 0, False): k(x)
    k("s_mov_b32 s42, 0"); k("s_mov_b32 s43, 0x7fffffff")
    k("s_add_u32 s44, s32, 8192"); k("s_add_u32 s45, s45, 32")
    k("s_lshl_b32 s67, s25, 17"); k("s_add_u32 s67, s67, s55"); k("s_and_b32 s57, s57, 0xffff")
    k(f"s_setprio {GP2}")
    k("s_waitcnt vmcnt(0)")
    for i in range(2): k(f"buffer_load_dwordx4 {vr(EP+4*i,4)}, v152, s[16:19], s40 offen offset:{32*i}")
    k.label("DN_LOOP")
    if OPT("HOLD", 0):
        k(f"s_cmp_lg_u32 s42, {OPT('HPOS', 12)}"); k("s_cbranch_scc1 DN_NOH")
        k(f"s_lshl_b32 s28, s25, 8"); k(f"s_add_u32 s28, s28, {PROG}"); k("v_lshrrev_b32 v153, 5, v0"); k("v_lshl_add_u32 v153, v153, 10, s28")
        k.label("DN_HOLD")
        k("s_sleep 4"); k("ds_read_b32 v154, v153"); k("s_waitcnt lgkmcnt(0)")
        k(f"v_cmp_le_u32 vcc, {OPT('HOLD', 0)}, v154"); k("s_cmp_eq_u64 vcc, -1" if OPT("HBOTH") else "s_cmp_lg_u64 vcc, 0"); k("s_cbranch_scc0 DN_HOLD")
        k.label("DN_NOH")
    k("s_cmp_lg_u32 s42, 12"); k("s_cbranch_scc1 DB_GO")
    gpoll(k, "DB", "s45", 4)
    k("s_add_u32 s34, s34, 4096"); k("s_add_u32 s35, s35, 4096")
    k("s_cmp_lt_u32 s42, 24"); k("s_cselect_b32 s34, s34, s43"); k("s_cselect_b32 s35, s35, s43")
    for s in range(4):
        k("s_waitcnt vmcnt(14) lgkmcnt(0)")
        for x in interleave(mfl(s & 1, TF + 8*s), wreads((s+1) & 3, (s+1) & 1, s == 3)): k(x)
        for x in tload(s): k(x)
        if s == 1:
            k("s_cmp_eq_u32 s42, 20")
            k("s_cselect_b32 s12, s56, s12"); k("s_cselect_b32 s13, s57, s13"); k(f"s_cselect_b32 s14, {512*1024}, s14")
            k("s_cselect_b32 s33, s67, s33"); k("s_cselect_b32 s65, 16384, s65"); k("s_cselect_b32 s66, 16384, s66")
        for x in (wdma(s+7, 3, "s44") if s == 0 else wdma(s+7, s-1)): k(x)
    k("s_setprio 3")
    k("v_swap_b32 v5, v9"); k("v_swap_b32 v6, v10")
    k(f"s_setprio {GP2}")
    k("s_mov_b32 s28, s36"); k("s_mov_b32 s36, s44"); k("s_mov_b32 s44, s28")
    k("s_add_u32 s42, s42, 4"); k("s_cmp_lt_u32 s42, 28"); k("s_cbranch_scc1 DN_LOOP")
    k.stamp()
    k("s_setprio 3")
    for x in wdma(0, 3, "s44"): k(x)
    srd(k, 16, 58, 2048 * 1024)
    for r in range(8):
        k(f"v_lshlrev_b32 v{32+2*r}, 16, v{EP+r}"); k(f"v_and_b32 v{33+2*r}, 0xffff0000, v{EP+r}")
    k("v_mov_b32 v160, v152")
    k(f"s_lshl_b32 s34, s53, 16"); k("s_lshl_b32 s35, s25, 13"); k("s_add_u32 s34, s34, s35"); k(f"s_add_u32 s34, s34, {WS_O}")
    k("s_lshl_b32 s28, s63, 15"); k("s_add_u32 s35, s34, 32768"); k("s_sub_u32 s35, s35, s28"); k("s_add_u32 s34, s34, s28")
    k("s_add_u32 s46, s34, 4096"); k("s_add_u32 s47, s35, 4096")
    k("s_lshl_b32 s45, s53, 8"); k("s_lshl_b32 s28, s25, 5"); k("s_add_u32 s45, s45, s28"); k(f"s_add_u32 s45, s45, {OFLAG}")
    for r in range(16): k(f"v_add_f32 v{ACD+r}, v{ACD+r}, v{32+r}")
    k("v_add_u32 v161, s32, v1")
    for t in (1, 2, 3):
        k(f"s_xor_b32 s28, s25, {t}"); k("s_lshl_b32 s28, s28, 14"); k(f"s_add_u32 s28, s28, {GB + (t-1)*4096}"); k(f"v_add_u32 v{161+t}, s28, v1")
    k("v_add_u32 v13, 1, v13")
    OG = [[112, 120, 128, 136], [32, 40, 144, 152]]
    k("s_mov_b32 s44, 0x11"); k("s_mov_b32 s28, 0")
    k("s_waitcnt lgkmcnt(0)")
    k.label("WO_POLL")
    k("buffer_load_dword v4, v3, s[20:23], s45 offen sc1")
    k("s_waitcnt vmcnt(0)")
    k(f"v_cmp_eq_u32 vcc, {TAG}, v4")
    k("s_add_u32 s28, s28, 1"); k("s_cmp_lt_u32 s28, 0x100000"); k("s_cselect_b32 s42, vcc_lo, -1")
    k("s_lshr_b32 s29, s42, 1"); k("s_and_b32 s42, s42, s29"); k("s_lshr_b32 s29, s42, 2"); k("s_and_b32 s42, s42, s29")
    k("s_and_b32 s42, s42, s44")
    k("s_cbranch_scc1 WO_GO")
    k(f"s_sleep {OPT('WSLEEP', 3)}"); k("s_branch WO_POLL")
    k.label("WO_GO")
    if OPT("WARM", 2) == 1: k.hops_begin("WB")
    k("s_andn2_b32 s44, s44, s42")
    for g in range(2):
        k(f"s_bitcmp1_b32 s42, {4*g}"); k(f"s_cbranch_scc0 WO_L{g}")
        sa, sb = ("s34", "s35") if g == 0 else ("s46", "s47")
        for h in range(4):
            k(f"buffer_load_dwordx4 {vr(OG[g][h],4)}, v1, s[20:23], {sa} offen offset:{h*1024} sc1")
            k(f"buffer_load_dwordx4 {vr(OG[g][h]+4,4)}, v1, s[20:23], {sb} offen offset:{h*1024} sc1")
        k.label(f"WO_L{g}")
    for g in range(2):
        k(f"s_bitcmp1_b32 s42, {4*g}"); k(f"s_cbranch_scc0 WO_C{g}")
        for x in wreads(0, 0, g == 1): k(x)
        if g == 0:
            k("s_bitcmp1_b32 s42, 4"); k("s_cbranch_scc1 WO_W8"); k("s_waitcnt vmcnt(0)"); k.label("WO_W8"); k("s_waitcnt vmcnt(8)")
        else: k("s_waitcnt vmcnt(0)")
        for h in range(4):
            k("s_waitcnt lgkmcnt(0)")
            for x in interleave(mfl(h & 1, OG[g][h]), wreads(h+1, (h+1) & 1, g == 1) if h < 3 else []): k(x)
        k.label(f"WO_C{g}")
    if OPT("WARM", 2) == 1: k.hops_end("AQ_WR"); k.hops_begin("WC")
    k("s_cmp_lg_u32 s44, 0"); k("s_cbranch_scc1 WO_POLL")
    k.stamp()
    k("s_nop 5")
    for t in (1, 2, 3):
        for q in range(4): k(f"ds_write_b128 v161, {vr(ACD + t*16 + 4*q, 4)} offset:{(t-1)*4096 + q*1024}")
    k("ds_write_b32 v11, v13")
    k("ds_read_b32 v14, v12"); k("s_waitcnt lgkmcnt(0)"); k("s_mov_b32 s39, 11")
    tails.append(softcheck(k, "DC", "s39", "v14", "v12"))
    k.stamp()
    for q in range(4):
        for t in (1, 2, 3): k(f"ds_read_b128 {vr(ACD + t*16 + 4*q, 4)}, v{161+t} offset:{q*1024}")
    for q in range(4):
        k(f"s_waitcnt lgkmcnt({9 - 3*q})")
        for r in range(4*q, 4*q+4): k(f"v_add_f32 v{ACD+16+r}, v{ACD+16+r}, v{ACD+32+r}"); k(f"v_add_f32 v{ACD+r}, v{ACD+r}, v{ACD+48+r}")
        for r in range(4*q, 4*q+4): k(f"v_add_f32 v{ACD+r}, v{ACD+r}, v{ACD+16+r}")
        for r in range(2*q, 2*q+2): k(f"v_cvt_pk_bf16_f32 v{16+r}, v{ACD+2*r}, v{ACD+2*r+1}")
        if q & 1: k(f"buffer_store_dwordx4 {vr(16+4*(q>>1),4)}, v160, s[16:19], s40 offen offset:{32*(q>>1)}")
    if OPT("WARM", 2) == 1: k.hops_end("AQ_WR")
    k("s_add_u32 s28, s2, s25"); k("s_cmp_lg_u32 s28, 0"); k("s_cbranch_scc1 G_NOEP")
    k(f"v_mov_b32 v2, 0"); k(f"v_mov_b32 v3, {TAG}"); k(f"s_mov_b32 s28, {EPOCH}")
    k("s_mov_b64 exec, 1"); k("buffer_store_dword v3, v2, s[20:23], s28 offen sc1"); k("s_mov_b64 exec, -1")
    k.label("G_NOEP")
    finish(k, 2)
    for t in tails: t()

def gen_mega():
    k = Kern(NAME, 256, 768, LDS_TOTAL, 168, 72)
    k("s_cmp_ge_u32 s2, 256"); k("s_cbranch_scc1 M_END")
    k.stamp(True); k.stamp()
    k("s_load_dwordx2 s[8:9], s[0:1], 72")
    k("s_load_dwordx4 s[4:7], s[0:1], 0")
    k("v_lshrrev_b32 v1, 6, v0"); k("v_and_b32 v0, 63, v0"); k("v_readfirstlane_b32 s24, v1")
    k("s_cmp_ge_u32 s24, 8"); k("s_cbranch_scc1 M_GEMM")
    qkv_part(k)
    attn_part(k)
    k.label("M_GEMM")
    if Kern.DIAG: k.nst = 2
    k("s_waitcnt lgkmcnt(0)")
    gemm_part(k)
    k.label("M_END")
    k("s_endpgm")
    return k
```

```python
from common import *
import os
OPT = lambda n, d=0: int(os.environ.get(n, d))
MF = "v_mfma_f32_32x32x16_bf16"
MF16 = "v_mfma_f32_16x16x32_bf16"
UP_SLOT = 28928
UP_W3OFF = 14464
GB = 65536
ONES = GB + 3 * UP_SLOT
PROG = ONES + 2048
PAIR = PROG + 3072
SC = PAIR + 256
LDS_TOTAL = SC + 4096
assert ONES % 256 == 0 and LDS_TOTAL <= 163840 and ONES >= 131072
HFLAG = WS_FLAG
OFS = OPT("OFS", 2)
OFLAG = WS_FLAG + (32768 if OFS == 2 else 655360)
QFLAG = WS_FLAG + 131072
FSTR = 8192 + 256
XFLAG = WS_FLAG + 393216
RELAY = PAIR + 64
EPOCH = WS_FLAG + 65536 + 4096
TAG = "s70"
HS = 65536 + OPT("HPAD", 0)
QB = 24 * MB
if OPT("LAY") == 1:
    HS = 3 * 65536 + OPT("HPAD", 0); WS_Q = QB; WS_K = QB + 65536; WS_V = QB + 131072
elif OPT("HPAD") or OPT("RPAD"):
    WS_Q = QB; WS_K = QB + 32 * HS + OPT("RPAD"); WS_V = QB + 64 * HS + 2 * OPT("RPAD")
WS_SIZE = 32 * MB
NST = 14
NAME = "parallel_sum__softmax_full_mha__glu_gated_swiglu__prompt_kernel"

def load_tag(k):
    k(f"s_add_u32 s68, s8, {EPOCH}"); k("s_addc_u32 s69, s9, 0")
    k(f"s_load_dword {TAG}, s[68:69], 0"); k("s_waitcnt lgkmcnt(0)")
    k(f"s_mul_i32 {TAG}, {TAG}, 0x9e3779b1"); k(f"s_add_u32 {TAG}, {TAG}, 0x7f4a7c15")

def ln_scalars(k, s, q, mask, r, mb):
    k(f"v_mul_f32 {s}, {lit(1/512)}, {s}"); k(f"v_mul_f32 {q}, {lit(1/512)}, {q}")
    k(f"v_fma_f32 {q}, -{s}, {s}, {q}"); k(f"v_max_f32 {q}, 0, {q}")
    k(f"v_cvt_pk_bf16_f32 {s}, {s}, {q}")
    k(f"v_and_b32 {q}, {mask}, {s}"); k(f"v_lshlrev_b32 {mb}, 16, {s}")
    k(f"v_add_f32 {q}, {lit(1e-5)}, {q}")
    k(f"v_cvt_pk_bf16_f32 {q}, {q}, {q}"); k(f"v_lshlrev_b32 {q}, 16, {q}")
    k(f"v_sqrt_f32 {q}, {q}")
    k(f"v_cvt_pk_bf16_f32 {q}, {q}, {q}"); k(f"v_lshlrev_b32 {q}, 16, {q}")
    k(f"v_rcp_f32 {r}, {q}")

def qkv_part(k):
    k("s_and_b32 s27, s2, 7"); k("s_lshr_b32 s28, s2, 3")
    k("s_lshr_b32 s25, s27, 1"); k("s_lshl_b32 s25, s25, 3"); k("s_lshr_b32 s29, s28, 2"); k("s_add_u32 s25, s25, s29")
    k("s_and_b32 s26, s27, 1"); k("s_lshl_b32 s26, s26, 2"); k("s_and_b32 s29, s28, 3"); k("s_add_u32 s26, s26, s29")
    k("s_add_u32 s40, s25, s26"); k("s_and_b32 s40, s40, 7")
    if OPT("ROTM", 11) == 1: k("s_lshr_b32 s40, s25, 1"); k("s_add_u32 s40, s40, s26"); k("s_and_b32 s40, s40, 7")
    if OPT("ROTM") == 2: k("s_lshr_b32 s40, s25, 2"); k("s_add_u32 s40, s40, s26"); k("s_and_b32 s40, s40, 7")
    if OPT("ROTM") == 3: k("s_mov_b32 s40, s26")
    if OPT("ROTM", 11) >= 8:
        rm = OPT("ROTM", 11)
        if rm == 8: k("s_mov_b32 s40, 0")
        if rm == 9: k("s_and_b32 s40, s26, 1"); k("s_lshl_b32 s40, s40, 2")
        if rm == 10: k("s_and_b32 s40, s25, 1"); k("s_lshl_b32 s40, s40, 2")
        if rm == 11: k("s_lshr_b32 s40, s27, 0")
    elif OPT("ROTM", 11) >= 4:
        k("s_and_b32 s40, s26, 3"); k("s_lshl_b32 s40, s40, 1"); k("s_lshr_b32 s29, s26, 2"); k("s_add_u32 s40, s40, s29")
        k(f"s_and_b32 s29, s25, {(7, 6, 4, 0)[OPT('ROTM', 7) - 4]}"); k("s_add_u32 s40, s40, s29"); k("s_and_b32 s40, s40, 7")
    k("s_bfe_u32 s56, s24, 0x10001"); k("s_and_b32 s59, s24, 1")
    LD_FIRST = OPT("LDFIRST", 1)
    k("s_cmp_ge_u32 s24, 4" if LD_FIRST else "s_cmp_lt_u32 s24, 4"); k("s_cbranch_scc1 K1_COMP")
    k("s_and_b32 s57, s24, 3")
    k("v_lshrrev_b32 v40, 3, v0"); k("v_lshlrev_b32 v44, 10, v40")
    k("v_lshrrev_b32 v41, 4, v0"); k("v_and_b32 v42, 7, v0")
    k("v_xor_b32 v43, v41, v42"); k("v_lshl_add_u32 v1, v43, 4, v44")
    k("v_xor_b32 v43, 4, v43"); k("v_lshl_add_u32 v2, v43, 4, v44"); k(f"v_add_u32 v2, {8192-1024}, v2")
    k("v_mul_u32_u24 v40, 3072, v40"); k("v_and_b32 v41, 1, v41"); k("v_lshlrev_b32 v41, 2, v41"); k("v_xor_b32 v41, v41, v42"); k("v_lshl_add_u32 v3, v41, 4, v40")
    k("s_lshl_b32 s31, s25, 16"); k("s_lshl_b32 s33, s57, 14"); k("s_add_u32 s31, s31, s33")
    k("s_lshl_b32 s32, s57, 11")
    k("s_mul_i32 s35, s57, 49152"); k("s_lshl_b32 s33, s26, 7"); k("s_add_u32 s35, s35, s33")
    k("s_mul_i32 s36, s57, 6144"); k("s_add_u32 s36, s36, 8192")
    k("s_mov_b32 s42, 0"); k("s_mov_b32 s43, 0x10000"); k("s_mov_b32 s41, s40")
    k("s_waitcnt lgkmcnt(0)")
    srd(k, 12, 4, 2048 * 1024); srd(k, 16, 6, 512 * 3072)
    def issue():
        o = ["s_lshl_b32 s33, s41, 7", "s_add_u32 m0, s43, s32", "s_add_u32 s33, s33, s31",
             "buffer_load_dwordx4 v1, s[12:15], s33 offen lds",
             "buffer_load_dwordx4 v2, s[12:15], s33 offen offset:1024 lds",
             "s_mul_i32 s33, s41, 196608", "s_add_u32 m0, s43, s36", "s_add_u32 s33, s33, s35"]
        o += [f"buffer_load_dwordx4 v3, s[16:19], s33 offen offset:{blk*1024} lds" for blk in range(3)]
        o += ["s_add_u32 m0, m0, 3072", "s_add_u32 s33, s33, 24576"]
        o += [f"buffer_load_dwordx4 v3, s[16:19], s33 offen offset:{blk*1024} lds" for blk in range(3)]
        o += ["s_add_u32 s41, s41, 1", "s_and_b32 s41, s41, 7", "s_add_u32 s43, s43, 32768", "s_and_b32 s43, s43, 0x1ffff"]
        return o
    D0 = 3 if OPT("DEEP", 2) == 2 else 2
    k.label("K1_LP")
    for x in issue(): k(x)
    k("s_add_u32 s42, s42, 1"); k(f"s_cmp_lt_u32 s42, {D0}"); k("s_cbranch_scc1 K1_LP")
    k("v_and_b32 v48, 31, v0"); k("v_lshrrev_b32 v49, 5, v0"); k("v_bfe_u32 v50, v0, 1, 3")
    k("s_lshl_b32 s33, s56, 12"); k("v_lshl_add_u32 v51, v48, 7, s33")
    k("s_lshl_b32 s33, s59, 2"); k("v_or_b32 v52, s33, v49"); k("v_xor_b32 v52, v52, v50"); k("v_lshl_add_u32 v4, v52, 4, v51"); k("v_xor_b32 v5, 32, v4")
    k("v_add_u32 v8, 0x10000, v4"); k("v_add_u32 v9, 0x10000, v5"); k("v_mov_b32 v13, 0xffff0000")
    for r in range(54, 62): k(f"v_mov_b32 v{r}, 0")
    srd(k, 20, 8, WS_SIZE)
    k("s_mov_b32 s42, 0"); k("s_mov_b32 s44, 0x10000")
    k.stamp()
    KEEP = OPT("ROTM", 11) >= 8
    if KEEP: k("s_sub_u32 s45, s26, s40"); k("s_and_b32 s45, s45, 7")
    def keep():
        if KEEP:
            l = k.uid("KP"); k("s_cmp_lg_u32 s42, s45"); k(f"s_cbranch_scc1 {l}")
            for r in range(16): k(f"v_mov_b32 v{64+r}, v{24+r}")
            k.label(l)
    def stats():
        o = []
        for r in range(8):
            o += [f"v_lshlrev_b32 v{24+2*r}, 16, v{16+r}", f"v_and_b32 v{25+2*r}, v13, v{16+r}"]
        for r in range(16):
            o += [f"v_add_f32 v{54+(r&3)}, v{54+(r&3)}, v{24+r}", f"v_fmac_f32 v{58+(r&3)}, v{24+r}, v{24+r}"]
        return o
    head = ["s_barrier", "ds_read_b128 v[16:19], v8", "ds_read_b128 v[20:23], v9",
            "s_add_u32 s44, s44, 32768", "s_and_b32 s44, s44, 0x1ffff", "v_add_u32 v8, s44, v4", "v_add_u32 v9, s44, v5"]
    DEEP = OPT("DEEP", 2)
    if DEEP == 1:
        k("s_waitcnt vmcnt(8)")
        for x in head: k(x)
        iss = issue()
        for x in iss[:5]: k(x)
        k("s_waitcnt lgkmcnt(0)")
        for x in interleave(iss[5:] + issue(), stats()): k(x)
        keep()
        k("s_mov_b32 s42, 1")
    k.label("K1_LA")
    k(f"s_waitcnt vmcnt({16 if DEEP else 8})")
    for x in head: k(x)
    iss = issue()
    for x in iss[:5]: k(x)
    k("s_waitcnt lgkmcnt(0)")
    for x in interleave(iss[5:], stats()): k(x)
    keep()
    k("s_add_u32 s42, s42, 1"); k(f"s_cmp_lt_u32 s42, {5 if DEEP else 6}"); k("s_cbranch_scc1 K1_LA")
    k(f"s_waitcnt vmcnt({16 if DEEP else 8})")
    k.label("K1_LB")
    for x in head: k(x)
    k("s_waitcnt lgkmcnt(0)")
    for x in stats(): k(x)
    keep()
    k("s_add_u32 s42, s42, 1")
    if DEEP:
        k("s_waitcnt vmcnt(8)"); k("s_cmp_lt_u32 s42, 7"); k("s_cbranch_scc1 K1_LB")
    k("s_waitcnt vmcnt(0)"); k("s_cmp_lt_u32 s42, 8"); k("s_cbranch_scc1 K1_LB")
    k.stamp()
    k("v_add_f32 v54, v54, v55"); k("v_add_f32 v56, v56, v57"); k("v_add_f32 v58, v58, v59"); k("v_add_f32 v60, v60, v61")
    k("v_add_f32 v54, v54, v56"); k("v_add_f32 v58, v58, v60"); k("v_mov_b32 v55, v54"); k("v_mov_b32 v59, v58")
    k("s_lshl_b32 s33, s56, 9"); k(f"s_add_u32 s33, s33, {SC+2048}"); k("v_lshl_add_u32 v6, v48, 4, s33")
    k("v_permlane32_swap_b32 v54, v55"); k("v_permlane32_swap_b32 v58, v59")
    k("s_lshl_b32 s33, s59, 3"); k("v_add_u32 v7, s33, v6")
    k("v_add_f32 v54, v54, v55"); k("v_add_f32 v55, v58, v59")
    k("ds_write_b64 v7, v[54:55]")
    k("s_waitcnt lgkmcnt(0)"); k("s_barrier")
    k("ds_read_b128 v[54:57], v6")
    if KEEP: k("s_add_u32 s40, s26, 1")
    k("s_add_u32 s38, s40, 7"); k("s_and_b32 s38, s38, 7"); k("s_lshl_b32 s38, s38, 12"); k("s_lshl_b32 s39, s59, 11"); k("s_add_u32 s38, s38, s39")
    k("s_lshl_b32 s39, s25, 16"); k("s_add_u32 s38, s38, s39"); k("s_lshl_b32 s39, s56, 15"); k("s_add_u32 s38, s38, s39"); k(f"s_add_u32 s38, s38, {WS_XN}")
    k("v_lshlrev_b32 v15, 4, v0")
    k("s_waitcnt lgkmcnt(0)")
    k("v_add_f32 v54, v54, v56"); k("v_add_f32 v55, v55, v57")
    ln_scalars(k, "v54", "v55", "v13", "v12", "v14")
    k("v_mul_f32 v14, -v14, v12")
    for r in range(16): k(f"v_fma_f32 v{24+r}, v{(64 if KEEP else 24)+r}, v12, v14")
    for r in range(8): k(f"v_cvt_pk_bf16_f32 v{16+r}, v{24+2*r}, v{25+2*r}")
    if OPT("XNLATE"):
        k(f"v_mov_b32 v40, {RELAY+8}")
        k.label("XN_W"); k("s_sleep 1"); k("ds_read_b32 v41, v40"); k("s_waitcnt lgkmcnt(0)"); k("v_cmp_le_u32 vcc, 4, v41"); k("s_cmp_eq_u64 vcc, -1"); k("s_cbranch_scc0 XN_W")
    k("buffer_store_dwordx4 v[16:19], v15, s[20:23], s38 offen sc1")
    k("buffer_store_dwordx4 v[20:23], v15, s[20:23], s38 offen offset:1024 sc1")
    k("s_add_u32 s44, s40, 7"); k("s_and_b32 s44, s44, 7"); k("s_lshl_b32 s44, s44, 1"); k("s_add_u32 s44, s44, s59"); k("s_lshl_b32 s44, s44, 7")
    k("s_lshr_b32 s39, s25, 1"); k(f"s_mul_i32 s39, s39, {FSTR}"); k("s_add_u32 s44, s44, s39"); k("s_and_b32 s39, s25, 1"); k("s_lshl_b32 s39, s39, 12"); k("s_add_u32 s44, s44, s39")
    k("s_lshl_b32 s39, s56, 11"); k("s_add_u32 s44, s44, s39"); k(f"s_add_u32 s44, s44, {XFLAG}")
    k("s_branch AT_ENTRY")
    if Kern.DIAG: k.nst = 2
    FS = [16, 32, 48, 64]
    ACC = 80; CS = 128; SEL = 140
    k.label("K1_COMP")
    k("v_and_b32 v144, 31, v0"); k("v_lshrrev_b32 v145, 5, v0"); k("v_bfe_u32 v146, v0, 1, 3")
    k("s_lshl_b32 s33, s56, 12"); k("v_lshl_add_u32 v147, v144, 7, s33")
    k("s_lshl_b32 s33, s56, 2"); k("v_or_b32 v148, s33, v145"); k("v_xor_b32 v148, v148, v146"); k("v_lshl_add_u32 v4, v148, 4, v147")
    for j in (1, 2, 3): k(f"v_xor_b32 v{4+j}, {32*j}, v4")
    k("v_mul_u32_u24 v147, 3072, v145"); k("v_bfe_u32 v148, v0, 2, 2"); k("v_lshl_add_u32 v147, v148, 7, v147")
    k("v_bfe_u32 v148, v0, 3, 1"); k("v_xor_b32 v148, s59, v148"); k("v_lshl_add_u32 v147, v148, 6, v147")
    k("v_bfe_u32 v149, v0, 4, 1"); k("v_lshl_add_u32 v147, v149, 5, v147"); k("v_and_b32 v148, 3, v0"); k("v_lshl_add_u32 v147, v148, 3, v147")
    k("s_mul_i32 s33, s56, 12288"); k("s_add_u32 s34, s33, 8192"); k("v_add_u32 v8, s34, v147")
    k(f"s_sub_u32 s34, {8192+12288}, s33"); k("v_add_u32 v9, s34, v147")
    k("v_bfe_u32 v147, v0, 2, 1"); k("v_xor_b32 v147, v147, v149"); k("v_or_b32 v147, v147, v148")
    k("v_cmp_eq_u32 vcc, 0, v147"); k("v_mov_b32 v147, 0x3f803f80")
    k(f"v_cndmask_b32 v{SEL}, 0, v147, vcc")
    for r in (1, 2, 3): k(f"v_mov_b32 v{SEL+r}, v{SEL}")
    for r in range(FS[2], CS + 12): k(f"v_mov_b32 v{r}, 0")
    k("s_lshl_b32 s30, s25, 1"); k("s_add_u32 s30, s30, s56")
    k("s_lshl_b32 s33, s26, 1"); k("s_add_u32 s33, s33, s59"); k(f"s_mul_i32 s33, s33, {2*HS}"); k("s_lshl_b32 s34, s30, 10"); k("s_add_u32 s33, s33, s34")
    k(f"s_add_u32 s34, s33, {WS_K}"); k(f"s_add_u32 s35, s33, {WS_V}"); k(f"s_add_u32 s33, s33, {WS_Q}"); k(f"s_add_u32 s36, s33, {HS}"); k(f"s_add_u32 s37, s34, {HS}")
    k("v_lshlrev_b32 v15, 4, v0")
    k("s_lshl_b32 s38, s56, 9"); k(f"s_add_u32 s38, s38, {SC+2048}"); k("v_lshl_add_u32 v1, v144, 4, s38")
    k("s_lshl_b32 s38, s59, 10"); k(f"s_add_u32 s38, s38, {SC}"); k("v_lshl_add_u32 v2, v144, 5, s38")
    k("s_lshl_b32 s38, s56, 4"); k("v_add_u32 v10, s38, v2"); k("v_xor_b32 v2, 16, v10")
    k("s_and_b32 s38, s24, 3"); k("s_lshl_b32 s38, s38, 7"); k(f"s_add_u32 s38, s38, {SC+3072}")
    k("v_lshl_add_u32 v11, v144, 2, s38"); k("v_lshl_add_u32 v14, v145, 4, s38")
    k(f"v_mul_u32_u24 v3, {HS}, v149"); k("v_lshl_add_u32 v3, v145, 8, v3"); k("v_and_b32 v148, 15, v0"); k("v_lshl_add_u32 v3, v148, 4, v3")
    k("v_mov_b32 v13, 0xffff0000")
    k("s_mov_b32 s42, 0")
    k("s_waitcnt lgkmcnt(0)")
    srd(k, 20, 8, WS_SIZE)
    if OPT("TOUCH", 0):
        k("v_mov_b32 v150, 0"); k(f"s_mov_b32 s38, {EPOCH + 256}"); k(f"s_add_u32 s39, s33, {WS_XN - WS_Q}")
        k("s_mov_b64 exec, 1")
        for sg in ("s33", "s34", "s35", "s38"): k(f"buffer_load_dword v151, v150, s[20:23], {sg} offen sc1")
        k("s_mov_b64 exec, -1")
    QG = OPT("QWARM", 0)
    if QG:
        k("s_mov_b64 exec, 0")
        for w in range(4):
            k(f"s_cmp_eq_u32 s24, {4+w}"); k(f"s_cbranch_scc1 HOP_QE_{w*QG}")
        k.label("QE_WR"); k("s_mov_b64 exec, -1")
    k.stamp()
    def reads(j, off):
        f = FS[j]; w = "v8" if j < 2 else "v9"; o = off + (j & 1)*6144
        out = [f"ds_read_b128 {vr(f,4)}, v{4+j} offset:{off}"]
        for blk in range(3):
            out += [f"ds_read_b64_tr_b16 {vr(f+4+4*blk,2)}, {w} offset:{o+blk*1024}", f"ds_read_b64_tr_b16 {vr(f+6+4*blk,2)}, {w} offset:{o+blk*1024+512}"]
        return out
    def mfs(j):
        f = FS[j]; out = []
        for blk in range(3):
            a = vr(ACC + blk*16, 16); w = vr(f+4+4*blk, 4); x = vr(f, 4)
            out.append(f"{MF} {a}, {w}, {x}, {a}" if blk < 2 else f"{MF} {a}, {x}, {w}, {a}")
            if j < 2: out.append(f"{MF16} {vr(CS+4*blk,4)}, {vr(SEL,4)}, {w}, {vr(CS+4*blk,4)}")
        return out
    for i in range(6): k(f"v_xor_b32 v{4+i}, 0x10000, v{4+i}")
    k.label("K1_CL")
    for p in range(2):
        k("s_barrier")
        for j in range(4):
            if j >= 2: k("s_waitcnt lgkmcnt(7)")
            for x in interleave(mfs((j + 2) & 3), reads(j, p*32768)): k(x)
        if p == 1:
            for i in range(6): k(f"v_xor_b32 v{4+i}, 0x10000, v{4+i}")
            k("s_add_u32 s42, s42, 1"); k("s_cmp_lt_u32 s42, 4")
        k("s_waitcnt lgkmcnt(0)")
    k("s_cbranch_scc1 K1_CL")
    k.stamp()
    if QG: k.hops_begin("QE", (QG, "QE_WR"))
    for x in mfs(2): k(x)
    k(f"v_mov_b32 v{CS+1}, v{CS+4}"); k(f"v_mov_b32 v{CS+2}, v{CS+8}")
    k(f"ds_write_b128 v10, {vr(CS,4)}")
    for x in mfs(3): k(x)
    k("s_waitcnt lgkmcnt(0)"); k("s_barrier")
    k("ds_read_b128 v[16:19], v1"); k("ds_read_b128 v[20:23], v2")
    k("s_waitcnt lgkmcnt(1)")
    k("v_add_f32 v16, v16, v18"); k("v_add_f32 v17, v17, v19")
    ln_scalars(k, "v16", "v17", "v13", "v12", "v18")
    k("ds_write_b32 v11, v12")
    for q in range(4): k(f"ds_read_b128 {vr(48+4*q,4)}, v14 offset:{q*32}")
    k("v_cvt_pk_bf16_f32 v24, -v18, -v18"); k("v_lshrrev_b32 v25, 16, v24"); k("v_mov_b32 v26, 0"); k("v_mov_b32 v27, 0")
    k("s_mov_b32 exec_lo, 0"); k("v_mov_b32 v24, 0"); k("v_mov_b32 v25, 0"); k("s_mov_b32 exec_lo, -1")
    for b in range(3):
        c = 28 + 4*b
        k(f"v_add_f32 v{c+2}, v{CS+b}, v{20+b}")
        k(f"v_and_b32 v{c+3}, v13, v{c+2}"); k(f"v_sub_f32 v{c+2}, v{c+2}, v{c+3}")
        k(f"v_and_b32 v{c+1}, v13, v{c+2}"); k(f"v_sub_f32 v{c+2}, v{c+2}, v{c+1}")
        k(f"v_lshrrev_b32 v{c+3}, 16, v{c+3}"); k(f"v_or_b32 v{c}, v{c+3}, v{c+1}")
        k(f"v_lshrrev_b32 v{c+1}, 16, v{c+2}"); k(f"v_mov_b32 v{c+2}, 0"); k(f"v_mov_b32 v{c+3}, 0")
    for blk in (1, 2, 0):
        a = vr(ACC + blk*16, 16); c = vr(28+4*blk, 4)
        k(f"{MF} {a}, {c}, v[24:27], {a}" if blk < 2 else f"{MF} {a}, v[24:27], {c}, {a}")
    k(f"v_mul_f32 v10, {lit(QSCALE)}, v12")
    k("s_waitcnt lgkmcnt(0)")
    so = {0: ("s33", "s36"), 1: ("s34", "s37")}
    for blk in (1, 2, 0):
        a = ACC + blk*16
        for h in range(2):
            for r in range(8*h, 8*h+8):
                k(f"v_mul_f32 v{a+r}, {('v10', 'v12', 'v%d' % (48+r))[blk]}, v{a+r}")
            d = 16 + (blk*2+h)*4 if blk < 2 else 64 + 4*h
            if blk == 0: d = 72 + 4*h
            if blk == 1: d = 40 + 4*h
            for r in range(4): k(f"v_cvt_pk_bf16_f32 v{d+r}, v{a+8*h+2*r}, v{a+8*h+2*r+1}")
            if blk < 2: k(f"buffer_store_dwordx4 {vr(d,4)}, v15, s[20:23], {so[blk][h]} offen sc1")
            else: k(f"buffer_store_dwordx4 {vr(d,4)}, v3, s[20:23], s35 offen offset:{512*h} sc1")
    k("s_lshl_b32 s44, s26, 1"); k("s_add_u32 s44, s44, s59"); k(f"s_mul_i32 s44, s44, {FSTR}"); k("s_lshl_b32 s39, s30, 7"); k("s_add_u32 s44, s44, s39"); k(f"s_add_u32 s44, s44, {QFLAG}")

def softcheck(k, tag, sval, vdst, vaddr):
    k(f"v_cmp_le_u32 vcc, {sval}, {vdst}")
    k("s_cmp_eq_u64 vcc, -1")
    k(f"s_cbranch_scc0 {tag}_SPIN")
    k.label(f"{tag}_CONT")
    def tail():
        k.label(f"{tag}_SPIN")
        k("s_sleep 1")
        k(f"ds_read_b32 {vdst}, {vaddr}")
        k("s_waitcnt lgkmcnt(0)")
        k(f"v_cmp_le_u32 vcc, {sval}, {vdst}")
        k("s_cmp_eq_u64 vcc, -1")
        k(f"s_cbranch_scc0 {tag}_SPIN")
        k(f"s_branch {tag}_CONT")
    return tail

def finish(k, vtmp):
    if Kern.DIAG:
        k("s_waitcnt vmcnt(0)")
        while k.nst < NST - 1: k.stamp()
        k.stamp(True)
        k.dump_stamps(1, 24, vtmp, 8)
    k("s_endpgm")

def attn_part(k):
    S = [16, 32]; O = [48, 64]; C = 80; P = 96; Q = [104, 108]
    KF = [112, 116]; VF = [[120, 124], [128, 132]]; K0 = 136
    NG = OPT("AT_UNROLL", 2)
    tails = []
    k.label("AT_ENTRY")
    k.stamp()
    k(f"v_mov_b32 v150, {RELAY+12}"); k("ds_read_b32 v143, v150")
    if OPT("GOEARLY"):
        k("s_mov_b64 exec, 1"); k(f"v_mov_b32 v150, {RELAY+8}"); k("v_mov_b32 v151, 1"); k("ds_add_u32 v150, v151"); k("s_mov_b64 exec, -1")
    k("s_nop 1")
    k("v_lshlrev_b32 v1, 4, v0"); k("s_lshl_b32 s28, s24, 8"); k(f"s_add_u32 s28, s28, {PROG}"); k("v_lshl_add_u32 v11, v0, 2, s28")
    k("s_and_b32 s25, s2, 7"); k("s_lshl_b32 s25, s25, 2"); k("s_bfe_u32 s26, s2, 0x20003"); k("s_add_u32 s25, s25, s26")
    k("s_lshr_b32 s38, s24, 2"); k("s_and_b32 s39, s24, 3")
    k("s_lshr_b32 s26, s2, 5"); k("s_lshl_b32 s26, s26, 3"); k("s_lshl_b32 s28, s39, 1"); k("s_add_u32 s26, s26, s28")
    k(f"s_mul_i32 s27, s25, {HS}")
    k("s_lshr_b32 s28, s39, 1"); k(f"s_mul_i32 s28, s28, {WS_V - WS_K}"); k("s_add_u32 s30, s27, s28"); k(f"s_add_u32 s30, s30, {WS_K}")
    k("s_lshl_b32 s28, s38, 15"); k("s_add_u32 s30, s30, s28"); k("s_and_b32 s28, s39, 1"); k("s_lshl_b32 s28, s28, 10"); k("s_add_u32 s30, s30, s28")
    k("s_lshl_b32 s28, s24, 10")
    k("s_lshl_b32 s32, s26, 10"); k("s_add_u32 s32, s32, s27"); k(f"s_add_u32 s32, s32, {WS_Q}")
    k(f"s_add_u32 s33, s27, {WS_K}")
    k("s_mov_b32 m0, s28")
    k("v_lshrrev_b32 v2, 5, v0"); k("v_lshlrev_b32 v2, 8, v2"); k("v_and_b32 v3, 15, v0"); k("v_lshl_add_u32 v2, v3, 4, v2")
    k("s_lshl_b32 s29, s38, 12")
    k("v_add_u32 v15, s29, v1")
    k("v_bfe_u32 v10, v0, 4, 1"); k("v_add_u32 v10, -1, v10")
    k(f"s_add_u32 s31, s29, {2048 - ONES + (1<<32)}")
    k("v_and_b32 v3, s31, v10"); k(f"v_add_u32 v3, {ONES}, v3"); k("v_add_u32 v3, v3, v2")
    k("v_and_b32 v12, 3, v0"); k("v_lshlrev_b32 v12, 8, v12"); k("v_lshl_add_u32 v12, v0, 2, v12")
    k(f"s_lshl_b32 s31, s38, 10"); k(f"s_add_u32 s31, s31, {PROG}"); k("v_add_u32 v12, s31, v12")
    k("s_xor_b32 s31, s24, 4"); k("s_lshl_b32 s31, s31, 8"); k(f"s_add_u32 s31, s31, {PROG - 128}")
    k("s_mov_b32 exec_lo, 0"); k("v_lshl_add_u32 v12, v0, 2, s31"); k("s_mov_b32 exec_lo, -1")
    k("s_mov_b32 s40, 0x0000ffff"); k("s_mov_b32 s41, 0x0000ffff")
    for r in range(4): k(f"v_mov_b32 v{VF[1][1]+r}, 0")
    for r in range(32): k(f"v_mov_b32 v{O[0]+r}, 0")
    for r in range(4, 8): k(f"v_mov_b32 v{P+r}, 0")
    k("v_mov_b32 v5, v3"); k("v_add_u32 v6, 8192, v15"); k("v_and_b32 v7, 8192, v10"); k("v_add_u32 v7, v7, v3")
    k("v_lshrrev_b32 v13, 5, v0"); k("v_add_u32 v13, 1, v13")
    if OPT("QWARM", 0): k.hops_end("QE_WR")
    k("v_mov_b32 v142, 0"); k("s_waitcnt lgkmcnt(0)"); k(f"v_readfirstlane_b32 {TAG}, v143")
    k("s_mov_b64 exec, 1")
    k("s_waitcnt vmcnt(0)")
    k("buffer_store_dword v143, v142, s[20:23], s44 offen sc1")
    if not OPT("GOEARLY"): k(f"v_mov_b32 v140, {RELAY+8}"); k("v_mov_b32 v141, 1"); k("ds_add_u32 v140, v141")
    k("s_mov_b64 exec, -1")
    k.stamp()
    k("s_lshr_b32 s45, s25, 1"); k(f"s_mul_i32 s45, s45, {FSTR}"); k(f"s_add_u32 s45, s45, {QFLAG}"); k("v_lshlrev_b32 v140, 7, v0")
    k(f"v_mov_b32 v142, {RELAY}")
    if OPT("WARM", 2):
        k("s_cmp_ge_u32 s24, 4"); k("s_cbranch_scc1 AQ_NW")
        k("s_mov_b64 exec, 0")
        for w, nm in enumerate(("WA", "WB", "WC", "WD")):
            k(f"s_cmp_eq_u32 s24, {w}"); k(f"s_cbranch_scc1 HOP_{nm}_0")
        k.label("AQ_WR"); k("s_mov_b64 exec, -1")
        k.label("AQ_NW")
    k("s_cmp_lg_u32 s24, 4"); k("s_cbranch_scc1 AQ_REL")
    gpoll(k, "AQ", "s45", OPT("QSLEEP", 4), "v141", "v140", "s46")
    k("v_mov_b32 v141, 1"); k("ds_write_b32 v142, v141"); k("s_branch AQ_DONE")
    k.label("AQ_REL")
    k("s_sleep 1"); k("ds_read_b32 v141, v142"); k("s_waitcnt lgkmcnt(0)"); k("v_cmp_eq_u32 vcc, 1, v141"); k("s_cmp_eq_u64 vcc, -1"); k("s_cbranch_scc0 AQ_REL")
    k.label("AQ_DONE")
    if OPT("WARM", 2): k.hops_begin("WA")
    k.stamp()
    k(f"buffer_load_dwordx4 {vr(Q[0],4)}, v1, s[20:23], s32 offen sc1")
    k(f"buffer_load_dwordx4 {vr(Q[1],4)}, v1, s[20:23], s32 offen offset:1024 sc1")
    k(f"buffer_load_dwordx4 {vr(K0,4)}, v1, s[20:23], s33 offen sc1")
    for g in range(3):
        k("buffer_load_dwordx4 v1, s[20:23], s30 offen sc1 lds")
        k("s_add_u32 m0, m0, 8192"); k("s_add_u32 s30, s30, 2048")
    k("s_waitcnt vmcnt(3)")
    k(f"{MF} {vr(S[0],16)}, {vr(K0,4)}, {vr(Q[0],4)}, 0")
    k(f"{MF} {vr(S[1],16)}, {vr(K0,4)}, {vr(Q[1],4)}, 0")
    k("s_waitcnt vmcnt(1)")
    k("ds_write_b32 v11, v13")
    k("s_mov_b32 s34, 1")
    k(f"v_max3_f32 v8, v{S[0]}, v{S[0]+1}, v{S[0]+2}")
    for i in range(3, 31, 2): k(f"v_max3_f32 v8, v8, v{S[0]+i}, v{S[0]+i+1}")
    k(f"v_max_f32 v8, v8, v{S[0]+31}")
    k("ds_read_b32 v14, v12")
    k("v_mov_b32 v9, v8"); k("v_permlane32_swap_b32 v8, v9"); k("v_max_f32 v8, v8, v9")
    for r in range(16): k(f"v_xor_b32 v{C+r}, 0x80000000, v8")
    k("s_waitcnt lgkmcnt(0)")
    k("v_cmp_le_u32 vcc, v13, v14"); k("s_setprio 1"); k("s_cmp_eq_u32 vcc_lo, -1"); k("s_cbranch_scc0 AP_SPIN")
    k.label("AP_CONT")
    def tail(tag="AP"):
        k.label(f"{tag}_SPIN"); k("s_sleep 1"); k("ds_read_b32 v14, v12"); k("s_waitcnt lgkmcnt(0)")
        k("v_cmp_le_u32 vcc, v13, v14"); k("s_cmp_eq_u32 vcc_lo, -1"); k(f"s_cbranch_scc0 {tag}_SPIN"); k(f"s_branch {tag}_CONT")
    tails.append(tail)
    k.stamp()
    k(f"ds_read_b128 {vr(KF[0],4)}, v15")
    k(f"ds_read_b128 {vr(VF[0][0],4)}, v5"); k(f"ds_read_b128 {vr(VF[0][1],4)}, v5 offset:512")
    k(f"ds_read_b128 {vr(KF[1],4)}, v15 offset:1024")
    k("s_mov_b32 s37, 16384")
    k("s_waitcnt lgkmcnt(3)")
    k(f"{MF} {vr(S[0],16)}, {vr(KF[0],4)}, {vr(Q[0],4)}, {vr(C,16)}")
    k("s_nop 10")
    if OPT("WARM", 2): k.hops_end("AQ_WR")
    k.label("AT_LOOP")
    for gi in range(NG):
      if OPT("WARM", 2) == 2:
          if gi: k.hops_end("AQ_WR")
          k.hops_begin("WB" if gi == 0 else "WC")
      for t in range(2):
        for ab in range(2):
            Sa = S[ab]
            q = []
            def e(i, extra=None):
                k(f"v_exp_f32 v{Sa+i}, v{Sa+i}")
                if extra: k(extra)
                elif q: k(q.pop(0))
            c = lambda i: k(f"v_cvt_pk_bf16_f32 v{P+i}, v{Sa+2*i}, v{Sa+2*i+1}")
            if ab == 0:
                k(f"{MF} {vr(S[1],16)}, {vr(KF[t&1],4)}, {vr(Q[1],4)}, {vr(C,16)}")
                e(0, "ds_read_b32 v14, v12" if t == 0 else None); e(1); e(2); e(3)
                k(f"{MF} {vr(O[1],16)}, {vr(VF[(t+1)&1][1],4)}, {vr(P+4,4)}, {vr(O[1],16)}")
                va, vo = ("v5", 1024) if t == 0 else ("v7", 0)
                e(4, f"ds_read_b128 {vr(VF[(t+1)&1][0],4)}, {va} offset:{vo}")
                e(5)
                e(6, f"ds_read_b128 {vr(VF[(t+1)&1][1],4)}, {va} offset:{vo+512}")
                e(7); e(8)
                for i in range(4): c(i)
                e(9); e(10, "s_waitcnt lgkmcnt(4)")
                k(f"{MF} {vr(O[0],16)}, {vr(VF[t&1][0],4)}, {vr(P,4)}, {vr(O[0],16)}")
                e(11); e(12)
                e(13, "s_waitcnt lgkmcnt(2)")
                if t == 0:
                    k("v_cmp_le_u32 vcc, v13, v14")
                    e(14, "s_setprio 1" if OPT("BAL", 1) else None); e(15, "s_cmp_eq_u32 vcc_lo, -1")
                    if not OPT("X_NOSPIN"): k(f"s_cbranch_scc0 AT{gi}_SPIN")
                    k.label(f"AT{gi}_CONT")
                    k("v_add_u32 v13, 1, v13")
                    if OPT("BAL", 1):
                        k("s_cmp_eq_u32 vcc_hi, 0"); k(f"s_cbranch_scc1 AT{gi}_AHEAD"); k("s_setprio 2"); k.label(f"AT{gi}_AHEAD")
                    def tail(tag=f"AT{gi}"):
                        k.label(f"{tag}_SPIN"); k("s_sleep 1"); k("ds_read_b32 v14, v12"); k("s_waitcnt lgkmcnt(0)")
                        k("v_cmp_le_u32 vcc, v13, v14"); k("s_cmp_eq_u32 vcc_lo, -1"); k(f"s_cbranch_scc0 {tag}_SPIN"); k(f"s_branch {tag}_CONT")
                    tails.append(tail)
                else:
                    e(14); e(15)
                c(4); c(5); c(6); c(7)
            else:
                k(f"{MF} {vr(S[0],16)}, {vr(KF[(t+1)&1],4)}, {vr(Q[0],4)}, {vr(C,16)}")
                if t == 0:
                    e(0, "s_waitcnt vmcnt(0)"); e(1, "ds_write_b32 v11, v13")
                    e(2, f"ds_read_b128 {vr(KF[t&1],4)}, v6 offset:{t*1024}")
                    e(3, "s_cmp_ge_u32 s34, 14")
                else:
                    e(0, f"ds_read_b128 {vr(KF[t&1],4)}, v6 offset:{t*1024}"); e(1); e(2); e(3)
                k(f"{MF} {vr(O[0],16)}, {vr(VF[t&1][1],4)}, {vr(P+4,4)}, {vr(O[0],16)}")
                if t == 0:
                    k(f"s_cbranch_scc1 AT_NODMA{gi}")
                    k("buffer_load_dwordx4 v1, s[20:23], s30 offen sc1 lds")
                    k.label(f"AT_NODMA{gi}")
                    q += ["s_add_u32 s35, m0, 8192", "s_and_b32 m0, s35, 0xffff", "s_add_u32 s30, s30, 2048"]
                else:
                    q += ["s_add_u32 s34, s34, 1"]
                e(4); e(5); e(6); e(7); e(8)
                for i in range(4): c(i)
                e(9); e(10)
                k(f"{MF} {vr(O[1],16)}, {vr(VF[t&1][0],4)}, {vr(P,4)}, {vr(O[1],16)}")
                if t == 1:
                    k("v_mov_b32 v5, v7"); k("v_add_u32 v6, s37, v15"); k("v_and_b32 v7, s37, v10"); k("v_add_u32 v7, v7, v3")
                    q += ["s_add_u32 s37, s37, 8192", "s_and_b32 s37, s37, 0xffff", "s_cmp_lt_u32 s34, 17"]
                e(11); e(12); e(13); e(14); e(15)
                c(4); c(5); c(6); c(7)
    if OPT("WARM", 2) == 2: k.hops_end("AQ_WR")
    k("s_cbranch_scc1 AT_LOOP")
    if OPT("WARM", 2): k.hops_begin("WD")
    k(f"{MF} {vr(O[1],16)}, {vr(VF[1][1],4)}, {vr(P+4,4)}, {vr(O[1],16)}")
    k.stamp()
    if OPT("ABAR"): k("s_barrier")
    k("s_lshl_b32 s35, s39, 13")
    k("v_add_u32 v4, s35, v15")
    k("v_xor_b32 v5, 4096, v4")
    k("s_lshl_b32 s35, s39, 9"); k("s_add_u32 s35, s35, s29"); k("s_add_u32 s35, s35, 32768")
    k("v_lshl_add_u32 v6, v0, 2, s35"); k("v_xor_b32 v7, 4096, v6")
    k("s_lshl_b32 s35, s39, 2"); k(f"s_add_u32 s35, s35, {PAIR}"); k("v_mov_b32 v8, s35"); k("v_mov_b32 v9, 1")
    for ab in range(2):
        k(f"ds_write_b128 v4, {vr(O[ab],4)} offset:{ab*2048}"); k(f"ds_write_b128 v4, {vr(O[ab]+4,4)} offset:{ab*2048+1024}")
        k(f"ds_write_b32 v6, v{O[ab]+8} offset:{ab*256}")
    k("s_mov_b64 exec, 1")
    k("ds_add_rtn_u32 v9, v8, v9")
    k("s_mov_b64 exec, -1")
    for ab in range(2):
        k(f"ds_read_b128 {vr(S[ab],4)}, v5 offset:{ab*2048}"); k(f"ds_read_b128 {vr(S[ab]+4,4)}, v5 offset:{ab*2048+1024}")
        k(f"ds_read_b32 v{S[ab]+8}, v7 offset:{ab*256}")
    k("s_lshl_b32 s33, s26, 15"); k("s_lshl_b32 s34, s25, 10"); k("s_add_u32 s33, s33, s34"); k(f"s_add_u32 s33, s33, {WS_O}")
    k(f"v_mov_b32 v11, {lit(2.0**30)}"); k(f"v_mov_b32 v10, {lit(2.0**-30)}"); k(f"v_mov_b32 v14, 0x7f800000")
    k("s_waitcnt lgkmcnt(0)")
    k("v_readfirstlane_b32 s35, v9")
    k("s_cmp_eq_u32 s35, 0"); k("s_cbranch_scc1 AT_EXIT")
    for ab in range(2):
        for r in range(9): k(f"v_add_f32 v{O[ab]+r}, v{O[ab]+r}, v{S[ab]+r}")
    k(f"v_add_f32 v8, |v{O[0]}|, |v{O[1]}|")
    for ab in range(2):
        for i in range(1, 8): k(f"v_add_f32 v8, v8, |v{O[ab]+i}|")
    k(f"v_cmp_gt_f32 s[42:43], v14, v8")
    for ab in range(2):
        k(f"v_cmp_gt_f32 s[44:45], v11, v{O[ab]+8}"); k(f"v_cmp_lt_f32 s[46:47], v10, v{O[ab]+8}")
        k("s_and_b64 s[42:43], s[42:43], s[44:45]"); k("s_and_b64 s[42:43], s[42:43], s[46:47]")
    k("s_cmp_eq_u64 s[42:43], -1")
    k("s_cbranch_scc0 AT_SLOW")
    k.label("AT_FIN")
    k("s_add_u32 s34, s33, 32768")
    k(f"v_rcp_f32 v8, v{O[0]+8}"); k(f"v_rcp_f32 v9, v{O[1]+8}")
    for ab in range(2):
        for i in range(8): k(f"v_mul_f32 v{O[ab]+i}, v{8+ab}, v{O[ab]+i}")
        for i in range(4): k(f"v_cvt_pk_bf16_f32 v{P+4*ab+i}, v{O[ab]+2*i}, v{O[ab]+2*i+1}")
        k(f"buffer_store_dwordx4 {vr(P+4*ab,4)}, v1, s[20:23], s{33+ab} offen sc1")
    k("s_lshl_b32 s35, s26, 5"); k("s_add_u32 s35, s35, s25"); k(f"s_lshl_b32 s35, s35, {OFS}"); k(f"s_add_u32 s35, s35, {OFLAG}")
    k("v_mov_b32 v8, 0"); k(f"v_mov_b32 v9, {TAG}")
    k("s_mov_b64 exec, 1")
    k("s_waitcnt vmcnt(0)")
    k("buffer_store_dword v9, v8, s[20:23], s35 offen sc1")
    k("s_mov_b64 exec, -1")
    if OPT("WARM", 2): k.hops_end("AQ_WR")
    k.label("AT_EXIT")
    finish(k, 8)
    for t in tails: t()
    k.label("AT_SLOW")
    k(f"s_add_u32 s30, s27, {WS_K}"); k(f"s_add_u32 s31, s27, {WS_V}")
    for r in range(8): k(f"v_mov_b32 v{VF[0][0]+r}, 0x3f803f80")
    for ab in range(2):
        k("v_mov_b32 v8, 0xff800000"); k("s_mov_b32 s34, 0")
        k.label(f"AT_S1{ab}")
        k("s_add_u32 s36, s30, s34")
        k(f"buffer_load_dwordx4 {vr(KF[0],4)}, v1, s[20:23], s36 offen sc1")
        k("s_waitcnt vmcnt(0)")
        k(f"{MF} {vr(S[0],16)}, {vr(KF[0],4)}, {vr(Q[ab],4)}, 0")
        for i in range(0, 16, 2): k(f"v_max3_f32 v8, v8, v{S[0]+i}, v{S[0]+i+1}")
        k("s_add_u32 s34, s34, 1024"); k("s_cmp_lt_u32 s34, 65536"); k(f"s_cbranch_scc1 AT_S1{ab}")
        k("v_mov_b32 v9, v8"); k("v_permlane32_swap_b32 v8, v9"); k("v_max_f32 v8, v8, v9")
        for r in range(16): k(f"v_xor_b32 v{C+r}, 0x80000000, v8")
        for r in range(16): k(f"v_mov_b32 v{O[ab]+r}, 0")
        k("s_mov_b32 s34, 0")
        k.label(f"AT_S2{ab}")
        k("s_add_u32 s36, s30, s34"); k("s_add_u32 s35, s31, s34")
        k(f"buffer_load_dwordx4 {vr(KF[0],4)}, v1, s[20:23], s36 offen sc1")
        k("s_mov_b64 exec, s[40:41]")
        k(f"buffer_load_dwordx4 {vr(VF[0][0],4)}, v2, s[20:23], s35 offen sc1")
        k(f"buffer_load_dwordx4 {vr(VF[0][1],4)}, v2, s[20:23], s35 offen offset:512 sc1")
        k("s_mov_b64 exec, -1")
        k("s_waitcnt vmcnt(0)")
        k(f"{MF} {vr(S[0],16)}, {vr(KF[0],4)}, {vr(Q[ab],4)}, {vr(C,16)}")
        for i in range(16): k(f"v_exp_f32 v{S[0]+i}, v{S[0]+i}")
        for i in range(8): k(f"v_cvt_pk_bf16_f32 v{P+i}, v{S[0]+2*i}, v{S[0]+2*i+1}")
        k(f"{MF} {vr(O[ab],16)}, {vr(VF[0][0],4)}, {vr(P,4)}, {vr(O[ab],16)}")
        k(f"{MF} {vr(O[ab],16)}, {vr(VF[0][1],4)}, {vr(P+4,4)}, {vr(O[ab],16)}")
        k("s_nop 15")
        k("s_add_u32 s34, s34, 1024"); k("s_cmp_lt_u32 s34, 65536"); k(f"s_cbranch_scc1 AT_S2{ab}")
    k("s_branch AT_FIN")

def gpoll(k, tag, saddr, sleep, vd="v4", va="v3", cnt="s28", mask=None):
    k(f"s_mov_b32 {cnt}, 0")
    if mask: k(f"s_mov_b64 exec, {mask}")
    k.label(f"{tag}_POLL")
    k(f"buffer_load_dword {vd}, {va}, s[20:23], {saddr} offen sc1")
    k("s_waitcnt vmcnt(0)")
    k(f"v_cmp_ne_u32 vcc, {TAG}, {vd}")
    k("s_cmp_eq_u64 vcc, 0")
    k(f"s_cbranch_scc1 {tag}_OUT")
    if OPT("NARROW", 1): k("s_mov_b64 exec, vcc")
    k(f"s_sleep {sleep}")
    k(f"s_add_u32 {cnt}, {cnt}, 1"); k(f"s_cmp_lt_u32 {cnt}, 0x100000")
    k(f"s_cbranch_scc1 {tag}_POLL")
    k.label(f"{tag}_OUT")
    k("s_mov_b64 exec, -1")
    k.label(f"{tag}_GO")

def gemm_part(k):
    WF = 16; XF = 32; ACC = 48; DV = 160
    GP = OPT("GPRIO"); GP2 = OPT("GPRIO2")
    tails = []
    g0 = len(k.ins)
    k("s_load_dwordx4 s[4:7], s[0:1], 32")
    k("s_load_dwordx2 s[48:49], s[0:1], 48")
    k("s_load_dwordx2 s[50:51], s[0:1], 0")
    k("s_load_dwordx2 s[56:57], s[0:1], 16")
    k("s_load_dwordx2 s[58:59], s[0:1], 56")
    k("v_lshlrev_b32 v1, 4, v0"); k("s_lshl_b32 s28, s24, 8"); k(f"s_add_u32 s28, s28, {PROG}"); k("v_lshl_add_u32 v11, v0, 2, s28")
    k("v_mov_b32 v13, 0"); k("v_mov_b32 v14, 0x3f803f80")
    k("v_and_b32 v2, 44, v0"); k("v_cmp_eq_u32 vcc, 0, v2"); k("v_cndmask_b32 v14, 0, v14, vcc")
    k("ds_write_b32 v11, v13"); k("v_add_u32 v2, -1024, v11"); k("ds_write_b32 v2, v13"); k("v_add_u32 v2, -2048, v11"); k("ds_write_b32 v2, v13")
    k(f"v_lshlrev_b32 v2, 2, v0"); k(f"v_add_u32 v2, {PAIR}, v2"); k("ds_write_b32 v2, v13")
    k("v_add_u32 v2, -4096, v11"); k("ds_write_b32 v2, v14"); k("ds_write_b32 v2, v14 offset:1024")
    k("s_sub_u32 s25, s24, 8")
    k("s_mov_b32 s60, 0x7fffffff")
    k("s_and_b32 s27, s2, 7"); k("s_lshr_b32 s62, s2, 5")
    k("s_lshl_b32 s52, s62, 1"); k("s_lshr_b32 s29, s27, 2"); k("s_add_u32 s52, s52, s29")
    k("s_and_b32 s26, s27, 3"); k("s_lshl_b32 s26, s26, 2"); k("s_bfe_u32 s29, s2, 0x20003"); k("s_add_u32 s26, s26, s29")
    k("s_lshl_b32 s29, s29, 1"); k("s_add_u32 s62, s62, s29"); k("s_and_b32 s62, s62, 7")
    if not OPT("UROT", 0): k("s_mov_b32 s62, 0")
    k("s_lshl_b32 s30, s52, 2"); k("s_add_u32 s30, s30, s25")
    k("s_mov_b32 s28, 4096")
    for i in range(7):
        k(f"v_add_u32 v2, {64*i}, v0")
        k("v_mul_u32_u24 v3, 4682, v2"); k("v_lshrrev_b32 v3, 16, v3")
        k(f"v_mul_u32_u24 v3, {3584 - 224}, v3"); k(f"v_add3_u32 v{DV+i}, v1, v3, {'0' if i < 4 else 's28'}")
    k("s_and_b32 s31, s25, 1"); k("s_mul_i32 s63, s31, 114688"); k("s_mul_i32 s33, s26, 224"); k("s_add_u32 s63, s63, s33")
    k("s_mul_i32 s33, s31, 7168"); k("s_lshr_b32 s34, s25, 1"); k(f"s_mul_i32 s34, s34, {UP_W3OFF}"); k("s_add_u32 s33, s33, s34"); k(f"s_add_u32 s33, s33, {GB}")
    k("s_lshl_b32 s64, s30, 15"); k(f"s_add_u32 s64, s64, {WS_XN}")
    k("s_mul_i32 s32, s62, 229376"); k("s_add_u32 s32, s32, s63")
    k("s_lshl_b32 s35, s62, 12"); k("s_add_u32 s35, s35, s64")
    k("s_mov_b32 s36, s33")
    k("s_waitcnt lgkmcnt(0)")
    k("s_cmp_lt_u32 s25, 2"); k("s_cselect_b32 s10, s4, s6"); k("s_cselect_b32 s11, s5, s7")
    srd(k, 12, 10, 512 * 3584); srd(k, 20, 8, WS_SIZE)
    k("v_mov_b32 v16, 0"); k(f"s_mov_b32 s28, {EPOCH}"); k("buffer_load_dword v17, v16, s[20:23], s28 offen sc1")
    def dma():
        out = ["s_mov_b32 m0, s36", "s_nop 0"]
        for i in range(7):
            if i == 4: out += ["s_add_u32 m0, s36, 4096", "s_nop 0"]
            out.append(f"buffer_load_dwordx4 v{DV+i}, s[12:15], s32 offen offset:{(i&3)*1024} lds")
        return out
    PF = OPT("PF2", 1)
    if PF:
        srd(k, 16, 48, 1792 * 1024)
        k("v_lshrrev_b32 v15, 3, v0"); k("v_lshlrev_b32 v15, 10, v15"); k("v_and_b32 v2, 7, v0"); k("v_lshl_add_u32 v15, v2, 4, v15")
        k("s_lshr_b32 s61, s2, 5"); k("s_lshl_b32 s61, s61, 2"); k("s_add_u32 s61, s61, s25"); k(f"s_mul_i32 s61, s61, {56*1024}")
        k("s_and_b32 s28, s26, 7"); k("s_lshl_b32 s28, s28, 7"); k("s_add_u32 s61, s61, s28")
    k("v_lshrrev_b32 v2, 5, v0"); k("v_lshlrev_b32 v2, 3, v2"); k("v_bfe_u32 v3, v0, 2, 2"); k("v_add_u32 v2, v2, v3")
    k("v_mul_u32_u24 v2, 224, v2"); k("v_bfe_u32 v3, v0, 4, 1"); k(f"v_mul_u32_u24 v3, {UP_W3OFF}, v3"); k("v_add_u32 v2, v2, v3")
    k("v_and_b32 v3, 3, v0"); k("v_lshl_add_u32 v8, v3, 3, v2"); k(f"v_add_u32 v8, {GB}, v8")
    k("v_and_b32 v12, 3, v0"); k("v_lshlrev_b32 v12, 8, v12"); k("v_lshl_add_u32 v12, v0, 2, v12"); k(f"v_add_u32 v12, {PROG + 2048}, v12")
    for r in range(112): k(f"v_mov_b32 v{ACC+r}, 0")
    k("v_mov_b32 v9, v8"); k(f"v_add_u32 v10, {UP_SLOT}, v8")
    k(f"s_mov_b32 s37, {2*UP_SLOT}")
    k("s_mov_b32 s39, 1"); k("v_mov_b32 v13, 1")
    k(f"s_mul_i32 s45, s52, {FSTR}"); k(f"s_add_u32 s45, s45, {XFLAG}"); k("v_lshlrev_b32 v3, 7, v0"); k(f"v_mov_b32 v2, {RELAY+4}")
    NPF = OPT("NPF", 4)
    EW = OPT("EW", 9)
    def w01():
        for x in dma(): k(x)
        k("s_add_u32 s62, s62, 1"); k("s_and_b32 s62, s62, 7"); k("s_mul_i32 s32, s62, 229376"); k("s_add_u32 s32, s32, s63")
        k(f"s_add_u32 s36, s33, {UP_SLOT}")
        for x in dma(): k(x)
    NSP = OPT("NSP", 2)
    n = len(k.ins) - g0
    for i in reversed(range(NSP)):
        k.ins.insert(g0 + OPT("SP0", 120) + i * (n - OPT("SP0", 120)) // NSP, Ins("s_barrier"))
    for i in range(9):
        if i >= NSP: k("s_barrier")
        if i == OPT("PFAT", 5) and NPF:
            k("s_lshr_b32 s28, s2, 3"); k("s_lshl_b32 s28, s28, 1"); k("s_add_u32 s28, s28, s31"); k(f"s_mul_i32 s28, s28, {NPF*3584}")
            k("s_and_b32 s29, s27, 3"); k("s_mul_i32 s29, s29, 896"); k("s_add_u32 s28, s28, s29")
            if OPT("PFOFF"): k(f"s_add_u32 s28, s28, {128*3584}")
            for j in range(NPF):
                k("buffer_load_dwordx4 v[4:7], v1, s[12:15], s28 offen"); k("s_add_u32 s28, s28, 3584")
        if i == EW: w01()
        if i == 3:
            k("s_waitcnt vmcnt(0)"); k(f"v_readfirstlane_b32 {TAG}, v17")
            k(f"s_mul_i32 {TAG}, {TAG}, 0x9e3779b1"); k(f"s_add_u32 {TAG}, {TAG}, 0x7f4a7c15")
            k(f"v_mov_b32 v17, {TAG}"); k("ds_write_b32 v2, v17 offset:8"); k("s_waitcnt lgkmcnt(0)")
    k.stamp()
    k.label("UW_REL")
    if OPT("GLATE"):
        k(f"v_mov_b32 v5, {RELAY}")
        k("s_sleep 2"); k("ds_read_b32 v4, v5"); k("s_waitcnt lgkmcnt(0)"); k("v_cmp_eq_u32 vcc, 1, v4"); k("s_cmp_eq_u64 vcc, -1"); k("s_cbranch_scc0 UW_REL")
    else:
        k("s_sleep 2"); k("ds_read_b32 v4, v2 offset:4"); k("s_waitcnt lgkmcnt(0)"); k("v_cmp_eq_u32 vcc, 8, v4"); k("s_cmp_eq_u64 vcc, -1"); k("s_cbranch_scc0 UW_REL")
    k("s_setprio 3")
    if EW > 8: w01()
    k("s_waitcnt vmcnt(7)")
    k("ds_write_b32 v11, v13")
    k("s_cmp_lg_u32 s25, 0"); k("s_cbranch_scc1 UX_REL")
    gpoll(k, "UX", "s45", OPT("XSLEEP", 6))
    k("v_mov_b32 v4, 1"); k("ds_write_b32 v2, v4"); k("s_branch UX_DONE")
    k.label("UX_REL")
    k("s_sleep 2"); k("ds_read_b32 v4, v2"); k("s_waitcnt lgkmcnt(0)"); k("v_cmp_eq_u32 vcc, 1, v4"); k("s_cmp_eq_u64 vcc, -1"); k("s_cbranch_scc0 UX_REL")
    k("s_waitcnt vmcnt(0)")
    k.label("UX_DONE")
    for s in range(4): k(f"buffer_load_dwordx4 {vr(XF+4*s,4)}, v1, s[20:23], s35 offen offset:{s*1024} sc1")
    if PF: k("buffer_load_dwordx4 v[4:7], v15, s[16:19], s61 offen")
    k("s_lshl_b32 s35, s62, 12"); k("s_add_u32 s35, s35, s64")
    k("s_add_u32 s62, s62, 1"); k("s_and_b32 s62, s62, 7"); k("s_mul_i32 s32, s62, 229376"); k("s_add_u32 s32, s32, s63")
    k("ds_read_b32 v14, v12"); k("s_waitcnt lgkmcnt(0)")
    tails.append(softcheck(k, "UB", "s39", "v14", "v12"))
    k("v_mov_b32 v13, 2")
    k(f"s_setprio {GP}")
    k(f"s_waitcnt vmcnt({1+PF})")
    k.stamp()
    def rd(m, areg):
        s, j = divmod(m, 7); o = s*3584 + j*32; d = WF + 4*(m & 3)
        return [f"ds_read_b64_tr_b16 {vr(d,2)}, {areg} offset:{o}", f"ds_read_b64_tr_b16 {vr(d+2,2)}, {areg} offset:{o+896}"]
    for m in range(4):
        for x in rd(m, "v9"): k(x)
    k.label("UP_LOOP")
    extra = []
    for m in range(28):
        s, j = divmod(m, 7)
        if j == 0: k(f"s_waitcnt vmcnt({(10 if s < 3 else 3) + PF})")
        cnt = 6
        if m in (17, 18, 19, 20): cnt = 7
        if m in (22, 23): cnt = 7
        if m == 24:
            k("s_waitcnt lgkmcnt(4)")
            k("s_add_u32 s39, s39, 1")
            k("s_setprio 3")
            tails.append(softcheck(k, "UP", "s39", "v14", "v12"))
            k("v_add_u32 v13, 1, v13")
            k(f"s_setprio {GP}")
            k("s_add_u32 s36, s33, s37")
            extra = dma()
        else:
            k(f"s_waitcnt lgkmcnt({cnt})")
        a = vr(ACC + 16*j, 16)
        k(f"{MF} {a}, {vr(WF+4*(m&3),4)}, {vr(XF+4*s,4)}, {a}")
        for x in (rd(m+4, "v9") if m < 24 else rd(m+4-28, "v10")): k(x)
        if m == 16:
            k(f"s_waitcnt vmcnt({3+PF})"); k("ds_write_b32 v11, v13")
        if m == 21: k("ds_read_b32 v14, v12")
        if m >= 24:
            for x in extra[[0,4,6,9,11][m-24]:[0,4,6,9,11][m-23]]: k(x)
        if j == 6: k(f"buffer_load_dwordx4 {vr(XF+4*s,4)}, v1, s[20:23], s35 offen offset:{s*1024} sc1")
    if PF:
        k("s_add_u32 s61, s61, 8192"); k("s_cmp_lt_u32 s39, 8"); k("s_cselect_b32 s61, s61, s60")
        k("buffer_load_dwordx4 v[4:7], v15, s[16:19], s61 offen")
    k("s_setprio 3")
    k("v_mov_b32 v9, v10"); k("v_add_u32 v10, s37, v8")
    k(f"s_setprio {GP}")
    k("s_lshl_b32 s35, s62, 12"); k("s_add_u32 s35, s35, s64")
    k("s_add_u32 s62, s62, 1"); k("s_and_b32 s62, s62, 7"); k("s_mul_i32 s32, s62, 229376"); k("s_add_u32 s32, s32, s63")
    k("s_cmp_lt_u32 s39, 7"); k("s_cselect_b32 s32, s32, s60")
    k("s_cmp_lt_u32 s39, 8"); k("s_cselect_b32 s35, s35, s60")
    k(f"s_add_u32 s37, s37, {UP_SLOT}"); k(f"s_cmp_eq_u32 s37, {3*UP_SLOT}"); k("s_cselect_b32 s37, 0, s37")
    k("s_cmp_lt_u32 s39, 9"); k("s_cbranch_scc1 UP_LOOP")
    k.stamp()
    k("s_setprio 3")
    k("s_mul_i32 s40, s30, 112"); k("s_lshr_b32 s41, s26, 2"); k("s_mul_i32 s41, s41, 28"); k("s_add_u32 s40, s40, s41"); k("s_and_b32 s41, s26, 3"); k("s_add_u32 s40, s40, s41")
    k("s_lshl_b32 s40, s40, 10"); k(f"s_add_u32 s40, s40, {WS_H}")
    k("s_waitcnt vmcnt(0) lgkmcnt(0)")
    k("ds_write_b32 v11, v13")
    k("ds_read_b32 v14, v12")
    ACD = 48; TF = 112; WD = [16, 24]; EP = 144
    k("s_lshl_b32 s53, s52, 1"); k("s_lshr_b32 s28, s26, 3"); k("s_add_u32 s53, s53, s28"); k("s_and_b32 s54, s26, 7")
    k("s_lshr_b32 s63, s25, 1"); k("s_and_b32 s64, s25, 1")
    srd(k, 12, 48, 1792 * 1024); srd(k, 16, 50, 2048 * 1024)
    k("v_lshrrev_b32 v2, 3, v0"); k("v_lshlrev_b32 v2, 10, v2")
    k("v_bfe_u32 v3, v0, 2, 1"); k("v_bfe_u32 v4, v0, 4, 1"); k("v_xor_b32 v3, v3, v4"); k("v_lshl_add_u32 v2, v3, 6, v2")
    k("v_and_b32 v3, 3, v0"); k("v_lshl_add_u32 v2, v3, 4, v2")
    k(f"v_add_u32 v15, {8192-1024}, v2")
    k("s_lshl_b32 s32, s25, 14"); k(f"s_add_u32 s32, s32, {GB}")
    k("v_lshrrev_b32 v8, 5, v0"); k("v_lshlrev_b32 v3, 2, v8"); k("v_bfe_u32 v4, v0, 2, 2"); k("v_add_u32 v3, v3, v4"); k("v_lshlrev_b32 v3, 7, v3")
    k("v_bfe_u32 v4, v0, 3, 1"); k("v_xor_b32 v4, s64, v4"); k("v_lshl_add_u32 v3, v4, 6, v3")
    k("v_bfe_u32 v4, v0, 4, 1"); k("v_lshl_add_u32 v3, v4, 5, v3"); k("v_and_b32 v4, 1, v0"); k("v_lshl_add_u32 v3, v4, 4, v3")
    k("v_bfe_u32 v4, v0, 1, 1"); k("v_lshl_add_u32 v3, v4, 3, v3")
    k("v_xor_b32 v4, 64, v3"); k("v_add_u32 v5, s32, v3"); k("v_add_u32 v6, s32, v4")
    k("v_add_u32 v9, 8192, v5"); k("v_add_u32 v10, 8192, v6")
    k(f"s_mul_i32 s33, s25, {28*16384}"); k("s_lshl_b32 s55, s54, 7"); k("s_add_u32 s33, s33, s55")
    k(f"s_mov_b32 s65, {7*16384}"); k(f"s_mov_b32 s66, {(-20*16384) & 0xffffffff}")
    k(f"s_mul_i32 s34, s53, {2*112*1024}"); k(f"s_mul_i32 s35, s25, {28*1024}"); k("s_add_u32 s34, s34, s35"); k(f"s_add_u32 s34, s34, {WS_H}")
    k(f"s_mul_i32 s28, s63, {112*1024}"); k(f"s_add_u32 s35, s34, {112*1024}"); k("s_sub_u32 s35, s35, s28"); k("s_add_u32 s34, s34, s28")
    k("s_lshr_b32 s38, s30, 1"); k("s_lshl_b32 s38, s38, 10"); k("s_lshr_b32 s28, s26, 2"); k("s_lshl_b32 s28, s28, 8"); k("s_add_u32 s38, s38, s28")
    k("s_and_b32 s28, s26, 3"); k("s_lshl_b32 s28, s28, 3"); k("s_add_u32 s38, s38, s28"); k("s_and_b32 s28, s30, 1"); k("s_lshl_b32 s28, s28, 2")
    k("s_add_u32 s38, s38, s28"); k(f"s_add_u32 s38, s38, {HFLAG}")
    k("s_lshl_b32 s45, s53, 10"); k("s_lshl_b32 s28, s25, 8"); k("s_add_u32 s45, s45, s28"); k(f"s_add_u32 s45, s45, {HFLAG}")
    k("v_and_b32 v3, 7, v0"); k("v_lshlrev_b32 v3, 2, v3"); k("v_mov_b32 v7, 0"); k(f"v_mov_b32 v167, {TAG}")
    k("s_waitcnt lgkmcnt(0)"); k("s_mov_b32 s39, 10")
    tails.append(softcheck(k, "U9", "s39", "v14", "v12"))
    def wdma(n, slot, base="s36"):
        return [f"s_add_u32 m0, {base}, {slot*2048}", "s_nop 0",
                "buffer_load_dwordx4 v2, s[12:15], s33 offen lds",
                "buffer_load_dwordx4 v15, s[12:15], s33 offen offset:1024 lds",
                f"s_add_u32 s33, s33, {'s66' if n % 4 == 3 else 's65'}"]
    k("s_mov_b32 s36, s32")
    NL2E = lit(-1.4426950408889634)
    def flag(off):
        k("s_mov_b64 exec, 1"); k(f"buffer_store_dword v167, v7, s[20:23], s38 offen offset:{off} sc1"); k("s_mov_b64 exec, -1")
    for j in range(7):
        a = ACC + 16*j; t = 16 + (j & 1)*12
        for r in range(8): k(f"v_mul_f32 v{t+r}, {NL2E}, v{a+r}")
        for r in range(8): k(f"v_exp_f32 v{t+r}, v{t+r}")
        for r in range(0, 8, 2): k(f"v_pk_mul_f32 {vr(a+r,2)}, {vr(a+r,2)}, {vr(a+8+r,2)}")
        for r in range(0, 8, 2): k(f"v_pk_add_f32 {vr(t+r,2)}, {vr(t+r,2)}, 1.0 op_sel_hi:[1,0]")
        for r in range(8): k(f"v_rcp_f32 v{t+r}, v{t+r}")
        for r in range(0, 8, 2): k(f"v_pk_mul_f32 {vr(a+r,2)}, {vr(a+r,2)}, {vr(t+r,2)}")
        for r in range(4): k(f"v_cvt_pk_bf16_f32 v{t+8+r}, v{a+2*r}, v{a+2*r+1}")
        if j == 6:
            k("s_waitcnt vmcnt(8)"); flag(0)
        k(f"buffer_store_dwordx4 {vr(t+8,4)}, v1, s[20:23], s40 offen sc1")
        k("s_add_u32 s40, s40, 4096")
        for x in wdma(j, j): k(x)
    k.stamp()
    k(f"buffer_load_dword v4, v3, s[20:23], s45 offen sc1")
    for r in range(64): k(f"v_mov_b32 v{ACD+r}, 0")
    k("v_and_b32 v152, 31, v0"); k("v_lshlrev_b32 v152, 10, v152"); k("v_lshl_add_u32 v152, v8, 4, v152")
    k("s_lshl_b32 s40, s53, 16"); k("s_lshl_b32 s41, s63, 15"); k("s_add_u32 s40, s40, s41"); k("s_add_u32 s40, s40, s55")
    k("s_lshl_b32 s41, s64, 6"); k("s_add_u32 s40, s40, s41")
    k("s_waitcnt vmcnt(3)"); flag(32)
    k("s_waitcnt vmcnt(1)")
    k(f"v_cmp_eq_u32 vcc, {TAG}, v4"); k("s_cmp_eq_u64 vcc, -1"); k("s_cbranch_scc1 DH_GO")
    gpoll(k, "DH", "s45", 4)
    k.stamp()
    def tload(s):
        return [f"buffer_load_dwordx4 {vr(TF+8*s,4)}, v1, s[20:23], s34 offen offset:{s*1024} sc1",
                f"buffer_load_dwordx4 {vr(TF+8*s+4,4)}, v1, s[20:23], s35 offen offset:{s*1024} sc1"]
    for s in range(4):
        for x in tload(s): k(x)
    def wreads(slot, buf, other):
        a0, a1 = ("v9", "v10") if other else ("v5", "v6")
        o = slot * 2048
        return [f"ds_read_b64_tr_b16 {vr(WD[buf],2)}, {a0} offset:{o}", f"ds_read_b64_tr_b16 {vr(WD[buf]+2,2)}, {a0} offset:{o+1024}",
                f"ds_read_b64_tr_b16 {vr(WD[buf]+4,2)}, {a1} offset:{o}", f"ds_read_b64_tr_b16 {vr(WD[buf]+6,2)}, {a1} offset:{o+1024}"]
    def mfl(buf, tf):
        out = []
        for a in range(2):
            for b in range(2):
                c = vr(ACD + (a*2+b)*16, 16)
                out.append(f"{MF} {c}, {vr(WD[buf]+4*b,4)}, {vr(tf+4*a,4)}, {c}")
        return out
    for x in wreads(0, 0, False): k(x)
    k("s_mov_b32 s42, 0"); k("s_mov_b32 s43, 0x7fffffff")
    k("s_add_u32 s44, s32, 8192"); k("s_add_u32 s45, s45, 32")
    k("s_lshl_b32 s67, s25, 17"); k("s_add_u32 s67, s67, s55"); k("s_and_b32 s57, s57, 0xffff")
    k(f"s_setprio {GP2}")
    k("s_waitcnt vmcnt(0)")
    for i in range(2): k(f"buffer_load_dwordx4 {vr(EP+4*i,4)}, v152, s[16:19], s40 offen offset:{32*i}")
    k.label("DN_LOOP")
    if OPT("HOLD", 0):
        k(f"s_cmp_lg_u32 s42, {OPT('HPOS', 12)}"); k("s_cbranch_scc1 DN_NOH")
        k(f"s_lshl_b32 s28, s25, 8"); k(f"s_add_u32 s28, s28, {PROG}"); k("v_lshrrev_b32 v153, 5, v0"); k("v_lshl_add_u32 v153, v153, 10, s28")
        k.label("DN_HOLD")
        k("s_sleep 4"); k("ds_read_b32 v154, v153"); k("s_waitcnt lgkmcnt(0)")
        k(f"v_cmp_le_u32 vcc, {OPT('HOLD', 0)}, v154"); k("s_cmp_eq_u64 vcc, -1" if OPT("HBOTH") else "s_cmp_lg_u64 vcc, 0"); k("s_cbranch_scc0 DN_HOLD")
        k.label("DN_NOH")
    if OPT("HBAR"):
        k(f"s_cmp_lg_u32 s42, {OPT('HBAR')}"); k("s_cbranch_scc1 DN_NOB"); k("s_barrier"); k.label("DN_NOB")
    k("s_cmp_lg_u32 s42, 12"); k("s_cbranch_scc1 DB_GO")
    gpoll(k, "DB", "s45", 4)
    k("s_add_u32 s34, s34, 4096"); k("s_add_u32 s35, s35, 4096")
    k("s_cmp_lt_u32 s42, 24"); k("s_cselect_b32 s34, s34, s43"); k("s_cselect_b32 s35, s35, s43")
    for s in range(4):
        k("s_waitcnt vmcnt(14) lgkmcnt(0)")
        for x in interleave(mfl(s & 1, TF + 8*s), wreads((s+1) & 3, (s+1) & 1, s == 3)): k(x)
        for x in tload(s): k(x)
        if s == 1:
            k("s_cmp_eq_u32 s42, 20")
            k("s_cselect_b32 s12, s56, s12"); k("s_cselect_b32 s13, s57, s13"); k(f"s_cselect_b32 s14, {512*1024}, s14")
            k("s_cselect_b32 s33, s67, s33"); k("s_cselect_b32 s65, 16384, s65"); k("s_cselect_b32 s66, 16384, s66")
        for x in (wdma(s+7, 3, "s44") if s == 0 else wdma(s+7, s-1)): k(x)
    k("s_setprio 3")
    k("v_swap_b32 v5, v9"); k("v_swap_b32 v6, v10")
    k(f"s_setprio {GP2}")
    k("s_mov_b32 s28, s36"); k("s_mov_b32 s36, s44"); k("s_mov_b32 s44, s28")
    k("s_add_u32 s42, s42, 4"); k("s_cmp_lt_u32 s42, 28"); k("s_cbranch_scc1 DN_LOOP")
    k.stamp()
    k("s_setprio 3")
    for x in wdma(0, 3, "s44"): k(x)
    srd(k, 16, 58, 2048 * 1024)
    for r in range(8):
        k(f"v_lshlrev_b32 v{32+2*r}, 16, v{EP+r}"); k(f"v_and_b32 v{33+2*r}, 0xffff0000, v{EP+r}")
    k("v_mov_b32 v160, v152")
    k(f"s_lshl_b32 s34, s53, 16"); k("s_lshl_b32 s35, s25, 13"); k("s_add_u32 s34, s34, s35"); k(f"s_add_u32 s34, s34, {WS_O}")
    k("s_lshl_b32 s28, s63, 15"); k("s_add_u32 s35, s34, 32768"); k("s_sub_u32 s35, s35, s28"); k("s_add_u32 s34, s34, s28")
    k("s_add_u32 s46, s34, 4096"); k("s_add_u32 s47, s35, 4096")
    k("s_lshl_b32 s45, s53, 3"); k("s_add_u32 s45, s45, s25"); k(f"s_lshl_b32 s45, s45, {3+OFS}"); k(f"s_add_u32 s45, s45, {OFLAG}"); k(f"v_lshlrev_b32 v3, {OFS-2}, v3")
    for r in range(16): k(f"v_add_f32 v{ACD+r}, v{ACD+r}, v{32+r}")
    k("v_add_u32 v161, s32, v1")
    for t in (1, 2, 3):
        k(f"s_xor_b32 s28, s25, {t}"); k("s_lshl_b32 s28, s28, 14"); k(f"s_add_u32 s28, s28, {GB + (t-1)*4096}"); k(f"v_add_u32 v{161+t}, s28, v1")
    k("v_add_u32 v13, 1, v13")
    OG = [[112, 120, 128, 136], [32, 40, 144, 152]]
    k("s_mov_b32 s44, 0x11"); k("s_mov_b32 s28, 0")
    k("s_waitcnt lgkmcnt(0)")
    if OPT("WBAR", 1): k("s_barrier")
    k.label("WO_POLL")
    k("buffer_load_dword v4, v3, s[20:23], s45 offen sc1")
    k("s_waitcnt vmcnt(0)")
    k(f"v_cmp_eq_u32 vcc, {TAG}, v4")
    k("s_add_u32 s28, s28, 1"); k("s_cmp_lt_u32 s28, 0x100000"); k("s_cselect_b32 s42, vcc_lo, -1")
    k("s_lshr_b32 s29, s42, 1"); k("s_and_b32 s42, s42, s29"); k("s_lshr_b32 s29, s42, 2"); k("s_and_b32 s42, s42, s29")
    k("s_and_b32 s42, s42, s44")
    k("s_cbranch_scc1 WO_GO")
    k(f"s_sleep {OPT('WSLEEP', 3)}"); k("s_branch WO_POLL")
    k.label("WO_GO")
    if OPT("WARM", 2) == 1: k.hops_begin("WB")
    k("s_andn2_b32 s44, s44, s42")
    for g in range(2):
        k(f"s_bitcmp1_b32 s42, {4*g}"); k(f"s_cbranch_scc0 WO_L{g}")
        sa, sb = ("s34", "s35") if g == 0 else ("s46", "s47")
        for h in range(4):
            k(f"buffer_load_dwordx4 {vr(OG[g][h],4)}, v1, s[20:23], {sa} offen offset:{h*1024} sc1")
            k(f"buffer_load_dwordx4 {vr(OG[g][h]+4,4)}, v1, s[20:23], {sb} offen offset:{h*1024} sc1")
        k.label(f"WO_L{g}")
    for g in range(2):
        k(f"s_bitcmp1_b32 s42, {4*g}"); k(f"s_cbranch_scc0 WO_C{g}")
        for x in wreads(0, 0, g == 1): k(x)
        if g == 0:
            k("s_bitcmp1_b32 s42, 4"); k("s_cbranch_scc1 WO_W8"); k("s_waitcnt vmcnt(0)"); k.label("WO_W8"); k("s_waitcnt vmcnt(8)")
        else: k("s_waitcnt vmcnt(0)")
        for h in range(4):
            k("s_waitcnt lgkmcnt(0)")
            for x in interleave(mfl(h & 1, OG[g][h]), wreads(h+1, (h+1) & 1, g == 1) if h < 3 else []): k(x)
        k.label(f"WO_C{g}")
    if OPT("WARM", 2) == 1: k.hops_end("AQ_WR"); k.hops_begin("WC")
    k("s_cmp_lg_u32 s44, 0"); k("s_cbranch_scc1 WO_POLL")
    k.stamp()
    k("s_nop 5")
    for t in (1, 2, 3):
        for q in range(4): k(f"ds_write_b128 v161, {vr(ACD + t*16 + 4*q, 4)} offset:{(t-1)*4096 + q*1024}")
    if OPT("WBAR", 1):
        k("s_waitcnt lgkmcnt(0)"); k("s_barrier")
    else:
        k("ds_write_b32 v11, v13")
        k("ds_read_b32 v14, v12"); k("s_waitcnt lgkmcnt(0)"); k("s_mov_b32 s39, 11")
        tails.append(softcheck(k, "DC", "s39", "v14", "v12"))
    k.stamp()
    for q in range(4):
        for t in (1, 2, 3): k(f"ds_read_b128 {vr(ACD + t*16 + 4*q, 4)}, v{161+t} offset:{q*1024}")
    for q in range(4):
        k(f"s_waitcnt lgkmcnt({9 - 3*q})")
        for r in range(4*q, 4*q+4): k(f"v_add_f32 v{ACD+16+r}, v{ACD+16+r}, v{ACD+32+r}"); k(f"v_add_f32 v{ACD+r}, v{ACD+r}, v{ACD+48+r}")
        for r in range(4*q, 4*q+4): k(f"v_add_f32 v{ACD+r}, v{ACD+r}, v{ACD+16+r}")
        for r in range(2*q, 2*q+2): k(f"v_cvt_pk_bf16_f32 v{16+r}, v{ACD+2*r}, v{ACD+2*r+1}")
        if q & 1: k(f"buffer_store_dwordx4 {vr(16+4*(q>>1),4)}, v160, s[16:19], s40 offen offset:{32*(q>>1)} {os.environ.get('OUTST', '')}")
    if OPT("WARM", 2) == 1: k.hops_end("AQ_WR")
    k("s_add_u32 s28, s2, s25"); k("s_cmp_lg_u32 s28, 0"); k("s_cbranch_scc1 G_NOEP")
    k(f"v_mov_b32 v2, 0"); k(f"v_mov_b32 v3, {TAG}"); k(f"s_mov_b32 s28, {EPOCH}")
    k("s_mov_b64 exec, 1"); k("buffer_store_dword v3, v2, s[20:23], s28 offen sc1"); k("s_mov_b64 exec, -1")
    k.label("G_NOEP")
    finish(k, 2)
    for t in tails: t()

def gen_mega():
    k = Kern(NAME, 256, 768, LDS_TOTAL, 168, 72)
    k("s_cmp_ge_u32 s2, 256"); k("s_cbranch_scc1 M_END")
    k.stamp(True); k.stamp()
    k("s_load_dwordx2 s[8:9], s[0:1], 72")
    k("s_load_dwordx4 s[4:7], s[0:1], 0")
    k("v_lshrrev_b32 v1, 6, v0"); k("v_and_b32 v0, 63, v0"); k("v_readfirstlane_b32 s24, v1")
    k("s_cmp_ge_u32 s24, 8"); k("s_cbranch_scc1 M_GEMM")
    qkv_part(k)
    attn_part(k)
    k.label("M_GEMM")
    if Kern.DIAG: k.nst = 2
    k("s_waitcnt lgkmcnt(0)")
    gemm_part(k)
    k.label("M_END")
    k("s_endpgm")
    return k
```

```python
import re

TRANS = ("v_exp_", "v_log_", "v_rcp_", "v_rsq_", "v_sqrt_", "v_sin_", "v_cos_")
_REG = re.compile(r"^(-|\|)?(abs\()?([vas])(\d+|\[(\d+):(\d+)\])\)?\|?$")


def regs_of(op):
    op = op.strip()
    if op in ("vcc", "exec"):
        return {(op, 0), (op, 1)}
    if op in ("vcc_lo", "exec_lo"):
        return {(op[:-3], 0)}
    if op in ("vcc_hi", "exec_hi"):
        return {(op[:-3], 1)}
    if op == "m0":
        return {("m0", 0)}
    m = _REG.match(op)
    if not m:
        return set()
    t = m.group(3)
    if m.group(5) is not None:
        return {(t, i) for i in range(int(m.group(5)), int(m.group(6)) + 1)}
    return {(t, int(m.group(4)))}


class Ins:
    __slots__ = ("text", "mn", "ops", "cls", "wr", "rd", "passes", "srcc", "ab", "ws", "label", "target", "data", "mods")

    def __init__(self, text):
        self.text = text
        self.label = None
        self.target = None
        self.wr = set(); self.rd = set(); self.srcc = set(); self.ab = set(); self.data = set()
        self.passes = 0
        self.ws = 1
        t = text.split(";")[0].strip()
        if t.endswith(":"):
            self.label = t[:-1]; self.cls = "label"; self.mn = ""; self.ws = 0; self.ops = []
            return
        if t.startswith(".") or not t:
            self.cls = "dir"; self.mn = ""; self.ws = 0; self.ops = []
            return
        parts = t.split(None, 1)
        mn = parts[0]; self.mn = mn
        rest = parts[1] if len(parts) > 1 else ""
        ops = []; cur = ""; depth = 0
        for ch in rest:
            if ch in "[(": depth += 1
            if ch in "])": depth -= 1
            if ch == "," and depth == 0:
                ops.append(cur.strip()); cur = ""
            else:
                cur += ch
        if cur.strip(): ops.append(cur.strip())
        mods = ""
        if ops:
            sp = ops[-1].split(None, 1)
            ops[-1] = sp[0]
            if len(sp) > 1: mods = sp[1]
        self.ops = ops; self.mods = mods
        R = [regs_of(o) for o in ops]
        if mn.startswith("v_smfmac"):
            self.cls = "mfma"
            self.passes = 8 if "32x32" in mn else 4
            self.wr = R[0]; self.ab = R[1] | R[2] | R[3]; self.srcc = R[0]; self.rd = self.ab | self.srcc
        elif mn.startswith("v_mfma"):
            self.cls = "mfma"
            self.passes = 8 if "32x32x16" in mn else 4 if "16x16x32" in mn else 16
            self.wr = R[0]; self.ab = R[1] | R[2]; self.srcc = R[3]; self.rd = self.ab | self.srcc
        elif mn.startswith("v_"):
            self.cls = "trans" if mn.startswith(TRANS) else "valu"
            if mn.startswith("v_cmp"):
                self.wr = R[0]; self.rd = set().union(*R[1:])
                if mn.startswith("v_cmpx"): self.wr = self.wr | regs_of("exec")
            elif "permlane" in mn and "swap" in mn:
                self.wr = R[0] | R[1]; self.rd = R[0] | R[1]
            elif mn.startswith(("v_add_co", "v_sub_co", "v_addc_co", "v_subb_co", "v_subrev_co", "v_mad_u64", "v_div_scale")):
                self.wr = R[0] | R[1]; self.rd = set().union(*R[2:])
            else:
                self.wr = R[0]; self.rd = set().union(*R[1:]) if len(R) > 1 else set()
                if mn.startswith(("v_fmac", "v_dot2c", "v_mac", "v_pk_fmac", "v_writelane")) or "UNUSED_PRESERVE" in mods:
                    self.rd = self.rd | R[0]
                if mn.startswith("v_cndmask") and len(ops) == 3: self.rd |= regs_of("vcc")
        elif mn.startswith("ds_"):
            self.cls = "ds"
            if mn.startswith(("ds_read", "ds_bpermute", "ds_permute", "ds_swizzle")) or "_rtn" in mn:
                self.wr = R[0]; self.rd = set().union(*R[1:])
            else:
                self.rd = set().union(*R)
        elif mn.startswith(("buffer_", "global_")):
            self.cls = "vmem"
            islds = (" lds" in " " + mods) or "load_lds" in mn
            if mn in ("buffer_inv", "buffer_wbl2"):
                pass
            elif "load" in mn and not islds:
                self.wr = R[0]; self.rd = set().union(*R[1:])
            elif "load" in mn:
                self.rd = set().union(*R) | {("m0", 0)}; self.cls = "dma"
            else:
                self.rd = set().union(*R)
                d = R[0] if mn.startswith("buffer_") else R[1]
                if "x4" in mn or "x3" in mn: self.data = d
                if "atomic" in mn and "sc0" in mods:
                    self.wr = R[0]
        elif mn.startswith("s_"):
            self.cls = "salu"
            if mn == "s_nop":
                self.ws = int(ops[0], 0) + 1
            elif mn.startswith(("s_cbranch", "s_branch")):
                self.target = ops[0]; self.cls = "branch"
            elif mn.startswith(("s_cmp", "s_waitcnt", "s_barrier", "s_setprio", "s_sleep", "s_endpgm", "s_bitcmp")):
                self.rd = set().union(*R) if R else set()
            elif mn.startswith(("s_load", "s_buffer_load", "s_memtime", "s_memrealtime")):
                self.cls = "smem"; self.wr = R[0]; self.rd = set().union(*R[1:]) if len(R) > 1 else set()
            else:
                self.wr = R[0]; self.rd = set().union(*R[1:]) if len(R) > 1 else set()
                if "saveexec" in mn: self.wr = self.wr | regs_of("exec")
        else:
            raise ValueError("unknown instruction: " + text)


def isv(r): return r[0] in ("v", "a")
def iss(r): return r[0] in ("s", "vcc")


def need(prev, cur):
    n = 0
    pv = prev.cls in ("valu", "trans")
    cv = cur.cls in ("valu", "trans")
    if pv:
        wv = {r for r in prev.wr if isv(r)}
        wsg = {r for r in prev.wr if iss(r)}
        if cur.cls == "mfma" and wv & cur.rd: n = max(n, 2)
        if prev.cls == "trans" and cur.cls == "valu" and wv & cur.rd: n = max(n, 1)
        if prev.cls == "trans" and cur.cls in ("vmem", "ds", "dma") and wv & cur.rd: n = max(n, 1)
        if cur.cls in ("vmem", "dma") and wsg & cur.rd: n = max(n, 5)
        if cv and wsg & cur.rd:
            n = max(n, 4 if cur.mn.startswith(("v_readlane", "v_writelane")) else 2)
        if cur.mn.startswith(("v_readfirstlane", "v_readlane")) and wv & cur.rd: n = max(n, 1)
        if cv and ("permlane" in cur.mn or "dpp" in cur.mn or "row_" in cur.mods or "quad_perm" in cur.mods) and wv & cur.rd: n = max(n, 2)
        if prev.mn.startswith("v_dot") and cur.cls != "salu" and cur.mn != prev.mn and wv & (cur.rd | cur.wr): n = max(n, 3)
        if prev.mn.startswith("v_dot") and cur.mn == prev.mn and wv & (cur.rd - cur.wr): n = max(n, 3)
        if ("sdwa" in prev.mn or "op_sel:" in prev.mods) and cv and wv & (cur.rd | cur.wr): n = max(n, 1)
        if ("exec", 0) in prev.wr or ("exec", 1) in prev.wr:
            if cur.cls == "mfma": n = max(n, 4)
            if "permlane" in cur.mn or cur.mn.startswith(("v_readlane", "v_readfirstlane", "v_writelane")): n = max(n, 4)
            if "dpp" in cur.mn: n = max(n, 5)
        if cur.cls == "salu" and wsg & cur.rd: n = max(n, 1)
        if cur.cls == "branch" and "vcc" in cur.mn and ("vcc", 0) in prev.wr: n = max(n, 5)
    if prev.cls == "mfma":
        p = prev.passes
        big = {2: 5, 4: 8, 8: 12, 16: 20}[p]
        if cur.cls == "mfma":
            if prev.wr & cur.ab: n = max(n, big)
            if prev.wr & cur.srcc:
                if not (prev.wr == cur.srcc and prev.passes == cur.passes): n = max(n, {2: 4, 4: 6, 8: 10, 16: 18}[p])
                elif p == 2: n = max(n, 2)
            elif prev.wr & cur.wr:
                n = max(n, {2: 4, 4: 6, 8: 10, 16: 18}[p])
        elif cur.cls in ("valu", "trans", "vmem", "ds", "dma"):
            if prev.wr & (cur.rd | cur.wr): n = max(n, big)
            if cv and prev.srcc & cur.wr: n = max(n, {2: 1, 4: 3, 8: 7, 16: 15}[p])
    if prev.cls == "salu" and ("m0", 0) in prev.wr and cur.cls == "dma": n = max(n, 1)
    if prev.cls == "vmem" and prev.data and prev.data & cur.wr: n = max(n, 2 if cv else 1)
    return n


class Kern:
    def __init__(self, name, grid, block, lds, nvgpr, nsgpr=96, accum=None):
        self.name = name; self.grid = grid; self.block = block; self.lds = lds
        self.nvgpr = nvgpr; self.nsgpr0 = nsgpr; self.nsgpr = 102 if Kern.DIAG else nsgpr; self.accum = accum
        self.ins = []
        self._uid = 0

    def __call__(self, text):
        for line in text.split("\n"):
            line = line.strip()
            if line and not line.startswith(";"):
                ins = Ins(line)
                if self._hop is not None and ins.cls not in ("label", "dir"):
                    sz = 8 if (ins.cls in ("mfma", "ds", "vmem", "dma", "smem") or len(ins.ops) >= 4 or "0x" in line or ins.mn.startswith(("v_cvt_pk", "v_mul_lo", "v_cmp", "v_perm", "v_readlane"))
                               or "|" in line or any(o.lstrip("-").isdigit() and abs(int(o)) > 64 for o in ins.ops) or " -v" in line) else 4
                    if self._hopbytes + sz > 108:
                        self._emit_hop()
                    self._hopbytes += sz
                self.ins.append(ins)

    _hop = None
    def _emit_hop(self):
        n = self._hopn
        self.ins.append(Ins(f"HOP_{self._hop}_{n}:"))
        g = self._hopgrp
        self.ins.append(Ins(f"s_cbranch_execz {g[1] if g and (n + 1) % g[0] == 0 else 'HOP_%s_%d' % (self._hop, n + 1)}"))
        self._hopn += 1; self._hopbytes = 4
    def hops_begin(self, name, group=None):
        self._hop = name; self._hopn = 0; self._hopgrp = group; self._emit_hop()
    def hops_end(self, target):
        n = self._hopn
        self.ins.append(Ins(f"HOP_{self._hop}_{n}:"))
        self.ins.append(Ins(f"s_cbranch_execz {target}"))
        print("hops", self._hop, n + 1)
        self._hop = None
    def warm(self, name, ret):
        self("s_mov_b64 exec, 0"); self(f"s_branch HOP_{name}_0"); self.label(ret); self("s_mov_b64 exec, -1")

    def label(self, l): self.ins.append(Ins(l + ":"))

    DIAG = False
    def stamp(self, real=False, force=False):
        if not Kern.DIAG: return
        if getattr(self, "stamp_off", False) and not real and not force: return
        if not hasattr(self, "nst"): self.nst = 0
        b = self.nsgpr0 + 2 * self.nst
        if Kern.DIAG == "lite" and not real:
            self.nst += 1; return
        self("s_memrealtime s[%d:%d]" % (b, b + 1) if real else "s_memtime s[%d:%d]" % (b, b + 1))
        self("s_waitcnt lgkmcnt(0)")
        self.nst += 1
        assert b + 1 < 102

    def dump_stamps(self, kidx, wave_sgpr, vtmp, wsptr):
        if not Kern.DIAG: return
        a, d = vtmp, vtmp + 1
        self(f"s_lshl_b32 s101, s2, 4"); self(f"s_add_u32 s101, s101, s{wave_sgpr}"); self("s_lshl_b32 s101, s101, 7")
        self(f"s_add_u32 s101, s101, {(32 + kidx) << 20}")
        for i in range(self.nst):
            if Kern.DIAG == "lite" and i not in (0, self.nst - 1): continue
            if Kern.DIAG == "lite" and i:
                self(f"v_mov_b32 v{a}, s101"); self(f"v_mov_b32 v{d}, s{self.nsgpr0 + 2*i}")
                self(f"global_store_dword v{a}, v{d}, s[{wsptr}:{wsptr+1}] offset:4"); continue
            self(f"v_mov_b32 v{a}, s101"); self(f"v_mov_b32 v{d}, s{self.nsgpr0 + 2*i}")
            self(f"global_store_dword v{a}, v{d}, s[{wsptr}:{wsptr+1}] offset:{4*i}")

    def uid(self, p="L"):
        self._uid += 1
        return f"{p}_{self.name}_{self._uid}"

    def _scan_back(self, seq, idx, cur):
        dist = 0; miss = 0
        j = idx - 1
        while j >= 0 and dist < 20:
            p = seq[j]
            if p.cls == "branch" and p.mn == "s_branch": break
            if p.mn == "s_endpgm": break
            if p.cls not in ("label", "dir"):
                n = need(p, cur)
                if n > dist: miss = max(miss, n - dist)
                dist += p.ws
            j -= 1
        return miss

    def finalize(self):
        out = []
        nnop = 0
        for cur in self.ins:
            if cur.cls not in ("label", "dir"):
                miss = self._scan_back(out, len(out), cur)
                while miss > 0:
                    k = min(miss, 16)
                    out.append(Ins(f"s_nop {k-1}")); miss -= k; nnop += 1
            out.append(cur)
        labels = {x.label: i for i, x in enumerate(out) if x.cls == "label"}
        for i, b in enumerate(out):
            if b.cls == "branch" and b.target in labels and not b.target.startswith("HOP_") and b.mn != "s_cbranch_execz":
                t = labels[b.target]
                pre = out[max(0, i - 24):i] + [Ins("s_nop 0")]
                seq = list(pre)
                dist = 0
                for c in out[t:t + 40]:
                    if c.cls not in ("label", "dir"):
                        d = dist; j = len(pre) - 1
                        while j >= 0 and d < 20:
                            p = pre[j]
                            if p.cls not in ("label", "dir"):
                                n = need(p, c)
                                if n > d:
                                    raise RuntimeError(f"{self.name}: hazard across branch {b.text}: '{p.text}' -> '{c.text}' need {n} have {d}")
                                d += p.ws
                            j -= 1
                        dist += c.ws
                        if c.cls == "branch" and c.mn == "s_branch": break
                        if dist >= 20: break
        self.out = out; self.nnop = nnop
        mv = max([r[1] for x in out for r in (x.wr | x.rd) if r[0] == "v"] + [0])
        ma = max([r[1] for x in out for r in (x.wr | x.rd) if r[0] == "a"] + [-1])
        ms = max([r[1] for x in out for r in (x.wr | x.rd) if r[0] == "s"] + [0])
        acc = self.accum if self.accum else (self.nvgpr + 3) // 4 * 4
        assert mv < acc, (self.name, mv, acc)
        assert acc + ma + 1 <= self.nvgpr or ma < 0, (self.name, ma)
        assert ms < self.nsgpr, (self.name, ms)
        self.stats = dict(maxv=mv, maxa=ma, maxs=ms, n=len([x for x in out if x.cls not in ("label", "dir")]), nops=nnop)
        return out

    def text(self):
        out = self.finalize()
        t = [f".globl {self.name}", ".p2align 8", f".type {self.name},@function", f"{self.name}:"]
        for x in out:
            t.append(x.text if x.cls == "label" else "    " + x.text)
        return "\n".join(t)

    def kd(self):
        acc = self.accum if self.accum else min(256, (self.nvgpr + 3) // 4 * 4)
        return "\n".join([".p2align 6", f".amdhsa_kernel {self.name}",
                          f"  .amdhsa_next_free_vgpr {self.nvgpr}", f"  .amdhsa_next_free_sgpr {self.nsgpr}",
                          f"  .amdhsa_accum_offset {acc}", "  .amdhsa_group_segment_fixed_size 0", "  .amdhsa_kernarg_size 80",
                          "  .amdhsa_user_sgpr_count 2", "  .amdhsa_user_sgpr_kernarg_segment_ptr 1",
                          "  .amdhsa_system_sgpr_workgroup_id_x 1",
                          ".end_amdhsa_kernel"])

    def launch_line(self):
        return f"; @launch kernel={self.name} grid=({self.grid},1,1) block=({self.block},1,1) lds={self.lds}"


HEADER = """; Kernarg layout for this problem (80 bytes, ptrs only, base s[0:1]):
"""


def build_file(kerns, path, order=None, single=False):
    order = order or kerns
    if single:
        k0 = kerns[0]
        s = HEADER + f"; @launch grid=({k0.grid},1,1) block=({k0.block},1,1) lds={k0.lds}\n"
    else:
        s = HEADER + "\n".join(k.launch_line() for k in order) + "\n"
    s += '.amdgcn_target "amdgcn-amd-amdhsa--gfx950"\n.text\n'
    for k in kerns:
        s += k.text() + "\n"
        print(k.name, k.stats)
    s += '.section .rodata,"a"\n'
    for k in kerns:
        s += k.kd() + "\n"
    open(path, "w").write(s)
```

```python
from common import *
import os
OPT = lambda n, d=0: int(os.environ.get(n, d))
MF = "v_mfma_f32_32x32x16_bf16"
MF16 = "v_mfma_f32_16x16x32_bf16"
UP_SLOT = 28928
UP_W3OFF = 14464
GB = 65536
ONES = GB + 3 * UP_SLOT
PROG = ONES + 2048
PAIR = PROG + 3072
SC = PAIR + 256
LNX = SC + 4096
LDS_TOTAL = LNX + 256
assert ONES % 256 == 0 and LDS_TOTAL <= 163840 and ONES >= 131072
HFLAG = WS_FLAG
OFS = OPT("OFS", 2)
OFLAG = WS_FLAG + (32768 if OFS == 2 else 655360)
QFLAG = WS_FLAG + 131072
FSTR = 8192 + 256
XFLAG = WS_FLAG + 393216
RELAY = PAIR + 64
EPOCH = WS_FLAG + 65536 + 4096
TAG = "s70"
HS = 65536 + OPT("HPAD", 0)
QB = 24 * MB
if OPT("LAY") == 1:
    HS = 3 * 65536 + OPT("HPAD", 0); WS_Q = QB; WS_K = QB + 65536; WS_V = QB + 131072
elif OPT("HPAD") or OPT("RPAD"):
    WS_Q = QB; WS_K = QB + 32 * HS + OPT("RPAD"); WS_V = QB + 64 * HS + 2 * OPT("RPAD")
WS_SIZE = 32 * MB
NST = 14
NAME = "parallel_sum__softmax_full_mha__glu_gated_swiglu__prompt_kernel"

def load_tag(k):
    k(f"s_add_u32 s68, s8, {EPOCH}"); k("s_addc_u32 s69, s9, 0")
    k(f"s_load_dword {TAG}, s[68:69], 0"); k("s_waitcnt lgkmcnt(0)")
    k(f"s_mul_i32 {TAG}, {TAG}, 0x9e3779b1"); k(f"s_add_u32 {TAG}, {TAG}, 0x7f4a7c15")

def ln_scalars(k, s, q, mask, r, mb):
    k(f"v_mul_f32 {s}, {lit(1/512)}, {s}"); k(f"v_mul_f32 {q}, {lit(1/512)}, {q}")
    k(f"v_fma_f32 {q}, -{s}, {s}, {q}"); k(f"v_max_f32 {q}, 0, {q}")
    k(f"v_cvt_pk_bf16_f32 {s}, {s}, {q}")
    k(f"v_and_b32 {q}, {mask}, {s}"); k(f"v_lshlrev_b32 {mb}, 16, {s}")
    k(f"v_add_f32 {q}, {lit(1e-5)}, {q}")
    k(f"v_cvt_pk_bf16_f32 {q}, {q}, {q}"); k(f"v_lshlrev_b32 {q}, 16, {q}")
    k(f"v_sqrt_f32 {q}, {q}")
    k(f"v_cvt_pk_bf16_f32 {q}, {q}, {q}"); k(f"v_lshlrev_b32 {q}, 16, {q}")
    k(f"v_rcp_f32 {r}, {q}")

def qkv_part(k):
    k("s_and_b32 s27, s2, 7"); k("s_lshr_b32 s28, s2, 3")
    k("s_lshr_b32 s25, s27, 1"); k("s_lshl_b32 s25, s25, 3"); k("s_lshr_b32 s29, s28, 2"); k("s_add_u32 s25, s25, s29")
    k("s_and_b32 s26, s27, 1"); k("s_lshl_b32 s26, s26, 2"); k("s_and_b32 s29, s28, 3"); k("s_add_u32 s26, s26, s29")
    k("s_add_u32 s40, s25, s26"); k("s_and_b32 s40, s40, 7")
    if OPT("ROTM", 11) == 1: k("s_lshr_b32 s40, s25, 1"); k("s_add_u32 s40, s40, s26"); k("s_and_b32 s40, s40, 7")
    if OPT("ROTM") == 2: k("s_lshr_b32 s40, s25, 2"); k("s_add_u32 s40, s40, s26"); k("s_and_b32 s40, s40, 7")
    if OPT("ROTM") == 3: k("s_mov_b32 s40, s26")
    if OPT("ROTM", 11) >= 8:
        rm = OPT("ROTM", 11)
        if rm == 8: k("s_mov_b32 s40, 0")
        if rm == 9: k("s_and_b32 s40, s26, 1"); k("s_lshl_b32 s40, s40, 2")
        if rm == 10: k("s_and_b32 s40, s25, 1"); k("s_lshl_b32 s40, s40, 2")
        if rm == 11: k("s_lshr_b32 s40, s27, 0")
    elif OPT("ROTM", 11) >= 4:
        k("s_and_b32 s40, s26, 3"); k("s_lshl_b32 s40, s40, 1"); k("s_lshr_b32 s29, s26, 2"); k("s_add_u32 s40, s40, s29")
        k(f"s_and_b32 s29, s25, {(7, 6, 4, 0)[OPT('ROTM', 7) - 4]}"); k("s_add_u32 s40, s40, s29"); k("s_and_b32 s40, s40, 7")
    k("s_bfe_u32 s56, s24, 0x10001"); k("s_and_b32 s59, s24, 1")
    LD_FIRST = OPT("LDFIRST", 1)
    k("s_cmp_ge_u32 s24, 4" if LD_FIRST else "s_cmp_lt_u32 s24, 4"); k("s_cbranch_scc1 K1_COMP")
    k("s_and_b32 s57, s24, 3")
    k("v_lshrrev_b32 v40, 3, v0"); k("v_lshlrev_b32 v44, 10, v40")
    k("v_lshrrev_b32 v41, 4, v0"); k("v_and_b32 v42, 7, v0")
    k("v_xor_b32 v43, v41, v42"); k("v_lshl_add_u32 v1, v43, 4, v44")
    k("v_xor_b32 v43, 4, v43"); k("v_lshl_add_u32 v2, v43, 4, v44"); k(f"v_add_u32 v2, {8192-1024}, v2")
    k("v_mul_u32_u24 v40, 3072, v40"); k("v_and_b32 v41, 1, v41"); k("v_lshlrev_b32 v41, 2, v41"); k("v_xor_b32 v41, v41, v42"); k("v_lshl_add_u32 v3, v41, 4, v40")
    k("s_lshl_b32 s31, s25, 16"); k("s_lshl_b32 s33, s57, 14"); k("s_add_u32 s31, s31, s33")
    k("s_lshl_b32 s32, s57, 11")
    k("s_mul_i32 s35, s57, 49152"); k("s_lshl_b32 s33, s26, 7"); k("s_add_u32 s35, s35, s33")
    k("s_mul_i32 s36, s57, 6144"); k("s_add_u32 s36, s36, 8192")
    k("s_mov_b32 s42, 0"); k("s_mov_b32 s43, 0x10000"); k("s_mov_b32 s41, s40")
    k("s_waitcnt lgkmcnt(0)")
    srd(k, 12, 4, 2048 * 1024); srd(k, 16, 6, 512 * 3072)
    def issue():
        o = ["s_lshl_b32 s33, s41, 7", "s_add_u32 m0, s43, s32", "s_add_u32 s33, s33, s31",
             "buffer_load_dwordx4 v1, s[12:15], s33 offen lds",
             "buffer_load_dwordx4 v2, s[12:15], s33 offen offset:1024 lds",
             "s_mul_i32 s33, s41, 196608", "s_add_u32 m0, s43, s36", "s_add_u32 s33, s33, s35"]
        o += [f"buffer_load_dwordx4 v3, s[16:19], s33 offen offset:{blk*1024} lds" for blk in range(3)]
        o += ["s_add_u32 m0, m0, 3072", "s_add_u32 s33, s33, 24576"]
        o += [f"buffer_load_dwordx4 v3, s[16:19], s33 offen offset:{blk*1024} lds" for blk in range(3)]
        o += ["s_add_u32 s41, s41, 1", "s_and_b32 s41, s41, 7", "s_add_u32 s43, s43, 32768", "s_and_b32 s43, s43, 0x1ffff"]
        return o
    D0 = 3 if OPT("DEEP", 2) == 2 else 2
    k.label("K1_LP")
    for x in issue(): k(x)
    k("s_add_u32 s42, s42, 1"); k(f"s_cmp_lt_u32 s42, {D0}"); k("s_cbranch_scc1 K1_LP")
    k("v_and_b32 v48, 31, v0"); k("v_lshrrev_b32 v49, 5, v0"); k("v_bfe_u32 v50, v0, 1, 3")
    k("s_lshl_b32 s33, s56, 12"); k("v_lshl_add_u32 v51, v48, 7, s33")
    k("s_lshl_b32 s33, s59, 2"); k("v_or_b32 v52, s33, v49"); k("v_xor_b32 v52, v52, v50"); k("v_lshl_add_u32 v4, v52, 4, v51"); k("v_xor_b32 v5, 32, v4")
    k("v_add_u32 v8, 0x10000, v4"); k("v_add_u32 v9, 0x10000, v5"); k("v_mov_b32 v13, 0xffff0000")
    for r in range(54, 62): k(f"v_mov_b32 v{r}, 0")
    srd(k, 20, 8, WS_SIZE)
    k("s_mov_b32 s42, 0"); k("s_mov_b32 s44, 0x10000")
    k.stamp()
    KEEP = False
    if KEEP: k("s_sub_u32 s45, s26, s40"); k("s_and_b32 s45, s45, 7")
    def keep():
        if KEEP:
            l = k.uid("KP"); k("s_cmp_lg_u32 s42, s45"); k(f"s_cbranch_scc1 {l}")
            for r in range(16): k(f"v_mov_b32 v{64+r}, v{24+r}")
            k.label(l)
    def stats():
        o = []
        for r in range(8):
            o += [f"v_lshlrev_b32 v{24+2*r}, 16, v{16+r}", f"v_and_b32 v{25+2*r}, v13, v{16+r}"]
        for r in range(16):
            o += [f"v_add_f32 v{54+(r&3)}, v{54+(r&3)}, v{24+r}", f"v_fmac_f32 v{58+(r&3)}, v{24+r}, v{24+r}"]
        return o
    head = ["s_barrier", "ds_read_b128 v[16:19], v8", "ds_read_b128 v[20:23], v9",
            "s_add_u32 s44, s44, 32768", "s_and_b32 s44, s44, 0x1ffff", "v_add_u32 v8, s44, v4", "v_add_u32 v9, s44, v5"]
    DEEP = OPT("DEEP", 2)
    if DEEP == 1:
        k("s_waitcnt vmcnt(8)")
        for x in head: k(x)
        iss = issue()
        for x in iss[:5]: k(x)
        k("s_waitcnt lgkmcnt(0)")
        for x in interleave(iss[5:] + issue(), stats()): k(x)
        keep()
        k("s_mov_b32 s42, 1")
    k.label("K1_LA")
    k(f"s_waitcnt vmcnt({16 if DEEP else 8})")
    for x in head: k(x)
    iss = issue()
    for x in iss[:5]: k(x)
    k("s_waitcnt lgkmcnt(0)")
    for x in interleave(iss[5:], stats()): k(x)
    keep()
    k("s_add_u32 s42, s42, 1"); k(f"s_cmp_lt_u32 s42, {5 if DEEP else 6}"); k("s_cbranch_scc1 K1_LA")
    k(f"s_waitcnt vmcnt({16 if DEEP else 8})")
    k.label("K1_LB")
    for x in head: k(x)
    k("s_waitcnt lgkmcnt(0)")
    for x in stats(): k(x)
    keep()
    k("s_add_u32 s42, s42, 1")
    if DEEP:
        k("s_waitcnt vmcnt(8)"); k("s_cmp_lt_u32 s42, 7"); k("s_cbranch_scc1 K1_LB")
    k("s_waitcnt vmcnt(0)"); k("s_cmp_lt_u32 s42, 8"); k("s_cbranch_scc1 K1_LB")
    k.stamp()
    k("v_add_f32 v54, v54, v55"); k("v_add_f32 v56, v56, v57"); k("v_add_f32 v58, v58, v59"); k("v_add_f32 v60, v60, v61")
    k("v_add_f32 v54, v54, v56"); k("v_add_f32 v58, v58, v60"); k("v_mov_b32 v55, v54"); k("v_mov_b32 v59, v58")
    k("s_lshl_b32 s33, s56, 9"); k(f"s_add_u32 s33, s33, {SC+2048}"); k("v_lshl_add_u32 v6, v48, 4, s33")
    k("v_permlane32_swap_b32 v54, v55"); k("v_permlane32_swap_b32 v58, v59")
    k("s_lshl_b32 s33, s59, 3"); k("v_add_u32 v7, s33, v6")
    k("v_add_f32 v54, v54, v55"); k("v_add_f32 v55, v58, v59")
    k("ds_write_b64 v7, v[54:55]")
    k("s_waitcnt lgkmcnt(0)"); k("s_barrier")
    k("s_mov_b32 s44, 0x7fffffff")
    k("s_branch AT_ENTRY")
    if Kern.DIAG: k.nst = 2
    FS = [16, 32, 48, 64]
    ACC = 80; CS = 128; SEL = 140
    k.label("K1_COMP")
    k("v_and_b32 v144, 31, v0"); k("v_lshrrev_b32 v145, 5, v0"); k("v_bfe_u32 v146, v0, 1, 3")
    k("s_lshl_b32 s33, s56, 12"); k("v_lshl_add_u32 v147, v144, 7, s33")
    k("s_lshl_b32 s33, s56, 2"); k("v_or_b32 v148, s33, v145"); k("v_xor_b32 v148, v148, v146"); k("v_lshl_add_u32 v4, v148, 4, v147")
    for j in (1, 2, 3): k(f"v_xor_b32 v{4+j}, {32*j}, v4")
    k("v_mul_u32_u24 v147, 3072, v145"); k("v_bfe_u32 v148, v0, 2, 2"); k("v_lshl_add_u32 v147, v148, 7, v147")
    k("v_bfe_u32 v148, v0, 3, 1"); k("v_xor_b32 v148, s59, v148"); k("v_lshl_add_u32 v147, v148, 6, v147")
    k("v_bfe_u32 v149, v0, 4, 1"); k("v_lshl_add_u32 v147, v149, 5, v147"); k("v_and_b32 v148, 3, v0"); k("v_lshl_add_u32 v147, v148, 3, v147")
    k("s_mul_i32 s33, s56, 12288"); k("s_add_u32 s34, s33, 8192"); k("v_add_u32 v8, s34, v147")
    k(f"s_sub_u32 s34, {8192+12288}, s33"); k("v_add_u32 v9, s34, v147")
    k("v_bfe_u32 v147, v0, 2, 1"); k("v_xor_b32 v147, v147, v149"); k("v_or_b32 v147, v147, v148")
    k("v_cmp_eq_u32 vcc, 0, v147"); k("v_mov_b32 v147, 0x3f803f80")
    k(f"v_cndmask_b32 v{SEL}, 0, v147, vcc")
    for r in (1, 2, 3): k(f"v_mov_b32 v{SEL+r}, v{SEL}")
    for r in range(FS[2], CS + 12): k(f"v_mov_b32 v{r}, 0")
    k("s_lshl_b32 s30, s25, 1"); k("s_add_u32 s30, s30, s56")
    k("s_lshl_b32 s33, s26, 1"); k("s_add_u32 s33, s33, s59"); k(f"s_mul_i32 s33, s33, {2*HS}"); k("s_lshl_b32 s34, s30, 10"); k("s_add_u32 s33, s33, s34")
    k(f"s_add_u32 s34, s33, {WS_K}"); k(f"s_add_u32 s35, s33, {WS_V}"); k(f"s_add_u32 s33, s33, {WS_Q}"); k(f"s_add_u32 s36, s33, {HS}"); k(f"s_add_u32 s37, s34, {HS}")
    k("v_lshlrev_b32 v15, 4, v0")
    k("v_bfe_u32 v150, v0, 2, 1"); k("v_bfe_u32 v151, v0, 3, 1"); k("v_xor_b32 v150, v150, v151"); k("v_mul_u32_u24 v150, 192, v150"); k("v_xor_b32 v150, v150, v15")
    k("s_lshl_b32 s38, s56, 9"); k(f"s_add_u32 s38, s38, {SC+2048}"); k("v_lshl_add_u32 v1, v144, 4, s38")
    k("s_lshl_b32 s38, s59, 10"); k(f"s_add_u32 s38, s38, {SC}"); k("v_lshl_add_u32 v2, v144, 5, s38")
    k("s_lshl_b32 s38, s56, 4"); k("v_add_u32 v10, s38, v2"); k("v_xor_b32 v2, 16, v10")
    k("s_and_b32 s38, s24, 3"); k("s_lshl_b32 s38, s38, 7"); k(f"s_add_u32 s38, s38, {SC+3072}")
    k("v_lshl_add_u32 v11, v144, 2, s38"); k("v_lshl_add_u32 v14, v145, 4, s38")
    k(f"v_mul_u32_u24 v3, {HS}, v149"); k("v_lshl_add_u32 v3, v145, 8, v3"); k("v_and_b32 v148, 15, v0"); k("v_lshl_add_u32 v3, v148, 4, v3")
    k("v_mov_b32 v13, 0xffff0000")
    k("s_mov_b32 s42, 0")
    k("s_waitcnt lgkmcnt(0)")
    srd(k, 20, 8, WS_SIZE)
    if OPT("TOUCH", 0):
        k("v_mov_b32 v150, 0"); k(f"s_mov_b32 s38, {EPOCH + 256}"); k(f"s_add_u32 s39, s33, {WS_XN - WS_Q}")
        k("s_mov_b64 exec, 1")
        for sg in ("s33", "s34", "s35", "s38"): k(f"buffer_load_dword v151, v150, s[20:23], {sg} offen sc1")
        k("s_mov_b64 exec, -1")
    QG = OPT("QWARM", 0)
    if QG:
        k("s_mov_b64 exec, 0")
        for w in range(4):
            k(f"s_cmp_eq_u32 s24, {4+w}"); k(f"s_cbranch_scc1 HOP_QE_{w*QG}")
        k.label("QE_WR"); k("s_mov_b64 exec, -1")
    k.stamp()
    def reads(j, off):
        f = FS[j]; w = "v8" if j < 2 else "v9"; o = off + (j & 1)*6144
        out = [f"ds_read_b128 {vr(f,4)}, v{4+j} offset:{off}"]
        for blk in range(3):
            out += [f"ds_read_b64_tr_b16 {vr(f+4+4*blk,2)}, {w} offset:{o+blk*1024}", f"ds_read_b64_tr_b16 {vr(f+6+4*blk,2)}, {w} offset:{o+blk*1024+512}"]
        return out
    def mfs(j):
        f = FS[j]; out = []
        for blk in range(3):
            a = vr(ACC + blk*16, 16); w = vr(f+4+4*blk, 4); x = vr(f, 4)
            out.append(f"{MF} {a}, {w}, {x}, {a}" if blk < 2 else f"{MF} {a}, {x}, {w}, {a}")
            if j < 2: out.append(f"{MF16} {vr(CS+4*blk,4)}, {vr(SEL,4)}, {w}, {vr(CS+4*blk,4)}")
        return out
    for i in range(6): k(f"v_xor_b32 v{4+i}, 0x10000, v{4+i}")
    k.label("K1_CL")
    for p in range(2):
        k("s_barrier")
        for j in range(4):
            if j >= 2: k("s_waitcnt lgkmcnt(7)")
            for x in interleave(mfs((j + 2) & 3), reads(j, p*32768)): k(x)
        if p == 1:
            for i in range(6): k(f"v_xor_b32 v{4+i}, 0x10000, v{4+i}")
            k("s_add_u32 s42, s42, 1"); k("s_cmp_lt_u32 s42, 4")
        k("s_waitcnt lgkmcnt(0)")
    k("s_cbranch_scc1 K1_CL")
    k.stamp()
    if QG: k.hops_begin("QE", (QG, "QE_WR"))
    for x in mfs(2): k(x)
    k(f"v_mov_b32 v{CS+1}, v{CS+4}"); k(f"v_mov_b32 v{CS+2}, v{CS+8}")
    k(f"ds_write_b128 v10, {vr(CS,4)}")
    for x in mfs(3): k(x)
    k("s_waitcnt lgkmcnt(0)"); k("s_barrier")
    k("ds_read_b128 v[16:19], v1"); k("ds_read_b128 v[20:23], v2")
    k("s_waitcnt lgkmcnt(1)")
    k("v_add_f32 v16, v16, v18"); k("v_add_f32 v17, v17, v19")
    ln_scalars(k, "v16", "v17", "v13", "v12", "v18")
    k("ds_write_b32 v11, v12")
    for q in range(4): k(f"ds_read_b128 {vr(48+4*q,4)}, v14 offset:{q*32}")
    k("v_cvt_pk_bf16_f32 v24, -v18, -v18"); k("v_lshrrev_b32 v25, 16, v24"); k("v_mov_b32 v26, 0"); k("v_mov_b32 v27, 0")
    k("s_mov_b32 exec_lo, 0"); k("v_mov_b32 v24, 0"); k("v_mov_b32 v25, 0"); k("s_mov_b32 exec_lo, -1")
    for b in range(3):
        c = 28 + 4*b
        k(f"v_add_f32 v{c+2}, v{CS+b}, v{20+b}")
        k(f"v_and_b32 v{c+3}, v13, v{c+2}"); k(f"v_sub_f32 v{c+2}, v{c+2}, v{c+3}")
        k(f"v_and_b32 v{c+1}, v13, v{c+2}"); k(f"v_sub_f32 v{c+2}, v{c+2}, v{c+1}")
        k(f"v_lshrrev_b32 v{c+3}, 16, v{c+3}"); k(f"v_or_b32 v{c}, v{c+3}, v{c+1}")
        k(f"v_lshrrev_b32 v{c+1}, 16, v{c+2}"); k(f"v_mov_b32 v{c+2}, 0"); k(f"v_mov_b32 v{c+3}, 0")
    for blk in (1, 2, 0):
        a = vr(ACC + blk*16, 16); c = vr(28+4*blk, 4)
        k(f"{MF} {a}, {c}, v[24:27], {a}" if blk < 2 else f"{MF} {a}, v[24:27], {c}, {a}")
    k(f"v_mul_f32 v10, {lit(QSCALE)}, v12")
    k("s_waitcnt lgkmcnt(0)")
    so = {0: ("s33", "s36"), 1: ("s34", "s37")}
    for blk in (1, 2, 0):
        a = ACC + blk*16
        for h in range(2):
            for r in range(8*h, 8*h+8):
                k(f"v_mul_f32 v{a+r}, {('v10', 'v12', 'v%d' % (48+r))[blk]}, v{a+r}")
            d = 16 + (blk*2+h)*4 if blk < 2 else 64 + 4*h
            if blk == 0: d = 72 + 4*h
            if blk == 1: d = 40 + 4*h
            for r in range(4): k(f"v_cvt_pk_bf16_f32 v{d+r}, v{a+8*h+2*r}, v{a+8*h+2*r+1}")
            if blk < 2: k(f"buffer_store_dwordx4 {vr(d,4)}, {('v15', 'v150')[blk]}, s[20:23], {so[blk][h]} offen sc1")
            else: k(f"buffer_store_dwordx4 {vr(d,4)}, v3, s[20:23], s35 offen offset:{512*h} sc1")
    k("s_lshl_b32 s44, s26, 1"); k("s_add_u32 s44, s44, s59"); k(f"s_mul_i32 s44, s44, {FSTR}"); k("s_lshl_b32 s39, s30, 7"); k("s_add_u32 s44, s44, s39"); k(f"s_add_u32 s44, s44, {QFLAG}")

def softcheck(k, tag, sval, vdst, vaddr):
    k(f"v_cmp_le_u32 vcc, {sval}, {vdst}")
    k("s_cmp_eq_u64 vcc, -1")
    k(f"s_cbranch_scc0 {tag}_SPIN")
    k.label(f"{tag}_CONT")
    def tail():
        k.label(f"{tag}_SPIN")
        k("s_sleep 1")
        k(f"ds_read_b32 {vdst}, {vaddr}")
        k("s_waitcnt lgkmcnt(0)")
        k(f"v_cmp_le_u32 vcc, {sval}, {vdst}")
        k("s_cmp_eq_u64 vcc, -1")
        k(f"s_cbranch_scc0 {tag}_SPIN")
        k(f"s_branch {tag}_CONT")
    return tail

def finish(k, vtmp):
    if Kern.DIAG:
        k("s_waitcnt vmcnt(0)")
        while k.nst < NST - 1: k.stamp(force=True)
        k.stamp(True)
        k.dump_stamps(1, 24, vtmp, 8)
    k("s_endpgm")

def attn_part(k):
    S = [16, 32]; O = [48, 64]; C = 80; P = 96; Q = [104, 108]
    KF = [112, 116]; VF = [[120, 124], [128, 132]]; K0 = 136; IDX = "v144"
    NG = OPT("AT_UNROLL", 2)
    tails = []
    k.label("AT_ENTRY")
    k.stamp()
    k(f"v_mov_b32 v150, {RELAY+12}"); k("ds_read_b32 v143, v150")
    if OPT("GOEARLY"):
        k("s_mov_b64 exec, 1"); k(f"v_mov_b32 v150, {RELAY+8}"); k("v_mov_b32 v151, 1"); k("ds_add_u32 v150, v151"); k("s_mov_b64 exec, -1")
    k("s_nop 1")
    k("v_lshlrev_b32 v1, 4, v0"); k("s_lshl_b32 s28, s24, 8"); k(f"s_add_u32 s28, s28, {PROG}"); k("v_lshl_add_u32 v11, v0, 2, s28")
    k("s_and_b32 s25, s2, 7"); k("s_lshl_b32 s25, s25, 2"); k("s_bfe_u32 s26, s2, 0x20003"); k("s_add_u32 s25, s25, s26")
    k("s_lshr_b32 s38, s24, 2"); k("s_and_b32 s39, s24, 3")
    k("s_lshr_b32 s26, s2, 5"); k("s_lshl_b32 s26, s26, 3"); k("s_lshl_b32 s28, s39, 1"); k("s_add_u32 s26, s26, s28")
    k(f"s_mul_i32 s27, s25, {HS}")
    k("s_lshr_b32 s28, s39, 1"); k(f"s_mul_i32 s28, s28, {WS_V - WS_K}"); k("s_add_u32 s30, s27, s28"); k(f"s_add_u32 s30, s30, {WS_K}")
    k("s_lshl_b32 s28, s38, 15"); k("s_add_u32 s30, s30, s28"); k("s_and_b32 s28, s39, 1"); k("s_lshl_b32 s28, s28, 10"); k("s_add_u32 s30, s30, s28")
    k("s_lshl_b32 s28, s24, 10")
    k("s_lshl_b32 s32, s26, 10"); k("s_add_u32 s32, s32, s27"); k(f"s_add_u32 s32, s32, {WS_Q}")
    k(f"s_add_u32 s33, s27, {WS_K}")
    k("s_mov_b32 m0, s28")
    k("v_lshrrev_b32 v2, 5, v0"); k("v_lshlrev_b32 v2, 8, v2"); k("v_and_b32 v3, 15, v0"); k("v_lshl_add_u32 v2, v3, 4, v2")
    k("s_lshl_b32 s29, s38, 12")
    k("v_add_u32 v15, s29, v1")
    k("v_bfe_u32 v10, v0, 4, 1"); k("v_add_u32 v10, -1, v10")
    k(f"s_add_u32 s31, s29, {2048 - ONES + (1<<32)}")
    k("v_and_b32 v3, s31, v10"); k(f"v_add_u32 v3, {ONES}, v3"); k("v_add_u32 v3, v3, v2")
    k("v_and_b32 v12, 3, v0"); k("v_lshlrev_b32 v12, 8, v12"); k("v_lshl_add_u32 v12, v0, 2, v12")
    k(f"s_lshl_b32 s31, s38, 10"); k(f"s_add_u32 s31, s31, {PROG}"); k("v_add_u32 v12, s31, v12")
    k("s_xor_b32 s31, s24, 4"); k("s_lshl_b32 s31, s31, 8"); k(f"s_add_u32 s31, s31, {PROG - 128}")
    k("s_mov_b32 exec_lo, 0"); k("v_lshl_add_u32 v12, v0, 2, s31"); k("s_mov_b32 exec_lo, -1")
    k("s_mov_b32 s40, 0x0000ffff"); k("s_mov_b32 s41, 0x0000ffff")
    for r in range(4): k(f"v_mov_b32 v{VF[1][1]+r}, 0")
    for r in range(32): k(f"v_mov_b32 v{O[0]+r}, 0")
    k(f"v_mov_b32 {IDX}, 0xdddddddd")
    k("v_mov_b32 v5, v3"); k("v_add_u32 v6, 8192, v15"); k("v_and_b32 v7, 8192, v10"); k("v_add_u32 v7, v7, v3")
    k("v_lshrrev_b32 v13, 5, v0"); k("v_add_u32 v13, 1, v13")
    if OPT("QWARM", 0): k.hops_end("QE_WR")
    k("v_mov_b32 v142, 0"); k("s_waitcnt lgkmcnt(0)"); k(f"v_readfirstlane_b32 {TAG}, v143")
    k("s_mov_b64 exec, 1")
    k("s_waitcnt vmcnt(0)")
    k("buffer_store_dword v143, v142, s[20:23], s44 offen sc1")
    k("s_lshl_b32 s28, s24, 2"); k(f"s_add_u32 s28, s28, {RELAY+16}"); k("v_mov_b32 v140, s28"); k("v_mov_b32 v141, 0x100000"); k("ds_write_b32 v140, v141")
    k("s_mov_b64 exec, -1")
    k.stamp()
    k("s_lshr_b32 s45, s25, 1"); k(f"s_mul_i32 s45, s45, {FSTR}"); k(f"s_add_u32 s45, s45, {QFLAG}"); k("v_lshlrev_b32 v140, 7, v0")
    k(f"v_mov_b32 v142, {RELAY}")
    if OPT("WARM", 2):
        k("s_cmp_ge_u32 s24, 4"); k("s_cbranch_scc1 AQ_NW")
        k("s_mov_b64 exec, 0")
        for w, nm in enumerate(("WA", "WB", "WC", "WD")):
            k(f"s_cmp_eq_u32 s24, {w}"); k(f"s_cbranch_scc1 HOP_{nm}_0")
        k.label("AQ_WR"); k("s_mov_b64 exec, -1")
        k.label("AQ_NW")
    k("s_cmp_lg_u32 s24, 4"); k("s_cbranch_scc1 AQ_REL")
    gpoll(k, "AQ", "s45", OPT("QSLEEP", 4), "v141", "v140", "s46")
    k("v_mov_b32 v141, 1"); k("ds_write_b32 v142, v141"); k("s_branch AQ_DONE")
    k.label("AQ_REL")
    k("s_sleep 1"); k("ds_read_b32 v141, v142"); k("s_waitcnt lgkmcnt(0)"); k("v_cmp_eq_u32 vcc, 1, v141"); k("s_cmp_eq_u64 vcc, -1"); k("s_cbranch_scc0 AQ_REL")
    k.label("AQ_DONE")
    if OPT("WARM", 2): k.hops_begin("WA")
    k.stamp()
    k(f"buffer_load_dwordx4 {vr(Q[0],4)}, v1, s[20:23], s32 offen sc1")
    k(f"buffer_load_dwordx4 {vr(Q[1],4)}, v1, s[20:23], s32 offen offset:1024 sc1")
    k(f"buffer_load_dwordx4 {vr(K0,4)}, v1, s[20:23], s33 offen sc1")
    for g in range(3):
        k("buffer_load_dwordx4 v1, s[20:23], s30 offen sc1 lds")
        k("s_add_u32 m0, m0, 8192"); k("s_add_u32 s30, s30, 2048")
    k("s_waitcnt vmcnt(3)")
    k(f"{MF} {vr(S[0],16)}, {vr(K0,4)}, {vr(Q[0],4)}, 0")
    k(f"{MF} {vr(S[1],16)}, {vr(K0,4)}, {vr(Q[1],4)}, 0")
    k("s_waitcnt vmcnt(1)")
    k("ds_write_b32 v11, v13")
    k("s_mov_b32 s34, 1")
    k(f"v_max3_f32 v8, v{S[0]}, v{S[0]+1}, v{S[0]+2}")
    for i in range(3, 31, 2): k(f"v_max3_f32 v8, v8, v{S[0]+i}, v{S[0]+i+1}")
    k(f"v_max_f32 v8, v8, v{S[0]+31}")
    k("ds_read_b32 v14, v12")
    k("v_mov_b32 v9, v8"); k("v_permlane32_swap_b32 v8, v9"); k("v_max_f32 v8, v8, v9")
    for r in range(16): k(f"v_xor_b32 v{C+r}, 0x80000000, v8")
    for r in range(8, 16): k(f"v_mov_b32 v{S[1]+r}, 0")
    k("s_waitcnt lgkmcnt(0)")
    k("v_cmp_le_u32 vcc, v13, v14"); k("s_setprio 1"); k("s_cmp_eq_u32 vcc_lo, -1"); k("s_cbranch_scc0 AP_SPIN")
    k.label("AP_CONT")
    def tail(tag="AP"):
        k.label(f"{tag}_SPIN"); k("s_sleep 1"); k("ds_read_b32 v14, v12"); k("s_waitcnt lgkmcnt(0)")
        k("v_cmp_le_u32 vcc, v13, v14"); k("s_cmp_eq_u32 vcc_lo, -1"); k(f"s_cbranch_scc0 {tag}_SPIN"); k(f"s_branch {tag}_CONT")
    tails.append(tail)
    k.stamp()
    k(f"ds_read_b128 {vr(KF[0],4)}, v15")
    k(f"ds_read_b128 {vr(VF[0][0],4)}, v5"); k(f"ds_read_b128 {vr(VF[0][1],4)}, v5 offset:512")
    k(f"ds_read_b128 {vr(KF[1],4)}, v15 offset:1024")
    k("s_mov_b32 s37, 16384")
    k("s_waitcnt lgkmcnt(3)")
    k(f"{MF} {vr(S[0],16)}, {vr(KF[0],4)}, {vr(Q[0],4)}, {vr(C,16)}")
    k("s_nop 10")
    if OPT("WARM", 2): k.hops_end("AQ_WR")
    k.label("AT_LOOP")
    SM = "v_smfmac_f32_32x32x32_bf16"
    L = Loop()
    for gi in range(NG):
      if OPT("WARM", 2) == 2:
          L.call(lambda gi=gi: ((k.hops_end("AQ_WR") if gi else None), k.hops_begin("WB" if gi == 0 else "WC")))
      for t in range(2):
        for ab in range(2):
            Sa = S[ab]; Sp = S[1-ab]
            q = []
            def e(i, fn=None):
                L.i(f"v_exp_f32 v{Sa+i}, v{Sa+i}")
                if fn: fn()
                elif q: L.i(q.pop(0))
            if ab == 0:
                va, vo = ("v5", 1024) if t == 0 else ("v7", 0)
                e(0, (lambda: L.ds("pr", "ds_read_b32 v14, v12")) if t == 0 else None); e(1)
                L.i(f"{SM} {vr(O[1],16)}, {vr(VF[(t+1)&1][1],4)}, {vr(Sp+8,8)}, {IDX}")
                e(2, lambda: L.ds(f"v{(t+1)&1}", f"ds_read_b128 {vr(VF[(t+1)&1][0],4)}, {va} offset:{vo}")); e(3)
                e(4, lambda: L.ds(f"v{(t+1)&1}", f"ds_read_b128 {vr(VF[(t+1)&1][1],4)}, {va} offset:{vo+512}")); e(5)
                L.i(f"{MF} {vr(Sp,16)}, {vr(KF[t&1],4)}, {vr(Q[1],4)}, {vr(C,16)}")
                e(6); e(7); e(8); e(9); e(10, lambda: L.wait(ds=[f"v{t&1}", "pr"] if t == 0 else f"v{t&1}"))
                L.i(f"{SM} {vr(O[0],16)}, {vr(VF[t&1][0],4)}, {vr(Sa,8)}, {IDX}")
                if t == 0:
                    e(11); L.i("v_cmp_le_u32 vcc, v13, v14")
                    e(12, lambda: L.i("s_setprio 1")); e(13, lambda: L.i("s_cmp_eq_u32 vcc_lo, -1"))
                    def chk(gi=gi):
                        k(f"s_cbranch_scc0 AT{gi}_SPIN"); k.label(f"AT{gi}_CONT"); k("v_add_u32 v13, 1, v13")
                        k("s_cmp_eq_u32 vcc_hi, 0"); k(f"s_cbranch_scc1 AT{gi}_AHEAD"); k("s_setprio 2"); k.label(f"AT{gi}_AHEAD")
                        def tail(tag=f"AT{gi}"):
                            k.label(f"{tag}_SPIN"); k("s_sleep 1"); k("ds_read_b32 v14, v12"); k("s_waitcnt lgkmcnt(0)")
                            k("v_cmp_le_u32 vcc, v13, v14"); k("s_cmp_eq_u32 vcc_lo, -1"); k(f"s_cbranch_scc0 {tag}_SPIN"); k(f"s_branch {tag}_CONT")
                        tails.append(tail)
                    L.call(chk)
                    e(14); e(15)
                else:
                    for i in range(11, 16): e(i)
            else:
                if t == 0:
                    e(0, lambda: L.i("s_waitcnt vmcnt(0)")); e(1, lambda: L.ds("pw", "ds_write_b32 v11, v13"))
                else:
                    e(0); e(1)
                L.i(f"{SM} {vr(O[0],16)}, {vr(VF[t&1][1],4)}, {vr(Sp+8,8)}, {IDX}")
                e(2, lambda: L.ds(f"k{t&1}", f"ds_read_b128 {vr(KF[t&1],4)}, v6 offset:{t*1024}"))
                e(3, (lambda: L.i("s_cmp_ge_u32 s34, 14")) if t == 0 else None); e(4)
                e(5, lambda: L.wait(ds=f"k{(t+1)&1}"))
                L.i(f"{MF} {vr(Sp,16)}, {vr(KF[(t+1)&1],4)}, {vr(Q[0],4)}, {vr(C,16)}")
                if t == 0:
                    def dm(gi=gi):
                        k(f"s_cbranch_scc1 AT_NODMA{gi}"); k("buffer_load_dwordx4 v1, s[20:23], s30 offen sc1 lds"); k.label(f"AT_NODMA{gi}")
                    L.call(dm)
                    q += ["s_add_u32 s35, m0, 8192", "s_and_b32 m0, s35, 0xffff", "s_add_u32 s30, s30, 2048"]
                else:
                    q += ["s_add_u32 s34, s34, 1"]
                for i in range(6, 11): e(i)
                L.i(f"{SM} {vr(O[1],16)}, {vr(VF[t&1][0],4)}, {vr(Sa,8)}, {IDX}")
                if t == 1:
                    for x in ("v_mov_b32 v5, v7", "v_add_u32 v6, s37, v15", "v_and_b32 v7, s37, v10", "v_add_u32 v7, v7, v3"): L.i(x)
                    q += ["s_add_u32 s37, s37, 8192", "s_and_b32 s37, s37, 0xffff", "s_cmp_lt_u32 s34, 17"]
                for i in range(11, 16): e(i)
    L.emit(k)
    if OPT("WARM", 2) == 2: k.hops_end("AQ_WR")
    k("s_cbranch_scc1 AT_LOOP")
    if OPT("WARM", 2): k.hops_begin("WD")
    k(f"{SM} {vr(O[1],16)}, {vr(VF[1][1],4)}, {vr(S[1]+8,8)}, {IDX}")
    k.stamp()
    k("s_lshl_b32 s35, s39, 13")
    k("v_add_u32 v4, s35, v15")
    k("v_xor_b32 v5, 4096, v4")
    k("s_lshl_b32 s35, s39, 9"); k("s_add_u32 s35, s35, s29"); k("s_add_u32 s35, s35, 32768")
    k("v_lshl_add_u32 v6, v0, 2, s35"); k("v_xor_b32 v7, 4096, v6")
    k("s_lshl_b32 s35, s39, 2"); k(f"s_add_u32 s35, s35, {PAIR}"); k("v_mov_b32 v8, s35"); k("v_mov_b32 v9, 1")
    for ab in range(2):
        k(f"ds_write_b128 v4, {vr(O[ab],4)} offset:{ab*2048}"); k(f"ds_write_b128 v4, {vr(O[ab]+4,4)} offset:{ab*2048+1024}")
        k(f"ds_write_b32 v6, v{O[ab]+8} offset:{ab*256}")
    k("s_mov_b64 exec, 1")
    k("ds_add_rtn_u32 v9, v8, v9")
    k("s_mov_b64 exec, -1")
    for ab in range(2):
        k(f"ds_read_b128 {vr(S[ab],4)}, v5 offset:{ab*2048}"); k(f"ds_read_b128 {vr(S[ab]+4,4)}, v5 offset:{ab*2048+1024}")
        k(f"ds_read_b32 v{S[ab]+8}, v7 offset:{ab*256}")
    k("s_lshl_b32 s33, s26, 15"); k("s_lshl_b32 s34, s25, 10"); k("s_add_u32 s33, s33, s34"); k(f"s_add_u32 s33, s33, {WS_O}")
    k(f"v_mov_b32 v11, {lit(2.0**30)}"); k(f"v_mov_b32 v10, {lit(2.0**-30)}"); k(f"v_mov_b32 v14, 0x7f800000")
    k("s_waitcnt lgkmcnt(0)")
    k("v_readfirstlane_b32 s35, v9")
    k("s_cmp_eq_u32 s35, 0"); k("s_cbranch_scc1 AT_EXIT")
    for ab in range(2):
        for r in range(9): k(f"v_add_f32 v{O[ab]+r}, v{O[ab]+r}, v{S[ab]+r}")
    k(f"v_add_f32 v8, |v{O[0]}|, |v{O[1]}|")
    for ab in range(2):
        for i in range(1, 8): k(f"v_add_f32 v8, v8, |v{O[ab]+i}|")
    k(f"v_cmp_gt_f32 s[42:43], v14, v8")
    for ab in range(2):
        k(f"v_cmp_gt_f32 s[44:45], v11, v{O[ab]+8}"); k(f"v_cmp_lt_f32 s[46:47], v10, v{O[ab]+8}")
        k("s_and_b64 s[42:43], s[42:43], s[44:45]"); k("s_and_b64 s[42:43], s[42:43], s[46:47]")
    k("s_cmp_eq_u64 s[42:43], -1")
    k("s_cbranch_scc0 AT_SLOW")
    k.label("AT_FIN")
    k("s_add_u32 s34, s33, 32768")
    k(f"v_rcp_f32 v8, v{O[0]+8}"); k(f"v_rcp_f32 v9, v{O[1]+8}")
    for ab in range(2):
        for i in range(8): k(f"v_mul_f32 v{O[ab]+i}, v{8+ab}, v{O[ab]+i}")
        for i in range(4): k(f"v_cvt_pk_bf16_f32 v{P+4*ab+i}, v{O[ab]+2*i}, v{O[ab]+2*i+1}")
        k(f"buffer_store_dwordx4 {vr(P+4*ab,4)}, v1, s[20:23], s{33+ab} offen sc1")
    k("s_lshl_b32 s35, s26, 5"); k("s_add_u32 s35, s35, s25"); k(f"s_lshl_b32 s35, s35, {OFS}"); k(f"s_add_u32 s35, s35, {OFLAG}")
    k("v_mov_b32 v8, 0"); k(f"v_mov_b32 v9, {TAG}")
    k("s_mov_b64 exec, 1")
    k("s_waitcnt vmcnt(0)")
    k("buffer_store_dword v9, v8, s[20:23], s35 offen sc1")
    k("s_mov_b64 exec, -1")
    if OPT("WARM", 2): k.hops_end("AQ_WR")
    k.label("AT_EXIT")
    finish(k, 8)
    for t in tails: t()
    k.label("AT_SLOW")
    k(f"s_add_u32 s30, s27, {WS_K}"); k(f"s_add_u32 s31, s27, {WS_V}")
    for r in range(8): k(f"v_mov_b32 v{VF[0][0]+r}, 0x3f803f80")
    for ab in range(2):
        k("v_mov_b32 v8, 0xff800000"); k("s_mov_b32 s34, 0")
        k.label(f"AT_S1{ab}")
        k("s_add_u32 s36, s30, s34")
        k(f"buffer_load_dwordx4 {vr(KF[0],4)}, v1, s[20:23], s36 offen sc1")
        k("s_waitcnt vmcnt(0)")
        k(f"{MF} {vr(S[0],16)}, {vr(KF[0],4)}, {vr(Q[ab],4)}, 0")
        for i in range(0, 16, 2): k(f"v_max3_f32 v8, v8, v{S[0]+i}, v{S[0]+i+1}")
        k("s_add_u32 s34, s34, 1024"); k("s_cmp_lt_u32 s34, 65536"); k(f"s_cbranch_scc1 AT_S1{ab}")
        k("v_mov_b32 v9, v8"); k("v_permlane32_swap_b32 v8, v9"); k("v_max_f32 v8, v8, v9")
        for r in range(16): k(f"v_xor_b32 v{C+r}, 0x80000000, v8")
        for r in range(16): k(f"v_mov_b32 v{O[ab]+r}, 0")
        k("s_mov_b32 s34, 0")
        k.label(f"AT_S2{ab}")
        k("s_add_u32 s36, s30, s34"); k("s_add_u32 s35, s31, s34")
        k(f"buffer_load_dwordx4 {vr(KF[0],4)}, v1, s[20:23], s36 offen sc1")
        k("s_mov_b64 exec, s[40:41]")
        k(f"buffer_load_dwordx4 {vr(VF[0][0],4)}, v2, s[20:23], s35 offen sc1")
        k(f"buffer_load_dwordx4 {vr(VF[0][1],4)}, v2, s[20:23], s35 offen offset:512 sc1")
        k("s_mov_b64 exec, -1")
        k("s_waitcnt vmcnt(0)")
        k(f"{MF} {vr(S[0],16)}, {vr(KF[0],4)}, {vr(Q[ab],4)}, {vr(C,16)}")
        for i in range(16): k(f"v_exp_f32 v{S[0]+i}, v{S[0]+i}")
        k(f"{SM} {vr(O[ab],16)}, {vr(VF[0][0],4)}, {vr(S[0],8)}, {IDX}")
        k(f"{SM} {vr(O[ab],16)}, {vr(VF[0][1],4)}, {vr(S[0]+8,8)}, {IDX}")
        k("s_nop 15")
        k("s_add_u32 s34, s34, 1024"); k("s_cmp_lt_u32 s34, 65536"); k(f"s_cbranch_scc1 AT_S2{ab}")
    k("s_branch AT_FIN")

def gpoll(k, tag, saddr, sleep, vd="v4", va="v3", cnt="s28", mask=None):
    k(f"s_mov_b32 {cnt}, 0")
    if mask: k(f"s_mov_b64 exec, {mask}")
    k.label(f"{tag}_POLL")
    k(f"buffer_load_dword {vd}, {va}, s[20:23], {saddr} offen sc1")
    k("s_waitcnt vmcnt(0)")
    k(f"v_cmp_ne_u32 vcc, {TAG}, {vd}")
    k("s_cmp_eq_u64 vcc, 0")
    k(f"s_cbranch_scc1 {tag}_OUT")
    if OPT("NARROW", 1): k("s_mov_b64 exec, vcc")
    k(f"s_sleep {sleep}")
    k(f"s_add_u32 {cnt}, {cnt}, 1"); k(f"s_cmp_lt_u32 {cnt}, 0x100000")
    k(f"s_cbranch_scc1 {tag}_POLL")
    k.label(f"{tag}_OUT")
    k("s_mov_b64 exec, -1")
    k.label(f"{tag}_GO")

def gb(k, n):
    sel = [int(x) for x in os.environ.get("BST", "").split(",") if x]
    if n in sel: k.stamp()
    k("s_barrier")
    if n in sel: k.stamp()
    if n == 8 and sel:
        k.stamp_off = True

def gemm_part(k):
    WF = 16; XF = 32; ACC = 48; DV = 160
    GP = OPT("GPRIO"); GP2 = OPT("GPRIO2")
    tails = []
    PF = OPT("PF2", 1); NPF = OPT("NPF", 4)
    k("s_setprio 3")
    k("s_sub_u32 s25, s24, 8")
    srd(k, 16, 4, 2048 * 1024); srd(k, 20, 8, WS_SIZE)
    k("v_lshrrev_b32 v42, 3, v0"); k("v_lshlrev_b32 v15, 10, v42"); k("v_and_b32 v45, 7, v0"); k("v_lshl_add_u32 v15, v45, 4, v15")
    k("s_lshl_b32 s28, s2, 13"); k("s_lshl_b32 s29, s25, 8"); k("s_add_u32 s28, s28, s29")
    k("buffer_load_dwordx4 v[16:19], v15, s[16:19], s28 offen"); k("buffer_load_dwordx4 v[20:23], v15, s[16:19], s28 offen offset:128")
    k("v_mov_b32 v13, 0"); k(f"s_mov_b32 s28, {EPOCH}"); k("buffer_load_dword v46, v13, s[20:23], s28 offen sc1")
    k("s_mov_b32 s50, s4"); k("s_mov_b32 s51, s5")
    k("s_load_dwordx4 s[4:7], s[0:1], 32")
    k("s_load_dwordx2 s[48:49], s[0:1], 48")
    k("s_load_dwordx2 s[56:57], s[0:1], 16")
    k("s_load_dwordx2 s[58:59], s[0:1], 56")
    k(f"v_lshlrev_b32 v43, 5, v42"); k(f"v_add_u32 v43, {LNX}, v43"); k("s_lshl_b32 s28, s25, 3"); k("v_add_u32 v44, s28, v43")
    k("v_lshlrev_b32 v45, 9, v45"); k("v_lshl_add_u32 v45, v42, 4, v45")
    gb(k, 0)
    k("s_waitcnt vmcnt(1)")
    for r in range(8):
        k(f"v_lshlrev_b32 v{24+2*r}, 16, v{16+r}"); k(f"v_and_b32 v{25+2*r}, 0xffff0000, v{16+r}")
    k("v_add_f32 v40, v24, v25"); k("v_mul_f32 v41, v24, v24"); k("v_fmac_f32 v41, v25, v25")
    for r in range(2, 16): k(f"v_add_f32 v40, v40, v{24+r}"); k(f"v_fmac_f32 v41, v{24+r}, v{24+r}")
    for ctl in ("quad_perm:[1,0,3,2]", "quad_perm:[2,3,0,1]", "row_half_mirror"):
        k(f"v_add_f32_dpp v40, v40, v40 {ctl} row_mask:0xf bank_mask:0xf"); k(f"v_add_f32_dpp v41, v41, v41 {ctl} row_mask:0xf bank_mask:0xf")
    k("ds_write_b64 v44, v[40:41]"); k("s_waitcnt lgkmcnt(0)")
    gb(k, 1)
    k("ds_read_b128 v[16:19], v43"); k("ds_read_b128 v[20:23], v43 offset:16"); k("v_mov_b32 v44, 0xffff0000")
    k("s_lshr_b32 s28, s2, 2"); k("s_lshl_b32 s28, s28, 15"); k("s_and_b32 s29, s2, 3"); k("s_lshl_b32 s29, s29, 7"); k("s_add_u32 s28, s28, s29")
    k("s_lshl_b32 s29, s25, 13"); k("s_add_u32 s28, s28, s29"); k(f"s_add_u32 s40, s28, {WS_XN}"); k("s_add_u32 s41, s40, 4096")
    k("s_waitcnt lgkmcnt(0)")
    k("v_add_f32 v16, v16, v18"); k("v_add_f32 v17, v17, v19"); k("v_add_f32 v20, v20, v22"); k("v_add_f32 v21, v21, v23")
    k("v_add_f32 v40, v16, v20"); k("v_add_f32 v41, v17, v21")
    ln_scalars(k, "v40", "v41", "v44", "v42", "v43")
    k("v_mul_f32 v43, -v43, v42")
    gb(k, 2)
    for r in range(16): k(f"v_fma_f32 v{24+r}, v{24+r}, v42, v43")
    for r in range(8): k(f"v_cvt_pk_bf16_f32 v{16+r}, v{24+2*r}, v{25+2*r}")
    k("buffer_store_dwordx4 v[16:19], v45, s[20:23], s40 offen sc1"); k("buffer_store_dwordx4 v[20:23], v45, s[20:23], s41 offen sc1")
    gb(k, 3)
    k("v_lshlrev_b32 v1, 4, v0"); k("s_lshl_b32 s28, s24, 8"); k(f"s_add_u32 s28, s28, {PROG}"); k("v_lshl_add_u32 v11, v0, 2, s28")
    k("v_mov_b32 v14, 0x3f803f80")
    k("v_and_b32 v2, 44, v0"); k("v_cmp_eq_u32 vcc, 0, v2"); k("v_cndmask_b32 v14, 0, v14, vcc")
    k("ds_write_b32 v11, v13"); k("v_add_u32 v2, -1024, v11"); k("ds_write_b32 v2, v13"); k("v_add_u32 v2, -2048, v11"); k("ds_write_b32 v2, v13")
    k(f"v_lshlrev_b32 v2, 2, v0"); k(f"v_add_u32 v2, {PAIR}, v2"); k("ds_write_b32 v2, v13")
    k("v_add_u32 v2, -4096, v11"); k("ds_write_b32 v2, v14"); k("ds_write_b32 v2, v14 offset:1024")
    k("s_mov_b32 s60, 0x7fffffff")
    k("s_and_b32 s27, s2, 7"); k("s_lshr_b32 s62, s2, 5")
    k("s_lshl_b32 s52, s62, 1"); k("s_lshr_b32 s29, s27, 2"); k("s_add_u32 s52, s52, s29")
    k("s_and_b32 s26, s27, 3"); k("s_lshl_b32 s26, s26, 2"); k("s_bfe_u32 s29, s2, 0x20003"); k("s_add_u32 s26, s26, s29")
    k("s_lshl_b32 s30, s52, 2"); k("s_add_u32 s30, s30, s25")
    k("s_and_b32 s31, s25, 1")
    k("s_cmp_lt_u32 s25, 2"); k("s_cselect_b32 s10, s4, s6"); k("s_cselect_b32 s11, s5, s7")
    srd(k, 12, 10, 512 * 3584); srd(k, 16, 48, 1792 * 1024)
    k("s_waitcnt lgkmcnt(0)")
    gb(k, 4)
    k("s_lshr_b32 s42, s2, 4"); k(f"s_mul_i32 s42, s42, {FSTR}"); k("s_and_b32 s29, s2, 15"); k("s_lshl_b32 s29, s29, 2"); k("s_add_u32 s29, s29, s25"); k("s_lshl_b32 s29, s29, 7")
    k("s_add_u32 s42, s42, s29"); k(f"s_add_u32 s42, s42, {XFLAG}")
    k("s_mov_b32 s28, 4096")
    for i in range(7):
        k(f"v_add_u32 v2, {64*i}, v0")
        k("v_mul_u32_u24 v3, 4682, v2"); k("v_lshrrev_b32 v3, 16, v3")
        k(f"v_mul_u32_u24 v3, {3584 - 224}, v3"); k(f"v_add3_u32 v{DV+i}, v1, v3, {'0' if i < 4 else 's28'}")
    k("s_waitcnt vmcnt(0)")
    k(f"v_readfirstlane_b32 {TAG}, v46"); k(f"v_mov_b32 v2, {RELAY+4}")
    k(f"s_mul_i32 {TAG}, {TAG}, 0x9e3779b1"); k(f"s_add_u32 {TAG}, {TAG}, 0x7f4a7c15")
    k(f"v_mov_b32 v46, {TAG}"); k("ds_write_b32 v2, v46 offset:8")
    k("s_mov_b64 exec, 1"); k("buffer_store_dword v46, v13, s[20:23], s42 offen sc1"); k("s_mov_b64 exec, -1")
    gb(k, 5)
    if NPF:
        k("s_lshr_b32 s28, s2, 3"); k("s_lshl_b32 s28, s28, 1"); k("s_add_u32 s28, s28, s31"); k(f"s_mul_i32 s28, s28, {NPF*3584}")
        k("s_and_b32 s29, s27, 3"); k("s_mul_i32 s29, s29, 896"); k("s_add_u32 s28, s28, s29")
        if OPT("PFOFF"): k(f"s_add_u32 s28, s28, {128*3584}")
        for j in range(NPF):
            k("buffer_load_dwordx4 v[4:7], v1, s[12:15], s28 offen"); k("s_add_u32 s28, s28, 3584")
    k("s_mul_i32 s63, s31, 114688"); k("s_mul_i32 s33, s26, 224"); k("s_add_u32 s63, s63, s33")
    k("s_mul_i32 s33, s31, 7168"); k("s_lshr_b32 s34, s25, 1"); k(f"s_mul_i32 s34, s34, {UP_W3OFF}"); k("s_add_u32 s33, s33, s34"); k(f"s_add_u32 s33, s33, {GB}")
    k("s_lshl_b32 s64, s30, 15"); k(f"s_add_u32 s64, s64, {WS_XN}")
    k("s_mov_b32 s32, s63"); k("s_mov_b32 s35, s64"); k("s_mov_b32 s36, s33")
    for r in range(40): k(f"v_mov_b32 v{ACC+r}, 0")
    gb(k, 6)
    def dma():
        out = ["s_mov_b32 m0, s36", "s_nop 0"]
        for i in range(7):
            if i == 4: out += ["s_add_u32 m0, s36, 4096", "s_nop 0"]
            out.append(f"buffer_load_dwordx4 v{DV+i}, s[12:15], s32 offen offset:{(i&3)*1024} lds")
        return out
    for x in dma(): k(x)
    k("s_add_u32 s32, s63, 229376"); k(f"s_add_u32 s36, s33, {UP_SLOT}")
    k(f"s_mul_i32 s45, s52, {FSTR}"); k(f"s_add_u32 s45, s45, {XFLAG}"); k("s_lshl_b32 s28, s25, 11"); k("s_add_u32 s45, s45, s28"); k("v_and_b32 v3, 15, v0"); k("v_lshlrev_b32 v3, 7, v3")
    for r in range(40, 80): k(f"v_mov_b32 v{ACC+r}, 0")
    gb(k, 7)
    k("s_mov_b64 exec, 0xffff"); k("buffer_load_dword v24, v3, s[20:23], s45 offen sc1"); k("s_mov_b64 exec, -1")
    for x in dma(): k(x)
    k("s_waitcnt lgkmcnt(0)")
    gb(k, 8)
    k.stamp()
    k("s_setprio 0")
    for r in range(80, 112): k(f"v_mov_b32 v{ACC+r}, 0")
    k("s_lshr_b32 s61, s2, 5"); k("s_lshl_b32 s61, s61, 2"); k("s_add_u32 s61, s61, s25"); k(f"s_mul_i32 s61, s61, {56*1024}")
    k("s_and_b32 s28, s26, 7"); k("s_lshl_b32 s28, s28, 7"); k("s_add_u32 s61, s61, s28")
    k("v_mov_b32 v13, 1")
    k("s_waitcnt vmcnt(7)")
    k("ds_write_b32 v11, v13")
    k(f"v_cmp_eq_u32 vcc, {TAG}, v24"); k("s_and_b32 s43, vcc_lo, 0xffff"); k("s_cmp_eq_u32 s43, 0xffff"); k("s_cbranch_scc1 UX_GO")
    gpoll(k, "UX", "s45", 4, mask="0xffff")
    for s in range(4): k(f"buffer_load_dwordx4 {vr(XF+4*s,4)}, v1, s[20:23], s35 offen offset:{s*1024} sc1")
    if PF: k("buffer_load_dwordx4 v[4:7], v15, s[16:19], s60 offen")
    k("v_lshrrev_b32 v8, 5, v0"); k("v_lshlrev_b32 v8, 3, v8"); k("v_bfe_u32 v3, v0, 2, 2"); k("v_add_u32 v8, v8, v3")
    k("v_mul_u32_u24 v8, 224, v8"); k("v_bfe_u32 v3, v0, 4, 1"); k(f"v_mul_u32_u24 v3, {UP_W3OFF}, v3"); k("v_add_u32 v8, v8, v3")
    k("v_and_b32 v3, 3, v0"); k("v_lshl_add_u32 v8, v3, 3, v8"); k(f"v_add_u32 v8, {GB}, v8")
    k("v_and_b32 v12, 3, v0"); k("v_lshlrev_b32 v12, 8, v12"); k("v_lshl_add_u32 v12, v0, 2, v12"); k(f"v_add_u32 v12, {PROG + 2048}, v12")
    k("ds_read_b32 v14, v12")
    k("v_mov_b32 v9, v8"); k(f"v_add_u32 v10, {UP_SLOT}, v8")
    k(f"s_mov_b32 s37, {2*UP_SLOT}"); k("s_mov_b32 s39, 1")
    k("s_add_u32 s35, s64, 4096"); k("s_mov_b32 s62, 2"); k(f"s_add_u32 s32, s63, {2*229376}"); k("s_sub_u32 s61, s61, 8192")
    k("s_waitcnt lgkmcnt(0)")
    tails.append(softcheck(k, "UB", "s39", "v14", "v12"))
    if OPT("GATE", 1):
        k("s_mov_b32 exec_lo, 0"); k("v_and_b32 v12, 3, v0"); k("v_lshlrev_b32 v12, 2, v12"); k(f"v_add_u32 v12, {RELAY+16+16}, v12"); k("s_mov_b32 exec_lo, -1")
    k("v_mov_b32 v13, 2")
    k(f"s_waitcnt vmcnt({1+PF})")
    k.stamp()
    def rd(m, areg):
        s, j = divmod(m, 7); o = s*3584 + j*32; d = WF + 4*(m & 3)
        return [f"ds_read_b64_tr_b16 {vr(d,2)}, {areg} offset:{o}", f"ds_read_b64_tr_b16 {vr(d+2,2)}, {areg} offset:{o+896}"]
    for m in range(4):
        for x in rd(m, "v9"): k(x)
    k.label("UP_LOOP")
    extra = []
    for m in range(28):
        s, j = divmod(m, 7)
        if j == 0: k(f"s_waitcnt vmcnt({(10 if s < 3 else 3) + PF})")
        cnt = 6
        if m in (17, 18, 19, 20): cnt = 7
        if m in (22, 23): cnt = 7
        if m == 24:
            k("s_waitcnt lgkmcnt(4)")
            k("s_add_u32 s39, s39, 1")
            k("s_setprio 3")
            tails.append(softcheck(k, "UP", "s39", "v14", "v12"))
            k("v_add_u32 v13, 1, v13")
            k(f"s_setprio {GP}")
            k("s_add_u32 s36, s33, s37")
            extra = dma()
        else:
            k(f"s_waitcnt lgkmcnt({cnt})")
        a = vr(ACC + 16*j, 16)
        k(f"{MF} {a}, {vr(WF+4*(m&3),4)}, {vr(XF+4*s,4)}, {a}")
        for x in (rd(m+4, "v9") if m < 24 else rd(m+4-28, "v10")): k(x)
        if m == 16:
            k(f"s_waitcnt vmcnt({3+PF})"); k("ds_write_b32 v11, v13")
        if m == 21: k("ds_read_b32 v14, v12")
        if m >= 24:
            for x in extra[[0,4,6,9,11][m-24]:[0,4,6,9,11][m-23]]: k(x)
        if j == 6: k(f"buffer_load_dwordx4 {vr(XF+4*s,4)}, v1, s[20:23], s35 offen offset:{s*1024} sc1")
    if PF:
        k("s_add_u32 s61, s61, 8192"); k("s_cmp_lt_u32 s39, 9"); k("s_cselect_b32 s61, s61, s60")
        k("buffer_load_dwordx4 v[4:7], v15, s[16:19], s61 offen")
    k("s_setprio 3")
    k("v_mov_b32 v9, v10"); k("v_add_u32 v10, s37, v8")
    k(f"s_setprio {GP}")
    k("s_lshl_b32 s35, s62, 12"); k("s_add_u32 s35, s35, s64")
    k("s_add_u32 s62, s62, 1"); k("s_and_b32 s62, s62, 7"); k("s_mul_i32 s32, s62, 229376"); k("s_add_u32 s32, s32, s63")
    k("s_cmp_lt_u32 s39, 7"); k("s_cselect_b32 s32, s32, s60")
    k("s_cmp_lt_u32 s39, 8"); k("s_cselect_b32 s35, s35, s60")
    k(f"s_add_u32 s37, s37, {UP_SLOT}"); k(f"s_cmp_eq_u32 s37, {3*UP_SLOT}"); k("s_cselect_b32 s37, 0, s37")
    k("s_cmp_lt_u32 s39, 9"); k("s_cbranch_scc1 UP_LOOP")
    k.stamp()
    k("s_setprio 3")
    k("s_mul_i32 s40, s30, 112"); k("s_lshr_b32 s41, s26, 2"); k("s_mul_i32 s41, s41, 28"); k("s_add_u32 s40, s40, s41"); k("s_and_b32 s41, s26, 3"); k("s_add_u32 s40, s40, s41")
    k("s_lshl_b32 s40, s40, 10"); k(f"s_add_u32 s40, s40, {WS_H}")
    k("s_waitcnt vmcnt(0) lgkmcnt(0)")
    k("ds_write_b32 v11, v13")
    k("ds_read_b32 v14, v12")
    ACD = 48; TF = 112; WD = [16, 24]; EP = 144
    k("s_lshl_b32 s53, s52, 1"); k("s_lshr_b32 s28, s26, 3"); k("s_add_u32 s53, s53, s28"); k("s_and_b32 s54, s26, 7")
    k("s_lshr_b32 s63, s25, 1"); k("s_and_b32 s64, s25, 1")
    srd(k, 12, 48, 1792 * 1024); srd(k, 16, 50, 2048 * 1024)
    k("v_lshrrev_b32 v2, 3, v0"); k("v_lshlrev_b32 v2, 10, v2")
    k("v_bfe_u32 v3, v0, 2, 1"); k("v_bfe_u32 v4, v0, 4, 1"); k("v_xor_b32 v3, v3, v4"); k("v_lshl_add_u32 v2, v3, 6, v2")
    k("v_and_b32 v3, 3, v0"); k("v_lshl_add_u32 v2, v3, 4, v2")
    k(f"v_add_u32 v15, {8192-1024}, v2")
    k("s_lshl_b32 s32, s25, 14"); k(f"s_add_u32 s32, s32, {GB}")
    k("v_lshrrev_b32 v8, 5, v0"); k("v_lshlrev_b32 v3, 2, v8"); k("v_bfe_u32 v4, v0, 2, 2"); k("v_add_u32 v3, v3, v4"); k("v_lshlrev_b32 v3, 7, v3")
    k("v_bfe_u32 v4, v0, 3, 1"); k("v_xor_b32 v4, s64, v4"); k("v_lshl_add_u32 v3, v4, 6, v3")
    k("v_bfe_u32 v4, v0, 4, 1"); k("v_lshl_add_u32 v3, v4, 5, v3"); k("v_and_b32 v4, 1, v0"); k("v_lshl_add_u32 v3, v4, 4, v3")
    k("v_bfe_u32 v4, v0, 1, 1"); k("v_lshl_add_u32 v3, v4, 3, v3")
    k("v_xor_b32 v4, 64, v3"); k("v_add_u32 v5, s32, v3"); k("v_add_u32 v6, s32, v4")
    k("v_add_u32 v9, 8192, v5"); k("v_add_u32 v10, 8192, v6")
    k(f"s_mul_i32 s33, s25, {28*16384}"); k("s_lshl_b32 s55, s54, 7"); k("s_add_u32 s33, s33, s55")
    k(f"s_mov_b32 s65, {7*16384}"); k(f"s_mov_b32 s66, {(-20*16384) & 0xffffffff}")
    k(f"s_mul_i32 s34, s53, {2*112*1024}"); k(f"s_mul_i32 s35, s25, {28*1024}"); k("s_add_u32 s34, s34, s35"); k(f"s_add_u32 s34, s34, {WS_H}")
    k(f"s_mul_i32 s28, s63, {112*1024}"); k(f"s_add_u32 s35, s34, {112*1024}"); k("s_sub_u32 s35, s35, s28"); k("s_add_u32 s34, s34, s28")
    k("s_lshr_b32 s38, s30, 1"); k("s_lshl_b32 s38, s38, 10"); k("s_lshr_b32 s28, s26, 2"); k("s_lshl_b32 s28, s28, 8"); k("s_add_u32 s38, s38, s28")
    k("s_and_b32 s28, s26, 3"); k("s_lshl_b32 s28, s28, 3"); k("s_add_u32 s38, s38, s28"); k("s_and_b32 s28, s30, 1"); k("s_lshl_b32 s28, s28, 2")
    k("s_add_u32 s38, s38, s28"); k(f"s_add_u32 s38, s38, {HFLAG}")
    k("s_lshl_b32 s45, s53, 10"); k("s_lshl_b32 s28, s25, 8"); k("s_add_u32 s45, s45, s28"); k(f"s_add_u32 s45, s45, {HFLAG}")
    k("v_and_b32 v3, 7, v0"); k("v_lshlrev_b32 v3, 2, v3"); k("v_mov_b32 v7, 0"); k(f"v_mov_b32 v167, {TAG}")
    k("s_waitcnt lgkmcnt(0)"); k("s_mov_b32 s39, 10")
    tails.append(softcheck(k, "U9", "s39", "v14", "v12"))
    def wdma(n, slot, base="s36"):
        return [f"s_add_u32 m0, {base}, {slot*2048}", "s_nop 0",
                "buffer_load_dwordx4 v2, s[12:15], s33 offen lds",
                "buffer_load_dwordx4 v15, s[12:15], s33 offen offset:1024 lds",
                f"s_add_u32 s33, s33, {'s66' if n % 4 == 3 else 's65'}"]
    k("s_mov_b32 s36, s32")
    NL2E = lit(-1.4426950408889634)
    def flag(off):
        k("s_mov_b64 exec, 1"); k(f"buffer_store_dword v167, v7, s[20:23], s38 offen offset:{off} sc1"); k("s_mov_b64 exec, -1")
    for j in range(7):
        a = ACC + 16*j; t = 16 + (j & 1)*12
        for r in range(8): k(f"v_mul_f32 v{t+r}, {NL2E}, v{a+r}")
        for r in range(8): k(f"v_exp_f32 v{t+r}, v{t+r}")
        for r in range(0, 8, 2): k(f"v_pk_mul_f32 {vr(a+r,2)}, {vr(a+r,2)}, {vr(a+8+r,2)}")
        for r in range(0, 8, 2): k(f"v_pk_add_f32 {vr(t+r,2)}, {vr(t+r,2)}, 1.0 op_sel_hi:[1,0]")
        for r in range(8): k(f"v_rcp_f32 v{t+r}, v{t+r}")
        for r in range(0, 8, 2): k(f"v_pk_mul_f32 {vr(a+r,2)}, {vr(a+r,2)}, {vr(t+r,2)}")
        for r in range(4): k(f"v_cvt_pk_bf16_f32 v{t+8+r}, v{a+2*r}, v{a+2*r+1}")
        if j == 6:
            k("s_waitcnt vmcnt(8)"); flag(0)
        k(f"buffer_store_dwordx4 {vr(t+8,4)}, v1, s[20:23], s40 offen sc1")
        k("s_add_u32 s40, s40, 4096")
        for x in wdma(j, j): k(x)
    k.stamp()
    k(f"buffer_load_dword v4, v3, s[20:23], s45 offen sc1")
    for r in range(64): k(f"v_mov_b32 v{ACD+r}, 0")
    k("v_and_b32 v152, 31, v0"); k("v_lshlrev_b32 v152, 10, v152"); k("v_lshl_add_u32 v152, v8, 4, v152")
    k("s_lshl_b32 s40, s53, 16"); k("s_lshl_b32 s41, s63, 15"); k("s_add_u32 s40, s40, s41"); k("s_add_u32 s40, s40, s55")
    k("s_lshl_b32 s41, s64, 6"); k("s_add_u32 s40, s40, s41")
    k("s_waitcnt vmcnt(3)"); flag(32)
    k("s_waitcnt vmcnt(1)")
    k(f"v_cmp_eq_u32 vcc, {TAG}, v4"); k("s_cmp_eq_u64 vcc, -1"); k("s_cbranch_scc1 DH_GO")
    gpoll(k, "DH", "s45", 4)
    k.stamp()
    def tload(s):
        return [f"buffer_load_dwordx4 {vr(TF+8*s,4)}, v1, s[20:23], s34 offen offset:{s*1024} sc1",
                f"buffer_load_dwordx4 {vr(TF+8*s+4,4)}, v1, s[20:23], s35 offen offset:{s*1024} sc1"]
    for s in range(4):
        for x in tload(s): k(x)
    def wreads(slot, buf, other):
        a0, a1 = ("v9", "v10") if other else ("v5", "v6")
        o = slot * 2048
        return [f"ds_read_b64_tr_b16 {vr(WD[buf],2)}, {a0} offset:{o}", f"ds_read_b64_tr_b16 {vr(WD[buf]+2,2)}, {a0} offset:{o+1024}",
                f"ds_read_b64_tr_b16 {vr(WD[buf]+4,2)}, {a1} offset:{o}", f"ds_read_b64_tr_b16 {vr(WD[buf]+6,2)}, {a1} offset:{o+1024}"]
    def mfl(buf, tf):
        out = []
        for a in range(2):
            for b in range(2):
                c = vr(ACD + (a*2+b)*16, 16)
                out.append(f"{MF} {c}, {vr(WD[buf]+4*b,4)}, {vr(tf+4*a,4)}, {c}")
        return out
    for x in wreads(0, 0, False): k(x)
    k("s_mov_b32 s42, 0"); k("s_mov_b32 s43, 0x7fffffff")
    k("s_add_u32 s44, s32, 8192"); k("s_add_u32 s45, s45, 32")
    k("s_lshl_b32 s67, s25, 17"); k("s_add_u32 s67, s67, s55"); k("s_and_b32 s57, s57, 0xffff")
    k(f"s_setprio {GP2}")
    k("s_waitcnt vmcnt(0)")
    for i in range(2): k(f"buffer_load_dwordx4 {vr(EP+4*i,4)}, v152, s[16:19], s40 offen offset:{32*i}")
    k.label("DN_LOOP")
    if OPT("HOLD", 0):
        k(f"s_cmp_lg_u32 s42, {OPT('HPOS', 12)}"); k("s_cbranch_scc1 DN_NOH")
        k(f"s_lshl_b32 s28, s25, 8"); k(f"s_add_u32 s28, s28, {PROG}"); k("v_lshrrev_b32 v153, 5, v0"); k("v_lshl_add_u32 v153, v153, 10, s28")
        k.label("DN_HOLD")
        k("s_sleep 4"); k("ds_read_b32 v154, v153"); k("s_waitcnt lgkmcnt(0)")
        k(f"v_cmp_le_u32 vcc, {OPT('HOLD', 0)}, v154"); k("s_cmp_eq_u64 vcc, -1" if OPT("HBOTH") else "s_cmp_lg_u64 vcc, 0"); k("s_cbranch_scc0 DN_HOLD")
        k.label("DN_NOH")
    if OPT("HBAR"):
        k(f"s_cmp_lg_u32 s42, {OPT('HBAR')}"); k("s_cbranch_scc1 DN_NOB"); k("s_barrier"); k.label("DN_NOB")
    k("s_cmp_lg_u32 s42, 12"); k("s_cbranch_scc1 DB_GO")
    gpoll(k, "DB", "s45", 4)
    k("s_add_u32 s34, s34, 4096"); k("s_add_u32 s35, s35, 4096")
    k("s_cmp_lt_u32 s42, 24"); k("s_cselect_b32 s34, s34, s43"); k("s_cselect_b32 s35, s35, s43")
    for s in range(4):
        k("s_waitcnt vmcnt(14) lgkmcnt(0)")
        for x in interleave(mfl(s & 1, TF + 8*s), wreads((s+1) & 3, (s+1) & 1, s == 3)): k(x)
        for x in tload(s): k(x)
        if s == 1:
            k("s_cmp_eq_u32 s42, 20")
            k("s_cselect_b32 s12, s56, s12"); k("s_cselect_b32 s13, s57, s13"); k(f"s_cselect_b32 s14, {512*1024}, s14")
            k("s_cselect_b32 s33, s67, s33"); k("s_cselect_b32 s65, 16384, s65"); k("s_cselect_b32 s66, 16384, s66")
        for x in (wdma(s+7, 3, "s44") if s == 0 else wdma(s+7, s-1)): k(x)
    k("s_setprio 3")
    k("v_swap_b32 v5, v9"); k("v_swap_b32 v6, v10")
    k(f"s_setprio {GP2}")
    k("s_mov_b32 s28, s36"); k("s_mov_b32 s36, s44"); k("s_mov_b32 s44, s28")
    k("s_add_u32 s42, s42, 4"); k("s_cmp_lt_u32 s42, 28"); k("s_cbranch_scc1 DN_LOOP")
    k.stamp()
    k("s_setprio 3")
    for x in wdma(0, 3, "s44"): k(x)
    srd(k, 16, 58, 2048 * 1024)
    for r in range(8):
        k(f"v_lshlrev_b32 v{32+2*r}, 16, v{EP+r}"); k(f"v_and_b32 v{33+2*r}, 0xffff0000, v{EP+r}")
    k("v_mov_b32 v160, v152")
    k(f"s_lshl_b32 s34, s53, 16"); k("s_lshl_b32 s35, s25, 13"); k("s_add_u32 s34, s34, s35"); k(f"s_add_u32 s34, s34, {WS_O}")
    k("s_lshl_b32 s28, s63, 15"); k("s_add_u32 s35, s34, 32768"); k("s_sub_u32 s35, s35, s28"); k("s_add_u32 s34, s34, s28")
    k("s_add_u32 s46, s34, 4096"); k("s_add_u32 s47, s35, 4096")
    k("s_lshl_b32 s45, s53, 3"); k("s_add_u32 s45, s45, s25"); k(f"s_lshl_b32 s45, s45, {3+OFS}"); k(f"s_add_u32 s45, s45, {OFLAG}"); k(f"v_lshlrev_b32 v3, {OFS-2}, v3")
    for r in range(16): k(f"v_add_f32 v{ACD+r}, v{ACD+r}, v{32+r}")
    k("v_add_u32 v161, s32, v1")
    for t in (1, 2, 3):
        k(f"s_xor_b32 s28, s25, {t}"); k("s_lshl_b32 s28, s28, 14"); k(f"s_add_u32 s28, s28, {GB + (t-1)*4096}"); k(f"v_add_u32 v{161+t}, s28, v1")
    k("v_add_u32 v13, 1, v13")
    OG = [[112, 120, 128, 136], [32, 40, 144, 152]]
    k("s_mov_b32 s44, 0x11"); k("s_mov_b32 s28, 0")
    k("s_waitcnt lgkmcnt(0)")
    if OPT("WBAR", 1): k("s_barrier")
    k.label("WO_POLL")
    k("buffer_load_dword v4, v3, s[20:23], s45 offen sc1")
    k("s_waitcnt vmcnt(0)")
    k(f"v_cmp_eq_u32 vcc, {TAG}, v4")
    k("s_add_u32 s28, s28, 1"); k("s_cmp_lt_u32 s28, 0x100000"); k("s_cselect_b32 s42, vcc_lo, -1")
    k("s_lshr_b32 s29, s42, 1"); k("s_and_b32 s42, s42, s29"); k("s_lshr_b32 s29, s42, 2"); k("s_and_b32 s42, s42, s29")
    k("s_and_b32 s42, s42, s44")
    k("s_cbranch_scc1 WO_GO")
    k(f"s_sleep {OPT('WSLEEP', 3)}"); k("s_branch WO_POLL")
    k.label("WO_GO")
    if OPT("WARM", 2) == 1: k.hops_begin("WB")
    k("s_andn2_b32 s44, s44, s42")
    for g in range(2):
        k(f"s_bitcmp1_b32 s42, {4*g}"); k(f"s_cbranch_scc0 WO_L{g}")
        sa, sb = ("s34", "s35") if g == 0 else ("s46", "s47")
        for h in range(4):
            k(f"buffer_load_dwordx4 {vr(OG[g][h],4)}, v1, s[20:23], {sa} offen offset:{h*1024} sc1")
            k(f"buffer_load_dwordx4 {vr(OG[g][h]+4,4)}, v1, s[20:23], {sb} offen offset:{h*1024} sc1")
        k.label(f"WO_L{g}")
    for g in range(2):
        k(f"s_bitcmp1_b32 s42, {4*g}"); k(f"s_cbranch_scc0 WO_C{g}")
        for x in wreads(0, 0, g == 1): k(x)
        if g == 0:
            k("s_bitcmp1_b32 s42, 4"); k("s_cbranch_scc1 WO_W8"); k("s_waitcnt vmcnt(0)"); k.label("WO_W8"); k("s_waitcnt vmcnt(8)")
        else: k("s_waitcnt vmcnt(0)")
        for h in range(4):
            k("s_waitcnt lgkmcnt(0)")
            for x in interleave(mfl(h & 1, OG[g][h]), wreads(h+1, (h+1) & 1, g == 1) if h < 3 else []): k(x)
        k.label(f"WO_C{g}")
    if OPT("WARM", 2) == 1: k.hops_end("AQ_WR"); k.hops_begin("WC")
    k("s_cmp_lg_u32 s44, 0"); k("s_cbranch_scc1 WO_POLL")
    k.stamp()
    k("s_nop 5")
    for t in (1, 2, 3):
        for q in range(4): k(f"ds_write_b128 v161, {vr(ACD + t*16 + 4*q, 4)} offset:{(t-1)*4096 + q*1024}")
    if OPT("WBAR", 1):
        k("s_waitcnt lgkmcnt(0)"); k("s_barrier")
    else:
        k("ds_write_b32 v11, v13")
        k("ds_read_b32 v14, v12"); k("s_waitcnt lgkmcnt(0)"); k("s_mov_b32 s39, 11")
        tails.append(softcheck(k, "DC", "s39", "v14", "v12"))
    k.stamp()
    for q in range(4):
        for t in (1, 2, 3): k(f"ds_read_b128 {vr(ACD + t*16 + 4*q, 4)}, v{161+t} offset:{q*1024}")
    for q in range(4):
        k(f"s_waitcnt lgkmcnt({9 - 3*q})")
        for r in range(4*q, 4*q+4): k(f"v_add_f32 v{ACD+16+r}, v{ACD+16+r}, v{ACD+32+r}"); k(f"v_add_f32 v{ACD+r}, v{ACD+r}, v{ACD+48+r}")
        for r in range(4*q, 4*q+4): k(f"v_add_f32 v{ACD+r}, v{ACD+r}, v{ACD+16+r}")
        for r in range(2*q, 2*q+2): k(f"v_cvt_pk_bf16_f32 v{16+r}, v{ACD+2*r}, v{ACD+2*r+1}")
        if q & 1: k(f"buffer_store_dwordx4 {vr(16+4*(q>>1),4)}, v160, s[16:19], s40 offen offset:{32*(q>>1)} {os.environ.get('OUTST', '')}")
    if OPT("WARM", 2) == 1: k.hops_end("AQ_WR")
    k("s_add_u32 s28, s2, s25"); k("s_cmp_lg_u32 s28, 0"); k("s_cbranch_scc1 G_NOEP")
    k(f"v_mov_b32 v2, 0"); k(f"v_mov_b32 v3, {TAG}"); k(f"s_mov_b32 s28, {EPOCH}")
    k("s_mov_b64 exec, 1"); k("buffer_store_dword v3, v2, s[20:23], s28 offen sc1"); k("s_mov_b64 exec, -1")
    k.label("G_NOEP")
    finish(k, 2)
    for t in tails: t()

def gen_mega():
    k = Kern(NAME, 256, 768, LDS_TOTAL, 168, 72)
    k("s_cmp_ge_u32 s2, 256"); k("s_cbranch_scc1 M_END")
    k.stamp(True); k.stamp()
    k("s_load_dwordx2 s[8:9], s[0:1], 72")
    k("s_load_dwordx4 s[4:7], s[0:1], 0")
    k("v_lshrrev_b32 v1, 6, v0"); k("v_and_b32 v0, 63, v0"); k("v_readfirstlane_b32 s24, v1")
    k("s_cmp_ge_u32 s24, 8"); k("s_cbranch_scc1 M_GEMM")
    qkv_part(k)
    attn_part(k)
    k.label("M_GEMM")
    if Kern.DIAG: k.nst = 2
    k("s_waitcnt lgkmcnt(0)")
    gemm_part(k)
    k.label("M_END")
    k("s_endpgm")
    return k
```

```python
from common import *
import os
OPT = lambda n, d=0: int(os.environ.get(n, d))
MF = "v_mfma_f32_32x32x16_bf16"
MF16 = "v_mfma_f32_16x16x32_bf16"
UP_SLOT = 28928
UP_W3OFF = 14464
GB = 65536
ONES = GB + 3 * UP_SLOT
PROG = ONES + 2048
PAIR = PROG + 3072
SC = PAIR + 256
LDS_TOTAL = SC + 4096
assert ONES % 256 == 0 and LDS_TOTAL <= 163840 and ONES >= 131072
HFLAG = WS_FLAG
OFS = OPT("OFS", 2)
OFLAG = WS_FLAG + (32768 if OFS == 2 else 655360)
QFLAG = WS_FLAG + 131072
FSTR = 8192 + 256
XFLAG = WS_FLAG + 393216
RELAY = PAIR + 64
EPOCH = WS_FLAG + 65536 + 4096
TAG = "s70"
HS = 65536 + OPT("HPAD", 0)
QB = 24 * MB
if OPT("LAY") == 1:
    HS = 3 * 65536 + OPT("HPAD", 0); WS_Q = QB; WS_K = QB + 65536; WS_V = QB + 131072
elif OPT("HPAD") or OPT("RPAD"):
    WS_Q = QB; WS_K = QB + 32 * HS + OPT("RPAD"); WS_V = QB + 64 * HS + 2 * OPT("RPAD")
WS_SIZE = 32 * MB
NST = 14
NAME = "parallel_sum__softmax_full_mha__glu_gated_swiglu__prompt_kernel"

def load_tag(k):
    k(f"s_add_u32 s68, s8, {EPOCH}"); k("s_addc_u32 s69, s9, 0")
    k(f"s_load_dword {TAG}, s[68:69], 0"); k("s_waitcnt lgkmcnt(0)")
    k(f"s_mul_i32 {TAG}, {TAG}, 0x9e3779b1"); k(f"s_add_u32 {TAG}, {TAG}, 0x7f4a7c15")

def ln_scalars(k, s, q, mask, r, mb):
    k(f"v_mul_f32 {s}, {lit(1/512)}, {s}"); k(f"v_mul_f32 {q}, {lit(1/512)}, {q}")
    k(f"v_fma_f32 {q}, -{s}, {s}, {q}"); k(f"v_max_f32 {q}, 0, {q}")
    k(f"v_cvt_pk_bf16_f32 {s}, {s}, {q}")
    k(f"v_and_b32 {q}, {mask}, {s}"); k(f"v_lshlrev_b32 {mb}, 16, {s}")
    k(f"v_add_f32 {q}, {lit(1e-5)}, {q}")
    k(f"v_cvt_pk_bf16_f32 {q}, {q}, {q}"); k(f"v_lshlrev_b32 {q}, 16, {q}")
    k(f"v_sqrt_f32 {q}, {q}")
    k(f"v_cvt_pk_bf16_f32 {q}, {q}, {q}"); k(f"v_lshlrev_b32 {q}, 16, {q}")
    k(f"v_rcp_f32 {r}, {q}")

def qkv_part(k):
    k("s_and_b32 s27, s2, 7"); k("s_lshr_b32 s28, s2, 3")
    k("s_lshr_b32 s25, s27, 1"); k("s_lshl_b32 s25, s25, 3"); k("s_lshr_b32 s29, s28, 2"); k("s_add_u32 s25, s25, s29")
    k("s_and_b32 s26, s27, 1"); k("s_lshl_b32 s26, s26, 2"); k("s_and_b32 s29, s28, 3"); k("s_add_u32 s26, s26, s29")
    k("s_add_u32 s40, s25, s26"); k("s_and_b32 s40, s40, 7")
    if OPT("ROTM", 11) == 1: k("s_lshr_b32 s40, s25, 1"); k("s_add_u32 s40, s40, s26"); k("s_and_b32 s40, s40, 7")
    if OPT("ROTM") == 2: k("s_lshr_b32 s40, s25, 2"); k("s_add_u32 s40, s40, s26"); k("s_and_b32 s40, s40, 7")
    if OPT("ROTM") == 3: k("s_mov_b32 s40, s26")
    if OPT("ROTM", 11) >= 8:
        rm = OPT("ROTM", 11)
        if rm == 8: k("s_mov_b32 s40, 0")
        if rm == 9: k("s_and_b32 s40, s26, 1"); k("s_lshl_b32 s40, s40, 2")
        if rm == 10: k("s_and_b32 s40, s25, 1"); k("s_lshl_b32 s40, s40, 2")
        if rm == 11: k("s_lshr_b32 s40, s27, 0")
    elif OPT("ROTM", 11) >= 4:
        k("s_and_b32 s40, s26, 3"); k("s_lshl_b32 s40, s40, 1"); k("s_lshr_b32 s29, s26, 2"); k("s_add_u32 s40, s40, s29")
        k(f"s_and_b32 s29, s25, {(7, 6, 4, 0)[OPT('ROTM', 7) - 4]}"); k("s_add_u32 s40, s40, s29"); k("s_and_b32 s40, s40, 7")
    k("s_bfe_u32 s56, s24, 0x10001"); k("s_and_b32 s59, s24, 1")
    LD_FIRST = OPT("LDFIRST", 1)
    k("s_cmp_ge_u32 s24, 4" if LD_FIRST else "s_cmp_lt_u32 s24, 4"); k("s_cbranch_scc1 K1_COMP")
    k("s_and_b32 s57, s24, 3")
    k("v_lshrrev_b32 v40, 3, v0"); k("v_lshlrev_b32 v44, 10, v40")
    k("v_lshrrev_b32 v41, 4, v0"); k("v_and_b32 v42, 7, v0")
    k("v_xor_b32 v43, v41, v42"); k("v_lshl_add_u32 v1, v43, 4, v44")
    k("v_xor_b32 v43, 4, v43"); k("v_lshl_add_u32 v2, v43, 4, v44"); k(f"v_add_u32 v2, {8192-1024}, v2")
    k("v_mul_u32_u24 v40, 3072, v40"); k("v_and_b32 v41, 1, v41"); k("v_lshlrev_b32 v41, 2, v41"); k("v_xor_b32 v41, v41, v42"); k("v_lshl_add_u32 v3, v41, 4, v40")
    k("s_lshl_b32 s31, s25, 16"); k("s_lshl_b32 s33, s57, 14"); k("s_add_u32 s31, s31, s33")
    k("s_lshl_b32 s32, s57, 11")
    k("s_mul_i32 s35, s57, 49152"); k("s_lshl_b32 s33, s26, 7"); k("s_add_u32 s35, s35, s33")
    k("s_mul_i32 s36, s57, 6144"); k("s_add_u32 s36, s36, 8192")
    k("s_mov_b32 s42, 0"); k("s_mov_b32 s43, 0x10000"); k("s_mov_b32 s41, s40")
    k("s_waitcnt lgkmcnt(0)")
    srd(k, 12, 4, 2048 * 1024); srd(k, 16, 6, 512 * 3072)
    def issue():
        o = ["s_lshl_b32 s33, s41, 7", "s_add_u32 m0, s43, s32", "s_add_u32 s33, s33, s31",
             "buffer_load_dwordx4 v1, s[12:15], s33 offen lds",
             "buffer_load_dwordx4 v2, s[12:15], s33 offen offset:1024 lds",
             "s_mul_i32 s33, s41, 196608", "s_add_u32 m0, s43, s36", "s_add_u32 s33, s33, s35"]
        o += [f"buffer_load_dwordx4 v3, s[16:19], s33 offen offset:{blk*1024} lds" for blk in range(3)]
        o += ["s_add_u32 m0, m0, 3072", "s_add_u32 s33, s33, 24576"]
        o += [f"buffer_load_dwordx4 v3, s[16:19], s33 offen offset:{blk*1024} lds" for blk in range(3)]
        o += ["s_add_u32 s41, s41, 1", "s_and_b32 s41, s41, 7", "s_add_u32 s43, s43, 32768", "s_and_b32 s43, s43, 0x1ffff"]
        return o
    D0 = 3 if OPT("DEEP", 2) == 2 else 2
    k.label("K1_LP")
    for x in issue(): k(x)
    k("s_add_u32 s42, s42, 1"); k(f"s_cmp_lt_u32 s42, {D0}"); k("s_cbranch_scc1 K1_LP")
    k("v_and_b32 v48, 31, v0"); k("v_lshrrev_b32 v49, 5, v0"); k("v_bfe_u32 v50, v0, 1, 3")
    k("s_lshl_b32 s33, s56, 12"); k("v_lshl_add_u32 v51, v48, 7, s33")
    k("s_lshl_b32 s33, s59, 2"); k("v_or_b32 v52, s33, v49"); k("v_xor_b32 v52, v52, v50"); k("v_lshl_add_u32 v4, v52, 4, v51"); k("v_xor_b32 v5, 32, v4")
    k("v_add_u32 v8, 0x10000, v4"); k("v_add_u32 v9, 0x10000, v5"); k("v_mov_b32 v13, 0xffff0000")
    for r in range(54, 62): k(f"v_mov_b32 v{r}, 0")
    srd(k, 20, 8, WS_SIZE)
    k("s_mov_b32 s42, 0"); k("s_mov_b32 s44, 0x10000")
    k.stamp()
    KEEP = OPT("ROTM", 11) >= 8
    if KEEP: k("s_sub_u32 s45, s26, s40"); k("s_and_b32 s45, s45, 7")
    def keep():
        if KEEP:
            l = k.uid("KP"); k("s_cmp_lg_u32 s42, s45"); k(f"s_cbranch_scc1 {l}")
            for r in range(16): k(f"v_mov_b32 v{64+r}, v{24+r}")
            k.label(l)
    def stats():
        o = []
        for r in range(8):
            o += [f"v_lshlrev_b32 v{24+2*r}, 16, v{16+r}", f"v_and_b32 v{25+2*r}, v13, v{16+r}"]
        for r in range(16):
            o += [f"v_add_f32 v{54+(r&3)}, v{54+(r&3)}, v{24+r}", f"v_fmac_f32 v{58+(r&3)}, v{24+r}, v{24+r}"]
        return o
    head = ["s_barrier", "ds_read_b128 v[16:19], v8", "ds_read_b128 v[20:23], v9",
            "s_add_u32 s44, s44, 32768", "s_and_b32 s44, s44, 0x1ffff", "v_add_u32 v8, s44, v4", "v_add_u32 v9, s44, v5"]
    DEEP = OPT("DEEP", 2)
    if DEEP == 1:
        k("s_waitcnt vmcnt(8)")
        for x in head: k(x)
        iss = issue()
        for x in iss[:5]: k(x)
        k("s_waitcnt lgkmcnt(0)")
        for x in interleave(iss[5:] + issue(), stats()): k(x)
        keep()
        k("s_mov_b32 s42, 1")
    k.label("K1_LA")
    k(f"s_waitcnt vmcnt({16 if DEEP else 8})")
    for x in head: k(x)
    iss = issue()
    for x in iss[:5]: k(x)
    k("s_waitcnt lgkmcnt(0)")
    for x in interleave(iss[5:], stats()): k(x)
    keep()
    k("s_add_u32 s42, s42, 1"); k(f"s_cmp_lt_u32 s42, {5 if DEEP else 6}"); k("s_cbranch_scc1 K1_LA")
    k(f"s_waitcnt vmcnt({16 if DEEP else 8})")
    k.label("K1_LB")
    for x in head: k(x)
    k("s_waitcnt lgkmcnt(0)")
    for x in stats(): k(x)
    keep()
    k("s_add_u32 s42, s42, 1")
    if DEEP:
        k("s_waitcnt vmcnt(8)"); k("s_cmp_lt_u32 s42, 7"); k("s_cbranch_scc1 K1_LB")
    k("s_waitcnt vmcnt(0)"); k("s_cmp_lt_u32 s42, 8"); k("s_cbranch_scc1 K1_LB")
    k.stamp()
    k("v_add_f32 v54, v54, v55"); k("v_add_f32 v56, v56, v57"); k("v_add_f32 v58, v58, v59"); k("v_add_f32 v60, v60, v61")
    k("v_add_f32 v54, v54, v56"); k("v_add_f32 v58, v58, v60"); k("v_mov_b32 v55, v54"); k("v_mov_b32 v59, v58")
    k("s_lshl_b32 s33, s56, 9"); k(f"s_add_u32 s33, s33, {SC+2048}"); k("v_lshl_add_u32 v6, v48, 4, s33")
    k("v_permlane32_swap_b32 v54, v55"); k("v_permlane32_swap_b32 v58, v59")
    k("s_lshl_b32 s33, s59, 3"); k("v_add_u32 v7, s33, v6")
    k("v_add_f32 v54, v54, v55"); k("v_add_f32 v55, v58, v59")
    k("ds_write_b64 v7, v[54:55]")
    k("s_waitcnt lgkmcnt(0)"); k("s_barrier")
    k("ds_read_b128 v[54:57], v6")
    if KEEP: k("s_add_u32 s40, s26, 1")
    k("s_add_u32 s38, s40, 7"); k("s_and_b32 s38, s38, 7"); k("s_lshl_b32 s38, s38, 12"); k("s_lshl_b32 s39, s59, 11"); k("s_add_u32 s38, s38, s39")
    k("s_lshl_b32 s39, s25, 16"); k("s_add_u32 s38, s38, s39"); k("s_lshl_b32 s39, s56, 15"); k("s_add_u32 s38, s38, s39"); k(f"s_add_u32 s38, s38, {WS_XN}")
    k("v_lshlrev_b32 v15, 4, v0")
    k("s_waitcnt lgkmcnt(0)")
    k("v_add_f32 v54, v54, v56"); k("v_add_f32 v55, v55, v57")
    ln_scalars(k, "v54", "v55", "v13", "v12", "v14")
    k("v_mul_f32 v14, -v14, v12")
    for r in range(16): k(f"v_fma_f32 v{24+r}, v{(64 if KEEP else 24)+r}, v12, v14")
    for r in range(8): k(f"v_cvt_pk_bf16_f32 v{16+r}, v{24+2*r}, v{25+2*r}")
    if OPT("XNLATE"):
        k(f"v_mov_b32 v40, {RELAY+8}")
        k.label("XN_W"); k("s_sleep 1"); k("ds_read_b32 v41, v40"); k("s_waitcnt lgkmcnt(0)"); k("v_cmp_le_u32 vcc, 4, v41"); k("s_cmp_eq_u64 vcc, -1"); k("s_cbranch_scc0 XN_W")
    k("buffer_store_dwordx4 v[16:19], v15, s[20:23], s38 offen sc1")
    k("buffer_store_dwordx4 v[20:23], v15, s[20:23], s38 offen offset:1024 sc1")
    k("s_add_u32 s44, s40, 7"); k("s_and_b32 s44, s44, 7"); k("s_lshl_b32 s44, s44, 1"); k("s_add_u32 s44, s44, s59"); k("s_lshl_b32 s44, s44, 7")
    k("s_lshr_b32 s39, s25, 1"); k(f"s_mul_i32 s39, s39, {FSTR}"); k("s_add_u32 s44, s44, s39"); k("s_and_b32 s39, s25, 1"); k("s_lshl_b32 s39, s39, 12"); k("s_add_u32 s44, s44, s39")
    k("s_lshl_b32 s39, s56, 11"); k("s_add_u32 s44, s44, s39"); k(f"s_add_u32 s44, s44, {XFLAG}")
    k("s_branch AT_ENTRY")
    if Kern.DIAG: k.nst = 2
    FS = [16, 32, 48, 64]
    ACC = 80; CS = 128; SEL = 140
    k.label("K1_COMP")
    k("v_and_b32 v144, 31, v0"); k("v_lshrrev_b32 v145, 5, v0"); k("v_bfe_u32 v146, v0, 1, 3")
    k("s_lshl_b32 s33, s56, 12"); k("v_lshl_add_u32 v147, v144, 7, s33")
    k("s_lshl_b32 s33, s56, 2"); k("v_or_b32 v148, s33, v145"); k("v_xor_b32 v148, v148, v146"); k("v_lshl_add_u32 v4, v148, 4, v147")
    for j in (1, 2, 3): k(f"v_xor_b32 v{4+j}, {32*j}, v4")
    k("v_mul_u32_u24 v147, 3072, v145"); k("v_bfe_u32 v148, v0, 2, 2"); k("v_lshl_add_u32 v147, v148, 7, v147")
    k("v_bfe_u32 v148, v0, 3, 1"); k("v_xor_b32 v148, s59, v148"); k("v_lshl_add_u32 v147, v148, 6, v147")
    k("v_bfe_u32 v149, v0, 4, 1"); k("v_lshl_add_u32 v147, v149, 5, v147"); k("v_and_b32 v148, 3, v0"); k("v_lshl_add_u32 v147, v148, 3, v147")
    k("s_mul_i32 s33, s56, 12288"); k("s_add_u32 s34, s33, 8192"); k("v_add_u32 v8, s34, v147")
    k(f"s_sub_u32 s34, {8192+12288}, s33"); k("v_add_u32 v9, s34, v147")
    k("v_bfe_u32 v147, v0, 2, 1"); k("v_xor_b32 v147, v147, v149"); k("v_or_b32 v147, v147, v148")
    k("v_cmp_eq_u32 vcc, 0, v147"); k("v_mov_b32 v147, 0x3f803f80")
    k(f"v_cndmask_b32 v{SEL}, 0, v147, vcc")
    for r in (1, 2, 3): k(f"v_mov_b32 v{SEL+r}, v{SEL}")
    for r in range(FS[2], CS + 12): k(f"v_mov_b32 v{r}, 0")
    k("s_lshl_b32 s30, s25, 1"); k("s_add_u32 s30, s30, s56")
    k("s_lshl_b32 s33, s26, 1"); k("s_add_u32 s33, s33, s59"); k(f"s_mul_i32 s33, s33, {2*HS}"); k("s_lshl_b32 s34, s30, 10"); k("s_add_u32 s33, s33, s34")
    k(f"s_add_u32 s34, s33, {WS_K}"); k(f"s_add_u32 s35, s33, {WS_V}"); k(f"s_add_u32 s33, s33, {WS_Q}"); k(f"s_add_u32 s36, s33, {HS}"); k(f"s_add_u32 s37, s34, {HS}")
    k("v_lshlrev_b32 v15, 4, v0")
    k("v_bfe_u32 v150, v0, 2, 1"); k("v_bfe_u32 v151, v0, 3, 1"); k("v_xor_b32 v150, v150, v151"); k("v_mul_u32_u24 v150, 192, v150"); k("v_xor_b32 v150, v150, v15")
    k("s_lshl_b32 s38, s56, 9"); k(f"s_add_u32 s38, s38, {SC+2048}"); k("v_lshl_add_u32 v1, v144, 4, s38")
    k("s_lshl_b32 s38, s59, 10"); k(f"s_add_u32 s38, s38, {SC}"); k("v_lshl_add_u32 v2, v144, 5, s38")
    k("s_lshl_b32 s38, s56, 4"); k("v_add_u32 v10, s38, v2"); k("v_xor_b32 v2, 16, v10")
    k("s_and_b32 s38, s24, 3"); k("s_lshl_b32 s38, s38, 7"); k(f"s_add_u32 s38, s38, {SC+3072}")
    k("v_lshl_add_u32 v11, v144, 2, s38"); k("v_lshl_add_u32 v14, v145, 4, s38")
    k(f"v_mul_u32_u24 v3, {HS}, v149"); k("v_lshl_add_u32 v3, v145, 8, v3"); k("v_and_b32 v148, 15, v0"); k("v_lshl_add_u32 v3, v148, 4, v3")
    k("v_mov_b32 v13, 0xffff0000")
    k("s_mov_b32 s42, 0")
    k("s_waitcnt lgkmcnt(0)")
    srd(k, 20, 8, WS_SIZE)
    if OPT("TOUCH", 0):
        k("v_mov_b32 v150, 0"); k(f"s_mov_b32 s38, {EPOCH + 256}"); k(f"s_add_u32 s39, s33, {WS_XN - WS_Q}")
        k("s_mov_b64 exec, 1")
        for sg in ("s33", "s34", "s35", "s38"): k(f"buffer_load_dword v151, v150, s[20:23], {sg} offen sc1")
        k("s_mov_b64 exec, -1")
    QG = OPT("QWARM", 0)
    if QG:
        k("s_mov_b64 exec, 0")
        for w in range(4):
            k(f"s_cmp_eq_u32 s24, {4+w}"); k(f"s_cbranch_scc1 HOP_QE_{w*QG}")
        k.label("QE_WR"); k("s_mov_b64 exec, -1")
    k.stamp()
    def reads(j, off):
        f = FS[j]; w = "v8" if j < 2 else "v9"; o = off + (j & 1)*6144
        out = [f"ds_read_b128 {vr(f,4)}, v{4+j} offset:{off}"]
        for blk in range(3):
            out += [f"ds_read_b64_tr_b16 {vr(f+4+4*blk,2)}, {w} offset:{o+blk*1024}", f"ds_read_b64_tr_b16 {vr(f+6+4*blk,2)}, {w} offset:{o+blk*1024+512}"]
        return out
    def mfs(j):
        f = FS[j]; out = []
        for blk in range(3):
            a = vr(ACC + blk*16, 16); w = vr(f+4+4*blk, 4); x = vr(f, 4)
            out.append(f"{MF} {a}, {w}, {x}, {a}" if blk < 2 else f"{MF} {a}, {x}, {w}, {a}")
            if j < 2: out.append(f"{MF16} {vr(CS+4*blk,4)}, {vr(SEL,4)}, {w}, {vr(CS+4*blk,4)}")
        return out
    for i in range(6): k(f"v_xor_b32 v{4+i}, 0x10000, v{4+i}")
    k.label("K1_CL")
    for p in range(2):
        k("s_barrier")
        for j in range(4):
            if j >= 2: k("s_waitcnt lgkmcnt(7)")
            for x in interleave(mfs((j + 2) & 3), reads(j, p*32768)): k(x)
        if p == 1:
            for i in range(6): k(f"v_xor_b32 v{4+i}, 0x10000, v{4+i}")
            k("s_add_u32 s42, s42, 1"); k("s_cmp_lt_u32 s42, 4")
        k("s_waitcnt lgkmcnt(0)")
    k("s_cbranch_scc1 K1_CL")
    k.stamp()
    if QG: k.hops_begin("QE", (QG, "QE_WR"))
    for x in mfs(2): k(x)
    k(f"v_mov_b32 v{CS+1}, v{CS+4}"); k(f"v_mov_b32 v{CS+2}, v{CS+8}")
    k(f"ds_write_b128 v10, {vr(CS,4)}")
    for x in mfs(3): k(x)
    k("s_waitcnt lgkmcnt(0)"); k("s_barrier")
    k("ds_read_b128 v[16:19], v1"); k("ds_read_b128 v[20:23], v2")
    k("s_waitcnt lgkmcnt(1)")
    k("v_add_f32 v16, v16, v18"); k("v_add_f32 v17, v17, v19")
    ln_scalars(k, "v16", "v17", "v13", "v12", "v18")
    k("ds_write_b32 v11, v12")
    for q in range(4): k(f"ds_read_b128 {vr(48+4*q,4)}, v14 offset:{q*32}")
    k("v_cvt_pk_bf16_f32 v24, -v18, -v18"); k("v_lshrrev_b32 v25, 16, v24"); k("v_mov_b32 v26, 0"); k("v_mov_b32 v27, 0")
    k("s_mov_b32 exec_lo, 0"); k("v_mov_b32 v24, 0"); k("v_mov_b32 v25, 0"); k("s_mov_b32 exec_lo, -1")
    for b in range(3):
        c = 28 + 4*b
        k(f"v_add_f32 v{c+2}, v{CS+b}, v{20+b}")
        k(f"v_and_b32 v{c+3}, v13, v{c+2}"); k(f"v_sub_f32 v{c+2}, v{c+2}, v{c+3}")
        k(f"v_and_b32 v{c+1}, v13, v{c+2}"); k(f"v_sub_f32 v{c+2}, v{c+2}, v{c+1}")
        k(f"v_lshrrev_b32 v{c+3}, 16, v{c+3}"); k(f"v_or_b32 v{c}, v{c+3}, v{c+1}")
        k(f"v_lshrrev_b32 v{c+1}, 16, v{c+2}"); k(f"v_mov_b32 v{c+2}, 0"); k(f"v_mov_b32 v{c+3}, 0")
    for blk in (1, 2, 0):
        a = vr(ACC + blk*16, 16); c = vr(28+4*blk, 4)
        k(f"{MF} {a}, {c}, v[24:27], {a}" if blk < 2 else f"{MF} {a}, v[24:27], {c}, {a}")
    k(f"v_mul_f32 v10, {lit(QSCALE)}, v12")
    k("s_waitcnt lgkmcnt(0)")
    so = {0: ("s33", "s36"), 1: ("s34", "s37")}
    for blk in (1, 2, 0):
        a = ACC + blk*16
        for h in range(2):
            for r in range(8*h, 8*h+8):
                k(f"v_mul_f32 v{a+r}, {('v10', 'v12', 'v%d' % (48+r))[blk]}, v{a+r}")
            d = 16 + (blk*2+h)*4 if blk < 2 else 64 + 4*h
            if blk == 0: d = 72 + 4*h
            if blk == 1: d = 40 + 4*h
            for r in range(4): k(f"v_cvt_pk_bf16_f32 v{d+r}, v{a+8*h+2*r}, v{a+8*h+2*r+1}")
            if blk < 2: k(f"buffer_store_dwordx4 {vr(d,4)}, {('v15', 'v150')[blk]}, s[20:23], {so[blk][h]} offen sc1")
            else: k(f"buffer_store_dwordx4 {vr(d,4)}, v3, s[20:23], s35 offen offset:{512*h} sc1")
    k("s_lshl_b32 s44, s26, 1"); k("s_add_u32 s44, s44, s59"); k(f"s_mul_i32 s44, s44, {FSTR}"); k("s_lshl_b32 s39, s30, 7"); k("s_add_u32 s44, s44, s39"); k(f"s_add_u32 s44, s44, {QFLAG}")

def softcheck(k, tag, sval, vdst, vaddr):
    k(f"v_cmp_le_u32 vcc, {sval}, {vdst}")
    k("s_cmp_eq_u64 vcc, -1")
    k(f"s_cbranch_scc0 {tag}_SPIN")
    k.label(f"{tag}_CONT")
    def tail():
        k.label(f"{tag}_SPIN")
        k("s_sleep 1")
        k(f"ds_read_b32 {vdst}, {vaddr}")
        k("s_waitcnt lgkmcnt(0)")
        k(f"v_cmp_le_u32 vcc, {sval}, {vdst}")
        k("s_cmp_eq_u64 vcc, -1")
        k(f"s_cbranch_scc0 {tag}_SPIN")
        k(f"s_branch {tag}_CONT")
    return tail

def finish(k, vtmp):
    if Kern.DIAG:
        k("s_waitcnt vmcnt(0)")
        while k.nst < NST - 1: k.stamp()
        k.stamp(True)
        k.dump_stamps(1, 24, vtmp, 8)
    k("s_endpgm")

def attn_part(k):
    S = [16, 32]; O = [48, 64]; C = 80; P = 96; Q = [104, 108]
    KF = [112, 116]; VF = [[120, 124], [128, 132]]; K0 = 136; IDX = "v144"
    NG = OPT("AT_UNROLL", 2)
    tails = []
    k.label("AT_ENTRY")
    k.stamp()
    k(f"v_mov_b32 v150, {RELAY+12}"); k("ds_read_b32 v143, v150")
    if OPT("GOEARLY"):
        k("s_mov_b64 exec, 1"); k(f"v_mov_b32 v150, {RELAY+8}"); k("v_mov_b32 v151, 1"); k("ds_add_u32 v150, v151"); k("s_mov_b64 exec, -1")
    k("s_nop 1")
    k("v_lshlrev_b32 v1, 4, v0"); k("s_lshl_b32 s28, s24, 8"); k(f"s_add_u32 s28, s28, {PROG}"); k("v_lshl_add_u32 v11, v0, 2, s28")
    k("s_and_b32 s25, s2, 7"); k("s_lshl_b32 s25, s25, 2"); k("s_bfe_u32 s26, s2, 0x20003"); k("s_add_u32 s25, s25, s26")
    k("s_lshr_b32 s38, s24, 2"); k("s_and_b32 s39, s24, 3")
    k("s_lshr_b32 s26, s2, 5"); k("s_lshl_b32 s26, s26, 3"); k("s_lshl_b32 s28, s39, 1"); k("s_add_u32 s26, s26, s28")
    k(f"s_mul_i32 s27, s25, {HS}")
    k("s_lshr_b32 s28, s39, 1"); k(f"s_mul_i32 s28, s28, {WS_V - WS_K}"); k("s_add_u32 s30, s27, s28"); k(f"s_add_u32 s30, s30, {WS_K}")
    k("s_lshl_b32 s28, s38, 15"); k("s_add_u32 s30, s30, s28"); k("s_and_b32 s28, s39, 1"); k("s_lshl_b32 s28, s28, 10"); k("s_add_u32 s30, s30, s28")
    k("s_lshl_b32 s28, s24, 10")
    k("s_lshl_b32 s32, s26, 10"); k("s_add_u32 s32, s32, s27"); k(f"s_add_u32 s32, s32, {WS_Q}")
    k(f"s_add_u32 s33, s27, {WS_K}")
    k("s_mov_b32 m0, s28")
    k("v_lshrrev_b32 v2, 5, v0"); k("v_lshlrev_b32 v2, 8, v2"); k("v_and_b32 v3, 15, v0"); k("v_lshl_add_u32 v2, v3, 4, v2")
    k("s_lshl_b32 s29, s38, 12")
    k("v_add_u32 v15, s29, v1")
    k("v_bfe_u32 v10, v0, 4, 1"); k("v_add_u32 v10, -1, v10")
    k(f"s_add_u32 s31, s29, {2048 - ONES + (1<<32)}")
    k("v_and_b32 v3, s31, v10"); k(f"v_add_u32 v3, {ONES}, v3"); k("v_add_u32 v3, v3, v2")
    k("v_and_b32 v12, 3, v0"); k("v_lshlrev_b32 v12, 8, v12"); k("v_lshl_add_u32 v12, v0, 2, v12")
    k(f"s_lshl_b32 s31, s38, 10"); k(f"s_add_u32 s31, s31, {PROG}"); k("v_add_u32 v12, s31, v12")
    k("s_xor_b32 s31, s24, 4"); k("s_lshl_b32 s31, s31, 8"); k(f"s_add_u32 s31, s31, {PROG - 128}")
    k("s_mov_b32 exec_lo, 0"); k("v_lshl_add_u32 v12, v0, 2, s31"); k("s_mov_b32 exec_lo, -1")
    k("s_mov_b32 s40, 0x0000ffff"); k("s_mov_b32 s41, 0x0000ffff")
    for r in range(4): k(f"v_mov_b32 v{VF[1][1]+r}, 0")
    for r in range(32): k(f"v_mov_b32 v{O[0]+r}, 0")
    k(f"v_mov_b32 {IDX}, 0xdddddddd")
    k("v_mov_b32 v5, v3"); k("v_add_u32 v6, 8192, v15"); k("v_and_b32 v7, 8192, v10"); k("v_add_u32 v7, v7, v3")
    k("v_lshrrev_b32 v13, 5, v0"); k("v_add_u32 v13, 1, v13")
    if OPT("QWARM", 0): k.hops_end("QE_WR")
    k("v_mov_b32 v142, 0"); k("s_waitcnt lgkmcnt(0)"); k(f"v_readfirstlane_b32 {TAG}, v143")
    k("s_mov_b64 exec, 1")
    k("s_waitcnt vmcnt(0)")
    k("buffer_store_dword v143, v142, s[20:23], s44 offen sc1")
    if not OPT("GOEARLY"): k(f"v_mov_b32 v140, {RELAY+8}"); k("v_mov_b32 v141, 1"); k("ds_add_u32 v140, v141")
    k("s_mov_b64 exec, -1")
    k.stamp()
    k("s_lshr_b32 s45, s25, 1"); k(f"s_mul_i32 s45, s45, {FSTR}"); k(f"s_add_u32 s45, s45, {QFLAG}"); k("v_lshlrev_b32 v140, 7, v0")
    k(f"v_mov_b32 v142, {RELAY}")
    if OPT("WARM", 2):
        k("s_cmp_ge_u32 s24, 4"); k("s_cbranch_scc1 AQ_NW")
        k("s_mov_b64 exec, 0")
        for w, nm in enumerate(("WA", "WB", "WC", "WD")):
            k(f"s_cmp_eq_u32 s24, {w}"); k(f"s_cbranch_scc1 HOP_{nm}_0")
        k.label("AQ_WR"); k("s_mov_b64 exec, -1")
        k.label("AQ_NW")
    k("s_cmp_lg_u32 s24, 4"); k("s_cbranch_scc1 AQ_REL")
    gpoll(k, "AQ", "s45", OPT("QSLEEP", 4), "v141", "v140", "s46")
    k("v_mov_b32 v141, 1"); k("ds_write_b32 v142, v141"); k("s_branch AQ_DONE")
    k.label("AQ_REL")
    k("s_sleep 1"); k("ds_read_b32 v141, v142"); k("s_waitcnt lgkmcnt(0)"); k("v_cmp_eq_u32 vcc, 1, v141"); k("s_cmp_eq_u64 vcc, -1"); k("s_cbranch_scc0 AQ_REL")
    k.label("AQ_DONE")
    if OPT("WARM", 2): k.hops_begin("WA")
    k.stamp()
    k(f"buffer_load_dwordx4 {vr(Q[0],4)}, v1, s[20:23], s32 offen sc1")
    k(f"buffer_load_dwordx4 {vr(Q[1],4)}, v1, s[20:23], s32 offen offset:1024 sc1")
    k(f"buffer_load_dwordx4 {vr(K0,4)}, v1, s[20:23], s33 offen sc1")
    for g in range(3):
        k("buffer_load_dwordx4 v1, s[20:23], s30 offen sc1 lds")
        k("s_add_u32 m0, m0, 8192"); k("s_add_u32 s30, s30, 2048")
    k("s_waitcnt vmcnt(3)")
    k(f"{MF} {vr(S[0],16)}, {vr(K0,4)}, {vr(Q[0],4)}, 0")
    k(f"{MF} {vr(S[1],16)}, {vr(K0,4)}, {vr(Q[1],4)}, 0")
    k("s_waitcnt vmcnt(1)")
    k("ds_write_b32 v11, v13")
    k("s_mov_b32 s34, 1")
    k(f"v_max3_f32 v8, v{S[0]}, v{S[0]+1}, v{S[0]+2}")
    for i in range(3, 31, 2): k(f"v_max3_f32 v8, v8, v{S[0]+i}, v{S[0]+i+1}")
    k(f"v_max_f32 v8, v8, v{S[0]+31}")
    k("ds_read_b32 v14, v12")
    k("v_mov_b32 v9, v8"); k("v_permlane32_swap_b32 v8, v9"); k("v_max_f32 v8, v8, v9")
    for r in range(16): k(f"v_xor_b32 v{C+r}, 0x80000000, v8")
    for r in range(8, 16): k(f"v_mov_b32 v{S[1]+r}, 0")
    k("s_waitcnt lgkmcnt(0)")
    k("v_cmp_le_u32 vcc, v13, v14"); k("s_setprio 1"); k("s_cmp_eq_u32 vcc_lo, -1"); k("s_cbranch_scc0 AP_SPIN")
    k.label("AP_CONT")
    def tail(tag="AP"):
        k.label(f"{tag}_SPIN"); k("s_sleep 1"); k("ds_read_b32 v14, v12"); k("s_waitcnt lgkmcnt(0)")
        k("v_cmp_le_u32 vcc, v13, v14"); k("s_cmp_eq_u32 vcc_lo, -1"); k(f"s_cbranch_scc0 {tag}_SPIN"); k(f"s_branch {tag}_CONT")
    tails.append(tail)
    k.stamp()
    k(f"ds_read_b128 {vr(KF[0],4)}, v15")
    k(f"ds_read_b128 {vr(VF[0][0],4)}, v5"); k(f"ds_read_b128 {vr(VF[0][1],4)}, v5 offset:512")
    k(f"ds_read_b128 {vr(KF[1],4)}, v15 offset:1024")
    k("s_mov_b32 s37, 16384")
    k("s_waitcnt lgkmcnt(3)")
    k(f"{MF} {vr(S[0],16)}, {vr(KF[0],4)}, {vr(Q[0],4)}, {vr(C,16)}")
    k("s_nop 10")
    if OPT("WARM", 2): k.hops_end("AQ_WR")
    k.label("AT_LOOP")
    SM = "v_smfmac_f32_32x32x32_bf16"
    L = Loop()
    for gi in range(NG):
      if OPT("WARM", 2) == 2:
          L.call(lambda gi=gi: ((k.hops_end("AQ_WR") if gi else None), k.hops_begin("WB" if gi == 0 else "WC")))
      for t in range(2):
        for ab in range(2):
            Sa = S[ab]; Sp = S[1-ab]
            q = []
            def e(i, fn=None):
                L.i(f"v_exp_f32 v{Sa+i}, v{Sa+i}")
                if fn: fn()
                elif q: L.i(q.pop(0))
            if ab == 0:
                va, vo = ("v5", 1024) if t == 0 else ("v7", 0)
                e(0, (lambda: L.ds("pr", "ds_read_b32 v14, v12")) if t == 0 else None); e(1)
                L.i(f"{SM} {vr(O[1],16)}, {vr(VF[(t+1)&1][1],4)}, {vr(Sp+8,8)}, {IDX}")
                e(2, lambda: L.ds(f"v{(t+1)&1}", f"ds_read_b128 {vr(VF[(t+1)&1][0],4)}, {va} offset:{vo}")); e(3)
                e(4, lambda: L.ds(f"v{(t+1)&1}", f"ds_read_b128 {vr(VF[(t+1)&1][1],4)}, {va} offset:{vo+512}")); e(5)
                L.i(f"{MF} {vr(Sp,16)}, {vr(KF[t&1],4)}, {vr(Q[1],4)}, {vr(C,16)}")
                e(6); e(7); e(8); e(9); e(10, lambda: L.wait(ds=[f"v{t&1}", "pr"] if t == 0 else f"v{t&1}"))
                L.i(f"{SM} {vr(O[0],16)}, {vr(VF[t&1][0],4)}, {vr(Sa,8)}, {IDX}")
                if t == 0:
                    e(11); L.i("v_cmp_le_u32 vcc, v13, v14")
                    e(12, lambda: L.i("s_setprio 1")); e(13, lambda: L.i("s_cmp_eq_u32 vcc_lo, -1"))
                    def chk(gi=gi):
                        k(f"s_cbranch_scc0 AT{gi}_SPIN"); k.label(f"AT{gi}_CONT"); k("v_add_u32 v13, 1, v13")
                        k("s_cmp_eq_u32 vcc_hi, 0"); k(f"s_cbranch_scc1 AT{gi}_AHEAD"); k("s_setprio 2"); k.label(f"AT{gi}_AHEAD")
                        def tail(tag=f"AT{gi}"):
                            k.label(f"{tag}_SPIN"); k("s_sleep 1"); k("ds_read_b32 v14, v12"); k("s_waitcnt lgkmcnt(0)")
                            k("v_cmp_le_u32 vcc, v13, v14"); k("s_cmp_eq_u32 vcc_lo, -1"); k(f"s_cbranch_scc0 {tag}_SPIN"); k(f"s_branch {tag}_CONT")
                        tails.append(tail)
                    L.call(chk)
                    e(14); e(15)
                else:
                    for i in range(11, 16): e(i)
            else:
                if t == 0:
                    e(0, lambda: L.i("s_waitcnt vmcnt(0)")); e(1, lambda: L.ds("pw", "ds_write_b32 v11, v13"))
                else:
                    e(0); e(1)
                L.i(f"{SM} {vr(O[0],16)}, {vr(VF[t&1][1],4)}, {vr(Sp+8,8)}, {IDX}")
                e(2, lambda: L.ds(f"k{t&1}", f"ds_read_b128 {vr(KF[t&1],4)}, v6 offset:{t*1024}"))
                e(3, (lambda: L.i("s_cmp_ge_u32 s34, 14")) if t == 0 else None); e(4)
                e(5, lambda: L.wait(ds=f"k{(t+1)&1}"))
                L.i(f"{MF} {vr(Sp,16)}, {vr(KF[(t+1)&1],4)}, {vr(Q[0],4)}, {vr(C,16)}")
                if t == 0:
                    def dm(gi=gi):
                        k(f"s_cbranch_scc1 AT_NODMA{gi}"); k("buffer_load_dwordx4 v1, s[20:23], s30 offen sc1 lds"); k.label(f"AT_NODMA{gi}")
                    L.call(dm)
                    q += ["s_add_u32 s35, m0, 8192", "s_and_b32 m0, s35, 0xffff", "s_add_u32 s30, s30, 2048"]
                else:
                    q += ["s_add_u32 s34, s34, 1"]
                for i in range(6, 11): e(i)
                L.i(f"{SM} {vr(O[1],16)}, {vr(VF[t&1][0],4)}, {vr(Sa,8)}, {IDX}")
                if t == 1:
                    for x in ("v_mov_b32 v5, v7", "v_add_u32 v6, s37, v15", "v_and_b32 v7, s37, v10", "v_add_u32 v7, v7, v3"): L.i(x)
                    q += ["s_add_u32 s37, s37, 8192", "s_and_b32 s37, s37, 0xffff", "s_cmp_lt_u32 s34, 17"]
                for i in range(11, 16): e(i)
    L.emit(k)
    if OPT("WARM", 2) == 2: k.hops_end("AQ_WR")
    k("s_cbranch_scc1 AT_LOOP")
    if OPT("WARM", 2): k.hops_begin("WD")
    k(f"{SM} {vr(O[1],16)}, {vr(VF[1][1],4)}, {vr(S[1]+8,8)}, {IDX}")
    k.stamp()
    k("s_lshl_b32 s35, s39, 13")
    k("v_add_u32 v4, s35, v15")
    k("v_xor_b32 v5, 4096, v4")
    k("s_lshl_b32 s35, s39, 9"); k("s_add_u32 s35, s35, s29"); k("s_add_u32 s35, s35, 32768")
    k("v_lshl_add_u32 v6, v0, 2, s35"); k("v_xor_b32 v7, 4096, v6")
    k("s_lshl_b32 s35, s39, 2"); k(f"s_add_u32 s35, s35, {PAIR}"); k("v_mov_b32 v8, s35"); k("v_mov_b32 v9, 1")
    for ab in range(2):
        k(f"ds_write_b128 v4, {vr(O[ab],4)} offset:{ab*2048}"); k(f"ds_write_b128 v4, {vr(O[ab]+4,4)} offset:{ab*2048+1024}")
        k(f"ds_write_b32 v6, v{O[ab]+8} offset:{ab*256}")
    k("s_mov_b64 exec, 1")
    k("ds_add_rtn_u32 v9, v8, v9")
    k("s_mov_b64 exec, -1")
    for ab in range(2):
        k(f"ds_read_b128 {vr(S[ab],4)}, v5 offset:{ab*2048}"); k(f"ds_read_b128 {vr(S[ab]+4,4)}, v5 offset:{ab*2048+1024}")
        k(f"ds_read_b32 v{S[ab]+8}, v7 offset:{ab*256}")
    k("s_lshl_b32 s33, s26, 15"); k("s_lshl_b32 s34, s25, 10"); k("s_add_u32 s33, s33, s34"); k(f"s_add_u32 s33, s33, {WS_O}")
    k(f"v_mov_b32 v11, {lit(2.0**30)}"); k(f"v_mov_b32 v10, {lit(2.0**-30)}"); k(f"v_mov_b32 v14, 0x7f800000")
    k("s_waitcnt lgkmcnt(0)")
    k("v_readfirstlane_b32 s35, v9")
    k("s_cmp_eq_u32 s35, 0"); k("s_cbranch_scc1 AT_EXIT")
    for ab in range(2):
        for r in range(9): k(f"v_add_f32 v{O[ab]+r}, v{O[ab]+r}, v{S[ab]+r}")
    k(f"v_add_f32 v8, |v{O[0]}|, |v{O[1]}|")
    for ab in range(2):
        for i in range(1, 8): k(f"v_add_f32 v8, v8, |v{O[ab]+i}|")
    k(f"v_cmp_gt_f32 s[42:43], v14, v8")
    for ab in range(2):
        k(f"v_cmp_gt_f32 s[44:45], v11, v{O[ab]+8}"); k(f"v_cmp_lt_f32 s[46:47], v10, v{O[ab]+8}")
        k("s_and_b64 s[42:43], s[42:43], s[44:45]"); k("s_and_b64 s[42:43], s[42:43], s[46:47]")
    k("s_cmp_eq_u64 s[42:43], -1")
    k("s_cbranch_scc0 AT_SLOW")
    k.label("AT_FIN")
    k("s_add_u32 s34, s33, 32768")
    k(f"v_rcp_f32 v8, v{O[0]+8}"); k(f"v_rcp_f32 v9, v{O[1]+8}")
    for ab in range(2):
        for i in range(8): k(f"v_mul_f32 v{O[ab]+i}, v{8+ab}, v{O[ab]+i}")
        for i in range(4): k(f"v_cvt_pk_bf16_f32 v{P+4*ab+i}, v{O[ab]+2*i}, v{O[ab]+2*i+1}")
        k(f"buffer_store_dwordx4 {vr(P+4*ab,4)}, v1, s[20:23], s{33+ab} offen sc1")
    k("s_lshl_b32 s35, s26, 5"); k("s_add_u32 s35, s35, s25"); k(f"s_lshl_b32 s35, s35, {OFS}"); k(f"s_add_u32 s35, s35, {OFLAG}")
    k("v_mov_b32 v8, 0"); k(f"v_mov_b32 v9, {TAG}")
    k("s_mov_b64 exec, 1")
    k("s_waitcnt vmcnt(0)")
    k("buffer_store_dword v9, v8, s[20:23], s35 offen sc1")
    k("s_mov_b64 exec, -1")
    if OPT("WARM", 2): k.hops_end("AQ_WR")
    k.label("AT_EXIT")
    finish(k, 8)
    for t in tails: t()
    k.label("AT_SLOW")
    k(f"s_add_u32 s30, s27, {WS_K}"); k(f"s_add_u32 s31, s27, {WS_V}")
    for r in range(8): k(f"v_mov_b32 v{VF[0][0]+r}, 0x3f803f80")
    for ab in range(2):
        k("v_mov_b32 v8, 0xff800000"); k("s_mov_b32 s34, 0")
        k.label(f"AT_S1{ab}")
        k("s_add_u32 s36, s30, s34")
        k(f"buffer_load_dwordx4 {vr(KF[0],4)}, v1, s[20:23], s36 offen sc1")
        k("s_waitcnt vmcnt(0)")
        k(f"{MF} {vr(S[0],16)}, {vr(KF[0],4)}, {vr(Q[ab],4)}, 0")
        for i in range(0, 16, 2): k(f"v_max3_f32 v8, v8, v{S[0]+i}, v{S[0]+i+1}")
        k("s_add_u32 s34, s34, 1024"); k("s_cmp_lt_u32 s34, 65536"); k(f"s_cbranch_scc1 AT_S1{ab}")
        k("v_mov_b32 v9, v8"); k("v_permlane32_swap_b32 v8, v9"); k("v_max_f32 v8, v8, v9")
        for r in range(16): k(f"v_xor_b32 v{C+r}, 0x80000000, v8")
        for r in range(16): k(f"v_mov_b32 v{O[ab]+r}, 0")
        k("s_mov_b32 s34, 0")
        k.label(f"AT_S2{ab}")
        k("s_add_u32 s36, s30, s34"); k("s_add_u32 s35, s31, s34")
        k(f"buffer_load_dwordx4 {vr(KF[0],4)}, v1, s[20:23], s36 offen sc1")
        k("s_mov_b64 exec, s[40:41]")
        k(f"buffer_load_dwordx4 {vr(VF[0][0],4)}, v2, s[20:23], s35 offen sc1")
        k(f"buffer_load_dwordx4 {vr(VF[0][1],4)}, v2, s[20:23], s35 offen offset:512 sc1")
        k("s_mov_b64 exec, -1")
        k("s_waitcnt vmcnt(0)")
        k(f"{MF} {vr(S[0],16)}, {vr(KF[0],4)}, {vr(Q[ab],4)}, {vr(C,16)}")
        for i in range(16): k(f"v_exp_f32 v{S[0]+i}, v{S[0]+i}")
        k(f"{SM} {vr(O[ab],16)}, {vr(VF[0][0],4)}, {vr(S[0],8)}, {IDX}")
        k(f"{SM} {vr(O[ab],16)}, {vr(VF[0][1],4)}, {vr(S[0]+8,8)}, {IDX}")
        k("s_nop 15")
        k("s_add_u32 s34, s34, 1024"); k("s_cmp_lt_u32 s34, 65536"); k(f"s_cbranch_scc1 AT_S2{ab}")
    k("s_branch AT_FIN")

def gpoll(k, tag, saddr, sleep, vd="v4", va="v3", cnt="s28", mask=None):
    k(f"s_mov_b32 {cnt}, 0")
    if mask: k(f"s_mov_b64 exec, {mask}")
    k.label(f"{tag}_POLL")
    k(f"buffer_load_dword {vd}, {va}, s[20:23], {saddr} offen sc1")
    k("s_waitcnt vmcnt(0)")
    k(f"v_cmp_ne_u32 vcc, {TAG}, {vd}")
    k("s_cmp_eq_u64 vcc, 0")
    k(f"s_cbranch_scc1 {tag}_OUT")
    if OPT("NARROW", 1): k("s_mov_b64 exec, vcc")
    k(f"s_sleep {sleep}")
    k(f"s_add_u32 {cnt}, {cnt}, 1"); k(f"s_cmp_lt_u32 {cnt}, 0x100000")
    k(f"s_cbranch_scc1 {tag}_POLL")
    k.label(f"{tag}_OUT")
    k("s_mov_b64 exec, -1")
    k.label(f"{tag}_GO")

def gemm_part(k):
    WF = 16; XF = 32; ACC = 48; DV = 160
    GP = OPT("GPRIO"); GP2 = OPT("GPRIO2")
    tails = []
    g0 = len(k.ins)
    k("s_load_dwordx4 s[4:7], s[0:1], 32")
    k("s_load_dwordx2 s[48:49], s[0:1], 48")
    k("s_load_dwordx2 s[50:51], s[0:1], 0")
    k("s_load_dwordx2 s[56:57], s[0:1], 16")
    k("s_load_dwordx2 s[58:59], s[0:1], 56")
    k("v_lshlrev_b32 v1, 4, v0"); k("s_lshl_b32 s28, s24, 8"); k(f"s_add_u32 s28, s28, {PROG}"); k("v_lshl_add_u32 v11, v0, 2, s28")
    k("v_mov_b32 v13, 0"); k("v_mov_b32 v14, 0x3f803f80")
    k("v_and_b32 v2, 44, v0"); k("v_cmp_eq_u32 vcc, 0, v2"); k("v_cndmask_b32 v14, 0, v14, vcc")
    k("ds_write_b32 v11, v13"); k("v_add_u32 v2, -1024, v11"); k("ds_write_b32 v2, v13"); k("v_add_u32 v2, -2048, v11"); k("ds_write_b32 v2, v13")
    k(f"v_lshlrev_b32 v2, 2, v0"); k(f"v_add_u32 v2, {PAIR}, v2"); k("ds_write_b32 v2, v13")
    k("v_add_u32 v2, -4096, v11"); k("ds_write_b32 v2, v14"); k("ds_write_b32 v2, v14 offset:1024")
    k("s_sub_u32 s25, s24, 8")
    k("s_mov_b32 s60, 0x7fffffff")
    k("s_and_b32 s27, s2, 7"); k("s_lshr_b32 s62, s2, 5")
    k("s_lshl_b32 s52, s62, 1"); k("s_lshr_b32 s29, s27, 2"); k("s_add_u32 s52, s52, s29")
    k("s_and_b32 s26, s27, 3"); k("s_lshl_b32 s26, s26, 2"); k("s_bfe_u32 s29, s2, 0x20003"); k("s_add_u32 s26, s26, s29")
    k("s_lshl_b32 s29, s29, 1"); k("s_add_u32 s62, s62, s29"); k("s_and_b32 s62, s62, 7")
    if not OPT("UROT", 0): k("s_mov_b32 s62, 0")
    k("s_lshl_b32 s30, s52, 2"); k("s_add_u32 s30, s30, s25")
    k("s_mov_b32 s28, 4096")
    for i in range(7):
        k(f"v_add_u32 v2, {64*i}, v0")
        k("v_mul_u32_u24 v3, 4682, v2"); k("v_lshrrev_b32 v3, 16, v3")
        k(f"v_mul_u32_u24 v3, {3584 - 224}, v3"); k(f"v_add3_u32 v{DV+i}, v1, v3, {'0' if i < 4 else 's28'}")
    k("s_and_b32 s31, s25, 1"); k("s_mul_i32 s63, s31, 114688"); k("s_mul_i32 s33, s26, 224"); k("s_add_u32 s63, s63, s33")
    k("s_mul_i32 s33, s31, 7168"); k("s_lshr_b32 s34, s25, 1"); k(f"s_mul_i32 s34, s34, {UP_W3OFF}"); k("s_add_u32 s33, s33, s34"); k(f"s_add_u32 s33, s33, {GB}")
    k("s_lshl_b32 s64, s30, 15"); k(f"s_add_u32 s64, s64, {WS_XN}")
    k("s_mul_i32 s32, s62, 229376"); k("s_add_u32 s32, s32, s63")
    k("s_lshl_b32 s35, s62, 12"); k("s_add_u32 s35, s35, s64")
    k("s_mov_b32 s36, s33")
    k("s_waitcnt lgkmcnt(0)")
    k("s_cmp_lt_u32 s25, 2"); k("s_cselect_b32 s10, s4, s6"); k("s_cselect_b32 s11, s5, s7")
    srd(k, 12, 10, 512 * 3584); srd(k, 20, 8, WS_SIZE)
    k("v_mov_b32 v16, 0"); k(f"s_mov_b32 s28, {EPOCH}"); k("buffer_load_dword v17, v16, s[20:23], s28 offen sc1")
    def dma():
        out = ["s_mov_b32 m0, s36", "s_nop 0"]
        for i in range(7):
            if i == 4: out += ["s_add_u32 m0, s36, 4096", "s_nop 0"]
            out.append(f"buffer_load_dwordx4 v{DV+i}, s[12:15], s32 offen offset:{(i&3)*1024} lds")
        return out
    PF = OPT("PF2", 1)
    if PF:
        srd(k, 16, 48, 1792 * 1024)
        k("v_lshrrev_b32 v15, 3, v0"); k("v_lshlrev_b32 v15, 10, v15"); k("v_and_b32 v2, 7, v0"); k("v_lshl_add_u32 v15, v2, 4, v15")
        k("s_lshr_b32 s61, s2, 5"); k("s_lshl_b32 s61, s61, 2"); k("s_add_u32 s61, s61, s25"); k(f"s_mul_i32 s61, s61, {56*1024}")
        k("s_and_b32 s28, s26, 7"); k("s_lshl_b32 s28, s28, 7"); k("s_add_u32 s61, s61, s28")
    k("v_lshrrev_b32 v2, 5, v0"); k("v_lshlrev_b32 v2, 3, v2"); k("v_bfe_u32 v3, v0, 2, 2"); k("v_add_u32 v2, v2, v3")
    k("v_mul_u32_u24 v2, 224, v2"); k("v_bfe_u32 v3, v0, 4, 1"); k(f"v_mul_u32_u24 v3, {UP_W3OFF}, v3"); k("v_add_u32 v2, v2, v3")
    k("v_and_b32 v3, 3, v0"); k("v_lshl_add_u32 v8, v3, 3, v2"); k(f"v_add_u32 v8, {GB}, v8")
    k("v_and_b32 v12, 3, v0"); k("v_lshlrev_b32 v12, 8, v12"); k("v_lshl_add_u32 v12, v0, 2, v12"); k(f"v_add_u32 v12, {PROG + 2048}, v12")
    for r in range(112): k(f"v_mov_b32 v{ACC+r}, 0")
    k("v_mov_b32 v9, v8"); k(f"v_add_u32 v10, {UP_SLOT}, v8")
    k(f"s_mov_b32 s37, {2*UP_SLOT}")
    k("s_mov_b32 s39, 1"); k("v_mov_b32 v13, 1")
    k(f"s_mul_i32 s45, s52, {FSTR}"); k(f"s_add_u32 s45, s45, {XFLAG}"); k("v_lshlrev_b32 v3, 7, v0"); k(f"v_mov_b32 v2, {RELAY+4}")
    NPF = OPT("NPF", 4)
    EW = OPT("EW", 9)
    def w01():
        for x in dma(): k(x)
        k("s_add_u32 s62, s62, 1"); k("s_and_b32 s62, s62, 7"); k("s_mul_i32 s32, s62, 229376"); k("s_add_u32 s32, s32, s63")
        k(f"s_add_u32 s36, s33, {UP_SLOT}")
        for x in dma(): k(x)
    NSP = OPT("NSP", 2)
    n = len(k.ins) - g0
    for i in reversed(range(NSP)):
        k.ins.insert(g0 + OPT("SP0", 120) + i * (n - OPT("SP0", 120)) // NSP, Ins("s_barrier"))
    for i in range(9):
        if i >= NSP: k("s_barrier")
        if i == OPT("PFAT", 5) and NPF:
            k("s_lshr_b32 s28, s2, 3"); k("s_lshl_b32 s28, s28, 1"); k("s_add_u32 s28, s28, s31"); k(f"s_mul_i32 s28, s28, {NPF*3584}")
            k("s_and_b32 s29, s27, 3"); k("s_mul_i32 s29, s29, 896"); k("s_add_u32 s28, s28, s29")
            if OPT("PFOFF"): k(f"s_add_u32 s28, s28, {128*3584}")
            for j in range(NPF):
                k("buffer_load_dwordx4 v[4:7], v1, s[12:15], s28 offen"); k("s_add_u32 s28, s28, 3584")
        if i == EW: w01()
        if i == 3:
            k("s_waitcnt vmcnt(0)"); k(f"v_readfirstlane_b32 {TAG}, v17")
            k(f"s_mul_i32 {TAG}, {TAG}, 0x9e3779b1"); k(f"s_add_u32 {TAG}, {TAG}, 0x7f4a7c15")
            k(f"v_mov_b32 v17, {TAG}"); k("ds_write_b32 v2, v17 offset:8"); k("s_waitcnt lgkmcnt(0)")
    k.stamp()
    k.label("UW_REL")
    if OPT("GLATE"):
        k(f"v_mov_b32 v5, {RELAY}")
        k("s_sleep 2"); k("ds_read_b32 v4, v5"); k("s_waitcnt lgkmcnt(0)"); k("v_cmp_eq_u32 vcc, 1, v4"); k("s_cmp_eq_u64 vcc, -1"); k("s_cbranch_scc0 UW_REL")
    else:
        k("s_sleep 2"); k("ds_read_b32 v4, v2 offset:4"); k("s_waitcnt lgkmcnt(0)"); k("v_cmp_eq_u32 vcc, 8, v4"); k("s_cmp_eq_u64 vcc, -1"); k("s_cbranch_scc0 UW_REL")
    k("s_setprio 3")
    if EW > 8: w01()
    k("s_waitcnt vmcnt(7)")
    k("ds_write_b32 v11, v13")
    k("s_cmp_lg_u32 s25, 0"); k("s_cbranch_scc1 UX_REL")
    gpoll(k, "UX", "s45", OPT("XSLEEP", 6))
    k("v_mov_b32 v4, 1"); k("ds_write_b32 v2, v4"); k("s_branch UX_DONE")
    k.label("UX_REL")
    k("s_sleep 2"); k("ds_read_b32 v4, v2"); k("s_waitcnt lgkmcnt(0)"); k("v_cmp_eq_u32 vcc, 1, v4"); k("s_cmp_eq_u64 vcc, -1"); k("s_cbranch_scc0 UX_REL")
    k("s_waitcnt vmcnt(0)")
    k.label("UX_DONE")
    for s in range(4): k(f"buffer_load_dwordx4 {vr(XF+4*s,4)}, v1, s[20:23], s35 offen offset:{s*1024} sc1")
    if PF: k("buffer_load_dwordx4 v[4:7], v15, s[16:19], s61 offen")
    k("s_lshl_b32 s35, s62, 12"); k("s_add_u32 s35, s35, s64")
    k("s_add_u32 s62, s62, 1"); k("s_and_b32 s62, s62, 7"); k("s_mul_i32 s32, s62, 229376"); k("s_add_u32 s32, s32, s63")
    k("ds_read_b32 v14, v12"); k("s_waitcnt lgkmcnt(0)")
    tails.append(softcheck(k, "UB", "s39", "v14", "v12"))
    k("v_mov_b32 v13, 2")
    k(f"s_setprio {GP}")
    k(f"s_waitcnt vmcnt({1+PF})")
    k.stamp()
    def rd(m, areg):
        s, j = divmod(m, 7); o = s*3584 + j*32; d = WF + 4*(m & 3)
        return [f"ds_read_b64_tr_b16 {vr(d,2)}, {areg} offset:{o}", f"ds_read_b64_tr_b16 {vr(d+2,2)}, {areg} offset:{o+896}"]
    for m in range(4):
        for x in rd(m, "v9"): k(x)
    k.label("UP_LOOP")
    extra = []
    for m in range(28):
        s, j = divmod(m, 7)
        if j == 0: k(f"s_waitcnt vmcnt({(10 if s < 3 else 3) + PF})")
        cnt = 6
        if m in (17, 18, 19, 20): cnt = 7
        if m in (22, 23): cnt = 7
        if m == 24:
            k("s_waitcnt lgkmcnt(4)")
            k("s_add_u32 s39, s39, 1")
            k("s_setprio 3")
            tails.append(softcheck(k, "UP", "s39", "v14", "v12"))
            k("v_add_u32 v13, 1, v13")
            k(f"s_setprio {GP}")
            k("s_add_u32 s36, s33, s37")
            extra = dma()
        else:
            k(f"s_waitcnt lgkmcnt({cnt})")
        a = vr(ACC + 16*j, 16)
        k(f"{MF} {a}, {vr(WF+4*(m&3),4)}, {vr(XF+4*s,4)}, {a}")
        for x in (rd(m+4, "v9") if m < 24 else rd(m+4-28, "v10")): k(x)
        if m == 16:
            k(f"s_waitcnt vmcnt({3+PF})"); k("ds_write_b32 v11, v13")
        if m == 21: k("ds_read_b32 v14, v12")
        if m >= 24:
            for x in extra[[0,4,6,9,11][m-24]:[0,4,6,9,11][m-23]]: k(x)
        if j == 6: k(f"buffer_load_dwordx4 {vr(XF+4*s,4)}, v1, s[20:23], s35 offen offset:{s*1024} sc1")
    if PF:
        k("s_add_u32 s61, s61, 8192"); k("s_cmp_lt_u32 s39, 8"); k("s_cselect_b32 s61, s61, s60")
        k("buffer_load_dwordx4 v[4:7], v15, s[16:19], s61 offen")
    k("s_setprio 3")
    k("v_mov_b32 v9, v10"); k("v_add_u32 v10, s37, v8")
    k(f"s_setprio {GP}")
    k("s_lshl_b32 s35, s62, 12"); k("s_add_u32 s35, s35, s64")
    k("s_add_u32 s62, s62, 1"); k("s_and_b32 s62, s62, 7"); k("s_mul_i32 s32, s62, 229376"); k("s_add_u32 s32, s32, s63")
    k("s_cmp_lt_u32 s39, 7"); k("s_cselect_b32 s32, s32, s60")
    k("s_cmp_lt_u32 s39, 8"); k("s_cselect_b32 s35, s35, s60")
    k(f"s_add_u32 s37, s37, {UP_SLOT}"); k(f"s_cmp_eq_u32 s37, {3*UP_SLOT}"); k("s_cselect_b32 s37, 0, s37")
    k("s_cmp_lt_u32 s39, 9"); k("s_cbranch_scc1 UP_LOOP")
    k.stamp()
    k("s_setprio 3")
    k("s_mul_i32 s40, s30, 112"); k("s_lshr_b32 s41, s26, 2"); k("s_mul_i32 s41, s41, 28"); k("s_add_u32 s40, s40, s41"); k("s_and_b32 s41, s26, 3"); k("s_add_u32 s40, s40, s41")
    k("s_lshl_b32 s40, s40, 10"); k(f"s_add_u32 s40, s40, {WS_H}")
    k("s_waitcnt vmcnt(0) lgkmcnt(0)")
    k("ds_write_b32 v11, v13")
    k("ds_read_b32 v14, v12")
    ACD = 48; TF = 112; WD = [16, 24]; EP = 144
    k("s_lshl_b32 s53, s52, 1"); k("s_lshr_b32 s28, s26, 3"); k("s_add_u32 s53, s53, s28"); k("s_and_b32 s54, s26, 7")
    k("s_lshr_b32 s63, s25, 1"); k("s_and_b32 s64, s25, 1")
    srd(k, 12, 48, 1792 * 1024); srd(k, 16, 50, 2048 * 1024)
    k("v_lshrrev_b32 v2, 3, v0"); k("v_lshlrev_b32 v2, 10, v2")
    k("v_bfe_u32 v3, v0, 2, 1"); k("v_bfe_u32 v4, v0, 4, 1"); k("v_xor_b32 v3, v3, v4"); k("v_lshl_add_u32 v2, v3, 6, v2")
    k("v_and_b32 v3, 3, v0"); k("v_lshl_add_u32 v2, v3, 4, v2")
    k(f"v_add_u32 v15, {8192-1024}, v2")
    k("s_lshl_b32 s32, s25, 14"); k(f"s_add_u32 s32, s32, {GB}")
    k("v_lshrrev_b32 v8, 5, v0"); k("v_lshlrev_b32 v3, 2, v8"); k("v_bfe_u32 v4, v0, 2, 2"); k("v_add_u32 v3, v3, v4"); k("v_lshlrev_b32 v3, 7, v3")
    k("v_bfe_u32 v4, v0, 3, 1"); k("v_xor_b32 v4, s64, v4"); k("v_lshl_add_u32 v3, v4, 6, v3")
    k("v_bfe_u32 v4, v0, 4, 1"); k("v_lshl_add_u32 v3, v4, 5, v3"); k("v_and_b32 v4, 1, v0"); k("v_lshl_add_u32 v3, v4, 4, v3")
    k("v_bfe_u32 v4, v0, 1, 1"); k("v_lshl_add_u32 v3, v4, 3, v3")
    k("v_xor_b32 v4, 64, v3"); k("v_add_u32 v5, s32, v3"); k("v_add_u32 v6, s32, v4")
    k("v_add_u32 v9, 8192, v5"); k("v_add_u32 v10, 8192, v6")
    k(f"s_mul_i32 s33, s25, {28*16384}"); k("s_lshl_b32 s55, s54, 7"); k("s_add_u32 s33, s33, s55")
    k(f"s_mov_b32 s65, {7*16384}"); k(f"s_mov_b32 s66, {(-20*16384) & 0xffffffff}")
    k(f"s_mul_i32 s34, s53, {2*112*1024}"); k(f"s_mul_i32 s35, s25, {28*1024}"); k("s_add_u32 s34, s34, s35"); k(f"s_add_u32 s34, s34, {WS_H}")
    k(f"s_mul_i32 s28, s63, {112*1024}"); k(f"s_add_u32 s35, s34, {112*1024}"); k("s_sub_u32 s35, s35, s28"); k("s_add_u32 s34, s34, s28")
    k("s_lshr_b32 s38, s30, 1"); k("s_lshl_b32 s38, s38, 10"); k("s_lshr_b32 s28, s26, 2"); k("s_lshl_b32 s28, s28, 8"); k("s_add_u32 s38, s38, s28")
    k("s_and_b32 s28, s26, 3"); k("s_lshl_b32 s28, s28, 3"); k("s_add_u32 s38, s38, s28"); k("s_and_b32 s28, s30, 1"); k("s_lshl_b32 s28, s28, 2")
    k("s_add_u32 s38, s38, s28"); k(f"s_add_u32 s38, s38, {HFLAG}")
    k("s_lshl_b32 s45, s53, 10"); k("s_lshl_b32 s28, s25, 8"); k("s_add_u32 s45, s45, s28"); k(f"s_add_u32 s45, s45, {HFLAG}")
    k("v_and_b32 v3, 7, v0"); k("v_lshlrev_b32 v3, 2, v3"); k("v_mov_b32 v7, 0"); k(f"v_mov_b32 v167, {TAG}")
    k("s_waitcnt lgkmcnt(0)"); k("s_mov_b32 s39, 10")
    tails.append(softcheck(k, "U9", "s39", "v14", "v12"))
    def wdma(n, slot, base="s36"):
        return [f"s_add_u32 m0, {base}, {slot*2048}", "s_nop 0",
                "buffer_load_dwordx4 v2, s[12:15], s33 offen lds",
                "buffer_load_dwordx4 v15, s[12:15], s33 offen offset:1024 lds",
                f"s_add_u32 s33, s33, {'s66' if n % 4 == 3 else 's65'}"]
    k("s_mov_b32 s36, s32")
    NL2E = lit(-1.4426950408889634)
    def flag(off):
        k("s_mov_b64 exec, 1"); k(f"buffer_store_dword v167, v7, s[20:23], s38 offen offset:{off} sc1"); k("s_mov_b64 exec, -1")
    for j in range(7):
        a = ACC + 16*j; t = 16 + (j & 1)*12
        for r in range(8): k(f"v_mul_f32 v{t+r}, {NL2E}, v{a+r}")
        for r in range(8): k(f"v_exp_f32 v{t+r}, v{t+r}")
        for r in range(0, 8, 2): k(f"v_pk_mul_f32 {vr(a+r,2)}, {vr(a+r,2)}, {vr(a+8+r,2)}")
        for r in range(0, 8, 2): k(f"v_pk_add_f32 {vr(t+r,2)}, {vr(t+r,2)}, 1.0 op_sel_hi:[1,0]")
        for r in range(8): k(f"v_rcp_f32 v{t+r}, v{t+r}")
        for r in range(0, 8, 2): k(f"v_pk_mul_f32 {vr(a+r,2)}, {vr(a+r,2)}, {vr(t+r,2)}")
        for r in range(4): k(f"v_cvt_pk_bf16_f32 v{t+8+r}, v{a+2*r}, v{a+2*r+1}")
        if j == 6:
            k("s_waitcnt vmcnt(8)"); flag(0)
        k(f"buffer_store_dwordx4 {vr(t+8,4)}, v1, s[20:23], s40 offen sc1")
        k("s_add_u32 s40, s40, 4096")
        for x in wdma(j, j): k(x)
    k.stamp()
    k(f"buffer_load_dword v4, v3, s[20:23], s45 offen sc1")
    for r in range(64): k(f"v_mov_b32 v{ACD+r}, 0")
    k("v_and_b32 v152, 31, v0"); k("v_lshlrev_b32 v152, 10, v152"); k("v_lshl_add_u32 v152, v8, 4, v152")
    k("s_lshl_b32 s40, s53, 16"); k("s_lshl_b32 s41, s63, 15"); k("s_add_u32 s40, s40, s41"); k("s_add_u32 s40, s40, s55")
    k("s_lshl_b32 s41, s64, 6"); k("s_add_u32 s40, s40, s41")
    k("s_waitcnt vmcnt(3)"); flag(32)
    k("s_waitcnt vmcnt(1)")
    k(f"v_cmp_eq_u32 vcc, {TAG}, v4"); k("s_cmp_eq_u64 vcc, -1"); k("s_cbranch_scc1 DH_GO")
    gpoll(k, "DH", "s45", 4)
    k.stamp()
    def tload(s):
        return [f"buffer_load_dwordx4 {vr(TF+8*s,4)}, v1, s[20:23], s34 offen offset:{s*1024} sc1",
                f"buffer_load_dwordx4 {vr(TF+8*s+4,4)}, v1, s[20:23], s35 offen offset:{s*1024} sc1"]
    for s in range(4):
        for x in tload(s): k(x)
    def wreads(slot, buf, other):
        a0, a1 = ("v9", "v10") if other else ("v5", "v6")
        o = slot * 2048
        return [f"ds_read_b64_tr_b16 {vr(WD[buf],2)}, {a0} offset:{o}", f"ds_read_b64_tr_b16 {vr(WD[buf]+2,2)}, {a0} offset:{o+1024}",
                f"ds_read_b64_tr_b16 {vr(WD[buf]+4,2)}, {a1} offset:{o}", f"ds_read_b64_tr_b16 {vr(WD[buf]+6,2)}, {a1} offset:{o+1024}"]
    def mfl(buf, tf):
        out = []
        for a in range(2):
            for b in range(2):
                c = vr(ACD + (a*2+b)*16, 16)
                out.append(f"{MF} {c}, {vr(WD[buf]+4*b,4)}, {vr(tf+4*a,4)}, {c}")
        return out
    for x in wreads(0, 0, False): k(x)
    k("s_mov_b32 s42, 0"); k("s_mov_b32 s43, 0x7fffffff")
    k("s_add_u32 s44, s32, 8192"); k("s_add_u32 s45, s45, 32")
    k("s_lshl_b32 s67, s25, 17"); k("s_add_u32 s67, s67, s55"); k("s_and_b32 s57, s57, 0xffff")
    k(f"s_setprio {GP2}")
    k("s_waitcnt vmcnt(0)")
    for i in range(2): k(f"buffer_load_dwordx4 {vr(EP+4*i,4)}, v152, s[16:19], s40 offen offset:{32*i}")
    k.label("DN_LOOP")
    if OPT("HOLD", 0):
        k(f"s_cmp_lg_u32 s42, {OPT('HPOS', 12)}"); k("s_cbranch_scc1 DN_NOH")
        k(f"s_lshl_b32 s28, s25, 8"); k(f"s_add_u32 s28, s28, {PROG}"); k("v_lshrrev_b32 v153, 5, v0"); k("v_lshl_add_u32 v153, v153, 10, s28")
        k.label("DN_HOLD")
        k("s_sleep 4"); k("ds_read_b32 v154, v153"); k("s_waitcnt lgkmcnt(0)")
        k(f"v_cmp_le_u32 vcc, {OPT('HOLD', 0)}, v154"); k("s_cmp_eq_u64 vcc, -1" if OPT("HBOTH") else "s_cmp_lg_u64 vcc, 0"); k("s_cbranch_scc0 DN_HOLD")
        k.label("DN_NOH")
    if OPT("HBAR"):
        k(f"s_cmp_lg_u32 s42, {OPT('HBAR')}"); k("s_cbranch_scc1 DN_NOB"); k("s_barrier"); k.label("DN_NOB")
    k("s_cmp_lg_u32 s42, 12"); k("s_cbranch_scc1 DB_GO")
    gpoll(k, "DB", "s45", 4)
    k("s_add_u32 s34, s34, 4096"); k("s_add_u32 s35, s35, 4096")
    k("s_cmp_lt_u32 s42, 24"); k("s_cselect_b32 s34, s34, s43"); k("s_cselect_b32 s35, s35, s43")
    for s in range(4):
        k("s_waitcnt vmcnt(14) lgkmcnt(0)")
        for x in interleave(mfl(s & 1, TF + 8*s), wreads((s+1) & 3, (s+1) & 1, s == 3)): k(x)
        for x in tload(s): k(x)
        if s == 1:
            k("s_cmp_eq_u32 s42, 20")
            k("s_cselect_b32 s12, s56, s12"); k("s_cselect_b32 s13, s57, s13"); k(f"s_cselect_b32 s14, {512*1024}, s14")
            k("s_cselect_b32 s33, s67, s33"); k("s_cselect_b32 s65, 16384, s65"); k("s_cselect_b32 s66, 16384, s66")
        for x in (wdma(s+7, 3, "s44") if s == 0 else wdma(s+7, s-1)): k(x)
    k("s_setprio 3")
    k("v_swap_b32 v5, v9"); k("v_swap_b32 v6, v10")
    k(f"s_setprio {GP2}")
    k("s_mov_b32 s28, s36"); k("s_mov_b32 s36, s44"); k("s_mov_b32 s44, s28")
    k("s_add_u32 s42, s42, 4"); k("s_cmp_lt_u32 s42, 28"); k("s_cbranch_scc1 DN_LOOP")
    k.stamp()
    k("s_setprio 3")
    for x in wdma(0, 3, "s44"): k(x)
    srd(k, 16, 58, 2048 * 1024)
    for r in range(8):
        k(f"v_lshlrev_b32 v{32+2*r}, 16, v{EP+r}"); k(f"v_and_b32 v{33+2*r}, 0xffff0000, v{EP+r}")
    k("v_mov_b32 v160, v152")
    k(f"s_lshl_b32 s34, s53, 16"); k("s_lshl_b32 s35, s25, 13"); k("s_add_u32 s34, s34, s35"); k(f"s_add_u32 s34, s34, {WS_O}")
    k("s_lshl_b32 s28, s63, 15"); k("s_add_u32 s35, s34, 32768"); k("s_sub_u32 s35, s35, s28"); k("s_add_u32 s34, s34, s28")
    k("s_add_u32 s46, s34, 4096"); k("s_add_u32 s47, s35, 4096")
    k("s_lshl_b32 s45, s53, 3"); k("s_add_u32 s45, s45, s25"); k(f"s_lshl_b32 s45, s45, {3+OFS}"); k(f"s_add_u32 s45, s45, {OFLAG}"); k(f"v_lshlrev_b32 v3, {OFS-2}, v3")
    for r in range(16): k(f"v_add_f32 v{ACD+r}, v{ACD+r}, v{32+r}")
    k("v_add_u32 v161, s32, v1")
    for t in (1, 2, 3):
        k(f"s_xor_b32 s28, s25, {t}"); k("s_lshl_b32 s28, s28, 14"); k(f"s_add_u32 s28, s28, {GB + (t-1)*4096}"); k(f"v_add_u32 v{161+t}, s28, v1")
    k("v_add_u32 v13, 1, v13")
    OG = [[112, 120, 128, 136], [32, 40, 144, 152]]
    k("s_mov_b32 s44, 0x11"); k("s_mov_b32 s28, 0")
    k("s_waitcnt lgkmcnt(0)")
    if OPT("WBAR", 1): k("s_barrier")
    k.label("WO_POLL")
    k("buffer_load_dword v4, v3, s[20:23], s45 offen sc1")
    k("s_waitcnt vmcnt(0)")
    k(f"v_cmp_eq_u32 vcc, {TAG}, v4")
    k("s_add_u32 s28, s28, 1"); k("s_cmp_lt_u32 s28, 0x100000"); k("s_cselect_b32 s42, vcc_lo, -1")
    k("s_lshr_b32 s29, s42, 1"); k("s_and_b32 s42, s42, s29"); k("s_lshr_b32 s29, s42, 2"); k("s_and_b32 s42, s42, s29")
    k("s_and_b32 s42, s42, s44")
    k("s_cbranch_scc1 WO_GO")
    k(f"s_sleep {OPT('WSLEEP', 3)}"); k("s_branch WO_POLL")
    k.label("WO_GO")
    if OPT("WARM", 2) == 1: k.hops_begin("WB")
    k("s_andn2_b32 s44, s44, s42")
    for g in range(2):
        k(f"s_bitcmp1_b32 s42, {4*g}"); k(f"s_cbranch_scc0 WO_L{g}")
        sa, sb = ("s34", "s35") if g == 0 else ("s46", "s47")
        for h in range(4):
            k(f"buffer_load_dwordx4 {vr(OG[g][h],4)}, v1, s[20:23], {sa} offen offset:{h*1024} sc1")
            k(f"buffer_load_dwordx4 {vr(OG[g][h]+4,4)}, v1, s[20:23], {sb} offen offset:{h*1024} sc1")
        k.label(f"WO_L{g}")
    for g in range(2):
        k(f"s_bitcmp1_b32 s42, {4*g}"); k(f"s_cbranch_scc0 WO_C{g}")
        for x in wreads(0, 0, g == 1): k(x)
        if g == 0:
            k("s_bitcmp1_b32 s42, 4"); k("s_cbranch_scc1 WO_W8"); k("s_waitcnt vmcnt(0)"); k.label("WO_W8"); k("s_waitcnt vmcnt(8)")
        else: k("s_waitcnt vmcnt(0)")
        for h in range(4):
            k("s_waitcnt lgkmcnt(0)")
            for x in interleave(mfl(h & 1, OG[g][h]), wreads(h+1, (h+1) & 1, g == 1) if h < 3 else []): k(x)
        k.label(f"WO_C{g}")
    if OPT("WARM", 2) == 1: k.hops_end("AQ_WR"); k.hops_begin("WC")
    k("s_cmp_lg_u32 s44, 0"); k("s_cbranch_scc1 WO_POLL")
    k.stamp()
    k("s_nop 5")
    for t in (1, 2, 3):
        for q in range(4): k(f"ds_write_b128 v161, {vr(ACD + t*16 + 4*q, 4)} offset:{(t-1)*4096 + q*1024}")
    if OPT("WBAR", 1):
        k("s_waitcnt lgkmcnt(0)"); k("s_barrier")
    else:
        k("ds_write_b32 v11, v13")
        k("ds_read_b32 v14, v12"); k("s_waitcnt lgkmcnt(0)"); k("s_mov_b32 s39, 11")
        tails.append(softcheck(k, "DC", "s39", "v14", "v12"))
    k.stamp()
    for q in range(4):
        for t in (1, 2, 3): k(f"ds_read_b128 {vr(ACD + t*16 + 4*q, 4)}, v{161+t} offset:{q*1024}")
    for q in range(4):
        k(f"s_waitcnt lgkmcnt({9 - 3*q})")
        for r in range(4*q, 4*q+4): k(f"v_add_f32 v{ACD+16+r}, v{ACD+16+r}, v{ACD+32+r}"); k(f"v_add_f32 v{ACD+r}, v{ACD+r}, v{ACD+48+r}")
        for r in range(4*q, 4*q+4): k(f"v_add_f32 v{ACD+r}, v{ACD+r}, v{ACD+16+r}")
        for r in range(2*q, 2*q+2): k(f"v_cvt_pk_bf16_f32 v{16+r}, v{ACD+2*r}, v{ACD+2*r+1}")
        if q & 1: k(f"buffer_store_dwordx4 {vr(16+4*(q>>1),4)}, v160, s[16:19], s40 offen offset:{32*(q>>1)} {os.environ.get('OUTST', '')}")
    if OPT("WARM", 2) == 1: k.hops_end("AQ_WR")
    k("s_add_u32 s28, s2, s25"); k("s_cmp_lg_u32 s28, 0"); k("s_cbranch_scc1 G_NOEP")
    k(f"v_mov_b32 v2, 0"); k(f"v_mov_b32 v3, {TAG}"); k(f"s_mov_b32 s28, {EPOCH}")
    k("s_mov_b64 exec, 1"); k("buffer_store_dword v3, v2, s[20:23], s28 offen sc1"); k("s_mov_b64 exec, -1")
    k.label("G_NOEP")
    finish(k, 2)
    for t in tails: t()

def gen_mega():
    k = Kern(NAME, 256, 768, LDS_TOTAL, 168, 72)
    k("s_cmp_ge_u32 s2, 256"); k("s_cbranch_scc1 M_END")
    k.stamp(True); k.stamp()
    k("s_load_dwordx2 s[8:9], s[0:1], 72")
    k("s_load_dwordx4 s[4:7], s[0:1], 0")
    k("v_lshrrev_b32 v1, 6, v0"); k("v_and_b32 v0, 63, v0"); k("v_readfirstlane_b32 s24, v1")
    k("s_cmp_ge_u32 s24, 8"); k("s_cbranch_scc1 M_GEMM")
    qkv_part(k)
    attn_part(k)
    k.label("M_GEMM")
    if Kern.DIAG: k.nst = 2
    k("s_waitcnt lgkmcnt(0)")
    gemm_part(k)
    k.label("M_END")
    k("s_endpgm")
    return k
```

```python
import re

TRANS = ("v_exp_", "v_log_", "v_rcp_", "v_rsq_", "v_sqrt_", "v_sin_", "v_cos_")
_REG = re.compile(r"^(-|\|)?(abs\()?([vas])(\d+|\[(\d+):(\d+)\])\)?\|?$")


def regs_of(op):
    op = op.strip()
    if op in ("vcc", "exec"):
        return {(op, 0), (op, 1)}
    if op in ("vcc_lo", "exec_lo"):
        return {(op[:-3], 0)}
    if op in ("vcc_hi", "exec_hi"):
        return {(op[:-3], 1)}
    if op == "m0":
        return {("m0", 0)}
    m = _REG.match(op)
    if not m:
        return set()
    t = m.group(3)
    if m.group(5) is not None:
        return {(t, i) for i in range(int(m.group(5)), int(m.group(6)) + 1)}
    return {(t, int(m.group(4)))}


class Ins:
    __slots__ = ("text", "mn", "ops", "cls", "wr", "rd", "passes", "srcc", "ab", "ws", "label", "target", "data", "mods")

    def __init__(self, text):
        self.text = text
        self.label = None
        self.target = None
        self.wr = set(); self.rd = set(); self.srcc = set(); self.ab = set(); self.data = set()
        self.passes = 0
        self.ws = 1
        t = text.split(";")[0].strip()
        if t.endswith(":"):
            self.label = t[:-1]; self.cls = "label"; self.mn = ""; self.ws = 0; self.ops = []
            return
        if t.startswith(".") or not t:
            self.cls = "dir"; self.mn = ""; self.ws = 0; self.ops = []
            return
        parts = t.split(None, 1)
        mn = parts[0]; self.mn = mn
        rest = parts[1] if len(parts) > 1 else ""
        ops = []; cur = ""; depth = 0
        for ch in rest:
            if ch in "[(": depth += 1
            if ch in "])": depth -= 1
            if ch == "," and depth == 0:
                ops.append(cur.strip()); cur = ""
            else:
                cur += ch
        if cur.strip(): ops.append(cur.strip())
        mods = ""
        if ops:
            sp = ops[-1].split(None, 1)
            ops[-1] = sp[0]
            if len(sp) > 1: mods = sp[1]
        self.ops = ops; self.mods = mods
        R = [regs_of(o) for o in ops]
        if mn.startswith("v_smfmac"):
            self.cls = "mfma"
            self.passes = 8 if "32x32" in mn else 4
            self.wr = R[0]; self.ab = R[1] | R[2] | R[3]; self.srcc = R[0]; self.rd = self.ab | self.srcc
        elif mn.startswith("v_mfma"):
            self.cls = "mfma"
            self.passes = 8 if "32x32x16" in mn else 4 if "16x16x32" in mn else 16
            self.wr = R[0]; self.ab = R[1] | R[2]; self.srcc = R[3]; self.rd = self.ab | self.srcc
        elif mn.startswith("v_"):
            self.cls = "trans" if mn.startswith(TRANS) else "valu"
            if mn.startswith("v_cmp"):
                self.wr = R[0]; self.rd = set().union(*R[1:])
                if mn.startswith("v_cmpx"): self.wr = self.wr | regs_of("exec")
            elif "permlane" in mn and "swap" in mn:
                self.wr = R[0] | R[1]; self.rd = R[0] | R[1]
            elif mn.startswith(("v_add_co", "v_sub_co", "v_addc_co", "v_subb_co", "v_subrev_co", "v_mad_u64", "v_div_scale")):
                self.wr = R[0] | R[1]; self.rd = set().union(*R[2:])
            else:
                self.wr = R[0]; self.rd = set().union(*R[1:]) if len(R) > 1 else set()
                if mn.startswith(("v_fmac", "v_dot2c", "v_mac", "v_pk_fmac", "v_writelane")) or "UNUSED_PRESERVE" in mods:
                    self.rd = self.rd | R[0]
                if mn.startswith("v_cndmask") and len(ops) == 3: self.rd |= regs_of("vcc")
        elif mn.startswith("ds_"):
            self.cls = "ds"
            if mn.startswith(("ds_read", "ds_bpermute", "ds_permute", "ds_swizzle")) or "_rtn" in mn:
                self.wr = R[0]; self.rd = set().union(*R[1:])
            else:
                self.rd = set().union(*R)
        elif mn.startswith(("buffer_", "global_")):
            self.cls = "vmem"
            islds = (" lds" in " " + mods) or "load_lds" in mn
            if mn in ("buffer_inv", "buffer_wbl2"):
                pass
            elif "load" in mn and not islds:
                self.wr = R[0]; self.rd = set().union(*R[1:])
            elif "load" in mn:
                self.rd = set().union(*R) | {("m0", 0)}; self.cls = "dma"
            else:
                self.rd = set().union(*R)
                d = R[0] if mn.startswith("buffer_") else R[1]
                if "x4" in mn or "x3" in mn: self.data = d
                if "atomic" in mn and "sc0" in mods:
                    self.wr = R[0]
        elif mn.startswith("s_"):
            self.cls = "salu"
            if mn == "s_nop":
                self.ws = int(ops[0], 0) + 1
            elif mn.startswith(("s_cbranch", "s_branch")):
                self.target = ops[0]; self.cls = "branch"
            elif mn.startswith(("s_cmp", "s_waitcnt", "s_barrier", "s_setprio", "s_sleep", "s_endpgm", "s_bitcmp")):
                self.rd = set().union(*R) if R else set()
            elif mn.startswith(("s_load", "s_buffer_load", "s_memtime", "s_memrealtime")):
                self.cls = "smem"; self.wr = R[0]; self.rd = set().union(*R[1:]) if len(R) > 1 else set()
            else:
                self.wr = R[0]; self.rd = set().union(*R[1:]) if len(R) > 1 else set()
                if "saveexec" in mn: self.wr = self.wr | regs_of("exec")
        else:
            raise ValueError("unknown instruction: " + text)


def isv(r): return r[0] in ("v", "a")
def iss(r): return r[0] in ("s", "vcc")


def need(prev, cur):
    n = 0
    pv = prev.cls in ("valu", "trans")
    cv = cur.cls in ("valu", "trans")
    if pv:
        wv = {r for r in prev.wr if isv(r)}
        wsg = {r for r in prev.wr if iss(r)}
        if cur.cls == "mfma" and wv & cur.rd: n = max(n, 2)
        if prev.cls == "trans" and cur.cls == "valu" and wv & cur.rd: n = max(n, 1)
        if prev.cls == "trans" and cur.cls in ("vmem", "ds", "dma") and wv & cur.rd: n = max(n, 1)
        if cur.cls in ("vmem", "dma") and wsg & cur.rd: n = max(n, 5)
        if cv and wsg & cur.rd:
            n = max(n, 4 if cur.mn.startswith(("v_readlane", "v_writelane")) else 2)
        if cur.mn.startswith(("v_readfirstlane", "v_readlane")) and wv & cur.rd: n = max(n, 1)
        if cv and ("permlane" in cur.mn or "dpp" in cur.mn or "row_" in cur.mods or "quad_perm" in cur.mods) and wv & cur.rd: n = max(n, 2)
        if prev.mn.startswith("v_dot") and cur.cls != "salu" and cur.mn != prev.mn and wv & (cur.rd | cur.wr): n = max(n, 3)
        if prev.mn.startswith("v_dot") and cur.mn == prev.mn and wv & (cur.rd - cur.wr): n = max(n, 3)
        if ("sdwa" in prev.mn or "op_sel:" in prev.mods) and cv and wv & (cur.rd | cur.wr): n = max(n, 1)
        if ("exec", 0) in prev.wr or ("exec", 1) in prev.wr:
            if cur.cls == "mfma": n = max(n, 4)
            if "permlane" in cur.mn or cur.mn.startswith(("v_readlane", "v_readfirstlane", "v_writelane")): n = max(n, 4)
            if "dpp" in cur.mn: n = max(n, 5)
        if cur.cls == "salu" and wsg & cur.rd: n = max(n, 1)
        if cur.cls == "branch" and "vcc" in cur.mn and ("vcc", 0) in prev.wr: n = max(n, 5)
    if prev.cls == "mfma":
        p = prev.passes
        big = {2: 5, 4: 8, 8: 12, 16: 20}[p]
        if cur.cls == "mfma":
            if prev.wr & cur.ab: n = max(n, big)
            if prev.wr & cur.srcc:
                if not (prev.wr == cur.srcc and prev.passes == cur.passes): n = max(n, {2: 4, 4: 6, 8: 10, 16: 18}[p])
                elif p == 2: n = max(n, 2)
            elif prev.wr & cur.wr:
                n = max(n, {2: 4, 4: 6, 8: 10, 16: 18}[p])
        elif cur.cls in ("valu", "trans", "vmem", "ds", "dma"):
            if prev.wr & (cur.rd | cur.wr): n = max(n, big)
            if cv and prev.srcc & cur.wr: n = max(n, {2: 1, 4: 3, 8: 7, 16: 15}[p])
    if prev.cls == "salu" and ("m0", 0) in prev.wr and cur.cls == "dma": n = max(n, 1)
    if prev.cls == "vmem" and prev.data and prev.data & cur.wr: n = max(n, 2 if cv else 1)
    return n


class Kern:
    def __init__(self, name, grid, block, lds, nvgpr, nsgpr=96, accum=None):
        self.name = name; self.grid = grid; self.block = block; self.lds = lds
        self.nvgpr = nvgpr; self.nsgpr0 = nsgpr; self.nsgpr = 102 if Kern.DIAG else nsgpr; self.accum = accum
        self.ins = []
        self._uid = 0

    def __call__(self, text):
        for line in text.split("\n"):
            line = line.strip()
            if line and not line.startswith(";"):
                ins = Ins(line)
                if self._hop is not None and ins.cls not in ("label", "dir"):
                    sz = 8 if (ins.cls in ("mfma", "ds", "vmem", "dma", "smem") or len(ins.ops) >= 4 or "0x" in line or ins.mn.startswith(("v_cvt_pk", "v_mul_lo", "v_cmp", "v_perm", "v_readlane"))
                               or "|" in line or any(o.lstrip("-").isdigit() and abs(int(o)) > 64 for o in ins.ops) or " -v" in line) else 4
                    if self._hopbytes + sz > 108:
                        self._emit_hop()
                    self._hopbytes += sz
                self.ins.append(ins)

    _hop = None
    def _emit_hop(self):
        n = self._hopn
        self.ins.append(Ins(f"HOP_{self._hop}_{n}:"))
        g = self._hopgrp
        self.ins.append(Ins(f"s_cbranch_execz {g[1] if g and (n + 1) % g[0] == 0 else 'HOP_%s_%d' % (self._hop, n + 1)}"))
        self._hopn += 1; self._hopbytes = 4
    def hops_begin(self, name, group=None):
        self._hop = name; self._hopn = 0; self._hopgrp = group; self._emit_hop()
    def hops_end(self, target):
        n = self._hopn
        self.ins.append(Ins(f"HOP_{self._hop}_{n}:"))
        self.ins.append(Ins(f"s_cbranch_execz {target}"))
        print("hops", self._hop, n + 1)
        self._hop = None
    def warm(self, name, ret):
        self("s_mov_b64 exec, 0"); self(f"s_branch HOP_{name}_0"); self.label(ret); self("s_mov_b64 exec, -1")

    def label(self, l): self.ins.append(Ins(l + ":"))
    def note(self, text):
        for line in text.strip().split("\n"):
            self.ins.append(Ins("; " + line.strip()))

    DIAG = False
    def stamp(self, real=False, force=False):
        if not Kern.DIAG: return
        if getattr(self, "stamp_off", False) and not real and not force: return
        if not hasattr(self, "nst"): self.nst = 0
        b = self.nsgpr0 + 2 * self.nst
        if Kern.DIAG == "lite" and not real:
            self.nst += 1; return
        self("s_memrealtime s[%d:%d]" % (b, b + 1) if real else "s_memtime s[%d:%d]" % (b, b + 1))
        self("s_waitcnt lgkmcnt(0)")
        self.nst += 1
        assert b + 1 < 102

    def dump_stamps(self, kidx, wave_sgpr, vtmp, wsptr):
        if not Kern.DIAG: return
        a, d = vtmp, vtmp + 1
        self(f"s_lshl_b32 s101, s2, 4"); self(f"s_add_u32 s101, s101, s{wave_sgpr}"); self("s_lshl_b32 s101, s101, 7")
        self(f"s_add_u32 s101, s101, {(32 + kidx) << 20}")
        for i in range(self.nst):
            if Kern.DIAG == "lite" and i not in (0, self.nst - 1): continue
            if Kern.DIAG == "lite" and i:
                self(f"v_mov_b32 v{a}, s101"); self(f"v_mov_b32 v{d}, s{self.nsgpr0 + 2*i}")
                self(f"global_store_dword v{a}, v{d}, s[{wsptr}:{wsptr+1}] offset:4"); continue
            self(f"v_mov_b32 v{a}, s101"); self(f"v_mov_b32 v{d}, s{self.nsgpr0 + 2*i}")
            self(f"global_store_dword v{a}, v{d}, s[{wsptr}:{wsptr+1}] offset:{4*i}")

    def uid(self, p="L"):
        self._uid += 1
        return f"{p}_{self.name}_{self._uid}"

    def _scan_back(self, seq, idx, cur):
        dist = 0; miss = 0
        j = idx - 1
        while j >= 0 and dist < 20:
            p = seq[j]
            if p.cls == "branch" and p.mn == "s_branch": break
            if p.mn == "s_endpgm": break
            if p.cls not in ("label", "dir"):
                n = need(p, cur)
                if n > dist: miss = max(miss, n - dist)
                dist += p.ws
            j -= 1
        return miss

    def finalize(self):
        out = []
        nnop = 0
        for cur in self.ins:
            if cur.cls not in ("label", "dir"):
                miss = self._scan_back(out, len(out), cur)
                while miss > 0:
                    k = min(miss, 16)
                    out.append(Ins(f"s_nop {k-1}")); miss -= k; nnop += 1
            out.append(cur)
        labels = {x.label: i for i, x in enumerate(out) if x.cls == "label"}
        for i, b in enumerate(out):
            if b.cls == "branch" and b.target in labels and not b.target.startswith("HOP_") and b.mn != "s_cbranch_execz":
                t = labels[b.target]
                pre = out[max(0, i - 24):i] + [Ins("s_nop 0")]
                seq = list(pre)
                dist = 0
                for c in out[t:t + 40]:
                    if c.cls not in ("label", "dir"):
                        d = dist; j = len(pre) - 1
                        while j >= 0 and d < 20:
                            p = pre[j]
                            if p.cls not in ("label", "dir"):
                                n = need(p, c)
                                if n > d:
                                    raise RuntimeError(f"{self.name}: hazard across branch {b.text}: '{p.text}' -> '{c.text}' need {n} have {d}")
                                d += p.ws
                            j -= 1
                        dist += c.ws
                        if c.cls == "branch" and c.mn == "s_branch": break
                        if dist >= 20: break
        self.out = out; self.nnop = nnop
        mv = max([r[1] for x in out for r in (x.wr | x.rd) if r[0] == "v"] + [0])
        ma = max([r[1] for x in out for r in (x.wr | x.rd) if r[0] == "a"] + [-1])
        ms = max([r[1] for x in out for r in (x.wr | x.rd) if r[0] == "s"] + [0])
        acc = self.accum if self.accum else (self.nvgpr + 3) // 4 * 4
        assert mv < acc, (self.name, mv, acc)
        assert acc + ma + 1 <= self.nvgpr or ma < 0, (self.name, ma)
        assert ms < self.nsgpr, (self.name, ms)
        self.stats = dict(maxv=mv, maxa=ma, maxs=ms, n=len([x for x in out if x.cls not in ("label", "dir")]), nops=nnop)
        return out

    def text(self):
        out = self.finalize()
        t = [f".globl {self.name}", ".p2align 8", f".type {self.name},@function", f"{self.name}:"]
        for x in out:
            t.append(x.text if x.cls == "label" else "    " + x.text)
        return "\n".join(t)

    def kd(self):
        acc = self.accum if self.accum else min(256, (self.nvgpr + 3) // 4 * 4)
        return "\n".join([".p2align 6", f".amdhsa_kernel {self.name}",
                          f"  .amdhsa_next_free_vgpr {self.nvgpr}", f"  .amdhsa_next_free_sgpr {self.nsgpr}",
                          f"  .amdhsa_accum_offset {acc}", "  .amdhsa_group_segment_fixed_size 0", "  .amdhsa_kernarg_size 80",
                          "  .amdhsa_user_sgpr_count 2", "  .amdhsa_user_sgpr_kernarg_segment_ptr 1",
                          "  .amdhsa_system_sgpr_workgroup_id_x 1",
                          ".end_amdhsa_kernel"])

    def launch_line(self):
        return f"; @launch kernel={self.name} grid=({self.grid},1,1) block=({self.block},1,1) lds={self.lds}"


HEADER = """; Kernarg layout for this problem (80 bytes, ptrs only, base s[0:1]):
;
; word holding this launch's tag; consumers poll the flag and read with sc1 loads. The tag is derived from one
"""


def build_file(kerns, path, order=None, single=False):
    order = order or kerns
    if single:
        k0 = kerns[0]
        s = HEADER + f"; @launch grid=({k0.grid},1,1) block=({k0.block},1,1) lds={k0.lds}\n"
    else:
        s = HEADER + "\n".join(k.launch_line() for k in order) + "\n"
    s += '.amdgcn_target "amdgcn-amd-amdhsa--gfx950"\n.text\n'
    for k in kerns:
        s += k.text() + "\n"
        print(k.name, k.stats)
    s += '.section .rodata,"a"\n'
    for k in kerns:
        s += k.kd() + "\n"
    open(path, "w").write(s)
```

```python
from common import *
import os
OPT = lambda n, d=0: int(os.environ.get(n, d))
MF = "v_mfma_f32_32x32x16_bf16"
MF16 = "v_mfma_f32_16x16x32_bf16"
UP_SLOT = 28928
UP_W3OFF = 14464
GB = 65536
ONES = GB + 3 * UP_SLOT
PROG = ONES + 2048
PAIR = PROG + 3072
SC = PAIR + 256
LNX = SC + 4096
LDS_TOTAL = LNX + 256
assert ONES % 256 == 0 and LDS_TOTAL <= 163840 and ONES >= 131072
HFLAG = WS_FLAG
OFS = OPT("OFS", 2)
OFLAG = WS_FLAG + (32768 if OFS == 2 else 655360)
QFLAG = WS_FLAG + 131072
FSTR = 8192 + 256
XFLAG = WS_FLAG + 393216
RELAY = PAIR + 64
EPOCH = WS_FLAG + 65536 + 4096
TAG = "s70"
HS = 65536 + OPT("HPAD", 0)
QB = 24 * MB
if OPT("LAY") == 1:
    HS = 3 * 65536 + OPT("HPAD", 0); WS_Q = QB; WS_K = QB + 65536; WS_V = QB + 131072
elif OPT("HPAD") or OPT("RPAD"):
    WS_Q = QB; WS_K = QB + 32 * HS + OPT("RPAD"); WS_V = QB + 64 * HS + 2 * OPT("RPAD")
WS_SIZE = 32 * MB
NST = 14
NAME = "parallel_sum__softmax_full_mha__glu_gated_swiglu__prompt_kernel"

def load_tag(k):
    k(f"s_add_u32 s68, s8, {EPOCH}"); k("s_addc_u32 s69, s9, 0")
    k(f"s_load_dword {TAG}, s[68:69], 0"); k("s_waitcnt lgkmcnt(0)")
    k(f"s_mul_i32 {TAG}, {TAG}, 0x9e3779b1"); k(f"s_add_u32 {TAG}, {TAG}, 0x7f4a7c15")

def ln_scalars(k, s, q, mask, r, mb):
    k(f"v_mul_f32 {s}, {lit(1/512)}, {s}"); k(f"v_mul_f32 {q}, {lit(1/512)}, {q}")
    k(f"v_fma_f32 {q}, -{s}, {s}, {q}"); k(f"v_max_f32 {q}, 0, {q}")
    k(f"v_cvt_pk_bf16_f32 {s}, {s}, {q}")
    k(f"v_and_b32 {q}, {mask}, {s}"); k(f"v_lshlrev_b32 {mb}, 16, {s}")
    k(f"v_add_f32 {q}, {lit(1e-5)}, {q}")
    k(f"v_cvt_pk_bf16_f32 {q}, {q}, {q}"); k(f"v_lshlrev_b32 {q}, 16, {q}")
    k(f"v_sqrt_f32 {q}, {q}")
    k(f"v_cvt_pk_bf16_f32 {q}, {q}, {q}"); k(f"v_lshlrev_b32 {q}, 16, {q}")
    k(f"v_rcp_f32 {r}, {q}")

def qkv_part(k):
    k("s_and_b32 s27, s2, 7"); k("s_lshr_b32 s28, s2, 3")
    k("s_lshr_b32 s25, s27, 1"); k("s_lshl_b32 s25, s25, 3"); k("s_lshr_b32 s29, s28, 2"); k("s_add_u32 s25, s25, s29")
    k("s_and_b32 s26, s27, 1"); k("s_lshl_b32 s26, s26, 2"); k("s_and_b32 s29, s28, 3"); k("s_add_u32 s26, s26, s29")
    k("s_add_u32 s40, s25, s26"); k("s_and_b32 s40, s40, 7")
    if OPT("ROTM", 11) == 1: k("s_lshr_b32 s40, s25, 1"); k("s_add_u32 s40, s40, s26"); k("s_and_b32 s40, s40, 7")
    if OPT("ROTM") == 2: k("s_lshr_b32 s40, s25, 2"); k("s_add_u32 s40, s40, s26"); k("s_and_b32 s40, s40, 7")
    if OPT("ROTM") == 3: k("s_mov_b32 s40, s26")
    if OPT("ROTM", 11) >= 8:
        rm = OPT("ROTM", 11)
        if rm == 8: k("s_mov_b32 s40, 0")
        if rm == 9: k("s_and_b32 s40, s26, 1"); k("s_lshl_b32 s40, s40, 2")
        if rm == 10: k("s_and_b32 s40, s25, 1"); k("s_lshl_b32 s40, s40, 2")
        if rm == 11: k("s_lshr_b32 s40, s27, 0")
    elif OPT("ROTM", 11) >= 4:
        k("s_and_b32 s40, s26, 3"); k("s_lshl_b32 s40, s40, 1"); k("s_lshr_b32 s29, s26, 2"); k("s_add_u32 s40, s40, s29")
        k(f"s_and_b32 s29, s25, {(7, 6, 4, 0)[OPT('ROTM', 7) - 4]}"); k("s_add_u32 s40, s40, s29"); k("s_and_b32 s40, s40, 7")
    k("s_bfe_u32 s56, s24, 0x10001"); k("s_and_b32 s59, s24, 1")
    LD_FIRST = OPT("LDFIRST", 1)
    k("s_cmp_ge_u32 s24, 4" if LD_FIRST else "s_cmp_lt_u32 s24, 4"); k("s_cbranch_scc1 K1_COMP")
    k("s_and_b32 s57, s24, 3")
    k("v_lshrrev_b32 v40, 3, v0"); k("v_lshlrev_b32 v44, 10, v40")
    k("v_lshrrev_b32 v41, 4, v0"); k("v_and_b32 v42, 7, v0")
    k("v_xor_b32 v43, v41, v42"); k("v_lshl_add_u32 v1, v43, 4, v44")
    k("v_xor_b32 v43, 4, v43"); k("v_lshl_add_u32 v2, v43, 4, v44"); k(f"v_add_u32 v2, {8192-1024}, v2")
    k("v_mul_u32_u24 v40, 3072, v40"); k("v_and_b32 v41, 1, v41"); k("v_lshlrev_b32 v41, 2, v41"); k("v_xor_b32 v41, v41, v42"); k("v_lshl_add_u32 v3, v41, 4, v40")
    k("s_lshl_b32 s31, s25, 16"); k("s_lshl_b32 s33, s57, 14"); k("s_add_u32 s31, s31, s33")
    k("s_lshl_b32 s32, s57, 11")
    k("s_mul_i32 s35, s57, 49152"); k("s_lshl_b32 s33, s26, 7"); k("s_add_u32 s35, s35, s33")
    k("s_mul_i32 s36, s57, 6144"); k("s_add_u32 s36, s36, 8192")
    k("s_mov_b32 s42, 0"); k("s_mov_b32 s43, 0x10000"); k("s_mov_b32 s41, s40")
    k("s_waitcnt lgkmcnt(0)")
    srd(k, 12, 4, 2048 * 1024); srd(k, 16, 6, 512 * 3072)
    def issue():
        o = ["s_lshl_b32 s33, s41, 7", "s_add_u32 m0, s43, s32", "s_add_u32 s33, s33, s31",
             "buffer_load_dwordx4 v1, s[12:15], s33 offen lds",
             "buffer_load_dwordx4 v2, s[12:15], s33 offen offset:1024 lds",
             "s_mul_i32 s33, s41, 196608", "s_add_u32 m0, s43, s36", "s_add_u32 s33, s33, s35"]
        o += [f"buffer_load_dwordx4 v3, s[16:19], s33 offen offset:{blk*1024} lds" for blk in range(3)]
        o += ["s_add_u32 m0, m0, 3072", "s_add_u32 s33, s33, 24576"]
        o += [f"buffer_load_dwordx4 v3, s[16:19], s33 offen offset:{blk*1024} lds" for blk in range(3)]
        o += ["s_add_u32 s41, s41, 1", "s_and_b32 s41, s41, 7", "s_add_u32 s43, s43, 32768", "s_and_b32 s43, s43, 0x1ffff"]
        return o
    D0 = 3 if OPT("DEEP", 2) == 2 else 2
    k.label("K1_LP")
    for x in issue(): k(x)
    k("s_add_u32 s42, s42, 1"); k(f"s_cmp_lt_u32 s42, {D0}"); k("s_cbranch_scc1 K1_LP")
    k("v_and_b32 v48, 31, v0"); k("v_lshrrev_b32 v49, 5, v0"); k("v_bfe_u32 v50, v0, 1, 3")
    k("s_lshl_b32 s33, s56, 12"); k("v_lshl_add_u32 v51, v48, 7, s33")
    k("s_lshl_b32 s33, s59, 2"); k("v_or_b32 v52, s33, v49"); k("v_xor_b32 v52, v52, v50"); k("v_lshl_add_u32 v4, v52, 4, v51"); k("v_xor_b32 v5, 32, v4")
    k("v_add_u32 v8, 0x10000, v4"); k("v_add_u32 v9, 0x10000, v5"); k("v_mov_b32 v13, 0xffff0000")
    for r in range(54, 62): k(f"v_mov_b32 v{r}, 0")
    srd(k, 20, 8, WS_SIZE)
    k("s_mov_b32 s42, 0"); k("s_mov_b32 s44, 0x10000")
    k.stamp()
    KEEP = False
    if KEEP: k("s_sub_u32 s45, s26, s40"); k("s_and_b32 s45, s45, 7")
    def keep():
        if KEEP:
            l = k.uid("KP"); k("s_cmp_lg_u32 s42, s45"); k(f"s_cbranch_scc1 {l}")
            for r in range(16): k(f"v_mov_b32 v{64+r}, v{24+r}")
            k.label(l)
    def stats():
        o = []
        for r in range(8):
            o += [f"v_lshlrev_b32 v{24+2*r}, 16, v{16+r}", f"v_and_b32 v{25+2*r}, v13, v{16+r}"]
        for r in range(16):
            o += [f"v_add_f32 v{54+(r&3)}, v{54+(r&3)}, v{24+r}", f"v_fmac_f32 v{58+(r&3)}, v{24+r}, v{24+r}"]
        return o
    head = ["s_barrier", "ds_read_b128 v[16:19], v8", "ds_read_b128 v[20:23], v9",
            "s_add_u32 s44, s44, 32768", "s_and_b32 s44, s44, 0x1ffff", "v_add_u32 v8, s44, v4", "v_add_u32 v9, s44, v5"]
    DEEP = OPT("DEEP", 2)
    if DEEP == 1:
        k("s_waitcnt vmcnt(8)")
        for x in head: k(x)
        iss = issue()
        for x in iss[:5]: k(x)
        k("s_waitcnt lgkmcnt(0)")
        for x in interleave(iss[5:] + issue(), stats()): k(x)
        keep()
        k("s_mov_b32 s42, 1")
    k.label("K1_LA")
    k(f"s_waitcnt vmcnt({16 if DEEP else 8})")
    for x in head: k(x)
    iss = issue()
    for x in iss[:5]: k(x)
    k("s_waitcnt lgkmcnt(0)")
    for x in interleave(iss[5:], stats()): k(x)
    keep()
    k("s_add_u32 s42, s42, 1"); k(f"s_cmp_lt_u32 s42, {5 if DEEP else 6}"); k("s_cbranch_scc1 K1_LA")
    k(f"s_waitcnt vmcnt({16 if DEEP else 8})")
    k.label("K1_LB")
    for x in head: k(x)
    k("s_waitcnt lgkmcnt(0)")
    for x in stats(): k(x)
    keep()
    k("s_add_u32 s42, s42, 1")
    if DEEP:
        k("s_waitcnt vmcnt(8)"); k("s_cmp_lt_u32 s42, 7"); k("s_cbranch_scc1 K1_LB")
    k("s_waitcnt vmcnt(0)"); k("s_cmp_lt_u32 s42, 8"); k("s_cbranch_scc1 K1_LB")
    k.stamp()
    k("v_add_f32 v54, v54, v55"); k("v_add_f32 v56, v56, v57"); k("v_add_f32 v58, v58, v59"); k("v_add_f32 v60, v60, v61")
    k("v_add_f32 v54, v54, v56"); k("v_add_f32 v58, v58, v60"); k("v_mov_b32 v55, v54"); k("v_mov_b32 v59, v58")
    k("s_lshl_b32 s33, s56, 9"); k(f"s_add_u32 s33, s33, {SC+2048}"); k("v_lshl_add_u32 v6, v48, 4, s33")
    k("v_permlane32_swap_b32 v54, v55"); k("v_permlane32_swap_b32 v58, v59")
    k("s_lshl_b32 s33, s59, 3"); k("v_add_u32 v7, s33, v6")
    k("v_add_f32 v54, v54, v55"); k("v_add_f32 v55, v58, v59")
    k("ds_write_b64 v7, v[54:55]")
    k("s_waitcnt lgkmcnt(0)"); k("s_barrier")
    k("s_mov_b32 s44, 0x7fffffff")
    k("s_branch AT_ENTRY")
    if Kern.DIAG: k.nst = 2
    FS = [16, 32, 48, 64]
    ACC = 80; CS = 128; SEL = 140
    k.label("K1_COMP")
    k("v_and_b32 v144, 31, v0"); k("v_lshrrev_b32 v145, 5, v0"); k("v_bfe_u32 v146, v0, 1, 3")
    k("s_lshl_b32 s33, s56, 12"); k("v_lshl_add_u32 v147, v144, 7, s33")
    k("s_lshl_b32 s33, s56, 2"); k("v_or_b32 v148, s33, v145"); k("v_xor_b32 v148, v148, v146"); k("v_lshl_add_u32 v4, v148, 4, v147")
    for j in (1, 2, 3): k(f"v_xor_b32 v{4+j}, {32*j}, v4")
    k("v_mul_u32_u24 v147, 3072, v145"); k("v_bfe_u32 v148, v0, 2, 2"); k("v_lshl_add_u32 v147, v148, 7, v147")
    k("v_bfe_u32 v148, v0, 3, 1"); k("v_xor_b32 v148, s59, v148"); k("v_lshl_add_u32 v147, v148, 6, v147")
    k("v_bfe_u32 v149, v0, 4, 1"); k("v_lshl_add_u32 v147, v149, 5, v147"); k("v_and_b32 v148, 3, v0"); k("v_lshl_add_u32 v147, v148, 3, v147")
    k("s_mul_i32 s33, s56, 12288"); k("s_add_u32 s34, s33, 8192"); k("v_add_u32 v8, s34, v147")
    k(f"s_sub_u32 s34, {8192+12288}, s33"); k("v_add_u32 v9, s34, v147")
    k("v_bfe_u32 v147, v0, 2, 1"); k("v_xor_b32 v147, v147, v149"); k("v_or_b32 v147, v147, v148")
    k("v_cmp_eq_u32 vcc, 0, v147"); k("v_mov_b32 v147, 0x3f803f80")
    k(f"v_cndmask_b32 v{SEL}, 0, v147, vcc")
    for r in (1, 2, 3): k(f"v_mov_b32 v{SEL+r}, v{SEL}")
    for r in range(FS[2], CS + 12): k(f"v_mov_b32 v{r}, 0")
    k("s_lshl_b32 s30, s25, 1"); k("s_add_u32 s30, s30, s56")
    k("s_lshl_b32 s33, s26, 1"); k("s_add_u32 s33, s33, s59"); k(f"s_mul_i32 s33, s33, {2*HS}"); k("s_lshl_b32 s34, s30, 10"); k("s_add_u32 s33, s33, s34")
    k(f"s_add_u32 s34, s33, {WS_K}"); k(f"s_add_u32 s35, s33, {WS_V}"); k(f"s_add_u32 s33, s33, {WS_Q}"); k(f"s_add_u32 s36, s33, {HS}"); k(f"s_add_u32 s37, s34, {HS}")
    k("v_lshlrev_b32 v15, 4, v0")
    k("v_bfe_u32 v150, v0, 2, 1"); k("v_bfe_u32 v151, v0, 3, 1"); k("v_xor_b32 v150, v150, v151"); k("v_mul_u32_u24 v150, 192, v150"); k("v_xor_b32 v150, v150, v15")
    k("s_lshl_b32 s38, s56, 9"); k(f"s_add_u32 s38, s38, {SC+2048}"); k("v_lshl_add_u32 v1, v144, 4, s38")
    k("s_lshl_b32 s38, s59, 10"); k(f"s_add_u32 s38, s38, {SC}"); k("v_lshl_add_u32 v2, v144, 5, s38")
    k("s_lshl_b32 s38, s56, 4"); k("v_add_u32 v10, s38, v2"); k("v_xor_b32 v2, 16, v10")
    k("s_and_b32 s38, s24, 3"); k("s_lshl_b32 s38, s38, 7"); k(f"s_add_u32 s38, s38, {SC+3072}")
    k("v_lshl_add_u32 v11, v144, 2, s38"); k("v_lshl_add_u32 v14, v145, 4, s38")
    k(f"v_mul_u32_u24 v3, {HS}, v149"); k("v_lshl_add_u32 v3, v145, 8, v3"); k("v_and_b32 v148, 15, v0"); k("v_lshl_add_u32 v3, v148, 4, v3")
    k("v_mov_b32 v13, 0xffff0000")
    k("s_mov_b32 s42, 0")
    k("s_waitcnt lgkmcnt(0)")
    srd(k, 20, 8, WS_SIZE)
    if OPT("TOUCH", 0):
        k("v_mov_b32 v150, 0"); k(f"s_mov_b32 s38, {EPOCH + 256}"); k(f"s_add_u32 s39, s33, {WS_XN - WS_Q}")
        k("s_mov_b64 exec, 1")
        for sg in ("s33", "s34", "s35", "s38"): k(f"buffer_load_dword v151, v150, s[20:23], {sg} offen sc1")
        k("s_mov_b64 exec, -1")
    QG = OPT("QWARM", 0)
    if QG:
        k("s_mov_b64 exec, 0")
        for w in range(4):
            k(f"s_cmp_eq_u32 s24, {4+w}"); k(f"s_cbranch_scc1 HOP_QE_{w*QG}")
        k.label("QE_WR"); k("s_mov_b64 exec, -1")
    k.stamp()
    def reads(j, off):
        f = FS[j]; w = "v8" if j < 2 else "v9"; o = off + (j & 1)*6144
        out = [f"ds_read_b128 {vr(f,4)}, v{4+j} offset:{off}"]
        for blk in range(3):
            out += [f"ds_read_b64_tr_b16 {vr(f+4+4*blk,2)}, {w} offset:{o+blk*1024}", f"ds_read_b64_tr_b16 {vr(f+6+4*blk,2)}, {w} offset:{o+blk*1024+512}"]
        return out
    def mfs(j):
        f = FS[j]; out = []
        for blk in range(3):
            a = vr(ACC + blk*16, 16); w = vr(f+4+4*blk, 4); x = vr(f, 4)
            out.append(f"{MF} {a}, {w}, {x}, {a}" if blk < 2 else f"{MF} {a}, {x}, {w}, {a}")
            if j < 2: out.append(f"{MF16} {vr(CS+4*blk,4)}, {vr(SEL,4)}, {w}, {vr(CS+4*blk,4)}")
        return out
    for i in range(6): k(f"v_xor_b32 v{4+i}, 0x10000, v{4+i}")
    k.label("K1_CL")
    for p in range(2):
        k("s_barrier")
        for j in range(4):
            if j >= 2: k("s_waitcnt lgkmcnt(7)")
            for x in interleave(mfs((j + 2) & 3), reads(j, p*32768)): k(x)
        if p == 1:
            for i in range(6): k(f"v_xor_b32 v{4+i}, 0x10000, v{4+i}")
            k("s_add_u32 s42, s42, 1"); k("s_cmp_lt_u32 s42, 4")
        k("s_waitcnt lgkmcnt(0)")
    k("s_cbranch_scc1 K1_CL")
    k.stamp()
    if QG: k.hops_begin("QE", (QG, "QE_WR"))
    for x in mfs(2): k(x)
    k(f"v_mov_b32 v{CS+1}, v{CS+4}"); k(f"v_mov_b32 v{CS+2}, v{CS+8}")
    k(f"ds_write_b128 v10, {vr(CS,4)}")
    for x in mfs(3): k(x)
    k("s_waitcnt lgkmcnt(0)"); k("s_barrier")
    k("ds_read_b128 v[16:19], v1"); k("ds_read_b128 v[20:23], v2")
    k("s_waitcnt lgkmcnt(1)")
    k("v_add_f32 v16, v16, v18"); k("v_add_f32 v17, v17, v19")
    ln_scalars(k, "v16", "v17", "v13", "v12", "v18")
    k("ds_write_b32 v11, v12")
    for q in range(4): k(f"ds_read_b128 {vr(48+4*q,4)}, v14 offset:{q*32}")
    k("v_cvt_pk_bf16_f32 v24, -v18, -v18"); k("v_lshrrev_b32 v25, 16, v24"); k("v_mov_b32 v26, 0"); k("v_mov_b32 v27, 0")
    k("s_mov_b32 exec_lo, 0"); k("v_mov_b32 v24, 0"); k("v_mov_b32 v25, 0"); k("s_mov_b32 exec_lo, -1")
    for b in range(3):
        c = 28 + 4*b
        k(f"v_add_f32 v{c+2}, v{CS+b}, v{20+b}")
        k(f"v_and_b32 v{c+3}, v13, v{c+2}"); k(f"v_sub_f32 v{c+2}, v{c+2}, v{c+3}")
        k(f"v_and_b32 v{c+1}, v13, v{c+2}"); k(f"v_sub_f32 v{c+2}, v{c+2}, v{c+1}")
        k(f"v_lshrrev_b32 v{c+3}, 16, v{c+3}"); k(f"v_or_b32 v{c}, v{c+3}, v{c+1}")
        k(f"v_lshrrev_b32 v{c+1}, 16, v{c+2}"); k(f"v_mov_b32 v{c+2}, 0"); k(f"v_mov_b32 v{c+3}, 0")
    for blk in (1, 2, 0):
        a = vr(ACC + blk*16, 16); c = vr(28+4*blk, 4)
        k(f"{MF} {a}, {c}, v[24:27], {a}" if blk < 2 else f"{MF} {a}, v[24:27], {c}, {a}")
    k(f"v_mul_f32 v10, {lit(QSCALE)}, v12")
    k("s_waitcnt lgkmcnt(0)")
    so = {0: ("s33", "s36"), 1: ("s34", "s37")}
    for blk in (1, 2, 0):
        a = ACC + blk*16
        for h in range(2):
            for r in range(8*h, 8*h+8):
                k(f"v_mul_f32 v{a+r}, {('v10', 'v12', 'v%d' % (48+r))[blk]}, v{a+r}")
            d = 16 + (blk*2+h)*4 if blk < 2 else 64 + 4*h
            if blk == 0: d = 72 + 4*h
            if blk == 1: d = 40 + 4*h
            for r in range(4): k(f"v_cvt_pk_bf16_f32 v{d+r}, v{a+8*h+2*r}, v{a+8*h+2*r+1}")
            if blk < 2: k(f"buffer_store_dwordx4 {vr(d,4)}, {('v15', 'v150')[blk]}, s[20:23], {so[blk][h]} offen sc1")
            else: k(f"buffer_store_dwordx4 {vr(d,4)}, v3, s[20:23], s35 offen offset:{512*h} sc1")
    k("s_lshl_b32 s44, s26, 1"); k("s_add_u32 s44, s44, s59"); k(f"s_mul_i32 s44, s44, {FSTR}"); k("s_lshl_b32 s39, s30, 7"); k("s_add_u32 s44, s44, s39"); k(f"s_add_u32 s44, s44, {QFLAG}")

def softcheck(k, tag, sval, vdst, vaddr):
    k(f"v_cmp_le_u32 vcc, {sval}, {vdst}")
    k("s_cmp_eq_u64 vcc, -1")
    k(f"s_cbranch_scc0 {tag}_SPIN")
    k.label(f"{tag}_CONT")
    def tail():
        k.label(f"{tag}_SPIN")
        k("s_sleep 1")
        k(f"ds_read_b32 {vdst}, {vaddr}")
        k("s_waitcnt lgkmcnt(0)")
        k(f"v_cmp_le_u32 vcc, {sval}, {vdst}")
        k("s_cmp_eq_u64 vcc, -1")
        k(f"s_cbranch_scc0 {tag}_SPIN")
        k(f"s_branch {tag}_CONT")
    return tail

def finish(k, vtmp):
    if Kern.DIAG:
        k("s_waitcnt vmcnt(0)")
        while k.nst < NST - 1: k.stamp(force=True)
        k.stamp(True)
        k.dump_stamps(1, 24, vtmp, 8)
    k("s_endpgm")

def attn_part(k):
    S = [16, 32]; O = [48, 64]; C = 80; P = 96; Q = [104, 108]
    KF = [112, 116]; VF = [[120, 124], [128, 132]]; K0 = 136; IDX = "v144"
    NG = OPT("AT_UNROLL", 2)
    tails = []
    k.label("AT_ENTRY")
    k.stamp()
    k(f"v_mov_b32 v150, {RELAY+12}"); k("ds_read_b32 v143, v150")
    if OPT("GOEARLY"):
        k("s_mov_b64 exec, 1"); k(f"v_mov_b32 v150, {RELAY+8}"); k("v_mov_b32 v151, 1"); k("ds_add_u32 v150, v151"); k("s_mov_b64 exec, -1")
    k("s_nop 1")
    k("v_lshlrev_b32 v1, 4, v0"); k("s_lshl_b32 s28, s24, 8"); k(f"s_add_u32 s28, s28, {PROG}"); k("v_lshl_add_u32 v11, v0, 2, s28")
    k("s_and_b32 s25, s2, 7"); k("s_lshl_b32 s25, s25, 2"); k("s_bfe_u32 s26, s2, 0x20003"); k("s_add_u32 s25, s25, s26")
    k("s_lshr_b32 s38, s24, 2"); k("s_and_b32 s39, s24, 3")
    k("s_lshr_b32 s26, s2, 5"); k("s_lshl_b32 s26, s26, 3"); k("s_lshl_b32 s28, s39, 1"); k("s_add_u32 s26, s26, s28")
    k(f"s_mul_i32 s27, s25, {HS}")
    k("s_lshr_b32 s28, s39, 1"); k(f"s_mul_i32 s28, s28, {WS_V - WS_K}"); k("s_add_u32 s30, s27, s28"); k(f"s_add_u32 s30, s30, {WS_K}")
    k("s_lshl_b32 s28, s38, 15"); k("s_add_u32 s30, s30, s28"); k("s_and_b32 s28, s39, 1"); k("s_lshl_b32 s28, s28, 10"); k("s_add_u32 s30, s30, s28")
    k("s_lshl_b32 s28, s24, 10")
    k("s_lshl_b32 s32, s26, 10"); k("s_add_u32 s32, s32, s27"); k(f"s_add_u32 s32, s32, {WS_Q}")
    k(f"s_add_u32 s33, s27, {WS_K}")
    k("s_mov_b32 m0, s28")
    k("v_lshrrev_b32 v2, 5, v0"); k("v_lshlrev_b32 v2, 8, v2"); k("v_and_b32 v3, 15, v0"); k("v_lshl_add_u32 v2, v3, 4, v2")
    k("s_lshl_b32 s29, s38, 12")
    k("v_add_u32 v15, s29, v1")
    k("v_bfe_u32 v10, v0, 4, 1"); k("v_add_u32 v10, -1, v10")
    k(f"s_add_u32 s31, s29, {2048 - ONES + (1<<32)}")
    k("v_and_b32 v3, s31, v10"); k(f"v_add_u32 v3, {ONES}, v3"); k("v_add_u32 v3, v3, v2")
    k("v_and_b32 v12, 3, v0"); k("v_lshlrev_b32 v12, 8, v12"); k("v_lshl_add_u32 v12, v0, 2, v12")
    k(f"s_lshl_b32 s31, s38, 10"); k(f"s_add_u32 s31, s31, {PROG}"); k("v_add_u32 v12, s31, v12")
    k("s_xor_b32 s31, s24, 4"); k("s_lshl_b32 s31, s31, 8"); k(f"s_add_u32 s31, s31, {PROG - 128}")
    k("s_mov_b32 exec_lo, 0"); k("v_lshl_add_u32 v12, v0, 2, s31"); k("s_mov_b32 exec_lo, -1")
    k("s_mov_b32 s40, 0x0000ffff"); k("s_mov_b32 s41, 0x0000ffff")
    for r in range(4): k(f"v_mov_b32 v{VF[1][1]+r}, 0")
    for r in range(32): k(f"v_mov_b32 v{O[0]+r}, 0")
    k(f"v_mov_b32 {IDX}, 0xdddddddd")
    k("v_mov_b32 v5, v3"); k("v_add_u32 v6, 8192, v15"); k("v_and_b32 v7, 8192, v10"); k("v_add_u32 v7, v7, v3")
    k("v_lshrrev_b32 v13, 5, v0"); k("v_add_u32 v13, 1, v13")
    if OPT("QWARM", 0): k.hops_end("QE_WR")
    k("v_mov_b32 v142, 0"); k("s_waitcnt lgkmcnt(0)"); k(f"v_readfirstlane_b32 {TAG}, v143")
    k("s_mov_b64 exec, 1")
    k("s_waitcnt vmcnt(0)")
    k("buffer_store_dword v143, v142, s[20:23], s44 offen sc1")
    k("s_lshl_b32 s28, s24, 2"); k(f"s_add_u32 s28, s28, {RELAY+16}"); k("v_mov_b32 v140, s28"); k("v_mov_b32 v141, 0x100000"); k("ds_write_b32 v140, v141")
    k("s_mov_b64 exec, -1")
    k.stamp()
    k("s_lshr_b32 s45, s25, 1"); k(f"s_mul_i32 s45, s45, {FSTR}"); k(f"s_add_u32 s45, s45, {QFLAG}"); k("v_lshlrev_b32 v140, 7, v0")
    k(f"v_mov_b32 v142, {RELAY}")
    if OPT("WARM", 2):
        k("s_cmp_ge_u32 s24, 4"); k("s_cbranch_scc1 AQ_NW")
        k("s_mov_b64 exec, 0")
        for w, nm in enumerate(("WA", "WB", "WC", "WD")):
            k(f"s_cmp_eq_u32 s24, {w}"); k(f"s_cbranch_scc1 HOP_{nm}_0")
        k.label("AQ_WR"); k("s_mov_b64 exec, -1")
        k.label("AQ_NW")
    k("s_cmp_lg_u32 s24, 4"); k("s_cbranch_scc1 AQ_REL")
    gpoll(k, "AQ", "s45", OPT("QSLEEP", 4), "v141", "v140", "s46")
    k("v_mov_b32 v141, 1"); k("ds_write_b32 v142, v141"); k("s_branch AQ_DONE")
    k.label("AQ_REL")
    k(f"s_sleep {OPT('RSLEEP', 1)}"); k("ds_read_b32 v141, v142"); k("s_waitcnt lgkmcnt(0)"); k("v_cmp_eq_u32 vcc, 1, v141"); k("s_cmp_eq_u64 vcc, -1"); k("s_cbranch_scc0 AQ_REL")
    k.label("AQ_DONE")
    if OPT("WARM", 2): k.hops_begin("WA")
    k.stamp()
    k(f"buffer_load_dwordx4 {vr(Q[0],4)}, v1, s[20:23], s32 offen sc1")
    k(f"buffer_load_dwordx4 {vr(Q[1],4)}, v1, s[20:23], s32 offen offset:1024 sc1")
    k(f"buffer_load_dwordx4 {vr(K0,4)}, v1, s[20:23], s33 offen sc1")
    for g in range(3):
        k("buffer_load_dwordx4 v1, s[20:23], s30 offen sc1 lds")
        k("s_add_u32 m0, m0, 8192"); k("s_add_u32 s30, s30, 2048")
    k("s_waitcnt vmcnt(3)")
    k(f"{MF} {vr(S[0],16)}, {vr(K0,4)}, {vr(Q[0],4)}, 0")
    k(f"{MF} {vr(S[1],16)}, {vr(K0,4)}, {vr(Q[1],4)}, 0")
    k("s_waitcnt vmcnt(1)")
    k("ds_write_b32 v11, v13")
    k("s_mov_b32 s34, 1")
    k(f"v_max3_f32 v8, v{S[0]}, v{S[0]+1}, v{S[0]+2}")
    for i in range(3, 31, 2): k(f"v_max3_f32 v8, v8, v{S[0]+i}, v{S[0]+i+1}")
    k(f"v_max_f32 v8, v8, v{S[0]+31}")
    k("ds_read_b32 v14, v12")
    k("v_mov_b32 v9, v8"); k("v_permlane32_swap_b32 v8, v9"); k("v_max_f32 v8, v8, v9")
    for r in range(16): k(f"v_xor_b32 v{C+r}, 0x80000000, v8")
    for r in range(8, 16): k(f"v_mov_b32 v{S[1]+r}, 0")
    k("s_waitcnt lgkmcnt(0)")
    k("v_cmp_le_u32 vcc, v13, v14"); k("s_setprio 1"); k("s_cmp_eq_u32 vcc_lo, -1"); k("s_cbranch_scc0 AP_SPIN")
    k.label("AP_CONT")
    def tail(tag="AP"):
        k.label(f"{tag}_SPIN"); k("s_sleep 1"); k("ds_read_b32 v14, v12"); k("s_waitcnt lgkmcnt(0)")
        k("v_cmp_le_u32 vcc, v13, v14"); k("s_cmp_eq_u32 vcc_lo, -1"); k(f"s_cbranch_scc0 {tag}_SPIN"); k(f"s_branch {tag}_CONT")
    tails.append(tail)
    k.stamp()
    k(f"ds_read_b128 {vr(KF[0],4)}, v15")
    k(f"ds_read_b128 {vr(VF[0][0],4)}, v5"); k(f"ds_read_b128 {vr(VF[0][1],4)}, v5 offset:512")
    k(f"ds_read_b128 {vr(KF[1],4)}, v15 offset:1024")
    k("s_mov_b32 s37, 16384")
    k("s_waitcnt lgkmcnt(3)")
    k(f"{MF} {vr(S[0],16)}, {vr(KF[0],4)}, {vr(Q[0],4)}, {vr(C,16)}")
    k("s_nop 10")
    if OPT("WARM", 2): k.hops_end("AQ_WR")
    k.label("AT_LOOP")
    SM = "v_smfmac_f32_32x32x32_bf16"
    L = Loop()
    for gi in range(NG):
      if OPT("WARM", 2) == 2:
          L.call(lambda gi=gi: ((k.hops_end("AQ_WR") if gi else None), k.hops_begin("WB" if gi == 0 else "WC")))
      for t in range(2):
        for ab in range(2):
            Sa = S[ab]; Sp = S[1-ab]
            q = []
            def e(i, fn=None):
                L.i(f"v_exp_f32 v{Sa+i}, v{Sa+i}")
                if fn: fn()
                elif q: L.i(q.pop(0))
            if ab == 0:
                va, vo = ("v5", 1024) if t == 0 else ("v7", 0)
                e(0, (lambda: L.ds("pr", "ds_read_b32 v14, v12")) if t == 0 else None); e(1)
                L.i(f"{SM} {vr(O[1],16)}, {vr(VF[(t+1)&1][1],4)}, {vr(Sp+8,8)}, {IDX}")
                e(2, lambda: L.ds(f"v{(t+1)&1}", f"ds_read_b128 {vr(VF[(t+1)&1][0],4)}, {va} offset:{vo}")); e(3)
                e(4, lambda: L.ds(f"v{(t+1)&1}", f"ds_read_b128 {vr(VF[(t+1)&1][1],4)}, {va} offset:{vo+512}")); e(5)
                L.i(f"{MF} {vr(Sp,16)}, {vr(KF[t&1],4)}, {vr(Q[1],4)}, {vr(C,16)}")
                e(6); e(7); e(8); e(9); e(10, lambda: L.wait(ds=[f"v{t&1}", "pr"] if t == 0 else f"v{t&1}"))
                L.i(f"{SM} {vr(O[0],16)}, {vr(VF[t&1][0],4)}, {vr(Sa,8)}, {IDX}")
                if t == 0:
                    e(11); L.i("v_cmp_le_u32 vcc, v13, v14")
                    e(12, lambda: L.i("s_setprio 1")); e(13, lambda: L.i("s_cmp_eq_u32 vcc_lo, -1"))
                    def chk(gi=gi):
                        k(f"s_cbranch_scc0 AT{gi}_SPIN"); k.label(f"AT{gi}_CONT"); k("v_add_u32 v13, 1, v13")
                        k("s_cmp_eq_u32 vcc_hi, 0"); k(f"s_cbranch_scc1 AT{gi}_AHEAD"); k("s_setprio 2"); k.label(f"AT{gi}_AHEAD")
                        def tail(tag=f"AT{gi}"):
                            k.label(f"{tag}_SPIN"); k("s_sleep 1"); k("ds_read_b32 v14, v12"); k("s_waitcnt lgkmcnt(0)")
                            k("v_cmp_le_u32 vcc, v13, v14"); k("s_cmp_eq_u32 vcc_lo, -1"); k(f"s_cbranch_scc0 {tag}_SPIN"); k(f"s_branch {tag}_CONT")
                        tails.append(tail)
                    L.call(chk)
                    e(14); e(15)
                else:
                    for i in range(11, 16): e(i)
            else:
                if t == 0:
                    e(0, lambda: L.i("s_waitcnt vmcnt(0)")); e(1, lambda: L.ds("pw", "ds_write_b32 v11, v13"))
                else:
                    e(0); e(1)
                L.i(f"{SM} {vr(O[0],16)}, {vr(VF[t&1][1],4)}, {vr(Sp+8,8)}, {IDX}")
                e(2, lambda: L.ds(f"k{t&1}", f"ds_read_b128 {vr(KF[t&1],4)}, v6 offset:{t*1024}"))
                e(3, (lambda: L.i("s_cmp_ge_u32 s34, 14")) if t == 0 else None); e(4)
                e(5, lambda: L.wait(ds=f"k{(t+1)&1}"))
                L.i(f"{MF} {vr(Sp,16)}, {vr(KF[(t+1)&1],4)}, {vr(Q[0],4)}, {vr(C,16)}")
                if t == 0:
                    def dm(gi=gi):
                        k(f"s_cbranch_scc1 AT_NODMA{gi}"); k("buffer_load_dwordx4 v1, s[20:23], s30 offen sc1 lds"); k.label(f"AT_NODMA{gi}")
                    L.call(dm)
                    q += ["s_add_u32 s35, m0, 8192", "s_and_b32 m0, s35, 0xffff", "s_add_u32 s30, s30, 2048"]
                else:
                    q += ["s_add_u32 s34, s34, 1"]
                for i in range(6, 11): e(i)
                L.i(f"{SM} {vr(O[1],16)}, {vr(VF[t&1][0],4)}, {vr(Sa,8)}, {IDX}")
                if t == 1:
                    for x in ("v_mov_b32 v5, v7", "v_add_u32 v6, s37, v15", "v_and_b32 v7, s37, v10", "v_add_u32 v7, v7, v3"): L.i(x)
                    q += ["s_add_u32 s37, s37, 8192", "s_and_b32 s37, s37, 0xffff", "s_cmp_lt_u32 s34, 17"]
                for i in range(11, 16): e(i)
    L.emit(k)
    if OPT("WARM", 2) == 2: k.hops_end("AQ_WR")
    k("s_cbranch_scc1 AT_LOOP")
    if OPT("WARM", 2): k.hops_begin("WD")
    k(f"{SM} {vr(O[1],16)}, {vr(VF[1][1],4)}, {vr(S[1]+8,8)}, {IDX}")
    k.stamp()
    k("s_lshl_b32 s35, s39, 13")
    k("v_add_u32 v4, s35, v15")
    k("v_xor_b32 v5, 4096, v4")
    k("s_lshl_b32 s35, s39, 9"); k("s_add_u32 s35, s35, s29"); k("s_add_u32 s35, s35, 32768")
    k("v_lshl_add_u32 v6, v0, 2, s35"); k("v_xor_b32 v7, 4096, v6")
    k("s_lshl_b32 s35, s39, 2"); k(f"s_add_u32 s35, s35, {PAIR}"); k("v_mov_b32 v8, s35"); k("v_mov_b32 v9, 1")
    for ab in range(2):
        k(f"ds_write_b128 v4, {vr(O[ab],4)} offset:{ab*2048}"); k(f"ds_write_b128 v4, {vr(O[ab]+4,4)} offset:{ab*2048+1024}")
        k(f"ds_write_b32 v6, v{O[ab]+8} offset:{ab*256}")
    k("s_mov_b64 exec, 1")
    k("ds_add_rtn_u32 v9, v8, v9")
    k("s_mov_b64 exec, -1")
    for ab in range(2):
        k(f"ds_read_b128 {vr(S[ab],4)}, v5 offset:{ab*2048}"); k(f"ds_read_b128 {vr(S[ab]+4,4)}, v5 offset:{ab*2048+1024}")
        k(f"ds_read_b32 v{S[ab]+8}, v7 offset:{ab*256}")
    k("s_lshl_b32 s33, s26, 15"); k("s_lshl_b32 s34, s25, 10"); k("s_add_u32 s33, s33, s34"); k(f"s_add_u32 s33, s33, {WS_O}")
    k(f"v_mov_b32 v11, {lit(2.0**30)}"); k(f"v_mov_b32 v10, {lit(2.0**-30)}"); k(f"v_mov_b32 v14, 0x7f800000")
    k("s_waitcnt lgkmcnt(0)")
    k("v_readfirstlane_b32 s35, v9")
    k("s_cmp_eq_u32 s35, 0"); k("s_cbranch_scc1 AT_EXIT")
    for ab in range(2):
        for r in range(9): k(f"v_add_f32 v{O[ab]+r}, v{O[ab]+r}, v{S[ab]+r}")
    k(f"v_add_f32 v8, |v{O[0]}|, |v{O[1]}|")
    for ab in range(2):
        for i in range(1, 8): k(f"v_add_f32 v8, v8, |v{O[ab]+i}|")
    k(f"v_cmp_gt_f32 s[42:43], v14, v8")
    for ab in range(2):
        k(f"v_cmp_gt_f32 s[44:45], v11, v{O[ab]+8}"); k(f"v_cmp_lt_f32 s[46:47], v10, v{O[ab]+8}")
        k("s_and_b64 s[42:43], s[42:43], s[44:45]"); k("s_and_b64 s[42:43], s[42:43], s[46:47]")
    k("s_cmp_eq_u64 s[42:43], -1")
    k("s_cbranch_scc0 AT_SLOW")
    k.label("AT_FIN")
    k("s_add_u32 s34, s33, 32768")
    k(f"v_rcp_f32 v8, v{O[0]+8}"); k(f"v_rcp_f32 v9, v{O[1]+8}")
    for ab in range(2):
        for i in range(8): k(f"v_mul_f32 v{O[ab]+i}, v{8+ab}, v{O[ab]+i}")
        for i in range(4): k(f"v_cvt_pk_bf16_f32 v{P+4*ab+i}, v{O[ab]+2*i}, v{O[ab]+2*i+1}")
        k(f"buffer_store_dwordx4 {vr(P+4*ab,4)}, v1, s[20:23], s{33+ab} offen sc1")
    k("s_lshl_b32 s35, s26, 5"); k("s_add_u32 s35, s35, s25"); k(f"s_lshl_b32 s35, s35, {OFS}"); k(f"s_add_u32 s35, s35, {OFLAG}")
    k("v_mov_b32 v8, 0"); k(f"v_mov_b32 v9, {TAG}")
    k("s_mov_b64 exec, 1")
    k("s_waitcnt vmcnt(0)")
    k("buffer_store_dword v9, v8, s[20:23], s35 offen sc1")
    k("s_mov_b64 exec, -1")
    if OPT("WARM", 2): k.hops_end("AQ_WR")
    k.label("AT_EXIT")
    finish(k, 8)
    for t in tails: t()
    k.label("AT_SLOW")
    k(f"s_add_u32 s30, s27, {WS_K}"); k(f"s_add_u32 s31, s27, {WS_V}")
    for r in range(8): k(f"v_mov_b32 v{VF[0][0]+r}, 0x3f803f80")
    for ab in range(2):
        k("v_mov_b32 v8, 0xff800000"); k("s_mov_b32 s34, 0")
        k.label(f"AT_S1{ab}")
        k("s_add_u32 s36, s30, s34")
        k(f"buffer_load_dwordx4 {vr(KF[0],4)}, v1, s[20:23], s36 offen sc1")
        k("s_waitcnt vmcnt(0)")
        k(f"{MF} {vr(S[0],16)}, {vr(KF[0],4)}, {vr(Q[ab],4)}, 0")
        for i in range(0, 16, 2): k(f"v_max3_f32 v8, v8, v{S[0]+i}, v{S[0]+i+1}")
        k("s_add_u32 s34, s34, 1024"); k("s_cmp_lt_u32 s34, 65536"); k(f"s_cbranch_scc1 AT_S1{ab}")
        k("v_mov_b32 v9, v8"); k("v_permlane32_swap_b32 v8, v9"); k("v_max_f32 v8, v8, v9")
        for r in range(16): k(f"v_xor_b32 v{C+r}, 0x80000000, v8")
        for r in range(16): k(f"v_mov_b32 v{O[ab]+r}, 0")
        k("s_mov_b32 s34, 0")
        k.label(f"AT_S2{ab}")
        k("s_add_u32 s36, s30, s34"); k("s_add_u32 s35, s31, s34")
        k(f"buffer_load_dwordx4 {vr(KF[0],4)}, v1, s[20:23], s36 offen sc1")
        k("s_mov_b64 exec, s[40:41]")
        k(f"buffer_load_dwordx4 {vr(VF[0][0],4)}, v2, s[20:23], s35 offen sc1")
        k(f"buffer_load_dwordx4 {vr(VF[0][1],4)}, v2, s[20:23], s35 offen offset:512 sc1")
        k("s_mov_b64 exec, -1")
        k("s_waitcnt vmcnt(0)")
        k(f"{MF} {vr(S[0],16)}, {vr(KF[0],4)}, {vr(Q[ab],4)}, {vr(C,16)}")
        for i in range(16): k(f"v_exp_f32 v{S[0]+i}, v{S[0]+i}")
        k(f"{SM} {vr(O[ab],16)}, {vr(VF[0][0],4)}, {vr(S[0],8)}, {IDX}")
        k(f"{SM} {vr(O[ab],16)}, {vr(VF[0][1],4)}, {vr(S[0]+8,8)}, {IDX}")
        k("s_nop 15")
        k("s_add_u32 s34, s34, 1024"); k("s_cmp_lt_u32 s34, 65536"); k(f"s_cbranch_scc1 AT_S2{ab}")
    k("s_branch AT_FIN")

def gpoll(k, tag, saddr, sleep, vd="v4", va="v3", cnt="s28", mask=None):
    k(f"s_mov_b32 {cnt}, 0")
    if mask: k(f"s_mov_b64 exec, {mask}")
    k.label(f"{tag}_POLL")
    k(f"buffer_load_dword {vd}, {va}, s[20:23], {saddr} offen sc1")
    k("s_waitcnt vmcnt(0)")
    k(f"v_cmp_ne_u32 vcc, {TAG}, {vd}")
    k("s_cmp_eq_u64 vcc, 0")
    k(f"s_cbranch_scc1 {tag}_OUT")
    if OPT("NARROW", 1): k("s_mov_b64 exec, vcc")
    k(f"s_sleep {sleep}")
    k(f"s_add_u32 {cnt}, {cnt}, 1"); k(f"s_cmp_lt_u32 {cnt}, 0x100000")
    k(f"s_cbranch_scc1 {tag}_POLL")
    k.label(f"{tag}_OUT")
    k("s_mov_b64 exec, -1")
    k.label(f"{tag}_GO")

def gb(k, n):
    sel = [int(x) for x in os.environ.get("BST", "").split(",") if x]
    if n in sel: k.stamp()
    k("s_barrier")
    if n in sel: k.stamp()
    if n == 8 and sel:
        k.stamp_off = True

def gemm_part(k):
    WF = 16; XF = 32; ACC = 48; DV = 160
    GP = OPT("GPRIO"); GP2 = OPT("GPRIO2")
    tails = []
    PF = OPT("PF2", 1); NPF = OPT("NPF", 4)
    k("s_setprio 3")
    k("s_sub_u32 s25, s24, 8")
    srd(k, 16, 4, 2048 * 1024); srd(k, 20, 8, WS_SIZE)
    k("v_lshrrev_b32 v42, 3, v0"); k("v_lshlrev_b32 v15, 10, v42"); k("v_and_b32 v45, 7, v0"); k("v_lshl_add_u32 v15, v45, 4, v15")
    k("s_lshl_b32 s28, s2, 13"); k("s_lshl_b32 s29, s25, 8"); k("s_add_u32 s28, s28, s29")
    k("buffer_load_dwordx4 v[16:19], v15, s[16:19], s28 offen"); k("buffer_load_dwordx4 v[20:23], v15, s[16:19], s28 offen offset:128")
    k("v_mov_b32 v13, 0"); k(f"s_mov_b32 s28, {EPOCH}"); k("buffer_load_dword v46, v13, s[20:23], s28 offen sc1")
    k("s_mov_b32 s50, s4"); k("s_mov_b32 s51, s5")
    k("s_load_dwordx4 s[4:7], s[0:1], 32")
    k("s_load_dwordx2 s[48:49], s[0:1], 48")
    k("s_load_dwordx2 s[56:57], s[0:1], 16")
    k("s_load_dwordx2 s[58:59], s[0:1], 56")
    k(f"v_lshlrev_b32 v43, 5, v42"); k(f"v_add_u32 v43, {LNX}, v43"); k("s_lshl_b32 s28, s25, 3"); k("v_add_u32 v44, s28, v43")
    k("v_lshlrev_b32 v45, 9, v45"); k("v_lshl_add_u32 v45, v42, 4, v45")
    gb(k, 0)
    k("s_waitcnt vmcnt(1)")
    for r in range(8):
        k(f"v_lshlrev_b32 v{24+2*r}, 16, v{16+r}"); k(f"v_and_b32 v{25+2*r}, 0xffff0000, v{16+r}")
    k("v_add_f32 v40, v24, v25"); k("v_mul_f32 v41, v24, v24"); k("v_fmac_f32 v41, v25, v25")
    for r in range(2, 16): k(f"v_add_f32 v40, v40, v{24+r}"); k(f"v_fmac_f32 v41, v{24+r}, v{24+r}")
    for ctl in ("quad_perm:[1,0,3,2]", "quad_perm:[2,3,0,1]", "row_half_mirror"):
        k(f"v_add_f32_dpp v40, v40, v40 {ctl} row_mask:0xf bank_mask:0xf"); k(f"v_add_f32_dpp v41, v41, v41 {ctl} row_mask:0xf bank_mask:0xf")
    k("ds_write_b64 v44, v[40:41]"); k("s_waitcnt lgkmcnt(0)")
    gb(k, 1)
    k("ds_read_b128 v[16:19], v43"); k("ds_read_b128 v[20:23], v43 offset:16"); k("v_mov_b32 v44, 0xffff0000")
    k("s_lshr_b32 s28, s2, 2"); k("s_lshl_b32 s28, s28, 15"); k("s_and_b32 s29, s2, 3"); k("s_lshl_b32 s29, s29, 7"); k("s_add_u32 s28, s28, s29")
    k("s_lshl_b32 s29, s25, 13"); k("s_add_u32 s28, s28, s29"); k(f"s_add_u32 s40, s28, {WS_XN}"); k("s_add_u32 s41, s40, 4096")
    k("s_waitcnt lgkmcnt(0)")
    k("v_add_f32 v16, v16, v18"); k("v_add_f32 v17, v17, v19"); k("v_add_f32 v20, v20, v22"); k("v_add_f32 v21, v21, v23")
    k("v_add_f32 v40, v16, v20"); k("v_add_f32 v41, v17, v21")
    ln_scalars(k, "v40", "v41", "v44", "v42", "v43")
    k("v_mul_f32 v43, -v43, v42")
    gb(k, 2)
    for r in range(16): k(f"v_fma_f32 v{24+r}, v{24+r}, v42, v43")
    for r in range(8): k(f"v_cvt_pk_bf16_f32 v{16+r}, v{24+2*r}, v{25+2*r}")
    k("buffer_store_dwordx4 v[16:19], v45, s[20:23], s40 offen sc1"); k("buffer_store_dwordx4 v[20:23], v45, s[20:23], s41 offen sc1")
    gb(k, 3)
    k("v_lshlrev_b32 v1, 4, v0"); k("s_lshl_b32 s28, s24, 8"); k(f"s_add_u32 s28, s28, {PROG}"); k("v_lshl_add_u32 v11, v0, 2, s28")
    k("v_mov_b32 v14, 0x3f803f80")
    k("v_and_b32 v2, 44, v0"); k("v_cmp_eq_u32 vcc, 0, v2"); k("v_cndmask_b32 v14, 0, v14, vcc")
    k("ds_write_b32 v11, v13"); k("v_add_u32 v2, -1024, v11"); k("ds_write_b32 v2, v13"); k("v_add_u32 v2, -2048, v11"); k("ds_write_b32 v2, v13")
    k(f"v_lshlrev_b32 v2, 2, v0"); k(f"v_add_u32 v2, {PAIR}, v2"); k("ds_write_b32 v2, v13")
    k("v_add_u32 v2, -4096, v11"); k("ds_write_b32 v2, v14"); k("ds_write_b32 v2, v14 offset:1024")
    k("s_mov_b32 s60, 0x7fffffff")
    k("s_and_b32 s27, s2, 7"); k("s_lshr_b32 s62, s2, 5")
    k("s_lshl_b32 s52, s62, 1"); k("s_lshr_b32 s29, s27, 2"); k("s_add_u32 s52, s52, s29")
    k("s_and_b32 s26, s27, 3"); k("s_lshl_b32 s26, s26, 2"); k("s_bfe_u32 s29, s2, 0x20003"); k("s_add_u32 s26, s26, s29")
    k("s_lshl_b32 s30, s52, 2"); k("s_add_u32 s30, s30, s25")
    k("s_and_b32 s31, s25, 1")
    k("s_cmp_lt_u32 s25, 2"); k("s_cselect_b32 s10, s4, s6"); k("s_cselect_b32 s11, s5, s7")
    srd(k, 12, 10, 512 * 3584); srd(k, 16, 48, 1792 * 1024)
    k("s_waitcnt lgkmcnt(0)")
    gb(k, 4)
    k("s_lshr_b32 s42, s2, 4"); k(f"s_mul_i32 s42, s42, {FSTR}"); k("s_and_b32 s29, s2, 15"); k("s_lshl_b32 s29, s29, 2"); k("s_add_u32 s29, s29, s25"); k("s_lshl_b32 s29, s29, 7")
    k("s_add_u32 s42, s42, s29"); k(f"s_add_u32 s42, s42, {XFLAG}")
    k("s_mov_b32 s28, 4096")
    for i in range(7):
        k(f"v_add_u32 v2, {64*i}, v0")
        k("v_mul_u32_u24 v3, 4682, v2"); k("v_lshrrev_b32 v3, 16, v3")
        k(f"v_mul_u32_u24 v3, {3584 - 224}, v3"); k(f"v_add3_u32 v{DV+i}, v1, v3, {'0' if i < 4 else 's28'}")
    k("s_waitcnt vmcnt(0)")
    k(f"v_readfirstlane_b32 {TAG}, v46"); k(f"v_mov_b32 v2, {RELAY+4}")
    k(f"s_mul_i32 {TAG}, {TAG}, 0x9e3779b1"); k(f"s_add_u32 {TAG}, {TAG}, 0x7f4a7c15")
    k(f"v_mov_b32 v46, {TAG}"); k("ds_write_b32 v2, v46 offset:8")
    k("s_mov_b64 exec, 1"); k("buffer_store_dword v46, v13, s[20:23], s42 offen sc1"); k("s_mov_b64 exec, -1")
    gb(k, 5)
    if NPF:
        k("s_lshr_b32 s28, s2, 3"); k("s_lshl_b32 s28, s28, 1"); k("s_add_u32 s28, s28, s31"); k(f"s_mul_i32 s28, s28, {NPF*3584}")
        k("s_and_b32 s29, s27, 3"); k("s_mul_i32 s29, s29, 896"); k("s_add_u32 s28, s28, s29")
        if OPT("PFOFF"): k(f"s_add_u32 s28, s28, {128*3584}")
        for j in range(NPF):
            k("buffer_load_dwordx4 v[4:7], v1, s[12:15], s28 offen"); k("s_add_u32 s28, s28, 3584")
    k("s_mul_i32 s63, s31, 114688"); k("s_mul_i32 s33, s26, 224"); k("s_add_u32 s63, s63, s33")
    k("s_mul_i32 s33, s31, 7168"); k("s_lshr_b32 s34, s25, 1"); k(f"s_mul_i32 s34, s34, {UP_W3OFF}"); k("s_add_u32 s33, s33, s34"); k(f"s_add_u32 s33, s33, {GB}")
    k("s_lshl_b32 s64, s30, 15"); k(f"s_add_u32 s64, s64, {WS_XN}")
    k("s_mov_b32 s32, s63"); k("s_mov_b32 s35, s64"); k("s_mov_b32 s36, s33")
    for r in range(40): k(f"v_mov_b32 v{ACC+r}, 0")
    gb(k, 6)
    def dma():
        out = ["s_mov_b32 m0, s36", "s_nop 0"]
        for i in range(7):
            if i == 4: out += ["s_add_u32 m0, s36, 4096", "s_nop 0"]
            out.append(f"buffer_load_dwordx4 v{DV+i}, s[12:15], s32 offen offset:{(i&3)*1024} lds")
        return out
    for x in dma(): k(x)
    k("s_add_u32 s32, s63, 229376"); k(f"s_add_u32 s36, s33, {UP_SLOT}")
    k(f"s_mul_i32 s45, s52, {FSTR}"); k(f"s_add_u32 s45, s45, {XFLAG}"); k("s_lshl_b32 s28, s25, 11"); k("s_add_u32 s45, s45, s28"); k("v_and_b32 v3, 15, v0"); k("v_lshlrev_b32 v3, 7, v3")
    for r in range(40, 80): k(f"v_mov_b32 v{ACC+r}, 0")
    gb(k, 7)
    k("s_mov_b64 exec, 0xffff"); k("buffer_load_dword v24, v3, s[20:23], s45 offen sc1"); k("s_mov_b64 exec, -1")
    for x in dma(): k(x)
    k("s_waitcnt lgkmcnt(0)")
    gb(k, 8)
    k.stamp()
    k("s_setprio 0")
    for r in range(80, 112): k(f"v_mov_b32 v{ACC+r}, 0")
    k("s_lshr_b32 s61, s2, 5"); k("s_lshl_b32 s61, s61, 2"); k("s_add_u32 s61, s61, s25"); k(f"s_mul_i32 s61, s61, {56*1024}")
    k("s_and_b32 s28, s26, 7"); k("s_lshl_b32 s28, s28, 7"); k("s_add_u32 s61, s61, s28")
    k("v_mov_b32 v13, 1")
    k("s_waitcnt vmcnt(7)")
    k("ds_write_b32 v11, v13")
    k(f"v_cmp_eq_u32 vcc, {TAG}, v24"); k("s_and_b32 s43, vcc_lo, 0xffff"); k("s_cmp_eq_u32 s43, 0xffff"); k("s_cbranch_scc1 UX_GO")
    gpoll(k, "UX", "s45", 4, mask="0xffff")
    for s in range(4): k(f"buffer_load_dwordx4 {vr(XF+4*s,4)}, v1, s[20:23], s35 offen offset:{s*1024} sc1")
    NPX = OPT("NPX", 0)
    if NPX:
        k("s_and_b32 s28, s26, 3"); k("s_lshl_b32 s28, s28, 10"); k("s_add_u32 s28, s28, s64")
        for i in range(NPX):
            k("s_add_u32 s28, s28, 4096"); k("buffer_load_dwordx4 v[4:7], v1, s[20:23], s28 offen sc1")
    if PF: k("buffer_load_dwordx4 v[4:7], v15, s[16:19], s60 offen")
    k("v_lshrrev_b32 v8, 5, v0"); k("v_lshlrev_b32 v8, 3, v8"); k("v_bfe_u32 v3, v0, 2, 2"); k("v_add_u32 v8, v8, v3")
    k("v_mul_u32_u24 v8, 224, v8"); k("v_bfe_u32 v3, v0, 4, 1"); k(f"v_mul_u32_u24 v3, {UP_W3OFF}, v3"); k("v_add_u32 v8, v8, v3")
    k("v_and_b32 v3, 3, v0"); k("v_lshl_add_u32 v8, v3, 3, v8"); k(f"v_add_u32 v8, {GB}, v8")
    k("v_and_b32 v12, 3, v0"); k("v_lshlrev_b32 v12, 8, v12"); k("v_lshl_add_u32 v12, v0, 2, v12"); k(f"v_add_u32 v12, {PROG + 2048}, v12")
    k("ds_read_b32 v14, v12")
    k("v_mov_b32 v9, v8"); k(f"v_add_u32 v10, {UP_SLOT}, v8")
    k(f"s_mov_b32 s37, {2*UP_SLOT}"); k("s_mov_b32 s39, 1")
    k("s_add_u32 s35, s64, 4096"); k("s_mov_b32 s62, 2"); k(f"s_add_u32 s32, s63, {2*229376}"); k("s_sub_u32 s61, s61, 8192")
    k("s_waitcnt lgkmcnt(0)")
    tails.append(softcheck(k, "UB", "s39", "v14", "v12"))
    if OPT("GATE", 1):
        k("s_mov_b32 exec_lo, 0"); k("v_and_b32 v12, 3, v0"); k("v_lshlrev_b32 v12, 2, v12"); k(f"v_add_u32 v12, {RELAY+16+16}, v12"); k("s_mov_b32 exec_lo, -1")
    k("v_mov_b32 v13, 2")
    k(f"s_waitcnt vmcnt({PF+NPX})")
    k.stamp()
    def rd(m, areg):
        s, j = divmod(m, 7); o = s*3584 + j*32; d = WF + 4*(m & 3)
        return [f"ds_read_b64_tr_b16 {vr(d,2)}, {areg} offset:{o}", f"ds_read_b64_tr_b16 {vr(d+2,2)}, {areg} offset:{o+896}"]
    for m in range(4):
        for x in rd(m, "v9"): k(x)
    k.label("UP_LOOP")
    extra = []
    for m in range(28):
        s, j = divmod(m, 7)
        if j == 0: k(f"s_waitcnt vmcnt({(10 if s < 3 else 3) + PF})")
        cnt = 6
        if m in (17, 18, 19, 20): cnt = 7
        if m in (22, 23): cnt = 7
        if m == 24:
            k("s_waitcnt lgkmcnt(4)")
            k("s_add_u32 s39, s39, 1")
            k("s_setprio 3")
            tails.append(softcheck(k, "UP", "s39", "v14", "v12"))
            k("v_add_u32 v13, 1, v13")
            k(f"s_setprio {GP}")
            k("s_add_u32 s36, s33, s37")
            extra = dma()
        else:
            k(f"s_waitcnt lgkmcnt({cnt})")
        a = vr(ACC + 16*j, 16)
        k(f"{MF} {a}, {vr(WF+4*(m&3),4)}, {vr(XF+4*s,4)}, {a}")
        for x in (rd(m+4, "v9") if m < 24 else rd(m+4-28, "v10")): k(x)
        if m == 16:
            k(f"s_waitcnt vmcnt({3+PF})"); k("ds_write_b32 v11, v13")
        if m == 21: k("ds_read_b32 v14, v12")
        if m >= 24:
            for x in extra[[0,4,6,9,11][m-24]:[0,4,6,9,11][m-23]]: k(x)
        if j == 6: k(f"buffer_load_dwordx4 {vr(XF+4*s,4)}, v1, s[20:23], s35 offen offset:{s*1024} sc1")
    if PF:
        PD = OPT("PFD", 3)
        if PD:
            k(f"s_cmp_ge_u32 s39, {2+PD}"); k("s_cselect_b32 s28, 8192, 0"); k("s_add_u32 s61, s61, s28"); k(f"s_cmp_ge_u32 s39, {2+PD}"); k("s_cselect_b32 s28, s61, s60")
            k("buffer_load_dwordx4 v[4:7], v15, s[16:19], s28 offen")
        else:
            k("s_add_u32 s61, s61, 8192"); k("s_cmp_lt_u32 s39, 9"); k("s_cselect_b32 s61, s61, s60")
            k("buffer_load_dwordx4 v[4:7], v15, s[16:19], s61 offen")
    k("s_setprio 3")
    k("v_mov_b32 v9, v10"); k("v_add_u32 v10, s37, v8")
    k(f"s_setprio {GP}")
    k("s_lshl_b32 s35, s62, 12"); k("s_add_u32 s35, s35, s64")
    k("s_add_u32 s62, s62, 1"); k("s_and_b32 s62, s62, 7"); k("s_mul_i32 s32, s62, 229376"); k("s_add_u32 s32, s32, s63")
    k(f"s_cmp_lt_u32 s39, {0 if OPT('X_WOOB') else 7}"); k("s_cselect_b32 s32, s32, s60")
    k(f"s_cmp_lt_u32 s39, {0 if OPT('X_XOOB') else 8}"); k("s_cselect_b32 s35, s35, s60")
    k(f"s_add_u32 s37, s37, {UP_SLOT}"); k(f"s_cmp_eq_u32 s37, {3*UP_SLOT}"); k("s_cselect_b32 s37, 0, s37")
    if OPT("UPST") and Kern.DIAG:
        b = k.nsgpr0 + 2 * k.nst
        for i in range(7): k(f"s_mov_b32 s{b+2*i}, s{b+2*i+2}")
        k(f"s_memtime s[{b+14}:{b+15}]"); k("s_waitcnt lgkmcnt(0)")
        k.nst += 8; k.stamp_off = True
    k("s_cmp_lt_u32 s39, 9"); k("s_cbranch_scc1 UP_LOOP")
    k.stamp()
    k("s_setprio 3")
    k("s_mul_i32 s40, s30, 112"); k("s_lshr_b32 s41, s26, 2"); k("s_mul_i32 s41, s41, 28"); k("s_add_u32 s40, s40, s41"); k("s_and_b32 s41, s26, 3"); k("s_add_u32 s40, s40, s41")
    k("s_lshl_b32 s40, s40, 10"); k(f"s_add_u32 s40, s40, {WS_H}")
    k("s_waitcnt vmcnt(0) lgkmcnt(0)")
    k("ds_write_b32 v11, v13")
    k("ds_read_b32 v14, v12")
    ACD = 48; TF = 112; WD = [16, 24]; EP = 144
    k("s_lshl_b32 s53, s52, 1"); k("s_lshr_b32 s28, s26, 3"); k("s_add_u32 s53, s53, s28"); k("s_and_b32 s54, s26, 7")
    k("s_lshr_b32 s63, s25, 1"); k("s_and_b32 s64, s25, 1")
    srd(k, 12, 48, 1792 * 1024); srd(k, 16, 50, 2048 * 1024)
    k("v_lshrrev_b32 v2, 3, v0"); k("v_lshlrev_b32 v2, 10, v2")
    k("v_bfe_u32 v3, v0, 2, 1"); k("v_bfe_u32 v4, v0, 4, 1"); k("v_xor_b32 v3, v3, v4"); k("v_lshl_add_u32 v2, v3, 6, v2")
    k("v_and_b32 v3, 3, v0"); k("v_lshl_add_u32 v2, v3, 4, v2")
    k(f"v_add_u32 v15, {8192-1024}, v2")
    k("s_lshl_b32 s32, s25, 14"); k(f"s_add_u32 s32, s32, {GB}")
    k("v_lshrrev_b32 v8, 5, v0"); k("v_lshlrev_b32 v3, 2, v8"); k("v_bfe_u32 v4, v0, 2, 2"); k("v_add_u32 v3, v3, v4"); k("v_lshlrev_b32 v3, 7, v3")
    k("v_bfe_u32 v4, v0, 3, 1"); k("v_xor_b32 v4, s64, v4"); k("v_lshl_add_u32 v3, v4, 6, v3")
    k("v_bfe_u32 v4, v0, 4, 1"); k("v_lshl_add_u32 v3, v4, 5, v3"); k("v_and_b32 v4, 1, v0"); k("v_lshl_add_u32 v3, v4, 4, v3")
    k("v_bfe_u32 v4, v0, 1, 1"); k("v_lshl_add_u32 v3, v4, 3, v3")
    k("v_xor_b32 v4, 64, v3"); k("v_add_u32 v5, s32, v3"); k("v_add_u32 v6, s32, v4")
    k("v_add_u32 v9, 8192, v5"); k("v_add_u32 v10, 8192, v6")
    k(f"s_mul_i32 s33, s25, {28*16384}"); k("s_lshl_b32 s55, s54, 7"); k("s_add_u32 s33, s33, s55")
    k(f"s_mov_b32 s65, {7*16384}"); k(f"s_mov_b32 s66, {(-20*16384) & 0xffffffff}")
    k(f"s_mul_i32 s34, s53, {2*112*1024}"); k(f"s_mul_i32 s35, s25, {28*1024}"); k("s_add_u32 s34, s34, s35"); k(f"s_add_u32 s34, s34, {WS_H}")
    k(f"s_mul_i32 s28, s63, {112*1024}"); k(f"s_add_u32 s35, s34, {112*1024}"); k("s_sub_u32 s35, s35, s28"); k("s_add_u32 s34, s34, s28")
    k("s_lshr_b32 s38, s30, 1"); k("s_lshl_b32 s38, s38, 10"); k("s_lshr_b32 s28, s26, 2"); k("s_lshl_b32 s28, s28, 8"); k("s_add_u32 s38, s38, s28")
    k("s_and_b32 s28, s26, 3"); k("s_lshl_b32 s28, s28, 3"); k("s_add_u32 s38, s38, s28"); k("s_and_b32 s28, s30, 1"); k("s_lshl_b32 s28, s28, 2")
    k("s_add_u32 s38, s38, s28"); k(f"s_add_u32 s38, s38, {HFLAG}")
    k("s_lshl_b32 s45, s53, 10"); k("s_lshl_b32 s28, s25, 8"); k("s_add_u32 s45, s45, s28"); k(f"s_add_u32 s45, s45, {HFLAG}")
    k("v_and_b32 v3, 7, v0"); k("v_lshlrev_b32 v3, 2, v3"); k("v_mov_b32 v7, 0"); k(f"v_mov_b32 v167, {TAG}")
    k("s_waitcnt lgkmcnt(0)"); k("s_mov_b32 s39, 10")
    tails.append(softcheck(k, "U9", "s39", "v14", "v12"))
    def wdma(n, slot, base="s36"):
        return [f"s_add_u32 m0, {base}, {slot*2048}", "s_nop 0",
                "buffer_load_dwordx4 v2, s[12:15], s33 offen lds",
                "buffer_load_dwordx4 v15, s[12:15], s33 offen offset:1024 lds",
                f"s_add_u32 s33, s33, {'s66' if n % 4 == 3 else 's65'}"]
    k("s_mov_b32 s36, s32")
    NL2E = lit(-1.4426950408889634)
    def flag(off):
        k("s_mov_b64 exec, 1"); k(f"buffer_store_dword v167, v7, s[20:23], s38 offen offset:{off} sc1"); k("s_mov_b64 exec, -1")
    for j in range(7):
        a = ACC + 16*j; t = 16 + (j & 1)*12
        for r in range(8): k(f"v_mul_f32 v{t+r}, {NL2E}, v{a+r}")
        for r in range(8): k(f"v_exp_f32 v{t+r}, v{t+r}")
        for r in range(0, 8, 2): k(f"v_pk_mul_f32 {vr(a+r,2)}, {vr(a+r,2)}, {vr(a+8+r,2)}")
        for r in range(0, 8, 2): k(f"v_pk_add_f32 {vr(t+r,2)}, {vr(t+r,2)}, 1.0 op_sel_hi:[1,0]")
        for r in range(8): k(f"v_rcp_f32 v{t+r}, v{t+r}")
        for r in range(0, 8, 2): k(f"v_pk_mul_f32 {vr(a+r,2)}, {vr(a+r,2)}, {vr(t+r,2)}")
        for r in range(4): k(f"v_cvt_pk_bf16_f32 v{t+8+r}, v{a+2*r}, v{a+2*r+1}")
        if j == 6:
            k("s_waitcnt vmcnt(8)"); flag(0)
        k(f"buffer_store_dwordx4 {vr(t+8,4)}, v1, s[20:23], s40 offen sc1")
        k("s_add_u32 s40, s40, 4096")
        for x in wdma(j, j): k(x)
    k.stamp()
    k(f"buffer_load_dword v4, v3, s[20:23], s45 offen sc1")
    for r in range(64): k(f"v_mov_b32 v{ACD+r}, 0")
    k("v_and_b32 v152, 31, v0"); k("v_lshlrev_b32 v152, 10, v152"); k("v_lshl_add_u32 v152, v8, 4, v152")
    k("s_lshl_b32 s40, s53, 16"); k("s_lshl_b32 s41, s63, 15"); k("s_add_u32 s40, s40, s41"); k("s_add_u32 s40, s40, s55")
    k("s_lshl_b32 s41, s64, 6"); k("s_add_u32 s40, s40, s41")
    k("s_waitcnt vmcnt(3)"); flag(32)
    k("s_waitcnt vmcnt(1)")
    k(f"v_cmp_eq_u32 vcc, {TAG}, v4"); k("s_cmp_eq_u64 vcc, -1"); k("s_cbranch_scc1 DH_GO")
    gpoll(k, "DH", "s45", 4)
    k.stamp()
    def tload(s):
        return [f"buffer_load_dwordx4 {vr(TF+8*s,4)}, v1, s[20:23], s34 offen offset:{s*1024} sc1",
                f"buffer_load_dwordx4 {vr(TF+8*s+4,4)}, v1, s[20:23], s35 offen offset:{s*1024} sc1"]
    for s in range(4):
        for x in tload(s): k(x)
    def wreads(slot, buf, other):
        a0, a1 = ("v9", "v10") if other else ("v5", "v6")
        o = slot * 2048
        return [f"ds_read_b64_tr_b16 {vr(WD[buf],2)}, {a0} offset:{o}", f"ds_read_b64_tr_b16 {vr(WD[buf]+2,2)}, {a0} offset:{o+1024}",
                f"ds_read_b64_tr_b16 {vr(WD[buf]+4,2)}, {a1} offset:{o}", f"ds_read_b64_tr_b16 {vr(WD[buf]+6,2)}, {a1} offset:{o+1024}"]
    def mfl(buf, tf):
        out = []
        for a in range(2):
            for b in range(2):
                c = vr(ACD + (a*2+b)*16, 16)
                out.append(f"{MF} {c}, {vr(WD[buf]+4*b,4)}, {vr(tf+4*a,4)}, {c}")
        return out
    for x in wreads(0, 0, False): k(x)
    k("s_mov_b32 s42, 0"); k("s_mov_b32 s43, 0x7fffffff")
    k("s_add_u32 s44, s32, 8192"); k("s_add_u32 s45, s45, 32")
    k("s_lshl_b32 s67, s25, 17"); k("s_add_u32 s67, s67, s55"); k("s_and_b32 s57, s57, 0xffff")
    k(f"s_setprio {GP2}")
    k("s_waitcnt vmcnt(0)")
    for i in range(2): k(f"buffer_load_dwordx4 {vr(EP+4*i,4)}, v152, s[16:19], s40 offen offset:{32*i}")
    k.label("DN_LOOP")
    if OPT("HOLD", 0):
        k(f"s_cmp_lg_u32 s42, {OPT('HPOS', 12)}"); k("s_cbranch_scc1 DN_NOH")
        k(f"s_lshl_b32 s28, s25, 8"); k(f"s_add_u32 s28, s28, {PROG}"); k("v_lshrrev_b32 v153, 5, v0"); k("v_lshl_add_u32 v153, v153, 10, s28")
        k.label("DN_HOLD")
        k("s_sleep 4"); k("ds_read_b32 v154, v153"); k("s_waitcnt lgkmcnt(0)")
        k(f"v_cmp_le_u32 vcc, {OPT('HOLD', 0)}, v154"); k("s_cmp_eq_u64 vcc, -1" if OPT("HBOTH") else "s_cmp_lg_u64 vcc, 0"); k("s_cbranch_scc0 DN_HOLD")
        k.label("DN_NOH")
    if OPT("HBAR"):
        k(f"s_cmp_lg_u32 s42, {OPT('HBAR')}"); k("s_cbranch_scc1 DN_NOB"); k("s_barrier"); k.label("DN_NOB")
    k("s_cmp_lg_u32 s42, 12"); k("s_cbranch_scc1 DB_GO")
    gpoll(k, "DB", "s45", 4)
    k("s_add_u32 s34, s34, 4096"); k("s_add_u32 s35, s35, 4096")
    k("s_cmp_lt_u32 s42, 24"); k("s_cselect_b32 s34, s34, s43"); k("s_cselect_b32 s35, s35, s43")
    for s in range(4):
        k("s_waitcnt vmcnt(14) lgkmcnt(0)")
        for x in interleave(mfl(s & 1, TF + 8*s), wreads((s+1) & 3, (s+1) & 1, s == 3)): k(x)
        for x in tload(s): k(x)
        if s == 1:
            k("s_cmp_eq_u32 s42, 20")
            k("s_cselect_b32 s12, s56, s12"); k("s_cselect_b32 s13, s57, s13"); k(f"s_cselect_b32 s14, {512*1024}, s14")
            k("s_cselect_b32 s33, s67, s33"); k("s_cselect_b32 s65, 16384, s65"); k("s_cselect_b32 s66, 16384, s66")
        for x in (wdma(s+7, 3, "s44") if s == 0 else wdma(s+7, s-1)): k(x)
    k("s_setprio 3")
    k("v_swap_b32 v5, v9"); k("v_swap_b32 v6, v10")
    k(f"s_setprio {GP2}")
    k("s_mov_b32 s28, s36"); k("s_mov_b32 s36, s44"); k("s_mov_b32 s44, s28")
    k("s_add_u32 s42, s42, 4"); k("s_cmp_lt_u32 s42, 28"); k("s_cbranch_scc1 DN_LOOP")
    k.stamp()
    k("s_setprio 3")
    for x in wdma(0, 3, "s44"): k(x)
    srd(k, 16, 58, 2048 * 1024)
    for r in range(8):
        k(f"v_lshlrev_b32 v{32+2*r}, 16, v{EP+r}"); k(f"v_and_b32 v{33+2*r}, 0xffff0000, v{EP+r}")
    k("v_mov_b32 v160, v152")
    k(f"s_lshl_b32 s34, s53, 16"); k("s_lshl_b32 s35, s25, 13"); k("s_add_u32 s34, s34, s35"); k(f"s_add_u32 s34, s34, {WS_O}")
    k("s_lshl_b32 s28, s63, 15"); k("s_add_u32 s35, s34, 32768"); k("s_sub_u32 s35, s35, s28"); k("s_add_u32 s34, s34, s28")
    k("s_add_u32 s46, s34, 4096"); k("s_add_u32 s47, s35, 4096")
    k("s_lshl_b32 s45, s53, 3"); k("s_add_u32 s45, s45, s25"); k(f"s_lshl_b32 s45, s45, {3+OFS}"); k(f"s_add_u32 s45, s45, {OFLAG}"); k(f"v_lshlrev_b32 v3, {OFS-2}, v3")
    for r in range(16): k(f"v_add_f32 v{ACD+r}, v{ACD+r}, v{32+r}")
    k("v_add_u32 v161, s32, v1")
    for t in (1, 2, 3):
        k(f"s_xor_b32 s28, s25, {t}"); k("s_lshl_b32 s28, s28, 14"); k(f"s_add_u32 s28, s28, {GB + (t-1)*4096}"); k(f"v_add_u32 v{161+t}, s28, v1")
    k("v_add_u32 v13, 1, v13")
    OG = [[112, 120, 128, 136], [32, 40, 144, 152]]
    k("s_mov_b32 s44, 0x11"); k("s_mov_b32 s28, 0")
    k("s_waitcnt lgkmcnt(0)")
    if OPT("WBAR", 1): k("s_barrier")
    k.label("WO_POLL")
    if OPT("APOLL"):
        k("v_mov_b32 v4, 0"); k("s_mov_b64 exec, 0xff"); k("buffer_atomic_or v4, v3, s[20:23], s45 offen sc0 sc1"); k("s_mov_b64 exec, -1")
    else: k("buffer_load_dword v4, v3, s[20:23], s45 offen sc1")
    k("s_waitcnt vmcnt(0)")
    k(f"v_cmp_eq_u32 vcc, {TAG}, v4")
    k("s_add_u32 s28, s28, 1"); k("s_cmp_lt_u32 s28, 0x100000"); k("s_cselect_b32 s42, vcc_lo, -1")
    k("s_lshr_b32 s29, s42, 1"); k("s_and_b32 s42, s42, s29"); k("s_lshr_b32 s29, s42, 2"); k("s_and_b32 s42, s42, s29")
    k("s_and_b32 s42, s42, s44")
    k("s_cbranch_scc1 WO_GO")
    k(f"s_sleep {OPT('WSLEEP', 3)}"); k("s_branch WO_POLL")
    k.label("WO_GO")
    if OPT("WARM", 2) == 1: k.hops_begin("WB")
    k("s_andn2_b32 s44, s44, s42")
    for g in range(2):
        k(f"s_bitcmp1_b32 s42, {4*g}"); k(f"s_cbranch_scc0 WO_L{g}")
        sa, sb = ("s34", "s35") if g == 0 else ("s46", "s47")
        for h in range(4):
            k(f"buffer_load_dwordx4 {vr(OG[g][h],4)}, v1, s[20:23], {sa} offen offset:{h*1024} sc1")
            k(f"buffer_load_dwordx4 {vr(OG[g][h]+4,4)}, v1, s[20:23], {sb} offen offset:{h*1024} sc1")
        k.label(f"WO_L{g}")
    for g in range(2):
        k(f"s_bitcmp1_b32 s42, {4*g}"); k(f"s_cbranch_scc0 WO_C{g}")
        for x in wreads(0, 0, g == 1): k(x)
        if g == 0:
            k("s_bitcmp1_b32 s42, 4"); k("s_cbranch_scc1 WO_W8"); k("s_waitcnt vmcnt(0)"); k.label("WO_W8"); k("s_waitcnt vmcnt(8)")
        else: k("s_waitcnt vmcnt(0)")
        for h in range(4):
            k("s_waitcnt lgkmcnt(0)")
            for x in interleave(mfl(h & 1, OG[g][h]), wreads(h+1, (h+1) & 1, g == 1) if h < 3 else []): k(x)
        k.label(f"WO_C{g}")
    if OPT("WARM", 2) == 1: k.hops_end("AQ_WR"); k.hops_begin("WC")
    k("s_cmp_lg_u32 s44, 0"); k("s_cbranch_scc1 WO_POLL")
    k.stamp()
    k("s_nop 5")
    for t in (1, 2, 3):
        for q in range(4): k(f"ds_write_b128 v161, {vr(ACD + t*16 + 4*q, 4)} offset:{(t-1)*4096 + q*1024}")
    if OPT("WBAR", 1):
        k("s_waitcnt lgkmcnt(0)"); k("s_barrier")
    else:
        k("ds_write_b32 v11, v13")
        k("ds_read_b32 v14, v12"); k("s_waitcnt lgkmcnt(0)"); k("s_mov_b32 s39, 11")
        tails.append(softcheck(k, "DC", "s39", "v14", "v12"))
    k.stamp()
    for q in range(4):
        for t in (1, 2, 3): k(f"ds_read_b128 {vr(ACD + t*16 + 4*q, 4)}, v{161+t} offset:{q*1024}")
    for q in range(4):
        k(f"s_waitcnt lgkmcnt({9 - 3*q})")
        for r in range(4*q, 4*q+4): k(f"v_add_f32 v{ACD+16+r}, v{ACD+16+r}, v{ACD+32+r}"); k(f"v_add_f32 v{ACD+r}, v{ACD+r}, v{ACD+48+r}")
        for r in range(4*q, 4*q+4): k(f"v_add_f32 v{ACD+r}, v{ACD+r}, v{ACD+16+r}")
        for r in range(2*q, 2*q+2): k(f"v_cvt_pk_bf16_f32 v{16+r}, v{ACD+2*r}, v{ACD+2*r+1}")
        if q & 1: k(f"buffer_store_dwordx4 {vr(16+4*(q>>1),4)}, v160, s[16:19], s40 offen offset:{32*(q>>1)} {os.environ.get('OUTST', '')}")
    if OPT("WARM", 2) == 1: k.hops_end("AQ_WR")
    k("s_add_u32 s28, s2, s25"); k("s_cmp_lg_u32 s28, 0"); k("s_cbranch_scc1 G_NOEP")
    k(f"v_mov_b32 v2, 0"); k(f"v_mov_b32 v3, {TAG}"); k(f"s_mov_b32 s28, {EPOCH}")
    k("s_mov_b64 exec, 1"); k("buffer_store_dword v3, v2, s[20:23], s28 offen sc1"); k("s_mov_b64 exec, -1")
    k.label("G_NOEP")
    finish(k, 2)
    for t in tails: t()

def gen_mega():
    k = Kern(NAME, 256, 768, LDS_TOTAL, 168, 72)
    k("s_cmp_ge_u32 s2, 256"); k("s_cbranch_scc1 M_END")
    k.stamp(True); k.stamp()
    k("s_load_dwordx2 s[8:9], s[0:1], 72")
    k("s_load_dwordx4 s[4:7], s[0:1], 0")
    k("v_lshrrev_b32 v1, 6, v0"); k("v_and_b32 v0, 63, v0"); k("v_readfirstlane_b32 s24, v1")
    k("s_cmp_ge_u32 s24, 8"); k("s_cbranch_scc1 M_GEMM")
    qkv_part(k)
    attn_part(k)
    k.label("M_GEMM")
    if Kern.DIAG: k.nst = 2
    k("s_waitcnt lgkmcnt(0)")
    gemm_part(k)
    k.label("M_END")
    k("s_endpgm")
    return k
```

```python
from common import *
import os
OPT = lambda n, d=0: int(os.environ.get(n, d))
MF = "v_mfma_f32_32x32x16_bf16"
MF16 = "v_mfma_f32_16x16x32_bf16"
UP_SLOT = 28928
UP_W3OFF = 14464
GB = 65536
ONES = GB + 3 * UP_SLOT
PROG = ONES + 2048
PAIR = PROG + 3072
SC = PAIR + 256
LNX = SC + 4096
LDS_TOTAL = LNX + 256
assert ONES % 256 == 0 and LDS_TOTAL <= 163840 and ONES >= 131072
HFLAG = WS_FLAG
OFS = OPT("OFS", 2)
OFLAG = WS_FLAG + (32768 if OFS == 2 else 655360)
QFLAG = WS_FLAG + 131072
FSTR = 8192 + 256
XFLAG = WS_FLAG + 393216
RELAY = PAIR + 64
EPOCH = WS_FLAG + 65536 + 4096
TAG = "s70"
HS = 65536 + OPT("HPAD", 0)
QB = 24 * MB
if OPT("LAY") == 1:
    HS = 3 * 65536 + OPT("HPAD", 0); WS_Q = QB; WS_K = QB + 65536; WS_V = QB + 131072
elif OPT("HPAD") or OPT("RPAD"):
    WS_Q = QB; WS_K = QB + 32 * HS + OPT("RPAD"); WS_V = QB + 64 * HS + 2 * OPT("RPAD")
WS_SIZE = 32 * MB
NST = 14
NAME = "parallel_sum__softmax_full_mha__glu_gated_swiglu__prompt_kernel"

def load_tag(k):
    k(f"s_add_u32 s68, s8, {EPOCH}"); k("s_addc_u32 s69, s9, 0")
    k(f"s_load_dword {TAG}, s[68:69], 0"); k("s_waitcnt lgkmcnt(0)")
    k(f"s_mul_i32 {TAG}, {TAG}, 0x9e3779b1"); k(f"s_add_u32 {TAG}, {TAG}, 0x7f4a7c15")

def ln_scalars(k, s, q, mask, r, mb):
    k(f"v_mul_f32 {s}, {lit(1/512)}, {s}"); k(f"v_mul_f32 {q}, {lit(1/512)}, {q}")
    k(f"v_fma_f32 {q}, -{s}, {s}, {q}"); k(f"v_max_f32 {q}, 0, {q}")
    k(f"v_cvt_pk_bf16_f32 {s}, {s}, {q}")
    k(f"v_and_b32 {q}, {mask}, {s}"); k(f"v_lshlrev_b32 {mb}, 16, {s}")
    k(f"v_add_f32 {q}, {lit(1e-5)}, {q}")
    k(f"v_cvt_pk_bf16_f32 {q}, {q}, {q}"); k(f"v_lshlrev_b32 {q}, 16, {q}")
    k(f"v_sqrt_f32 {q}, {q}")
    k(f"v_cvt_pk_bf16_f32 {q}, {q}, {q}"); k(f"v_lshlrev_b32 {q}, 16, {q}")
    k(f"v_rcp_f32 {r}, {q}")

def qkv_part(k):
    k("s_and_b32 s27, s2, 7"); k("s_lshr_b32 s28, s2, 3")
    k("s_lshr_b32 s25, s27, 1"); k("s_lshl_b32 s25, s25, 3"); k("s_lshr_b32 s29, s28, 2"); k("s_add_u32 s25, s25, s29")
    k("s_and_b32 s26, s27, 1"); k("s_lshl_b32 s26, s26, 2"); k("s_and_b32 s29, s28, 3"); k("s_add_u32 s26, s26, s29")
    k("s_add_u32 s40, s25, s26"); k("s_and_b32 s40, s40, 7")
    if OPT("ROTM", 11) == 1: k("s_lshr_b32 s40, s25, 1"); k("s_add_u32 s40, s40, s26"); k("s_and_b32 s40, s40, 7")
    if OPT("ROTM") == 2: k("s_lshr_b32 s40, s25, 2"); k("s_add_u32 s40, s40, s26"); k("s_and_b32 s40, s40, 7")
    if OPT("ROTM") == 3: k("s_mov_b32 s40, s26")
    if OPT("ROTM", 11) >= 8:
        rm = OPT("ROTM", 11)
        if rm == 8: k("s_mov_b32 s40, 0")
        if rm == 9: k("s_and_b32 s40, s26, 1"); k("s_lshl_b32 s40, s40, 2")
        if rm == 10: k("s_and_b32 s40, s25, 1"); k("s_lshl_b32 s40, s40, 2")
        if rm == 11: k("s_lshr_b32 s40, s27, 0")
    elif OPT("ROTM", 11) >= 4:
        k("s_and_b32 s40, s26, 3"); k("s_lshl_b32 s40, s40, 1"); k("s_lshr_b32 s29, s26, 2"); k("s_add_u32 s40, s40, s29")
        k(f"s_and_b32 s29, s25, {(7, 6, 4, 0)[OPT('ROTM', 7) - 4]}"); k("s_add_u32 s40, s40, s29"); k("s_and_b32 s40, s40, 7")
    k("s_bfe_u32 s56, s24, 0x10001"); k("s_and_b32 s59, s24, 1")
    LD_FIRST = OPT("LDFIRST", 1)
    k("s_cmp_ge_u32 s24, 4" if LD_FIRST else "s_cmp_lt_u32 s24, 4"); k("s_cbranch_scc1 K1_COMP")
    k("s_and_b32 s57, s24, 3")
    k("v_lshrrev_b32 v40, 3, v0"); k("v_lshlrev_b32 v44, 10, v40")
    k("v_lshrrev_b32 v41, 4, v0"); k("v_and_b32 v42, 7, v0")
    k("v_xor_b32 v43, v41, v42"); k("v_lshl_add_u32 v1, v43, 4, v44")
    k("v_xor_b32 v43, 4, v43"); k("v_lshl_add_u32 v2, v43, 4, v44"); k(f"v_add_u32 v2, {8192-1024}, v2")
    k("v_mul_u32_u24 v40, 3072, v40"); k("v_and_b32 v41, 1, v41"); k("v_lshlrev_b32 v41, 2, v41"); k("v_xor_b32 v41, v41, v42"); k("v_lshl_add_u32 v3, v41, 4, v40")
    k("s_lshl_b32 s31, s25, 16"); k("s_lshl_b32 s33, s57, 14"); k("s_add_u32 s31, s31, s33")
    k("s_lshl_b32 s32, s57, 11")
    k("s_mul_i32 s35, s57, 49152"); k("s_lshl_b32 s33, s26, 7"); k("s_add_u32 s35, s35, s33")
    k("s_mul_i32 s36, s57, 6144"); k("s_add_u32 s36, s36, 8192")
    k("s_mov_b32 s42, 0"); k("s_mov_b32 s43, 0x10000"); k("s_mov_b32 s41, s40")
    k("s_waitcnt lgkmcnt(0)")
    srd(k, 12, 4, 2048 * 1024); srd(k, 16, 6, 512 * 3072)
    def issue():
        o = ["s_lshl_b32 s33, s41, 7", "s_add_u32 m0, s43, s32", "s_add_u32 s33, s33, s31",
             "buffer_load_dwordx4 v1, s[12:15], s33 offen lds",
             "buffer_load_dwordx4 v2, s[12:15], s33 offen offset:1024 lds",
             "s_mul_i32 s33, s41, 196608", "s_add_u32 m0, s43, s36", "s_add_u32 s33, s33, s35"]
        o += [f"buffer_load_dwordx4 v3, s[16:19], s33 offen offset:{blk*1024} lds" for blk in range(3)]
        o += ["s_add_u32 m0, m0, 3072", "s_add_u32 s33, s33, 24576"]
        o += [f"buffer_load_dwordx4 v3, s[16:19], s33 offen offset:{blk*1024} lds" for blk in range(3)]
        o += ["s_add_u32 s41, s41, 1", "s_and_b32 s41, s41, 7", "s_add_u32 s43, s43, 32768", "s_and_b32 s43, s43, 0x1ffff"]
        return o
    D0 = 3 if OPT("DEEP", 2) == 2 else 2
    k.label("K1_LP")
    for x in issue(): k(x)
    k("s_add_u32 s42, s42, 1"); k(f"s_cmp_lt_u32 s42, {D0}"); k("s_cbranch_scc1 K1_LP")
    k("v_and_b32 v48, 31, v0"); k("v_lshrrev_b32 v49, 5, v0"); k("v_bfe_u32 v50, v0, 1, 3")
    k("s_lshl_b32 s33, s56, 12"); k("v_lshl_add_u32 v51, v48, 7, s33")
    k("s_lshl_b32 s33, s59, 2"); k("v_or_b32 v52, s33, v49"); k("v_xor_b32 v52, v52, v50"); k("v_lshl_add_u32 v4, v52, 4, v51"); k("v_xor_b32 v5, 32, v4")
    k("v_add_u32 v8, 0x10000, v4"); k("v_add_u32 v9, 0x10000, v5"); k("v_mov_b32 v13, 0xffff0000")
    for r in range(54, 62): k(f"v_mov_b32 v{r}, 0")
    srd(k, 20, 8, WS_SIZE)
    k("s_mov_b32 s42, 0"); k("s_mov_b32 s44, 0x10000")
    k.stamp()
    KEEP = False
    if KEEP: k("s_sub_u32 s45, s26, s40"); k("s_and_b32 s45, s45, 7")
    def keep():
        if KEEP:
            l = k.uid("KP"); k("s_cmp_lg_u32 s42, s45"); k(f"s_cbranch_scc1 {l}")
            for r in range(16): k(f"v_mov_b32 v{64+r}, v{24+r}")
            k.label(l)
    def stats():
        o = []
        for r in range(8):
            o += [f"v_lshlrev_b32 v{24+2*r}, 16, v{16+r}", f"v_and_b32 v{25+2*r}, v13, v{16+r}"]
        for r in range(16):
            o += [f"v_add_f32 v{54+(r&3)}, v{54+(r&3)}, v{24+r}", f"v_fmac_f32 v{58+(r&3)}, v{24+r}, v{24+r}"]
        return o
    head = ["s_barrier", "ds_read_b128 v[16:19], v8", "ds_read_b128 v[20:23], v9",
            "s_add_u32 s44, s44, 32768", "s_and_b32 s44, s44, 0x1ffff", "v_add_u32 v8, s44, v4", "v_add_u32 v9, s44, v5"]
    DEEP = OPT("DEEP", 2)
    if DEEP == 1:
        k("s_waitcnt vmcnt(8)")
        for x in head: k(x)
        iss = issue()
        for x in iss[:5]: k(x)
        k("s_waitcnt lgkmcnt(0)")
        for x in interleave(iss[5:] + issue(), stats()): k(x)
        keep()
        k("s_mov_b32 s42, 1")
    k.label("K1_LA")
    k(f"s_waitcnt vmcnt({16 if DEEP else 8})")
    for x in head: k(x)
    iss = issue()
    for x in iss[:5]: k(x)
    k("s_waitcnt lgkmcnt(0)")
    for x in interleave(iss[5:], stats()): k(x)
    keep()
    k("s_add_u32 s42, s42, 1"); k(f"s_cmp_lt_u32 s42, {5 if DEEP else 6}"); k("s_cbranch_scc1 K1_LA")
    k(f"s_waitcnt vmcnt({16 if DEEP else 8})")
    k.label("K1_LB")
    for x in head: k(x)
    k("s_waitcnt lgkmcnt(0)")
    for x in stats(): k(x)
    keep()
    k("s_add_u32 s42, s42, 1")
    if DEEP:
        k("s_waitcnt vmcnt(8)"); k("s_cmp_lt_u32 s42, 7"); k("s_cbranch_scc1 K1_LB")
    k("s_waitcnt vmcnt(0)"); k("s_cmp_lt_u32 s42, 8"); k("s_cbranch_scc1 K1_LB")
    k.stamp()
    k("v_add_f32 v54, v54, v55"); k("v_add_f32 v56, v56, v57"); k("v_add_f32 v58, v58, v59"); k("v_add_f32 v60, v60, v61")
    k("v_add_f32 v54, v54, v56"); k("v_add_f32 v58, v58, v60"); k("v_mov_b32 v55, v54"); k("v_mov_b32 v59, v58")
    k("s_lshl_b32 s33, s56, 9"); k(f"s_add_u32 s33, s33, {SC+2048}"); k("v_lshl_add_u32 v6, v48, 4, s33")
    k("v_permlane32_swap_b32 v54, v55"); k("v_permlane32_swap_b32 v58, v59")
    k("s_lshl_b32 s33, s59, 3"); k("v_add_u32 v7, s33, v6")
    k("v_add_f32 v54, v54, v55"); k("v_add_f32 v55, v58, v59")
    k("ds_write_b64 v7, v[54:55]")
    k("s_waitcnt lgkmcnt(0)"); k("s_barrier")
    k("s_mov_b32 s44, 0x7fffffff")
    k("s_branch AT_ENTRY")
    if Kern.DIAG: k.nst = 2
    FS = [16, 32, 48, 64]
    ACC = 80; CS = 128; SEL = 140
    k.label("K1_COMP")
    k("v_and_b32 v144, 31, v0"); k("v_lshrrev_b32 v145, 5, v0"); k("v_bfe_u32 v146, v0, 1, 3")
    k("s_lshl_b32 s33, s56, 12"); k("v_lshl_add_u32 v147, v144, 7, s33")
    k("s_lshl_b32 s33, s56, 2"); k("v_or_b32 v148, s33, v145"); k("v_xor_b32 v148, v148, v146"); k("v_lshl_add_u32 v4, v148, 4, v147")
    for j in (1, 2, 3): k(f"v_xor_b32 v{4+j}, {32*j}, v4")
    k("v_mul_u32_u24 v147, 3072, v145"); k("v_bfe_u32 v148, v0, 2, 2"); k("v_lshl_add_u32 v147, v148, 7, v147")
    k("v_bfe_u32 v148, v0, 3, 1"); k("v_xor_b32 v148, s59, v148"); k("v_lshl_add_u32 v147, v148, 6, v147")
    k("v_bfe_u32 v149, v0, 4, 1"); k("v_lshl_add_u32 v147, v149, 5, v147"); k("v_and_b32 v148, 3, v0"); k("v_lshl_add_u32 v147, v148, 3, v147")
    k("s_mul_i32 s33, s56, 12288"); k("s_add_u32 s34, s33, 8192"); k("v_add_u32 v8, s34, v147")
    k(f"s_sub_u32 s34, {8192+12288}, s33"); k("v_add_u32 v9, s34, v147")
    k("v_bfe_u32 v147, v0, 2, 1"); k("v_xor_b32 v147, v147, v149"); k("v_or_b32 v147, v147, v148")
    k("v_cmp_eq_u32 vcc, 0, v147"); k("v_mov_b32 v147, 0x3f803f80")
    k(f"v_cndmask_b32 v{SEL}, 0, v147, vcc")
    for r in (1, 2, 3): k(f"v_mov_b32 v{SEL+r}, v{SEL}")
    for r in range(FS[2], CS + 12): k(f"v_mov_b32 v{r}, 0")
    k("s_lshl_b32 s30, s25, 1"); k("s_add_u32 s30, s30, s56")
    k("s_lshl_b32 s33, s26, 1"); k("s_add_u32 s33, s33, s59"); k(f"s_mul_i32 s33, s33, {2*HS}"); k("s_lshl_b32 s34, s30, 10"); k("s_add_u32 s33, s33, s34")
    k(f"s_add_u32 s34, s33, {WS_K}"); k(f"s_add_u32 s35, s33, {WS_V}"); k(f"s_add_u32 s33, s33, {WS_Q}"); k(f"s_add_u32 s36, s33, {HS}"); k(f"s_add_u32 s37, s34, {HS}")
    k("v_lshlrev_b32 v15, 4, v0")
    k("v_bfe_u32 v150, v0, 2, 1"); k("v_bfe_u32 v151, v0, 3, 1"); k("v_xor_b32 v150, v150, v151"); k("v_mul_u32_u24 v150, 192, v150"); k("v_xor_b32 v150, v150, v15")
    k("s_lshl_b32 s38, s56, 9"); k(f"s_add_u32 s38, s38, {SC+2048}"); k("v_lshl_add_u32 v1, v144, 4, s38")
    k("s_lshl_b32 s38, s59, 10"); k(f"s_add_u32 s38, s38, {SC}"); k("v_lshl_add_u32 v2, v144, 5, s38")
    k("s_lshl_b32 s38, s56, 4"); k("v_add_u32 v10, s38, v2"); k("v_xor_b32 v2, 16, v10")
    k("s_and_b32 s38, s24, 3"); k("s_lshl_b32 s38, s38, 7"); k(f"s_add_u32 s38, s38, {SC+3072}")
    k("v_lshl_add_u32 v11, v144, 2, s38"); k("v_lshl_add_u32 v14, v145, 4, s38")
    k(f"v_mul_u32_u24 v3, {HS}, v149"); k("v_lshl_add_u32 v3, v145, 8, v3"); k("v_and_b32 v148, 15, v0"); k("v_lshl_add_u32 v3, v148, 4, v3")
    k("v_mov_b32 v13, 0xffff0000")
    k("s_mov_b32 s42, 0")
    k("s_waitcnt lgkmcnt(0)")
    srd(k, 20, 8, WS_SIZE)
    if OPT("TOUCH", 0):
        k("v_mov_b32 v150, 0"); k(f"s_mov_b32 s38, {EPOCH + 256}"); k(f"s_add_u32 s39, s33, {WS_XN - WS_Q}")
        k("s_mov_b64 exec, 1")
        for sg in ("s33", "s34", "s35", "s38"): k(f"buffer_load_dword v151, v150, s[20:23], {sg} offen sc1")
        k("s_mov_b64 exec, -1")
    QG = OPT("QWARM", 0)
    if QG:
        k("s_mov_b64 exec, 0")
        for w in range(4):
            k(f"s_cmp_eq_u32 s24, {4+w}"); k(f"s_cbranch_scc1 HOP_QE_{w*QG}")
        k.label("QE_WR"); k("s_mov_b64 exec, -1")
    k.stamp()
    def reads(j, off):
        f = FS[j]; w = "v8" if j < 2 else "v9"; o = off + (j & 1)*6144
        out = [f"ds_read_b128 {vr(f,4)}, v{4+j} offset:{off}"]
        for blk in range(3):
            out += [f"ds_read_b64_tr_b16 {vr(f+4+4*blk,2)}, {w} offset:{o+blk*1024}", f"ds_read_b64_tr_b16 {vr(f+6+4*blk,2)}, {w} offset:{o+blk*1024+512}"]
        return out
    def mfs(j):
        f = FS[j]; out = []
        for blk in range(3):
            a = vr(ACC + blk*16, 16); w = vr(f+4+4*blk, 4); x = vr(f, 4)
            out.append(f"{MF} {a}, {w}, {x}, {a}" if blk < 2 else f"{MF} {a}, {x}, {w}, {a}")
            if j < 2: out.append(f"{MF16} {vr(CS+4*blk,4)}, {vr(SEL,4)}, {w}, {vr(CS+4*blk,4)}")
        return out
    for i in range(6): k(f"v_xor_b32 v{4+i}, 0x10000, v{4+i}")
    k.label("K1_CL")
    for p in range(2):
        k("s_barrier")
        for j in range(4):
            if j >= 2: k("s_waitcnt lgkmcnt(7)")
            for x in interleave(mfs((j + 2) & 3), reads(j, p*32768)): k(x)
        if p == 1:
            for i in range(6): k(f"v_xor_b32 v{4+i}, 0x10000, v{4+i}")
            k("s_add_u32 s42, s42, 1"); k("s_cmp_lt_u32 s42, 4")
        k("s_waitcnt lgkmcnt(0)")
    k("s_cbranch_scc1 K1_CL")
    k.stamp()
    if QG: k.hops_begin("QE", (QG, "QE_WR"))
    for x in mfs(2): k(x)
    k(f"v_mov_b32 v{CS+1}, v{CS+4}"); k(f"v_mov_b32 v{CS+2}, v{CS+8}")
    k(f"ds_write_b128 v10, {vr(CS,4)}")
    for x in mfs(3): k(x)
    k("s_waitcnt lgkmcnt(0)"); k("s_barrier")
    k("ds_read_b128 v[16:19], v1"); k("ds_read_b128 v[20:23], v2")
    k("s_waitcnt lgkmcnt(1)")
    k("v_add_f32 v16, v16, v18"); k("v_add_f32 v17, v17, v19")
    ln_scalars(k, "v16", "v17", "v13", "v12", "v18")
    k("ds_write_b32 v11, v12")
    for q in range(4): k(f"ds_read_b128 {vr(48+4*q,4)}, v14 offset:{q*32}")
    k("v_cvt_pk_bf16_f32 v24, -v18, -v18"); k("v_lshrrev_b32 v25, 16, v24"); k("v_mov_b32 v26, 0"); k("v_mov_b32 v27, 0")
    k("s_mov_b32 exec_lo, 0"); k("v_mov_b32 v24, 0"); k("v_mov_b32 v25, 0"); k("s_mov_b32 exec_lo, -1")
    for b in range(3):
        c = 28 + 4*b
        k(f"v_add_f32 v{c+2}, v{CS+b}, v{20+b}")
        k(f"v_and_b32 v{c+3}, v13, v{c+2}"); k(f"v_sub_f32 v{c+2}, v{c+2}, v{c+3}")
        k(f"v_and_b32 v{c+1}, v13, v{c+2}"); k(f"v_sub_f32 v{c+2}, v{c+2}, v{c+1}")
        k(f"v_lshrrev_b32 v{c+3}, 16, v{c+3}"); k(f"v_or_b32 v{c}, v{c+3}, v{c+1}")
        k(f"v_lshrrev_b32 v{c+1}, 16, v{c+2}"); k(f"v_mov_b32 v{c+2}, 0"); k(f"v_mov_b32 v{c+3}, 0")
    for blk in (1, 2, 0):
        a = vr(ACC + blk*16, 16); c = vr(28+4*blk, 4)
        k(f"{MF} {a}, {c}, v[24:27], {a}" if blk < 2 else f"{MF} {a}, v[24:27], {c}, {a}")
    k(f"v_mul_f32 v10, {lit(QSCALE)}, v12")
    k("s_waitcnt lgkmcnt(0)")
    so = {0: ("s33", "s36"), 1: ("s34", "s37")}
    for blk in (1, 2, 0):
        a = ACC + blk*16
        for h in range(2):
            for r in range(8*h, 8*h+8):
                k(f"v_mul_f32 v{a+r}, {('v10', 'v12', 'v%d' % (48+r))[blk]}, v{a+r}")
            d = 16 + (blk*2+h)*4 if blk < 2 else 64 + 4*h
            if blk == 0: d = 72 + 4*h
            if blk == 1: d = 40 + 4*h
            for r in range(4): k(f"v_cvt_pk_bf16_f32 v{d+r}, v{a+8*h+2*r}, v{a+8*h+2*r+1}")
            if blk < 2: k(f"buffer_store_dwordx4 {vr(d,4)}, {('v15', 'v150')[blk]}, s[20:23], {so[blk][h]} offen sc1")
            else: k(f"buffer_store_dwordx4 {vr(d,4)}, v3, s[20:23], s35 offen offset:{512*h} sc1")
    k("s_lshl_b32 s44, s26, 1"); k("s_add_u32 s44, s44, s59"); k(f"s_mul_i32 s44, s44, {FSTR}"); k("s_lshl_b32 s39, s30, 7"); k("s_add_u32 s44, s44, s39"); k(f"s_add_u32 s44, s44, {QFLAG}")

def softcheck(k, tag, sval, vdst, vaddr):
    k(f"v_cmp_le_u32 vcc, {sval}, {vdst}")
    k("s_cmp_eq_u64 vcc, -1")
    k(f"s_cbranch_scc0 {tag}_SPIN")
    k.label(f"{tag}_CONT")
    def tail():
        k.label(f"{tag}_SPIN")
        k("s_sleep 1")
        k(f"ds_read_b32 {vdst}, {vaddr}")
        k("s_waitcnt lgkmcnt(0)")
        k(f"v_cmp_le_u32 vcc, {sval}, {vdst}")
        k("s_cmp_eq_u64 vcc, -1")
        k(f"s_cbranch_scc0 {tag}_SPIN")
        k(f"s_branch {tag}_CONT")
    return tail

def finish(k, vtmp):
    if Kern.DIAG:
        k("s_waitcnt vmcnt(0)")
        while k.nst < NST - 1: k.stamp(force=True)
        k.stamp(True)
        k.dump_stamps(1, 24, vtmp, 8)
    k("s_endpgm")

def attn_part(k):
    S = [16, 32]; O = [48, 64]; C = 80; P = 96; Q = [104, 108]
    KF = [112, 116]; VF = [[120, 124], [128, 132]]; K0 = 136; IDX = "v144"
    NG = OPT("AT_UNROLL", 2)
    tails = []
    k.label("AT_ENTRY")
    k.stamp()
    k(f"v_mov_b32 v150, {RELAY+12}"); k("ds_read_b32 v143, v150")
    if OPT("GOEARLY"):
        k("s_mov_b64 exec, 1"); k(f"v_mov_b32 v150, {RELAY+8}"); k("v_mov_b32 v151, 1"); k("ds_add_u32 v150, v151"); k("s_mov_b64 exec, -1")
    k("s_nop 1")
    k("v_lshlrev_b32 v1, 4, v0"); k("s_lshl_b32 s28, s24, 8"); k(f"s_add_u32 s28, s28, {PROG}"); k("v_lshl_add_u32 v11, v0, 2, s28")
    k("s_and_b32 s25, s2, 7"); k("s_lshl_b32 s25, s25, 2"); k("s_bfe_u32 s26, s2, 0x20003"); k("s_add_u32 s25, s25, s26")
    k("s_lshr_b32 s38, s24, 2"); k("s_and_b32 s39, s24, 3")
    k("s_lshr_b32 s26, s2, 5"); k("s_lshl_b32 s26, s26, 3"); k("s_lshl_b32 s28, s39, 1"); k("s_add_u32 s26, s26, s28")
    k(f"s_mul_i32 s27, s25, {HS}")
    k("s_lshr_b32 s28, s39, 1"); k(f"s_mul_i32 s28, s28, {WS_V - WS_K}"); k("s_add_u32 s30, s27, s28"); k(f"s_add_u32 s30, s30, {WS_K}")
    k("s_lshl_b32 s28, s38, 15"); k("s_add_u32 s30, s30, s28"); k("s_and_b32 s28, s39, 1"); k("s_lshl_b32 s28, s28, 10"); k("s_add_u32 s30, s30, s28")
    k("s_lshl_b32 s28, s24, 10")
    k("s_lshl_b32 s32, s26, 10"); k("s_add_u32 s32, s32, s27"); k(f"s_add_u32 s32, s32, {WS_Q}")
    k(f"s_add_u32 s33, s27, {WS_K}")
    k("s_mov_b32 m0, s28")
    k("v_lshrrev_b32 v2, 5, v0"); k("v_lshlrev_b32 v2, 8, v2"); k("v_and_b32 v3, 15, v0"); k("v_lshl_add_u32 v2, v3, 4, v2")
    k("s_lshl_b32 s29, s38, 12")
    k("v_add_u32 v15, s29, v1")
    k("v_bfe_u32 v10, v0, 4, 1"); k("v_add_u32 v10, -1, v10")
    k(f"s_add_u32 s31, s29, {2048 - ONES + (1<<32)}")
    k("v_and_b32 v3, s31, v10"); k(f"v_add_u32 v3, {ONES}, v3"); k("v_add_u32 v3, v3, v2")
    k("v_and_b32 v12, 3, v0"); k("v_lshlrev_b32 v12, 8, v12"); k("v_lshl_add_u32 v12, v0, 2, v12")
    k(f"s_lshl_b32 s31, s38, 10"); k(f"s_add_u32 s31, s31, {PROG}"); k("v_add_u32 v12, s31, v12")
    k("s_xor_b32 s31, s24, 4"); k("s_lshl_b32 s31, s31, 8"); k(f"s_add_u32 s31, s31, {PROG - 128}")
    k("s_mov_b32 exec_lo, 0"); k("v_lshl_add_u32 v12, v0, 2, s31"); k("s_mov_b32 exec_lo, -1")
    k("s_mov_b32 s40, 0x0000ffff"); k("s_mov_b32 s41, 0x0000ffff")
    for r in range(4): k(f"v_mov_b32 v{VF[1][1]+r}, 0")
    for r in range(32): k(f"v_mov_b32 v{O[0]+r}, 0")
    k(f"v_mov_b32 {IDX}, 0xdddddddd")
    k("v_mov_b32 v5, v3"); k("v_add_u32 v6, 8192, v15"); k("v_and_b32 v7, 8192, v10"); k("v_add_u32 v7, v7, v3")
    k("v_lshrrev_b32 v13, 5, v0"); k("v_add_u32 v13, 1, v13")
    if OPT("QWARM", 0): k.hops_end("QE_WR")
    k("v_mov_b32 v142, 0"); k("s_waitcnt lgkmcnt(0)"); k(f"v_readfirstlane_b32 {TAG}, v143")
    k("s_mov_b64 exec, 1")
    k("s_waitcnt vmcnt(0)")
    k("buffer_store_dword v143, v142, s[20:23], s44 offen sc1")
    k("s_lshl_b32 s28, s24, 2"); k(f"s_add_u32 s28, s28, {RELAY+16}"); k("v_mov_b32 v140, s28"); k("v_mov_b32 v141, 0x100000"); k("ds_write_b32 v140, v141")
    k("s_mov_b64 exec, -1")
    k.stamp()
    k("s_lshr_b32 s45, s25, 1"); k(f"s_mul_i32 s45, s45, {FSTR}"); k(f"s_add_u32 s45, s45, {QFLAG}"); k("v_lshlrev_b32 v140, 7, v0")
    k(f"v_mov_b32 v142, {RELAY}")
    if OPT("WARM", 2):
        k("s_cmp_ge_u32 s24, 4"); k("s_cbranch_scc1 AQ_NW")
        k("s_mov_b64 exec, 0")
        for w, nm in enumerate(("WA", "WB", "WC", "WD")):
            k(f"s_cmp_eq_u32 s24, {w}"); k(f"s_cbranch_scc1 HOP_{nm}_0")
        k.label("AQ_WR"); k("s_mov_b64 exec, -1")
        k.label("AQ_NW")
    k("s_cmp_lg_u32 s24, 4"); k("s_cbranch_scc1 AQ_REL")
    gpoll(k, "AQ", "s45", OPT("QSLEEP", 4), "v141", "v140", "s46")
    k("v_mov_b32 v141, 1"); k("ds_write_b32 v142, v141"); k("s_branch AQ_DONE")
    k.label("AQ_REL")
    k(f"s_sleep {OPT('RSLEEP', 1)}"); k("ds_read_b32 v141, v142"); k("s_waitcnt lgkmcnt(0)"); k("v_cmp_eq_u32 vcc, 1, v141"); k("s_cmp_eq_u64 vcc, -1"); k("s_cbranch_scc0 AQ_REL")
    k.label("AQ_DONE")
    if OPT("WARM", 2): k.hops_begin("WA")
    k.stamp()
    k(f"buffer_load_dwordx4 {vr(Q[0],4)}, v1, s[20:23], s32 offen sc1")
    k(f"buffer_load_dwordx4 {vr(Q[1],4)}, v1, s[20:23], s32 offen offset:1024 sc1")
    k(f"buffer_load_dwordx4 {vr(K0,4)}, v1, s[20:23], s33 offen sc1")
    for g in range(3):
        k("buffer_load_dwordx4 v1, s[20:23], s30 offen sc1 lds")
        k("s_add_u32 m0, m0, 8192"); k("s_add_u32 s30, s30, 2048")
    k("s_waitcnt vmcnt(3)")
    k(f"{MF} {vr(S[0],16)}, {vr(K0,4)}, {vr(Q[0],4)}, 0")
    k(f"{MF} {vr(S[1],16)}, {vr(K0,4)}, {vr(Q[1],4)}, 0")
    k("s_waitcnt vmcnt(1)")
    k("ds_write_b32 v11, v13")
    k("s_mov_b32 s34, 1")
    k(f"v_max3_f32 v8, v{S[0]}, v{S[0]+1}, v{S[0]+2}")
    for i in range(3, 31, 2): k(f"v_max3_f32 v8, v8, v{S[0]+i}, v{S[0]+i+1}")
    k(f"v_max_f32 v8, v8, v{S[0]+31}")
    k("ds_read_b32 v14, v12")
    k("v_mov_b32 v9, v8"); k("v_permlane32_swap_b32 v8, v9"); k("v_max_f32 v8, v8, v9")
    for r in range(16): k(f"v_xor_b32 v{C+r}, 0x80000000, v8")
    for r in range(8, 16): k(f"v_mov_b32 v{S[1]+r}, 0")
    k("s_waitcnt lgkmcnt(0)")
    k("v_cmp_le_u32 vcc, v13, v14"); k("s_setprio 1"); k("s_cmp_eq_u32 vcc_lo, -1"); k("s_cbranch_scc0 AP_SPIN")
    k.label("AP_CONT")
    def tail(tag="AP"):
        k.label(f"{tag}_SPIN"); k("s_sleep 1"); k("ds_read_b32 v14, v12"); k("s_waitcnt lgkmcnt(0)")
        k("v_cmp_le_u32 vcc, v13, v14"); k("s_cmp_eq_u32 vcc_lo, -1"); k(f"s_cbranch_scc0 {tag}_SPIN"); k(f"s_branch {tag}_CONT")
    tails.append(tail)
    k.stamp()
    k(f"ds_read_b128 {vr(KF[0],4)}, v15")
    k(f"ds_read_b128 {vr(VF[0][0],4)}, v5"); k(f"ds_read_b128 {vr(VF[0][1],4)}, v5 offset:512")
    k(f"ds_read_b128 {vr(KF[1],4)}, v15 offset:1024")
    k("s_mov_b32 s37, 16384")
    k("s_waitcnt lgkmcnt(3)")
    k(f"{MF} {vr(S[0],16)}, {vr(KF[0],4)}, {vr(Q[0],4)}, {vr(C,16)}")
    k("s_nop 10")
    if OPT("WARM", 2): k.hops_end("AQ_WR")
    k.label("AT_LOOP")
    SM = "v_smfmac_f32_32x32x32_bf16"
    L = Loop()
    for gi in range(NG):
      if OPT("WARM", 2) == 2:
          L.call(lambda gi=gi: ((k.hops_end("AQ_WR") if gi else None), k.hops_begin("WB" if gi == 0 else "WC")))
      for t in range(2):
        for ab in range(2):
            Sa = S[ab]; Sp = S[1-ab]
            q = []
            def e(i, fn=None):
                L.i(f"v_exp_f32 v{Sa+i}, v{Sa+i}")
                if fn: fn()
                elif q: L.i(q.pop(0))
            if ab == 0:
                va, vo = ("v5", 1024) if t == 0 else ("v7", 0)
                e(0, (lambda: L.ds("pr", "ds_read_b32 v14, v12")) if t == 0 else None); e(1)
                L.i(f"{SM} {vr(O[1],16)}, {vr(VF[(t+1)&1][1],4)}, {vr(Sp+8,8)}, {IDX}")
                e(2, lambda: L.ds(f"v{(t+1)&1}", f"ds_read_b128 {vr(VF[(t+1)&1][0],4)}, {va} offset:{vo}")); e(3)
                e(4, lambda: L.ds(f"v{(t+1)&1}", f"ds_read_b128 {vr(VF[(t+1)&1][1],4)}, {va} offset:{vo+512}")); e(5)
                L.i(f"{MF} {vr(Sp,16)}, {vr(KF[t&1],4)}, {vr(Q[1],4)}, {vr(C,16)}")
                e(6); e(7); e(8); e(9); e(10, lambda: L.wait(ds=[f"v{t&1}", "pr"] if t == 0 else f"v{t&1}"))
                L.i(f"{SM} {vr(O[0],16)}, {vr(VF[t&1][0],4)}, {vr(Sa,8)}, {IDX}")
                if t == 0:
                    e(11); L.i("v_cmp_le_u32 vcc, v13, v14")
                    e(12, lambda: L.i("s_setprio 1")); e(13, lambda: L.i("s_cmp_eq_u32 vcc_lo, -1"))
                    def chk(gi=gi):
                        k(f"s_cbranch_scc0 AT{gi}_SPIN"); k.label(f"AT{gi}_CONT"); k("v_add_u32 v13, 1, v13")
                        k("s_cmp_eq_u32 vcc_hi, 0"); k(f"s_cbranch_scc1 AT{gi}_AHEAD"); k("s_setprio 2"); k.label(f"AT{gi}_AHEAD")
                        def tail(tag=f"AT{gi}"):
                            k.label(f"{tag}_SPIN"); k("s_sleep 1"); k("ds_read_b32 v14, v12"); k("s_waitcnt lgkmcnt(0)")
                            k("v_cmp_le_u32 vcc, v13, v14"); k("s_cmp_eq_u32 vcc_lo, -1"); k(f"s_cbranch_scc0 {tag}_SPIN"); k(f"s_branch {tag}_CONT")
                        tails.append(tail)
                    L.call(chk)
                    e(14); e(15)
                else:
                    for i in range(11, 16): e(i)
            else:
                if t == 0:
                    e(0, lambda: L.i("s_waitcnt vmcnt(0)")); e(1, lambda: L.ds("pw", "ds_write_b32 v11, v13"))
                else:
                    e(0); e(1)
                L.i(f"{SM} {vr(O[0],16)}, {vr(VF[t&1][1],4)}, {vr(Sp+8,8)}, {IDX}")
                e(2, lambda: L.ds(f"k{t&1}", f"ds_read_b128 {vr(KF[t&1],4)}, v6 offset:{t*1024}"))
                e(3, (lambda: L.i("s_cmp_ge_u32 s34, 14")) if t == 0 else None); e(4)
                e(5, lambda: L.wait(ds=f"k{(t+1)&1}"))
                L.i(f"{MF} {vr(Sp,16)}, {vr(KF[(t+1)&1],4)}, {vr(Q[0],4)}, {vr(C,16)}")
                if t == 0:
                    def dm(gi=gi):
                        k(f"s_cbranch_scc1 AT_NODMA{gi}"); k("buffer_load_dwordx4 v1, s[20:23], s30 offen sc1 lds"); k.label(f"AT_NODMA{gi}")
                    L.call(dm)
                    q += ["s_add_u32 s35, m0, 8192", "s_and_b32 m0, s35, 0xffff", "s_add_u32 s30, s30, 2048"]
                else:
                    q += ["s_add_u32 s34, s34, 1"]
                for i in range(6, 11): e(i)
                L.i(f"{SM} {vr(O[1],16)}, {vr(VF[t&1][0],4)}, {vr(Sa,8)}, {IDX}")
                if t == 1:
                    for x in ("v_mov_b32 v5, v7", "v_add_u32 v6, s37, v15", "v_and_b32 v7, s37, v10", "v_add_u32 v7, v7, v3"): L.i(x)
                    q += ["s_add_u32 s37, s37, 8192", "s_and_b32 s37, s37, 0xffff", "s_cmp_lt_u32 s34, 17"]
                for i in range(11, 16): e(i)
    L.emit(k)
    if OPT("WARM", 2) == 2: k.hops_end("AQ_WR")
    k("s_cbranch_scc1 AT_LOOP")
    if OPT("WARM", 2): k.hops_begin("WD")
    k(f"{SM} {vr(O[1],16)}, {vr(VF[1][1],4)}, {vr(S[1]+8,8)}, {IDX}")
    k.stamp()
    k("s_lshl_b32 s35, s39, 13")
    k("v_add_u32 v4, s35, v15")
    k("v_xor_b32 v5, 4096, v4")
    k("s_lshl_b32 s35, s39, 9"); k("s_add_u32 s35, s35, s29"); k("s_add_u32 s35, s35, 32768")
    k("v_lshl_add_u32 v6, v0, 2, s35"); k("v_xor_b32 v7, 4096, v6")
    k("s_lshl_b32 s35, s39, 2"); k(f"s_add_u32 s35, s35, {PAIR}"); k("v_mov_b32 v8, s35"); k("v_mov_b32 v9, 1")
    for ab in range(2):
        k(f"ds_write_b128 v4, {vr(O[ab],4)} offset:{ab*2048}"); k(f"ds_write_b128 v4, {vr(O[ab]+4,4)} offset:{ab*2048+1024}")
        k(f"ds_write_b32 v6, v{O[ab]+8} offset:{ab*256}")
    k("s_mov_b64 exec, 1")
    k("ds_add_rtn_u32 v9, v8, v9")
    k("s_mov_b64 exec, -1")
    for ab in range(2):
        k(f"ds_read_b128 {vr(S[ab],4)}, v5 offset:{ab*2048}"); k(f"ds_read_b128 {vr(S[ab]+4,4)}, v5 offset:{ab*2048+1024}")
        k(f"ds_read_b32 v{S[ab]+8}, v7 offset:{ab*256}")
    k("s_lshl_b32 s33, s26, 15"); k("s_lshl_b32 s34, s25, 10"); k("s_add_u32 s33, s33, s34"); k(f"s_add_u32 s33, s33, {WS_O}")
    k(f"v_mov_b32 v11, {lit(2.0**30)}"); k(f"v_mov_b32 v10, {lit(2.0**-30)}"); k(f"v_mov_b32 v14, 0x7f800000")
    k("s_waitcnt lgkmcnt(0)")
    k("v_readfirstlane_b32 s35, v9")
    k("s_cmp_eq_u32 s35, 0"); k("s_cbranch_scc1 AT_EXIT")
    for ab in range(2):
        for r in range(9): k(f"v_add_f32 v{O[ab]+r}, v{O[ab]+r}, v{S[ab]+r}")
    k(f"v_add_f32 v8, |v{O[0]}|, |v{O[1]}|")
    for ab in range(2):
        for i in range(1, 8): k(f"v_add_f32 v8, v8, |v{O[ab]+i}|")
    k(f"v_cmp_gt_f32 s[42:43], v14, v8")
    for ab in range(2):
        k(f"v_cmp_gt_f32 s[44:45], v11, v{O[ab]+8}"); k(f"v_cmp_lt_f32 s[46:47], v10, v{O[ab]+8}")
        k("s_and_b64 s[42:43], s[42:43], s[44:45]"); k("s_and_b64 s[42:43], s[42:43], s[46:47]")
    k("s_cmp_eq_u64 s[42:43], -1")
    k("s_cbranch_scc0 AT_SLOW")
    k.label("AT_FIN")
    k("s_add_u32 s34, s33, 32768")
    k(f"v_rcp_f32 v8, v{O[0]+8}"); k(f"v_rcp_f32 v9, v{O[1]+8}")
    for ab in range(2):
        for i in range(8): k(f"v_mul_f32 v{O[ab]+i}, v{8+ab}, v{O[ab]+i}")
        for i in range(4): k(f"v_cvt_pk_bf16_f32 v{P+4*ab+i}, v{O[ab]+2*i}, v{O[ab]+2*i+1}")
        k(f"buffer_store_dwordx4 {vr(P+4*ab,4)}, v1, s[20:23], s{33+ab} offen sc1")
    k("s_lshl_b32 s35, s26, 5"); k("s_add_u32 s35, s35, s25"); k(f"s_lshl_b32 s35, s35, {OFS}"); k(f"s_add_u32 s35, s35, {OFLAG}")
    k("v_mov_b32 v8, 0"); k(f"v_mov_b32 v9, {TAG}")
    k("s_mov_b64 exec, 1")
    k("s_waitcnt vmcnt(0)")
    k("buffer_store_dword v9, v8, s[20:23], s35 offen sc1")
    k("s_mov_b64 exec, -1")
    if OPT("WARM", 2): k.hops_end("AQ_WR")
    k.label("AT_EXIT")
    finish(k, 8)
    for t in tails: t()
    k.label("AT_SLOW")
    k(f"s_add_u32 s30, s27, {WS_K}"); k(f"s_add_u32 s31, s27, {WS_V}")
    for r in range(8): k(f"v_mov_b32 v{VF[0][0]+r}, 0x3f803f80")
    for ab in range(2):
        k("v_mov_b32 v8, 0xff800000"); k("s_mov_b32 s34, 0")
        k.label(f"AT_S1{ab}")
        k("s_add_u32 s36, s30, s34")
        k(f"buffer_load_dwordx4 {vr(KF[0],4)}, v1, s[20:23], s36 offen sc1")
        k("s_waitcnt vmcnt(0)")
        k(f"{MF} {vr(S[0],16)}, {vr(KF[0],4)}, {vr(Q[ab],4)}, 0")
        for i in range(0, 16, 2): k(f"v_max3_f32 v8, v8, v{S[0]+i}, v{S[0]+i+1}")
        k("s_add_u32 s34, s34, 1024"); k("s_cmp_lt_u32 s34, 65536"); k(f"s_cbranch_scc1 AT_S1{ab}")
        k("v_mov_b32 v9, v8"); k("v_permlane32_swap_b32 v8, v9"); k("v_max_f32 v8, v8, v9")
        for r in range(16): k(f"v_xor_b32 v{C+r}, 0x80000000, v8")
        for r in range(16): k(f"v_mov_b32 v{O[ab]+r}, 0")
        k("s_mov_b32 s34, 0")
        k.label(f"AT_S2{ab}")
        k("s_add_u32 s36, s30, s34"); k("s_add_u32 s35, s31, s34")
        k(f"buffer_load_dwordx4 {vr(KF[0],4)}, v1, s[20:23], s36 offen sc1")
        k("s_mov_b64 exec, s[40:41]")
        k(f"buffer_load_dwordx4 {vr(VF[0][0],4)}, v2, s[20:23], s35 offen sc1")
        k(f"buffer_load_dwordx4 {vr(VF[0][1],4)}, v2, s[20:23], s35 offen offset:512 sc1")
        k("s_mov_b64 exec, -1")
        k("s_waitcnt vmcnt(0)")
        k(f"{MF} {vr(S[0],16)}, {vr(KF[0],4)}, {vr(Q[ab],4)}, {vr(C,16)}")
        for i in range(16): k(f"v_exp_f32 v{S[0]+i}, v{S[0]+i}")
        k(f"{SM} {vr(O[ab],16)}, {vr(VF[0][0],4)}, {vr(S[0],8)}, {IDX}")
        k(f"{SM} {vr(O[ab],16)}, {vr(VF[0][1],4)}, {vr(S[0]+8,8)}, {IDX}")
        k("s_nop 15")
        k("s_add_u32 s34, s34, 1024"); k("s_cmp_lt_u32 s34, 65536"); k(f"s_cbranch_scc1 AT_S2{ab}")
    k("s_branch AT_FIN")

def gpoll(k, tag, saddr, sleep, vd="v4", va="v3", cnt="s28", mask=None):
    k(f"s_mov_b32 {cnt}, 0")
    if mask: k(f"s_mov_b64 exec, {mask}")
    k.label(f"{tag}_POLL")
    k(f"buffer_load_dword {vd}, {va}, s[20:23], {saddr} offen sc1")
    k("s_waitcnt vmcnt(0)")
    k(f"v_cmp_ne_u32 vcc, {TAG}, {vd}")
    k("s_cmp_eq_u64 vcc, 0")
    k(f"s_cbranch_scc1 {tag}_OUT")
    if OPT("NARROW", 1): k("s_mov_b64 exec, vcc")
    k(f"s_sleep {sleep}")
    k(f"s_add_u32 {cnt}, {cnt}, 1"); k(f"s_cmp_lt_u32 {cnt}, 0x100000")
    k(f"s_cbranch_scc1 {tag}_POLL")
    k.label(f"{tag}_OUT")
    k("s_mov_b64 exec, -1")
    k.label(f"{tag}_GO")

def gb(k, n):
    sel = [int(x) for x in os.environ.get("BST", "").split(",") if x]
    if n in sel: k.stamp()
    k("s_barrier")
    if n in sel: k.stamp()
    if n == 8 and sel:
        k.stamp_off = True

def gemm_part(k):
    WF = 16; XF = 32; ACC = 48; DV = 160
    GP = OPT("GPRIO"); GP2 = OPT("GPRIO2")
    tails = []
    PF = OPT("PF2", 1); NPF = OPT("NPF", 4)
    k("s_setprio 3")
    k("s_sub_u32 s25, s24, 8")
    srd(k, 16, 4, 2048 * 1024); srd(k, 20, 8, WS_SIZE)
    k("v_lshrrev_b32 v42, 3, v0"); k("v_lshlrev_b32 v15, 10, v42"); k("v_and_b32 v45, 7, v0"); k("v_lshl_add_u32 v15, v45, 4, v15")
    k("s_lshl_b32 s28, s2, 13"); k("s_lshl_b32 s29, s25, 8"); k("s_add_u32 s28, s28, s29")
    k("buffer_load_dwordx4 v[16:19], v15, s[16:19], s28 offen"); k("buffer_load_dwordx4 v[20:23], v15, s[16:19], s28 offen offset:128")
    k("v_mov_b32 v13, 0"); k(f"s_mov_b32 s28, {EPOCH}"); k("buffer_load_dword v46, v13, s[20:23], s28 offen sc1")
    k("s_mov_b32 s50, s4"); k("s_mov_b32 s51, s5")
    k("s_load_dwordx4 s[4:7], s[0:1], 32")
    k("s_load_dwordx2 s[48:49], s[0:1], 48")
    k("s_load_dwordx2 s[56:57], s[0:1], 16")
    k("s_load_dwordx2 s[58:59], s[0:1], 56")
    k(f"v_lshlrev_b32 v43, 5, v42"); k(f"v_add_u32 v43, {LNX}, v43"); k("s_lshl_b32 s28, s25, 3"); k("v_add_u32 v44, s28, v43")
    k("v_lshlrev_b32 v45, 9, v45"); k("v_lshl_add_u32 v45, v42, 4, v45")
    gb(k, 0)
    k("s_waitcnt vmcnt(1)")
    for r in range(8):
        k(f"v_lshlrev_b32 v{24+2*r}, 16, v{16+r}"); k(f"v_and_b32 v{25+2*r}, 0xffff0000, v{16+r}")
    k("v_add_f32 v40, v24, v25"); k("v_mul_f32 v41, v24, v24"); k("v_fmac_f32 v41, v25, v25")
    for r in range(2, 16): k(f"v_add_f32 v40, v40, v{24+r}"); k(f"v_fmac_f32 v41, v{24+r}, v{24+r}")
    for ctl in ("quad_perm:[1,0,3,2]", "quad_perm:[2,3,0,1]", "row_half_mirror"):
        k(f"v_add_f32_dpp v40, v40, v40 {ctl} row_mask:0xf bank_mask:0xf"); k(f"v_add_f32_dpp v41, v41, v41 {ctl} row_mask:0xf bank_mask:0xf")
    k("ds_write_b64 v44, v[40:41]"); k("s_waitcnt lgkmcnt(0)")
    gb(k, 1)
    k("ds_read_b128 v[16:19], v43"); k("ds_read_b128 v[20:23], v43 offset:16"); k("v_mov_b32 v44, 0xffff0000")
    k("s_lshr_b32 s28, s2, 2"); k("s_lshl_b32 s28, s28, 15"); k("s_and_b32 s29, s2, 3"); k("s_lshl_b32 s29, s29, 7"); k("s_add_u32 s28, s28, s29")
    k("s_lshl_b32 s29, s25, 13"); k("s_add_u32 s28, s28, s29"); k(f"s_add_u32 s40, s28, {WS_XN}"); k("s_add_u32 s41, s40, 4096")
    k("s_waitcnt lgkmcnt(0)")
    k("v_add_f32 v16, v16, v18"); k("v_add_f32 v17, v17, v19"); k("v_add_f32 v20, v20, v22"); k("v_add_f32 v21, v21, v23")
    k("v_add_f32 v40, v16, v20"); k("v_add_f32 v41, v17, v21")
    ln_scalars(k, "v40", "v41", "v44", "v42", "v43")
    k("v_mul_f32 v43, -v43, v42")
    gb(k, 2)
    for r in range(16): k(f"v_fma_f32 v{24+r}, v{24+r}, v42, v43")
    for r in range(8): k(f"v_cvt_pk_bf16_f32 v{16+r}, v{24+2*r}, v{25+2*r}")
    k("buffer_store_dwordx4 v[16:19], v45, s[20:23], s40 offen sc1"); k("buffer_store_dwordx4 v[20:23], v45, s[20:23], s41 offen sc1")
    gb(k, 3)
    k("v_lshlrev_b32 v1, 4, v0"); k("s_lshl_b32 s28, s24, 8"); k(f"s_add_u32 s28, s28, {PROG}"); k("v_lshl_add_u32 v11, v0, 2, s28")
    k("v_mov_b32 v14, 0x3f803f80")
    k("v_and_b32 v2, 44, v0"); k("v_cmp_eq_u32 vcc, 0, v2"); k("v_cndmask_b32 v14, 0, v14, vcc")
    k("ds_write_b32 v11, v13"); k("v_add_u32 v2, -1024, v11"); k("ds_write_b32 v2, v13"); k("v_add_u32 v2, -2048, v11"); k("ds_write_b32 v2, v13")
    k(f"v_lshlrev_b32 v2, 2, v0"); k(f"v_add_u32 v2, {PAIR}, v2"); k("ds_write_b32 v2, v13")
    k("v_add_u32 v2, -4096, v11"); k("ds_write_b32 v2, v14"); k("ds_write_b32 v2, v14 offset:1024")
    k("s_mov_b32 s60, 0x7fffffff")
    k("s_and_b32 s27, s2, 7"); k("s_lshr_b32 s62, s2, 5")
    k("s_lshl_b32 s52, s62, 1"); k("s_lshr_b32 s29, s27, 2"); k("s_add_u32 s52, s52, s29")
    k("s_and_b32 s26, s27, 3"); k("s_lshl_b32 s26, s26, 2"); k("s_bfe_u32 s29, s2, 0x20003"); k("s_add_u32 s26, s26, s29")
    k("s_lshl_b32 s30, s52, 2"); k("s_add_u32 s30, s30, s25")
    k("s_and_b32 s31, s25, 1")
    k("s_cmp_lt_u32 s25, 2"); k("s_cselect_b32 s10, s4, s6"); k("s_cselect_b32 s11, s5, s7")
    srd(k, 12, 10, 512 * 3584); srd(k, 16, 48, 1792 * 1024)
    k("s_waitcnt lgkmcnt(0)")
    gb(k, 4)
    k("s_lshr_b32 s42, s2, 4"); k(f"s_mul_i32 s42, s42, {FSTR}"); k("s_and_b32 s29, s2, 15"); k("s_lshl_b32 s29, s29, 2"); k("s_add_u32 s29, s29, s25"); k("s_lshl_b32 s29, s29, 7")
    k("s_add_u32 s42, s42, s29"); k(f"s_add_u32 s42, s42, {XFLAG}")
    k("s_mov_b32 s28, 4096")
    for i in range(7):
        k(f"v_add_u32 v2, {64*i}, v0")
        k("v_mul_u32_u24 v3, 4682, v2"); k("v_lshrrev_b32 v3, 16, v3")
        k(f"v_mul_u32_u24 v3, {3584 - 224}, v3"); k(f"v_add3_u32 v{DV+i}, v1, v3, {'0' if i < 4 else 's28'}")
    k("s_waitcnt vmcnt(0)")
    k(f"v_readfirstlane_b32 {TAG}, v46"); k(f"v_mov_b32 v2, {RELAY+4}")
    k(f"s_mul_i32 {TAG}, {TAG}, 0x9e3779b1"); k(f"s_add_u32 {TAG}, {TAG}, 0x7f4a7c15")
    k(f"v_mov_b32 v46, {TAG}"); k("ds_write_b32 v2, v46 offset:8")
    k("s_mov_b64 exec, 1"); k("buffer_store_dword v46, v13, s[20:23], s42 offen sc1"); k("s_mov_b64 exec, -1")
    gb(k, 5)
    if NPF:
        k("s_lshr_b32 s28, s2, 3"); k("s_lshl_b32 s28, s28, 1"); k("s_add_u32 s28, s28, s31"); k(f"s_mul_i32 s28, s28, {NPF*3584}")
        k("s_and_b32 s29, s27, 3"); k("s_mul_i32 s29, s29, 896"); k("s_add_u32 s28, s28, s29")
        if OPT("PFOFF"): k(f"s_add_u32 s28, s28, {128*3584}")
        for j in range(NPF):
            k("buffer_load_dwordx4 v[4:7], v1, s[12:15], s28 offen"); k("s_add_u32 s28, s28, 3584")
    k("s_mul_i32 s63, s31, 114688"); k("s_mul_i32 s33, s26, 224"); k("s_add_u32 s63, s63, s33")
    k("s_mul_i32 s33, s31, 7168"); k("s_lshr_b32 s34, s25, 1"); k(f"s_mul_i32 s34, s34, {UP_W3OFF}"); k("s_add_u32 s33, s33, s34"); k(f"s_add_u32 s33, s33, {GB}")
    k("s_lshl_b32 s64, s30, 15"); k(f"s_add_u32 s64, s64, {WS_XN}")
    k("s_mov_b32 s32, s63"); k("s_mov_b32 s35, s64"); k("s_mov_b32 s36, s33")
    for r in range(40): k(f"v_mov_b32 v{ACC+r}, 0")
    gb(k, 6)
    def dma():
        out = ["s_mov_b32 m0, s36", "s_nop 0"]
        for i in range(7):
            if i == 4: out += ["s_add_u32 m0, s36, 4096", "s_nop 0"]
            out.append(f"buffer_load_dwordx4 v{DV+i}, s[12:15], s32 offen offset:{(i&3)*1024} lds")
        return out
    for x in dma(): k(x)
    k("s_add_u32 s32, s63, 229376"); k(f"s_add_u32 s36, s33, {UP_SLOT}")
    k(f"s_mul_i32 s45, s52, {FSTR}"); k(f"s_add_u32 s45, s45, {XFLAG}"); k("s_lshl_b32 s28, s25, 11"); k("s_add_u32 s45, s45, s28"); k("v_and_b32 v3, 15, v0"); k("v_lshlrev_b32 v3, 7, v3")
    for r in range(40, 80): k(f"v_mov_b32 v{ACC+r}, 0")
    gb(k, 7)
    k("s_mov_b64 exec, 0xffff"); k("buffer_load_dword v24, v3, s[20:23], s45 offen sc1"); k("s_mov_b64 exec, -1")
    for x in dma(): k(x)
    k("s_waitcnt lgkmcnt(0)")
    gb(k, 8)
    k.stamp()
    k("s_setprio 0")
    for r in range(80, 112): k(f"v_mov_b32 v{ACC+r}, 0")
    k("s_lshr_b32 s61, s2, 5"); k("s_lshl_b32 s61, s61, 2"); k("s_add_u32 s61, s61, s25"); k(f"s_mul_i32 s61, s61, {56*1024}")
    k("s_and_b32 s28, s26, 7"); k("s_lshl_b32 s28, s28, 7"); k("s_add_u32 s61, s61, s28")
    k("v_mov_b32 v13, 1")
    k("s_waitcnt vmcnt(7)")
    k("ds_write_b32 v11, v13")
    k(f"v_cmp_eq_u32 vcc, {TAG}, v24"); k("s_and_b32 s43, vcc_lo, 0xffff"); k("s_cmp_eq_u32 s43, 0xffff"); k("s_cbranch_scc1 UX_GO")
    gpoll(k, "UX", "s45", 4, mask="0xffff")
    for s in range(4): k(f"buffer_load_dwordx4 {vr(XF+4*s,4)}, v1, s[20:23], s35 offen offset:{s*1024} sc1")
    NPX = OPT("NPX", 0)
    if NPX:
        k("s_and_b32 s28, s26, 3"); k("s_lshl_b32 s28, s28, 10"); k("s_add_u32 s28, s28, s64")
        for i in range(NPX):
            k("s_add_u32 s28, s28, 4096"); k("buffer_load_dwordx4 v[4:7], v1, s[20:23], s28 offen sc1")
    if PF: k("buffer_load_dwordx4 v[4:7], v15, s[16:19], s60 offen")
    k("v_lshrrev_b32 v8, 5, v0"); k("v_lshlrev_b32 v8, 3, v8"); k("v_bfe_u32 v3, v0, 2, 2"); k("v_add_u32 v8, v8, v3")
    k("v_mul_u32_u24 v8, 224, v8"); k("v_bfe_u32 v3, v0, 4, 1"); k(f"v_mul_u32_u24 v3, {UP_W3OFF}, v3"); k("v_add_u32 v8, v8, v3")
    k("v_and_b32 v3, 3, v0"); k("v_lshl_add_u32 v8, v3, 3, v8"); k(f"v_add_u32 v8, {GB}, v8")
    k("v_and_b32 v12, 3, v0"); k("v_lshlrev_b32 v12, 8, v12"); k("v_lshl_add_u32 v12, v0, 2, v12"); k(f"v_add_u32 v12, {PROG + 2048}, v12")
    k("ds_read_b32 v14, v12")
    k("v_mov_b32 v9, v8"); k(f"v_add_u32 v10, {UP_SLOT}, v8")
    k(f"s_mov_b32 s37, {2*UP_SLOT}"); k("s_mov_b32 s39, 1")
    k("s_add_u32 s35, s64, 4096"); k("s_mov_b32 s62, 2"); k(f"s_add_u32 s32, s63, {2*229376}"); k("s_sub_u32 s61, s61, 8192")
    k("s_waitcnt lgkmcnt(0)")
    tails.append(softcheck(k, "UB", "s39", "v14", "v12"))
    if OPT("GATE", 1):
        k("s_mov_b32 exec_lo, 0"); k("v_and_b32 v12, 3, v0"); k("v_lshlrev_b32 v12, 2, v12"); k(f"v_add_u32 v12, {RELAY+16+16}, v12"); k("s_mov_b32 exec_lo, -1")
    k("v_mov_b32 v13, 2")
    k(f"s_waitcnt vmcnt({PF+NPX})")
    k.stamp()
    def rd(m, areg):
        s, j = divmod(m, 7); o = s*3584 + j*32; d = WF + 4*(m & 3)
        return [f"ds_read_b64_tr_b16 {vr(d,2)}, {areg} offset:{o}", f"ds_read_b64_tr_b16 {vr(d+2,2)}, {areg} offset:{o+896}"]
    for m in range(4):
        for x in rd(m, "v9"): k(x)
    k.label("UP_LOOP")
    extra = []
    for m in range(28):
        s, j = divmod(m, 7)
        if j == 0: k(f"s_waitcnt vmcnt({(10 if s < 3 else 3) + PF})")
        cnt = 6
        if m in (17, 18, 19, 20): cnt = 7
        if m in (22, 23): cnt = 7
        if m == 24:
            k("s_waitcnt lgkmcnt(4)")
            k("s_add_u32 s39, s39, 1")
            k("s_setprio 3")
            tails.append(softcheck(k, "UP", "s39", "v14", "v12"))
            k("v_add_u32 v13, 1, v13")
            k(f"s_setprio {GP}")
            k("s_add_u32 s36, s33, s37")
            extra = dma()
        else:
            k(f"s_waitcnt lgkmcnt({cnt})")
        a = vr(ACC + 16*j, 16)
        k(f"{MF} {a}, {vr(WF+4*(m&3),4)}, {vr(XF+4*s,4)}, {a}")
        for x in (rd(m+4, "v9") if m < 24 else rd(m+4-28, "v10")): k(x)
        if m == 16:
            k(f"s_waitcnt vmcnt({3+PF})"); k("ds_write_b32 v11, v13")
        if m == 21: k("ds_read_b32 v14, v12")
        if m >= 24:
            for x in extra[[0,4,6,9,11][m-24]:[0,4,6,9,11][m-23]]: k(x)
        if j == 6: k(f"buffer_load_dwordx4 {vr(XF+4*s,4)}, v1, s[20:23], s35 offen offset:{s*1024} sc1")
    if PF:
        PD = OPT("PFD", 3)
        if PD:
            k(f"s_cmp_ge_u32 s39, {2+PD}"); k("s_cselect_b32 s28, 8192, 0"); k("s_add_u32 s61, s61, s28"); k(f"s_cmp_ge_u32 s39, {2+PD}"); k("s_cselect_b32 s28, s61, s60")
            k("buffer_load_dwordx4 v[4:7], v15, s[16:19], s28 offen")
        else:
            k("s_add_u32 s61, s61, 8192"); k("s_cmp_lt_u32 s39, 9"); k("s_cselect_b32 s61, s61, s60")
            k("buffer_load_dwordx4 v[4:7], v15, s[16:19], s61 offen")
    k("s_setprio 3")
    k("v_mov_b32 v9, v10"); k("v_add_u32 v10, s37, v8")
    k(f"s_setprio {GP}")
    k("s_lshl_b32 s35, s62, 12"); k("s_add_u32 s35, s35, s64")
    k("s_add_u32 s62, s62, 1"); k("s_and_b32 s62, s62, 7"); k("s_mul_i32 s32, s62, 229376"); k("s_add_u32 s32, s32, s63")
    k(f"s_cmp_lt_u32 s39, {0 if OPT('X_WOOB') else 7}"); k("s_cselect_b32 s32, s32, s60")
    k(f"s_cmp_lt_u32 s39, {0 if OPT('X_XOOB') else 8}"); k("s_cselect_b32 s35, s35, s60")
    k(f"s_add_u32 s37, s37, {UP_SLOT}"); k(f"s_cmp_eq_u32 s37, {3*UP_SLOT}"); k("s_cselect_b32 s37, 0, s37")
    if OPT("UPST") and Kern.DIAG:
        b = k.nsgpr0 + 2 * k.nst
        for i in range(7): k(f"s_mov_b32 s{b+2*i}, s{b+2*i+2}")
        k(f"s_memtime s[{b+14}:{b+15}]"); k("s_waitcnt lgkmcnt(0)")
        k.nst += 8; k.stamp_off = True
    k("s_cmp_lt_u32 s39, 9"); k("s_cbranch_scc1 UP_LOOP")
    k.stamp()
    k(f"s_setprio {OPT('SPRIO', 3)}")
    k("s_mul_i32 s40, s30, 112"); k("s_lshr_b32 s41, s26, 2"); k("s_mul_i32 s41, s41, 28"); k("s_add_u32 s40, s40, s41"); k("s_and_b32 s41, s26, 3"); k("s_add_u32 s40, s40, s41")
    k("s_lshl_b32 s40, s40, 10"); k(f"s_add_u32 s40, s40, {WS_H}")
    k("s_waitcnt vmcnt(0) lgkmcnt(0)")
    k("ds_write_b32 v11, v13")
    k("ds_read_b32 v14, v12")
    ACD = 48; TF = 112; WD = [16, 24]; EP = 144
    k("s_lshl_b32 s53, s52, 1"); k("s_lshr_b32 s28, s26, 3"); k("s_add_u32 s53, s53, s28"); k("s_and_b32 s54, s26, 7")
    k("s_lshr_b32 s63, s25, 1"); k("s_and_b32 s64, s25, 1")
    srd(k, 12, 48, 1792 * 1024); srd(k, 16, 50, 2048 * 1024)
    k("v_lshrrev_b32 v2, 3, v0"); k("v_lshlrev_b32 v2, 10, v2")
    k("v_bfe_u32 v3, v0, 2, 1"); k("v_bfe_u32 v4, v0, 4, 1"); k("v_xor_b32 v3, v3, v4"); k("v_lshl_add_u32 v2, v3, 6, v2")
    k("v_and_b32 v3, 3, v0"); k("v_lshl_add_u32 v2, v3, 4, v2")
    k(f"v_add_u32 v15, {8192-1024}, v2")
    k("s_lshl_b32 s32, s25, 14"); k(f"s_add_u32 s32, s32, {GB}")
    k("v_lshrrev_b32 v8, 5, v0"); k("v_lshlrev_b32 v3, 2, v8"); k("v_bfe_u32 v4, v0, 2, 2"); k("v_add_u32 v3, v3, v4"); k("v_lshlrev_b32 v3, 7, v3")
    k("v_bfe_u32 v4, v0, 3, 1"); k("v_xor_b32 v4, s64, v4"); k("v_lshl_add_u32 v3, v4, 6, v3")
    k("v_bfe_u32 v4, v0, 4, 1"); k("v_lshl_add_u32 v3, v4, 5, v3"); k("v_and_b32 v4, 1, v0"); k("v_lshl_add_u32 v3, v4, 4, v3")
    k("v_bfe_u32 v4, v0, 1, 1"); k("v_lshl_add_u32 v3, v4, 3, v3")
    k("v_xor_b32 v4, 64, v3"); k("v_add_u32 v5, s32, v3"); k("v_add_u32 v6, s32, v4")
    k("v_add_u32 v9, 8192, v5"); k("v_add_u32 v10, 8192, v6")
    k(f"s_mul_i32 s33, s25, {28*16384}"); k("s_lshl_b32 s55, s54, 7"); k("s_add_u32 s33, s33, s55")
    k(f"s_mov_b32 s65, {7*16384}"); k(f"s_mov_b32 s66, {(-20*16384) & 0xffffffff}")
    k(f"s_mul_i32 s34, s53, {2*112*1024}"); k(f"s_mul_i32 s35, s25, {28*1024}"); k("s_add_u32 s34, s34, s35"); k(f"s_add_u32 s34, s34, {WS_H}")
    k(f"s_mul_i32 s28, s63, {112*1024}"); k(f"s_add_u32 s35, s34, {112*1024}"); k("s_sub_u32 s35, s35, s28"); k("s_add_u32 s34, s34, s28")
    k("s_lshr_b32 s38, s30, 1"); k("s_lshl_b32 s38, s38, 10"); k("s_lshr_b32 s28, s26, 2"); k("s_lshl_b32 s28, s28, 8"); k("s_add_u32 s38, s38, s28")
    k("s_and_b32 s28, s26, 3"); k("s_lshl_b32 s28, s28, 3"); k("s_add_u32 s38, s38, s28"); k("s_and_b32 s28, s30, 1"); k("s_lshl_b32 s28, s28, 2")
    k("s_add_u32 s38, s38, s28"); k(f"s_add_u32 s38, s38, {HFLAG}")
    k("s_lshl_b32 s45, s53, 10"); k("s_lshl_b32 s28, s25, 8"); k("s_add_u32 s45, s45, s28"); k(f"s_add_u32 s45, s45, {HFLAG}")
    k("v_and_b32 v3, 7, v0"); k("v_lshlrev_b32 v3, 2, v3"); k("v_mov_b32 v7, 0"); k(f"v_mov_b32 v167, {TAG}")
    k("s_waitcnt lgkmcnt(0)"); k("s_mov_b32 s39, 10")
    tails.append(softcheck(k, "U9", "s39", "v14", "v12"))
    def wdma(n, slot, base="s36"):
        return [f"s_add_u32 m0, {base}, {slot*2048}", "s_nop 0",
                "buffer_load_dwordx4 v2, s[12:15], s33 offen lds",
                "buffer_load_dwordx4 v15, s[12:15], s33 offen offset:1024 lds",
                f"s_add_u32 s33, s33, {'s66' if n % 4 == 3 else 's65'}"]
    k("s_mov_b32 s36, s32")
    NL2E = lit(-1.4426950408889634)
    def flag(off):
        k("s_mov_b64 exec, 1"); k(f"buffer_store_dword v167, v7, s[20:23], s38 offen offset:{off} sc1"); k("s_mov_b64 exec, -1")
    for j in range(7):
        a = ACC + 16*j; t = 16 + (j & 1)*12
        for r in range(8): k(f"v_mul_f32 v{t+r}, {NL2E}, v{a+r}")
        for r in range(8): k(f"v_exp_f32 v{t+r}, v{t+r}")
        if OPT("NOPK", 1):
            for r in range(8): k(f"v_mul_f32 v{a+r}, v{a+r}, v{a+8+r}")
            for r in range(8): k(f"v_add_f32 v{t+r}, 1.0, v{t+r}")
            for r in range(8): k(f"v_rcp_f32 v{t+r}, v{t+r}")
            for r in range(8): k(f"v_mul_f32 v{a+r}, v{a+r}, v{t+r}")
        else:
            for r in range(0, 8, 2): k(f"v_pk_mul_f32 {vr(a+r,2)}, {vr(a+r,2)}, {vr(a+8+r,2)}")
            for r in range(0, 8, 2): k(f"v_pk_add_f32 {vr(t+r,2)}, {vr(t+r,2)}, 1.0 op_sel_hi:[1,0]")
            for r in range(8): k(f"v_rcp_f32 v{t+r}, v{t+r}")
            for r in range(0, 8, 2): k(f"v_pk_mul_f32 {vr(a+r,2)}, {vr(a+r,2)}, {vr(t+r,2)}")
        for r in range(4): k(f"v_cvt_pk_bf16_f32 v{t+8+r}, v{a+2*r}, v{a+2*r+1}")
        if j == 6:
            k("s_waitcnt vmcnt(8)"); flag(0)
        k(f"buffer_store_dwordx4 {vr(t+8,4)}, v1, s[20:23], s40 offen sc1")
        k("s_add_u32 s40, s40, 4096")
        for x in wdma(j, j): k(x)
    k.stamp()
    k(f"buffer_load_dword v4, v3, s[20:23], s45 offen sc1")
    for r in range(64): k(f"v_mov_b32 v{ACD+r}, 0")
    k("v_and_b32 v152, 31, v0"); k("v_lshlrev_b32 v152, 10, v152"); k("v_lshl_add_u32 v152, v8, 4, v152")
    k("s_lshl_b32 s40, s53, 16"); k("s_lshl_b32 s41, s63, 15"); k("s_add_u32 s40, s40, s41"); k("s_add_u32 s40, s40, s55")
    k("s_lshl_b32 s41, s64, 6"); k("s_add_u32 s40, s40, s41")
    k("s_waitcnt vmcnt(3)"); flag(32)
    k("s_waitcnt vmcnt(1)")
    k(f"v_cmp_eq_u32 vcc, {TAG}, v4"); k("s_cmp_eq_u64 vcc, -1"); k("s_cbranch_scc1 DH_GO")
    gpoll(k, "DH", "s45", 4)
    k.stamp()
    def tload(s):
        return [f"buffer_load_dwordx4 {vr(TF+8*s,4)}, v1, s[20:23], s34 offen offset:{s*1024} sc1",
                f"buffer_load_dwordx4 {vr(TF+8*s+4,4)}, v1, s[20:23], s35 offen offset:{s*1024} sc1"]
    for s in range(4):
        for x in tload(s): k(x)
    def wreads(slot, buf, other):
        a0, a1 = ("v9", "v10") if other else ("v5", "v6")
        o = slot * 2048
        return [f"ds_read_b64_tr_b16 {vr(WD[buf],2)}, {a0} offset:{o}", f"ds_read_b64_tr_b16 {vr(WD[buf]+2,2)}, {a0} offset:{o+1024}",
                f"ds_read_b64_tr_b16 {vr(WD[buf]+4,2)}, {a1} offset:{o}", f"ds_read_b64_tr_b16 {vr(WD[buf]+6,2)}, {a1} offset:{o+1024}"]
    def mfl(buf, tf):
        out = []
        for a in range(2):
            for b in range(2):
                c = vr(ACD + (a*2+b)*16, 16)
                out.append(f"{MF} {c}, {vr(WD[buf]+4*b,4)}, {vr(tf+4*a,4)}, {c}")
        return out
    for x in wreads(0, 0, False): k(x)
    k("s_mov_b32 s42, 0"); k("s_mov_b32 s43, 0x7fffffff")
    k("s_add_u32 s44, s32, 8192"); k("s_add_u32 s45, s45, 32")
    k("s_lshl_b32 s67, s25, 17"); k("s_add_u32 s67, s67, s55"); k("s_and_b32 s57, s57, 0xffff")
    k(f"s_setprio {GP2}")
    k("s_waitcnt vmcnt(0)")
    for i in range(2): k(f"buffer_load_dwordx4 {vr(EP+4*i,4)}, v152, s[16:19], s40 offen offset:{32*i}")
    k.label("DN_LOOP")
    if OPT("HOLD", 0):
        k(f"s_cmp_lg_u32 s42, {OPT('HPOS', 12)}"); k("s_cbranch_scc1 DN_NOH")
        k(f"s_lshl_b32 s28, s25, 8"); k(f"s_add_u32 s28, s28, {PROG}"); k("v_lshrrev_b32 v153, 5, v0"); k("v_lshl_add_u32 v153, v153, 10, s28")
        k.label("DN_HOLD")
        k("s_sleep 4"); k("ds_read_b32 v154, v153"); k("s_waitcnt lgkmcnt(0)")
        k(f"v_cmp_le_u32 vcc, {OPT('HOLD', 0)}, v154"); k("s_cmp_eq_u64 vcc, -1" if OPT("HBOTH") else "s_cmp_lg_u64 vcc, 0"); k("s_cbranch_scc0 DN_HOLD")
        k.label("DN_NOH")
    if OPT("HBAR"):
        k(f"s_cmp_lg_u32 s42, {OPT('HBAR')}"); k("s_cbranch_scc1 DN_NOB"); k("s_barrier"); k.label("DN_NOB")
    k("s_cmp_lg_u32 s42, 12"); k("s_cbranch_scc1 DB_GO")
    gpoll(k, "DB", "s45", 4)
    k("s_add_u32 s34, s34, 4096"); k("s_add_u32 s35, s35, 4096")
    k("s_cmp_lt_u32 s42, 24"); k("s_cselect_b32 s34, s34, s43"); k("s_cselect_b32 s35, s35, s43")
    for s in range(4):
        k("s_waitcnt vmcnt(14) lgkmcnt(0)")
        for x in interleave(mfl(s & 1, TF + 8*s), wreads((s+1) & 3, (s+1) & 1, s == 3)): k(x)
        for x in tload(s): k(x)
        if s == 1:
            k("s_cmp_eq_u32 s42, 20")
            k("s_cselect_b32 s12, s56, s12"); k("s_cselect_b32 s13, s57, s13"); k(f"s_cselect_b32 s14, {512*1024}, s14")
            k("s_cselect_b32 s33, s67, s33"); k("s_cselect_b32 s65, 16384, s65"); k("s_cselect_b32 s66, 16384, s66")
        for x in (wdma(s+7, 3, "s44") if s == 0 else wdma(s+7, s-1)): k(x)
    k("s_setprio 3")
    k("v_swap_b32 v5, v9"); k("v_swap_b32 v6, v10")
    k(f"s_setprio {GP2}")
    k("s_mov_b32 s28, s36"); k("s_mov_b32 s36, s44"); k("s_mov_b32 s44, s28")
    k("s_add_u32 s42, s42, 4"); k("s_cmp_lt_u32 s42, 28"); k("s_cbranch_scc1 DN_LOOP")
    k.stamp()
    k("s_setprio 3")
    for x in wdma(0, 3, "s44"): k(x)
    srd(k, 16, 58, 2048 * 1024)
    for r in range(8):
        k(f"v_lshlrev_b32 v{32+2*r}, 16, v{EP+r}"); k(f"v_and_b32 v{33+2*r}, 0xffff0000, v{EP+r}")
    k("v_mov_b32 v160, v152")
    k(f"s_lshl_b32 s34, s53, 16"); k("s_lshl_b32 s35, s25, 13"); k("s_add_u32 s34, s34, s35"); k(f"s_add_u32 s34, s34, {WS_O}")
    k("s_lshl_b32 s28, s63, 15"); k("s_add_u32 s35, s34, 32768"); k("s_sub_u32 s35, s35, s28"); k("s_add_u32 s34, s34, s28")
    k("s_add_u32 s46, s34, 4096"); k("s_add_u32 s47, s35, 4096")
    k("s_lshl_b32 s45, s53, 3"); k("s_add_u32 s45, s45, s25"); k(f"s_lshl_b32 s45, s45, {3+OFS}"); k(f"s_add_u32 s45, s45, {OFLAG}"); k(f"v_lshlrev_b32 v3, {OFS-2}, v3")
    for r in range(16): k(f"v_add_f32 v{ACD+r}, v{ACD+r}, v{32+r}")
    k("v_add_u32 v161, s32, v1")
    for t in (1, 2, 3):
        k(f"s_xor_b32 s28, s25, {t}"); k("s_lshl_b32 s28, s28, 14"); k(f"s_add_u32 s28, s28, {GB + (t-1)*4096}"); k(f"v_add_u32 v{161+t}, s28, v1")
    k("v_add_u32 v13, 1, v13")
    OG = [[112, 120, 128, 136], [32, 40, 144, 152]]
    k("s_mov_b32 s44, 0x11"); k("s_mov_b32 s28, 0")
    k("s_waitcnt lgkmcnt(0)")
    if OPT("WBAR", 1): k("s_barrier")
    k.label("WO_POLL")
    k("buffer_load_dword v4, v3, s[20:23], s45 offen sc1")
    k("s_waitcnt vmcnt(0)")
    k(f"v_cmp_eq_u32 vcc, {TAG}, v4")
    k("s_add_u32 s28, s28, 1"); k("s_cmp_lt_u32 s28, 0x100000"); k("s_cselect_b32 s42, vcc_lo, -1")
    k("s_lshr_b32 s29, s42, 1"); k("s_and_b32 s42, s42, s29"); k("s_lshr_b32 s29, s42, 2"); k("s_and_b32 s42, s42, s29")
    k("s_and_b32 s42, s42, s44")
    k("s_cbranch_scc1 WO_GO")
    k(f"s_sleep {OPT('WSLEEP', 3)}"); k("s_branch WO_POLL")
    k.label("WO_GO")
    if OPT("WARM", 2) == 1: k.hops_begin("WB")
    k("s_andn2_b32 s44, s44, s42")
    for g in range(2):
        k(f"s_bitcmp1_b32 s42, {4*g}"); k(f"s_cbranch_scc0 WO_L{g}")
        sa, sb = ("s34", "s35") if g == 0 else ("s46", "s47")
        for h in range(4):
            k(f"buffer_load_dwordx4 {vr(OG[g][h],4)}, v1, s[20:23], {sa} offen offset:{h*1024} sc1")
            k(f"buffer_load_dwordx4 {vr(OG[g][h]+4,4)}, v1, s[20:23], {sb} offen offset:{h*1024} sc1")
        k.label(f"WO_L{g}")
    for g in range(2):
        k(f"s_bitcmp1_b32 s42, {4*g}"); k(f"s_cbranch_scc0 WO_C{g}")
        for x in wreads(0, 0, g == 1): k(x)
        if g == 0:
            k("s_bitcmp1_b32 s42, 4"); k("s_cbranch_scc1 WO_W8"); k("s_waitcnt vmcnt(0)"); k.label("WO_W8"); k("s_waitcnt vmcnt(8)")
        else: k("s_waitcnt vmcnt(0)")
        for h in range(4):
            k("s_waitcnt lgkmcnt(0)")
            for x in interleave(mfl(h & 1, OG[g][h]), wreads(h+1, (h+1) & 1, g == 1) if h < 3 else []): k(x)
        k.label(f"WO_C{g}")
    if OPT("WARM", 2) == 1: k.hops_end("AQ_WR"); k.hops_begin("WC")
    k("s_cmp_lg_u32 s44, 0"); k("s_cbranch_scc1 WO_POLL")
    k.stamp()
    k("s_nop 5")
    for t in (1, 2, 3):
        for q in range(4): k(f"ds_write_b128 v161, {vr(ACD + t*16 + 4*q, 4)} offset:{(t-1)*4096 + q*1024}")
    if OPT("WBAR", 1):
        k("s_waitcnt lgkmcnt(0)"); k("s_barrier")
    else:
        k("ds_write_b32 v11, v13")
        k("ds_read_b32 v14, v12"); k("s_waitcnt lgkmcnt(0)"); k("s_mov_b32 s39, 11")
        tails.append(softcheck(k, "DC", "s39", "v14", "v12"))
    k.stamp()
    for q in range(4):
        for t in (1, 2, 3): k(f"ds_read_b128 {vr(ACD + t*16 + 4*q, 4)}, v{161+t} offset:{q*1024}")
    for q in range(4):
        k(f"s_waitcnt lgkmcnt({9 - 3*q})")
        for r in range(4*q, 4*q+4): k(f"v_add_f32 v{ACD+16+r}, v{ACD+16+r}, v{ACD+32+r}"); k(f"v_add_f32 v{ACD+r}, v{ACD+r}, v{ACD+48+r}")
        for r in range(4*q, 4*q+4): k(f"v_add_f32 v{ACD+r}, v{ACD+r}, v{ACD+16+r}")
        for r in range(2*q, 2*q+2): k(f"v_cvt_pk_bf16_f32 v{16+r}, v{ACD+2*r}, v{ACD+2*r+1}")
        if q & 1: k(f"buffer_store_dwordx4 {vr(16+4*(q>>1),4)}, v160, s[16:19], s40 offen offset:{32*(q>>1)} {os.environ.get('OUTST', '')}")
    if OPT("WARM", 2) == 1: k.hops_end("AQ_WR")
    k("s_add_u32 s28, s2, s25"); k("s_cmp_lg_u32 s28, 0"); k("s_cbranch_scc1 G_NOEP")
    k(f"v_mov_b32 v2, 0"); k(f"v_mov_b32 v3, {TAG}"); k(f"s_mov_b32 s28, {EPOCH}")
    k("s_mov_b64 exec, 1"); k("buffer_store_dword v3, v2, s[20:23], s28 offen sc1"); k("s_mov_b64 exec, -1")
    k.label("G_NOEP")
    finish(k, 2)
    for t in tails: t()

def gen_mega():
    k = Kern(NAME, 256, 768, LDS_TOTAL, 168, 72)
    k("s_cmp_ge_u32 s2, 256"); k("s_cbranch_scc1 M_END")
    k.stamp(True); k.stamp()
    k("s_load_dwordx2 s[8:9], s[0:1], 72")
    k("s_load_dwordx4 s[4:7], s[0:1], 0")
    k("v_lshrrev_b32 v1, 6, v0"); k("v_and_b32 v0, 63, v0"); k("v_readfirstlane_b32 s24, v1")
    k("s_cmp_ge_u32 s24, 8"); k("s_cbranch_scc1 M_GEMM")
    qkv_part(k)
    attn_part(k)
    k.label("M_GEMM")
    if Kern.DIAG: k.nst = 2
    k("s_waitcnt lgkmcnt(0)")
    gemm_part(k)
    k.label("M_END")
    k("s_endpgm")
    return k
```
